```python
import torch

def _softmax(x, axis=-1):
    return torch.softmax(x, dim=axis)
def _gelu(x):
    return torch.nn.functional.gelu(x, approximate="tanh")
def _silu(x):
    return torch.nn.functional.silu(x)
def _sigmoid(x):
    return torch.sigmoid(x)
def _layernorm(x, axis=-1, eps=1e-5):
    m = x.mean(dim=axis, keepdim=True)
    v = x.var(dim=axis, keepdim=True, unbiased=False)
    return (x - m) / torch.sqrt(v + eps)
def _scatter_add(tgt, idx, src, axis=0):
    return tgt.clone().index_add_(axis, idx, src)
def _segment_sum(src, seg, n):
    out = torch.zeros((n,) + src.shape[1:], dtype=src.dtype)
    return out.index_add_(0, seg, src)
def _pad(x, pw):
    flat = tuple(v for pair in reversed(pw) for v in pair)
    return torch.nn.functional.pad(x, flat)

kernel_name = 'interleave_layers__grouped_kv_mqa__dense_activation_gelu__prompt'

def setup_inputs():

    _w = (lambda a: (lambda t: t.to(torch.bfloat16) if t.is_floating_point() else t)(torch.as_tensor(a)))
    def _A_setup():
        B, S, D, H = 1, 2048, 640, 32
        Dh = D // H
        return {
            "x": _w((lambda *s: torch.randn(*s, dtype=torch.bfloat16) * 0.05)(B, S, D)),
            "wq": _w((lambda *s: torch.randn(*s, dtype=torch.bfloat16) * 0.05)(D, H * Dh)),
            "wk": _w((lambda *s: torch.randn(*s, dtype=torch.bfloat16) * 0.05)(D, Dh)),
            "wv": _w((lambda *s: torch.randn(*s, dtype=torch.bfloat16) * 0.05)(D, Dh)),
            "wo": _w((lambda *s: torch.randn(*s, dtype=torch.bfloat16) * 0.05)(H * Dh, D)),
        }
    _A_in = _A_setup()

    def _B_setup():
        B, S, D, F = 1, 2048, 640, 1536
        return {
            "x": _w((lambda *s: torch.randn(*s, dtype=torch.bfloat16) * 0.05)(B, S, D)),
            "w1": _w((lambda *s: torch.randn(*s, dtype=torch.bfloat16) * 0.8)(D, F) * (D ** -0.5)),
            "b1": _w((lambda *s: torch.randn(*s, dtype=torch.bfloat16) * 0.8)(F) * 0.01),
            "w2": _w((lambda *s: torch.randn(*s, dtype=torch.bfloat16) * 0.8)(F, D) * (F ** -0.5)),
            "b2": _w((lambda *s: torch.randn(*s, dtype=torch.bfloat16) * 0.8)(D) * 0.01),
        }
    _B_in = _B_setup()

    return {
        "A_x": _A_in["x"],
        "A_wq": _A_in["wq"],
        "A_wk": _A_in["wk"],
        "A_wv": _A_in["wv"],
        "A_wo": _A_in["wo"],
        "B_x": _B_in["x"],
        "B_w1": _B_in["w1"],
        "B_b1": _B_in["b1"],
        "B_w2": _B_in["w2"],
        "B_b2": _B_in["b2"],
    }

def reference(A_x, A_wq, A_wk, A_wv, A_wo, B_x, B_w1, B_b1, B_w2, B_b2):
    def _A_ref(x, wq, wk, wv, wo):
        B, S, D = x.shape
        H = 32
        Dh = D // H
        q = (lambda x, *d: x.permute(*d))((x @ wq).reshape(B, S, H, Dh), 0, 2, 1, 3)
        k = x @ wk
        v = x @ wv
        scores = torch.einsum("bhqd,bkd->bhqk", q, k) * (Dh ** -0.5)
        p = _softmax(scores, axis=-1)
        o = torch.einsum("bhqk,bkd->bhqd", p, v)
        return (lambda x, *d: x.permute(*d))(o, 0, 2, 1, 3).reshape(B, S, H * Dh) @ wo

    def _B_ref(x, w1, b1, w2, b2):
        h = torch.einsum("bsd,df->bsf", x, w1) + b1
        h = _gelu(h)
        return torch.einsum("bsf,fd->bsd", h, w2) + b2

    x = A_x
    x = x + _A_ref(_layernorm(x, axis=-1), A_wq, A_wk, A_wv, A_wo)
    x = x + _B_ref(_layernorm(x, axis=-1), B_w1, B_b1, B_w2, B_b2)
    x = x + _A_ref(_layernorm(x, axis=-1), A_wq, A_wk, A_wv, A_wo)
    x = x + _B_ref(_layernorm(x, axis=-1), B_w1, B_b1, B_w2, B_b2)
    return x
```

```python
import re

class R:
    __slots__ = ("k", "i", "n")
    def __init__(self, k, i, n=1): self.k, self.i, self.n = k, i, n
    def __str__(self):
        return f"{self.k}{self.i}" if self.n == 1 else f"{self.k}[{self.i}:{self.i+self.n-1}]"
    __repr__ = __str__
    def __getitem__(self, x):
        if isinstance(x, slice):
            a = x.start or 0; b = self.n if x.stop is None else x.stop
            assert 0 <= a < b <= self.n, (self, x)
            return R(self.k, self.i + a, b - a)
        assert 0 <= x < self.n, (self, x)
        return R(self.k, self.i + x, 1)
    def regs(self): return {(self.k, self.i + j) for j in range(self.n)}
def V(i, n=1): return R("v", i, n)
def A(i, n=1): return R("a", i, n)
def S(i, n=1): return R("s", i, n)

_REG_RE = re.compile(r"^(-|abs\()?([vas])(?:(\d+)|\[(\d+):(\d+)\])\)?$")
def opregs(x):
    if isinstance(x, R): return x.regs()
    x = str(x).strip()
    m = _REG_RE.match(x)
    if m:
        if m.group(3) is not None: return {(m.group(2), int(m.group(3)))}
        return {(m.group(2), j) for j in range(int(m.group(4)), int(m.group(5)) + 1)}
    if x == "vcc": return {("s", "vcc")}
    if x == "exec": return {("s", "exec")}
    if x == "m0": return {("s", "m0")}
    if x == "scc": return {("s", "scc")}
    return set()

TRANS = ("v_exp_f32", "v_log_f32", "v_rcp_f32", "v_rsq_f32", "v_sqrt_f32", "v_sin_f32", "v_cos_f32")
MFMA_PASSES = {"v_mfma_f32_32x32x16_bf16": 8, "v_mfma_f32_32x32x8_bf16": 8, "v_mfma_f32_16x16x32_bf16": 4}
D_TO_VALU = {4: 8, 8: 12}
D_TO_AB = {4: 8, 8: 12}
D_TO_C_OVERLAP = {4: 6, 8: 10}
C_WAR = {4: 3, 8: 7}

class Inst:
    __slots__ = ("op", "text", "rd", "wr", "cls", "ws")
    def __init__(self, op, text, rd, wr, cls, ws=1):
        self.op, self.text, self.rd, self.wr, self.cls, self.ws = op, text, rd, wr, cls, ws

def classify(op):
    if op.startswith("v_mfma"): return "mfma"
    if op.startswith("buffer_") or op.startswith("global_"): return "vmem"
    if op.startswith("ds_"): return "ds"
    if op.startswith("s_load") or op.startswith("s_memtime") or op.startswith("s_memrealtime"): return "smem"
    if op.startswith("v_"): return "valu"
    return "salu"

class B:
    def __init__(self):
        self.out = []
        self.hist = []
        self.vm = []
        self.lg = []
        self.ntag = 0
        self.nops = 0
        self.stats = {}
        self.auto = True
    def raw(self, text): self.out.append(text)
    def comment(self, t): self.out.append(f"  ; {t}")
    def label(self, name):
        self.out.append(f"{name}:")
    def align(self, n): self.out.append(f".p2align {n}")
    def _emit_wait(self, vm=None, lg=None):
        parts = []
        if vm is not None:
            parts.append(f"vmcnt({min(vm,63)})")
            if vm <= 63: self.vm = self.vm[len(self.vm) - vm:] if vm < len(self.vm) else self.vm
            else: self.vm = self.vm[max(0, len(self.vm) - 63):]
        if lg is not None:
            parts.append(f"lgkmcnt({min(lg,15)})")
            keep = min(lg, 15)
            self.lg = self.lg[len(self.lg) - keep:] if keep < len(self.lg) else self.lg
            if keep == 0: self.lg = []
        t = "s_waitcnt " + " ".join(parts)
        self.out.append("  " + t)
        self._push(Inst("s_waitcnt", t, set(), set(), "salu"))
    def wait(self, vm=None, lg=None):
        self._emit_wait(vm, lg)
    def wait_vm_tag(self, tag):
        idx = [i for i, e in enumerate(self.vm) if e[0] == tag]
        if idx: self._emit_wait(vm=len(self.vm) - 1 - idx[-1])
    def wait_lg_tag(self, tag):
        idx = [i for i, e in enumerate(self.lg) if e[0] == tag]
        if idx:
            if any(e[2] for e in self.lg): self._emit_wait(lg=0)
            else: self._emit_wait(lg=len(self.lg) - 1 - idx[-1])
    def _need(self, regs):
        vmi = -1
        for i, e in enumerate(self.vm):
            if e[1] & regs: vmi = i
        lgi = -1
        for i, e in enumerate(self.lg):
            if e[1] & regs: lgi = i
        vm = lg = None
        if vmi >= 0: vm = len(self.vm) - 1 - vmi
        if lgi >= 0:
            lg = 0 if any(e[2] for e in self.lg) else len(self.lg) - 1 - lgi
        if vm is not None or lg is not None: self._emit_wait(vm, lg)
    def _push(self, ins):
        self.hist.append(ins)
        if len(self.hist) > 40: self.hist.pop(0)
    def _required(self, c):
        need = 0; dist = 0
        touched = c.rd | c.wr
        for p in reversed(self.hist):
            req = 0
            if p.cls == "mfma":
                ps = MFMA_PASSES[p.op]; D = p.wr
                if c.cls == "mfma":
                    cA, cB, cC = c.ab, c.ab, c.c
                    if D & cA: req = max(req, D_TO_AB[ps])
                    if D & cC:
                        same = (D == cC) and MFMA_PASSES[c.op] == ps
                        if not same: req = max(req, D_TO_C_OVERLAP[ps])
                    if (D & c.wr) and not (D & cC): req = max(req, D_TO_C_OVERLAP[ps])
                elif c.cls in ("valu", "vmem", "ds"):
                    if D & touched: req = max(req, D_TO_VALU[ps])
                if c.cls == "valu" and (p.c & c.wr): req = max(req, C_WAR[ps])
                if c.cls in ("ds", "vmem") and (p.c & c.wr): req = max(req, C_WAR[ps])
            elif p.cls == "valu":
                vw = {r for r in p.wr if r[0] in "va"}
                sw = {r for r in p.wr if r[0] == "s"}
                if c.cls == "mfma" and (vw & c.rd): req = max(req, 2)
                if c.cls == "mfma" and ("s", "exec") in sw: req = max(req, 4)
                if p.op in TRANS and c.cls in ("valu",) and c.op not in TRANS and (vw & c.rd): req = max(req, 1)
                if p.op in TRANS and c.cls in ("valu",) and c.op in TRANS and (vw & c.rd): req = max(req, 1)
                if p.op in TRANS and c.cls in ("ds", "vmem") and (vw & c.rd): req = max(req, 1)
                if c.cls == "vmem" and (sw & c.rd): req = max(req, 5)
                if c.cls == "valu" and (sw & c.rd):
                    req = max(req, 4 if c.op in ("v_readlane_b32", "v_writelane_b32") else 2)
                if c.op in ("v_readfirstlane_b32", "v_readlane_b32") and (vw & c.rd): req = max(req, 1)
                if c.cls == "valu" and ("dpp" in c.op or "_dpp" in c.text or "row_" in c.text or "quad_perm" in c.text) and (vw & c.rd): req = max(req, 2)
                if c.op.startswith("v_permlane") and (vw & (c.rd | c.wr)): req = max(req, 2)
                if ("s", "exec") in sw and c.cls == "valu" and ("row_" in c.text or "quad_perm" in c.text): req = max(req, 5)
                if ("s", "exec") in sw and (c.op.startswith("v_permlane") or c.op.startswith("v_read")): req = max(req, 4)
                if "sdwa" in p.text and c.cls == "valu" and (vw & c.rd): req = max(req, 1)
                if c.cls == "salu" and (sw & c.rd): req = max(req, 4)
            elif p.cls == "vmem":
                if getattr(p, "wide_store", None) and c.cls in ("valu", "ds", "vmem", "mfma") and (p.wide_store & c.wr): req = max(req, 2)
            elif p.cls == "salu":
                if ("s", "m0") in p.wr and c.cls == "vmem" and ("s", "m0") in c.rd: req = max(req, 1)
            need = max(need, req - dist)
            dist += p.ws
            if dist > 20: break
        return need
    def nop(self, n):
        while n > 0:
            k = min(n, 16)
            t = f"s_nop {k-1}"
            self.out.append("  " + t); self._push(Inst("s_nop", t, set(), set(), "salu", ws=k)); n -= k
            self.nops += 1
    def I(self, op, *ops, mods="", rd=None, wr=None, tag=None):
        cls = classify(op)
        text = op + (" " + ", ".join(str(o) for o in ops) if ops else "") + (" " + mods if mods else "")
        Rd, Wr = set(), set()
        dest = set()
        ins = InstX(op, text, cls)
        base = op.replace("_e32", "").replace("_e64", "").replace("_dpp", "").replace("_sdwa", "")
        ins.op = base if cls != "salu" else op
        o = [opregs(x) for x in ops]
        lds_dma = cls == "vmem" and " lds" in (" " + mods)
        if cls == "mfma":
            Wr = o[0]; ins.ab = o[1] | o[2]; ins.c = o[3]; Rd = o[1] | o[2] | o[3]
        elif cls == "vmem":
            Rd |= {("s", "exec")}
            if "load" in op:
                if lds_dma:
                    for x in o: Rd |= x
                    Rd |= {("s", "m0")}
                else:
                    dest = o[0]; Wr = set(o[0])
                    for x in o[1:]: Rd |= x
            elif "store" in op:
                for x in o: Rd |= x
                if "x4" in op or "x3" in op:
                    ins.wide_store = o[0] if op.startswith("buffer_") else o[1]
            elif "atomic" in op:
                ret = "sc0" in mods.split()
                if ret:
                    dest = o[0]; Wr = set(o[0])
                    for x in o[1:]: Rd |= x
                    if op.startswith("buffer_"): Rd |= o[0]
                else:
                    for x in o: Rd |= x
            else:
                for x in o: Rd |= x
        elif cls == "ds":
            if op.startswith("ds_read") or op.startswith("ds_bpermute") or op.startswith("ds_swizzle") or op.startswith("ds_permute"):
                dest = o[0]; Wr = set(o[0])
                for x in o[1:]: Rd |= x
            else:
                for x in o: Rd |= x
        elif cls == "smem":
            dest = o[0]; Wr = set(o[0])
            for x in o[1:]: Rd |= x
        elif cls == "valu":
            if base.startswith("v_cmp"):
                Wr = set(o[0])
                for x in o[1:]: Rd |= x
                if base.startswith("v_cmpx"): Wr |= {("s", "exec")}
            elif base in ("v_permlane32_swap_b32", "v_permlane16_swap_b32", "v_swap_b32"):
                Wr = o[0] | o[1]; Rd = o[0] | o[1]
            elif base in ("v_add_co_u32", "v_sub_co_u32", "v_addc_co_u32", "v_subb_co_u32"):
                Wr = o[0] | o[1]
                for x in o[2:]: Rd |= x
            else:
                Wr = set(o[0])
                for x in o[1:]: Rd |= x
                if base in ("v_fmac_f32", "v_pk_fmac_f16", "v_dot2c_f32_bf16", "v_writelane_b32") or "UNUSED_PRESERVE" in mods or ("row_" in mods or "quad_perm" in mods): Rd |= o[0]
                if base == "v_cndmask_b32" and len(ops) == 3: Rd |= {("s", "vcc")}
            Rd |= {("s", "exec")}
        else:
            nodst = ("s_cmp", "s_cbranch", "s_branch", "s_barrier", "s_nop", "s_sleep", "s_setprio", "s_endpgm", "s_bitcmp", "s_waitcnt", "s_setpc")
            if op.startswith(nodst):
                for x in o: Rd |= x
                if op.startswith("s_cbranch_vcc"): Rd |= {("s", "vcc")}
                if op.startswith("s_cbranch_exec"): Rd |= {("s", "exec")}
            else:
                Wr = set(o[0])
                for x in o[1:]: Rd |= x
                if "saveexec" in op: Wr |= {("s", "exec")}; Rd |= {("s", "exec")}
                if op.startswith("s_add") and op.endswith("k_i32"): Rd |= o[0]
        if rd: Rd |= rd
        if wr: Wr |= wr
        ins.rd, ins.wr = Rd, Wr
        if self.auto:
            self._need(Rd | Wr)
            n = self._required(ins)
            if n > 0: self.nop(n)
        self.out.append("  " + text)
        self._push(ins)
        self.stats[ins.op] = self.stats.get(ins.op, 0) + 1
        self.ntag += 1
        t = tag if tag is not None else ("_", self.ntag)
        if cls == "vmem":
            self.vm.append((t, dest))
            if len(self.vm) > 63 + 64: self.vm.pop(0)
        elif cls == "ds": self.lg.append((t, dest, False))
        elif cls == "smem": self.lg.append((t, set(o[0]), True))
        return t
    def barrier(self): self.I("s_barrier")
    def snapshot(self): return (list(self.vm), list(self.lg))
    def restore(self, snap): self.vm, self.lg = list(snap[0]), list(snap[1])
    def clear_hist(self): self.hist = []
    def text(self): return "\n".join(self.out) + "\n"

class InstX(Inst):
    __slots__ = ("ab", "c", "wide_store")
    def __init__(self, op, text, cls):
        Inst.__init__(self, op, text, set(), set(), cls)
        self.ab = set(); self.c = set(); self.wide_store = None

def interleave(main, fill, start=0):
    out = []
    n, m = len(main), len(fill)
    j = 0
    for i, x in enumerate(main):
        out.append(x)
        tgt = (m * (i + 1 - start)) // max(1, n - start) if i >= start else 0
        while j < min(tgt, m):
            out.append(fill[j]); j += 1
    out += fill[j:]
    return out
```

```python
import sys, os
sys.path.insert(0, os.path.dirname(os.path.abspath(__file__)))
from asmb import *
import layout as L

HEADER = open("interleave_layers__grouped_kv_mqa__dense_activation_gelu__prompt.s.ref").read().split("; Override launch geometry")[0]

def kernel_text(name, body, vgpr=256, agpr=0, sgpr=102):
    acc = (vgpr + 3) // 4 * 4
    nfv = acc + agpr if agpr else vgpr
    txt = f""".globl {name}
.p2align 8
.type {name},@function
{name}:
{body}  s_endpgm
"""
    kd = f""".p2align 6
.amdhsa_kernel {name}
  .amdhsa_next_free_vgpr {nfv}
  .amdhsa_next_free_sgpr {sgpr}
  .amdhsa_accum_offset {acc}
  .amdhsa_group_segment_fixed_size 0
  .amdhsa_kernarg_size 104
  .amdhsa_user_sgpr_count 2
  .amdhsa_user_sgpr_kernarg_segment_ptr 1
  .amdhsa_system_sgpr_workgroup_id_x 1
  .amdhsa_float_denorm_mode_32 3
.end_amdhsa_kernel
"""
    return txt, kd

def assemble_file(launches, kernels):
    s = HEADER
    for k, g, bl, lds in launches:
        s += f"; @launch kernel={k} grid=({g},1,1) block=({bl},1,1) lds={lds}\n"
    s += '.amdgcn_target "amdgcn-amd-amdhsa--gfx950"\n.text\n'
    kds = ""
    for name, body, vg, ag, sg in kernels:
        t, kd = kernel_text(name, body, vg, ag, sg)
        s += t; kds += kd
    s += '.section .rodata,"a"\n' + kds
    return s
```

```python
from asmb import *
import layout as L
off = L.off
WS_BYTES = 268435456
OOB = 0x40000000

def srd(b, dst, lo, hi, size):
    b.I("s_mov_b32", dst[0], lo)
    b.I("s_and_b32", dst[1], hi, "0xffff")
    b.I("s_mov_b32", dst[2], hex(size))
    b.I("s_mov_b32", dst[3], "0x20000")

def unpack_sum(b, src, accA, accB, t0, t1):
    b.I("v_lshlrev_b32", t0, 16, src)
    b.I("v_and_b32", t1, "0xffff0000", src)
    b.I("v_add_f32", accA, accA, t0)
    b.I("v_add_f32", accB, accB, t1)

def gen_l0(b):
    P_X, P_WQ, P_WK, P_WV, P_WO, P_W1, P_W2, P_WS = S(36, 2), S(38, 2), S(40, 2), S(42, 2), S(44, 2), S(46, 2), S(48, 2), S(50, 2)
    WS = S(8, 4); SRC = S(12, 4)
    sRS, sG0, sNG, sN0, sOff = S(16), S(17), S(18), S(19), S(20)
    sA, sP, sQ, sGL0, sBase, sM, sDv, sHS, sLS, sSwap, sCs, sCB, sCH, sKr, sT, sMask = (S(i) for i in range(21, 37 - 0)) if False else [S(i) for i in (21, 22, 23, 24, 25, 26, 27, 28, 29, 30, 31, 32, 33, 34, 35, 52)]
    b.I("s_cmp_ge_u32", S(2), 256)
    b.I("s_cbranch_scc1", "L0_end")
    b.I("s_load_dwordx2", P_X, S(0, 2), 0)
    b.I("s_load_dwordx2", P_WQ, S(0, 2), 8)
    b.I("s_load_dwordx2", P_WK, S(0, 2), 16)
    b.I("s_load_dwordx2", P_WV, S(0, 2), 24)
    b.I("s_load_dwordx2", P_WO, S(0, 2), 32)
    b.I("s_load_dwordx2", P_W1, S(0, 2), 48)
    b.I("s_load_dwordx2", P_W2, S(0, 2), 64)
    b.I("s_load_dwordx2", P_WS, S(0, 2), 96)
    lane = V(1); cp = V(2); slot = V(3)
    b.I("v_and_b32", cp, 31, V(0))
    b.I("v_lshrrev_b32", slot, 5, V(0))
    b.wait(lg=0)
    srd(b, WS, P_WS[0], P_WS[1], WS_BYTES)
    XS = S(56, 4)
    srd(b, XS, P_X[0], P_X[1], 2048 * 1280)
    wv_id = S(53)
    vt, vgg, vxo, vxd = V(4), V(5), V(6), V(7)
    b.I("v_lshrrev_b32", V(8), 6, V(0))
    b.I("v_and_b32", vt, 7, V(0))
    b.I("v_readfirstlane_b32", wv_id, V(8))
    b.I("v_bfe_u32", vgg, V(0), 3, 3)
    b.I("s_mul_i32", sT, S(2), 8 * 1280)
    b.I("v_mul_u32_u24", vxo, 1280, vt)
    b.I("v_lshl_add_u32", vxo, vgg, 4, vxo)
    b.I("s_lshl_b32", sOff, wv_id, 7)
    b.I("s_add_u32", sOff, sOff, sT)
    XL = [V(64 + 4 * q, 4) for q in range(3)]
    v_oob = V(9)
    b.I("s_cmp_lt_u32", wv_id, 2)
    b.I("s_cselect_b32", S(54), 0, hex(OOB))
    for q in range(3):
        if q == 2:
            b.I("v_add_u32", v_oob, S(54), vxo)
            b.I("buffer_load_dwordx4", XL[q], v_oob, XS, sOff, mods=f"offen offset:{q*512}")
        else:
            b.I("buffer_load_dwordx4", XL[q], vxo, XS, sOff, mods=f"offen offset:{q*512}")
    def setp(name, base, rs, size, strips_shift, ng, a, P, Q, B0, Dv, HS, LS, swap, cs, CB, CK, CH, w2=False):
        b.label(name)
        b.I("s_sub_u32", sT, S(2), base)
        b.I("s_lshr_b32", sN0, sT, strips_shift)
        b.I("s_lshl_b32", sN0, sN0, 6)
        b.I("s_and_b32", sKr, sT, (1 << strips_shift) - 1)
        b.I("s_mul_i32", sG0, sKr, ng)
        b.I("s_mov_b32", sNG, ng)
        b.I("s_mov_b32", sRS, rs[0])
        srd(b, SRC, rs[1][0], rs[1][1], size)
        b.I("s_mov_b32", sA, a); b.I("s_mov_b32", sP, P); b.I("s_mov_b32", sQ, Q)
        b.I("s_mov_b32", sMask, (1 << a) - 1)
        if w2:
            b.I("s_and_b32", sGL0, sKr, 1)
            b.I("s_mul_i32", sGL0, sGL0, 24)
            b.I("s_lshr_b32", sBase, sKr, 1)
            b.I("s_mul_i32", sBase, sBase, 61440)
            b.I("s_add_u32", sBase, sBase, hex(B0))
        else:
            b.I("s_mov_b32", sGL0, sG0)
            b.I("s_mov_b32", sBase, hex(B0))
        b.I("s_mov_b32", sDv, Dv); b.I("s_mov_b32", sM, -(-65536 // Dv))
        b.I("s_mov_b32", sHS, HS); b.I("s_mov_b32", sLS, LS)
        b.I("s_mov_b32", sSwap, swap); b.I("s_mov_b32", sCs, cs)
        b.I("s_mul_i32", sCB, sKr, CK)
        b.I("s_add_u32", sCB, sCB, hex(CB))
        b.I("s_mov_b32", sCH, CH)
        b.I("s_branch", "L0_common")
    b.I("s_cmp_lt_u32", S(2), 40);  b.I("s_cbranch_scc1", "L0_wq")
    b.I("s_cmp_lt_u32", S(2), 80);  b.I("s_cbranch_scc1", "L0_wo")
    b.I("s_cmp_lt_u32", S(2), 176); b.I("s_cbranch_scc1", "L0_w1")
    b.I("s_branch", "L0_w2")
    setp("L0_wq", 0, (1280, P_WQ), 640 * 1280, 2, 20, 1, 1024, 512, off["WQP"], 20, 40960, 256, 1, 1, off["CSQ"], 4096, 128)
    setp("L0_wo", 40, (1280, P_WO), 640 * 1280, 2, 20, 0, 1280, 0, off["WOP"], 80, 102400, 256, 0, 0, 0, 0, 0)
    setp("L0_w1", 80, (3072, P_W1), 640 * 3072, 2, 20, 2, 3072, 256, off["W1P"], 48, 61440, 1024, 0, 1, off["CS1"], 6144, 192)
    setp("L0_w2", 176, (1280, P_W2), 1536 * 1280, 3, 24, 2, 5120, 256, off["W2P"], 80, 245760, 1024, 0, 0, 0, 0, 0, w2=True)
    b.label("L0_common")
    vsrc = V(10)
    b.I("v_add_u32", vsrc, sG0, slot)
    b.I("s_lshl_b32", sT, sRS, 3)
    b.I("v_mul_lo_u32", vsrc, vsrc, sT)
    b.I("s_lshl_b32", sT, sN0, 1)
    b.I("v_lshl_add_u32", vsrc, cp, 2, vsrc)
    b.I("v_add_u32", vsrc, sT, vsrc)
    Lr = [[V(80 + 8 * it + e) for e in range(8)] for it in range(3)]
    b.I("s_mov_b32", sOff, 0)
    for it in range(3):
        for e in range(8):
            b.I("buffer_load_dword", Lr[it][e], vsrc, SRC, sOff, mods="offen")
            if e < 7: b.I("s_add_u32", sOff, sOff, sRS)
        if it < 2:
            b.I("s_mul_i32", sT, sRS, 57)
            b.I("s_add_u32", sOff, sOff, sT)

    def colmap(vn, vhi, vlo_hi, vlo_lo, t0, t1):
        b.I("v_mul_u32_u24", vhi, sM, vn)
        b.I("v_lshrrev_b32", vhi, 16, vhi)
        b.I("v_mul_u32_u24", t0, sDv, vhi)
        b.I("v_sub_u32", t0, vn, t0)
        b.I("v_lshrrev_b32", vlo_hi, 4, t0)
        b.I("v_and_b32", vlo_lo, 15, t0)
        b.I("v_and_b32", t0, 4, vlo_lo)
        b.I("v_and_b32", t1, 8, vlo_lo)
        b.I("v_lshlrev_b32", t0, 1, t0)
        b.I("v_lshrrev_b32", t1, 1, t1)
        b.I("v_or_b32", t0, t0, t1)
        b.I("v_and_b32", t1, 3, vlo_lo)
        b.I("v_or_b32", t0, t0, t1)
        b.I("s_cmp_eq_u32", sSwap, 1)
        b.I("s_cselect_b64", "vcc", -1, 0)
        b.I("v_cndmask_b32", vlo_lo, vlo_lo, t0, "vcc")
    vn, vhi, vlh, vll, t0, t1, vdb = V(11), V(12), V(13), V(14), V(15), V(16), V(17)
    b.I("v_lshlrev_b32", vn, 1, cp)
    b.I("v_add_u32", vn, sN0, vn)
    colmap(vn, vhi, vlh, vll, t0, t1)
    b.I("v_mul_lo_u32", vdb, vhi, sHS)
    b.I("v_mul_lo_u32", t0, vlh, sLS)
    b.I("v_add_u32", vdb, vdb, t0)
    b.I("v_lshl_add_u32", vdb, vll, 4, vdb)
    b.I("v_add_u32", vdb, sBase, vdb)
    sGrp = S(55)
    b.I("s_lshr_b32", sGrp, S(2), 3)
    b.I("s_mul_i32", sGrp, sGrp, 81920)
    b.I("s_and_b32", sT, S(2), 7)
    b.I("s_lshl_b32", sT, sT, 7)
    b.I("s_add_u32", sGrp, sGrp, sT)
    b.I("s_add_u32", sGrp, sGrp, hex(off["XB0"]))
    b.I("s_lshl_b32", sT, wv_id, 13)
    b.I("s_add_u32", sGrp, sGrp, sT)
    b.I("v_lshlrev_b32", vxd, 10, vgg)
    b.I("v_lshl_add_u32", vxd, vt, 4, vxd)
    b.I("v_add_u32", v_oob, S(54), vxd)
    ssum, ssq = V(18), V(19)
    b.I("v_mov_b32", ssum, 0); b.I("v_mov_b32", ssq, 0)
    for q in range(3):
        b.I("buffer_store_dwordx4", XL[q], (v_oob if q == 2 else vxd), WS, sGrp, mods="offen")
        if q < 2: b.I("s_add_u32", sGrp, sGrp, 32768)
        for e in range(4):
            b.I("v_lshlrev_b32", t0, 16, XL[q][e])
            b.I("v_and_b32", t1, "0xffff0000", XL[q][e])
            b.I("v_add_f32", ssum, ssum, t0)
            b.I("v_fmac_f32", ssq, t0, t0)
            b.I("v_add_f32", ssum, ssum, t1)
            b.I("v_fmac_f32", ssq, t1, t1)
    for r in (ssum, ssq):
        b.I("v_add_f32_dpp", r, r, r, mods="row_ror:8 row_mask:0xf bank_mask:0xf")
        b.I("v_mov_b32", t0, r)
        b.I("v_permlane16_swap_b32", r, t0)
        b.I("v_add_f32", r, r, t0)
        b.I("v_mov_b32", t0, r)
        b.I("v_permlane32_swap_b32", r, t0)
        b.I("v_add_f32", r, r, t0)
    b.I("v_lshlrev_b32", t0, 3, vt)
    b.I("s_lshl_b32", sT, wv_id, 6)
    b.I("v_add_u32", t0, sT, t0)
    b.I("ds_write_b64", t0, V(18, 2), mods="offset:4096")
    csA, csB = V(20), V(21)
    b.I("v_mov_b32", csA, 0); b.I("v_mov_b32", csB, 0)
    vg, vad, vval = V(22), V(23), V(24)
    U = V(28, 4); U2 = V(32, 4)
    selLo, selHi = S(60), S(61)
    b.I("s_mov_b32", selLo, "0x05040100"); b.I("s_mov_b32", selHi, "0x07060302")
    for it in range(3):
        b.I("v_add_u32", vg, 8 * it, slot)
        b.I("v_cmp_gt_u32", "vcc", sNG, vg)
        b.I("v_add_u32", vg, sGL0, vg)
        b.I("v_lshrrev_b32", t0, sA, vg)
        b.I("v_mul_lo_u32", t0, t0, sP)
        b.I("v_and_b32", t1, sMask, vg)
        b.I("v_mul_lo_u32", t1, t1, sQ)
        b.I("v_add3_u32", vad, vdb, t0, t1)
        b.I("v_mov_b32", t0, hex(OOB))
        b.I("v_cndmask_b32", vad, t0, vad, "vcc")
        for q in range(4):
            b.I("v_perm_b32", U[q], Lr[it][2 * q + 1], Lr[it][2 * q], selLo)
            b.I("v_perm_b32", U2[q], Lr[it][2 * q + 1], Lr[it][2 * q], selHi)
        b.I("buffer_store_dwordx4", U, vad, WS, 0, mods="offen")
        b.I("buffer_store_dwordx4", U2, vad, WS, 0, mods="offen offset:16")
        for e in range(8):
            b.I("v_cndmask_b32", t1, 0, Lr[it][e], "vcc")
            b.I("v_lshlrev_b32", t0, 16, t1)
            b.I("v_and_b32", t1, "0xffff0000", t1)
            b.I("v_add_f32", csA, csA, t0)
            b.I("v_add_f32", csB, csB, t1)
    b.I("v_lshlrev_b32", t0, 8, slot)
    b.I("v_lshl_add_u32", t0, cp, 3, t0)
    b.I("ds_write_b64", t0, V(20, 2))
    b.wait(lg=0)
    b.barrier()
    b.I("v_cmp_gt_u32", "vcc", 64, V(0))
    b.I("s_and_saveexec_b64", S(62, 2), "vcc")
    b.I("s_cbranch_execz", "L0_nocs")
    SW = [V(36 + 2 * w, 2) for w in range(4)]
    b.I("v_lshlrev_b32", t0, 3, vt)
    for w in range(4): b.I("ds_read_b64", SW[w], t0, mods=f"offset:{4096 + 64 * w}")
    for c in range(2):
        b.I("v_add_f32", SW[0][c], SW[0][c], SW[1][c])
        b.I("v_add_f32", SW[2][c], SW[2][c], SW[3][c])
        b.I("v_add_f32", SW[0][c], SW[0][c], SW[2][c])
    b.I("v_cmp_eq_u32", "vcc", 0, vgg)
    b.I("v_cndmask_b32", SW[0][0], 0, SW[0][0], "vcc")
    b.I("v_cndmask_b32", SW[0][1], 0, SW[0][1], "vcc")
    b.I("s_lshr_b32", sT, S(2), 3)
    b.I("s_lshl_b32", sT, sT, 12)
    b.I("s_and_b32", sOff, S(2), 7)
    b.I("s_lshl_b32", sOff, sOff, 6)
    b.I("s_add_u32", sT, sT, sOff)
    b.I("s_add_u32", sT, sT, hex(off["STI0"]))
    b.I("v_lshlrev_b32", t0, 9, vgg)
    b.I("v_lshl_add_u32", t0, vt, 3, t0)
    b.I("buffer_store_dwordx2", SW[0], t0, WS, sT, mods="offen")
    b.I("s_cmp_eq_u32", sCs, 0)
    b.I("s_cbranch_scc1", "L0_nocs")
    CW = [V(44 + s_) for s_ in range(8)]
    b.I("v_lshlrev_b32", t0, 2, V(0))
    for s_ in range(8): b.I("ds_read_b32", CW[s_], t0, mods=f"offset:{256 * s_}")
    b.I("v_add_u32", vn, sN0, V(0))
    colmap(vn, vhi, vlh, vll, t0, t1)
    for s_ in range(1, 8): b.I("v_add_f32", CW[0], CW[0], CW[s_])
    b.I("v_mul_lo_u32", vad, vhi, sCH)
    b.I("v_lshl_add_u32", vad, vlh, 6, vad)
    b.I("v_lshl_add_u32", vad, vll, 2, vad)
    b.I("buffer_store_dword", CW[0], vad, WS, sCB, mods="offen")
    b.label("L0_nocs")
    b.clear_hist(); b.nop(4)
    b.I("s_mov_b64", "exec", -1)
    b.I("s_cmp_ge_u32", S(2), 16)
    b.I("s_cbranch_scc1", "L0_noflag")
    Z = V(28, 4)
    for e in range(4): b.I("v_mov_b32", Z[e], 0)
    b.I("v_lshlrev_b32", t0, 4, V(0))
    b.I("s_lshl_b32", sT, S(2), 12)
    b.I("s_add_u32", sT, sT, hex(off["FLAGS"]))
    b.I("buffer_store_dwordx4", Z, t0, WS, sT, mods="offen")
    b.label("L0_noflag")
    b.I("s_cmp_lt_u32", S(2), 40); b.I("s_cbranch_scc1", "L0_end")
    b.I("s_cmp_ge_u32", S(2), 44); b.I("s_cbranch_scc1", "L0_end")
    b.barrier()
    b.I("s_sub_u32", sKr, S(2), 40)
    b.I("s_mul_i32", sG0, sKr, 20)
    b.I("v_add_u32", vsrc, sG0, slot)
    b.I("v_mul_u32_u24", vsrc, 320, vsrc)
    b.I("v_lshl_add_u32", vsrc, cp, 2, vsrc)
    b.I("v_cmp_gt_u32", "vcc", 10, cp)
    b.I("v_mov_b32", t0, hex(OOB))
    b.I("v_cndmask_b32", vsrc, t0, vsrc, "vcc")
    b.I("s_mov_b64", S(64, 2), "vcc")
    vqq, vwl, vm_ = V(11), V(12), V(13)
    b.I("v_lshrrev_b32", vqq, 1, cp)
    b.I("v_cmp_le_u32", "vcc", 3, vqq)
    b.I("v_cndmask_b32", vwl, 0, 1, "vcc")
    b.I("v_mul_u32_u24", t0, 3, vwl)
    b.I("v_sub_u32", t0, vqq, t0)
    b.I("v_lshlrev_b32", t0, 2, t0)
    b.I("v_and_b32", t1, 1, cp)
    b.I("v_lshl_add_u32", t0, t1, 1, t0)
    b.I("v_add_u32", vm_, 20, t0)
    for ps in range(2):
        PP = P_WK if ps == 0 else P_WV
        srd(b, SRC, PP[0], PP[1], 640 * 40)
        for it in range(3):
            for e in range(8):
                b.I("s_mov_b32", sOff, (64 * it + e) * 40)
                b.I("buffer_load_dword", Lr[it][e], vsrc, SRC, sOff, mods="offen")
        b.I("v_add_u32", t0, 2 * ps, vwl)
        b.I("v_mul_u32_u24", vdb, 40960, t0)
        b.I("v_lshl_add_u32", vdb, vm_, 4, vdb)
        b.I("v_add_u32", vdb, hex(off["WQP"]), vdb)
        b.I("v_mov_b32", csA, 0); b.I("v_mov_b32", csB, 0)
        for it in range(3):
            b.I("v_add_u32", vg, 8 * it, slot)
            b.I("v_cmp_gt_u32", "vcc", 20, vg)
            b.I("s_and_b64", "vcc", "vcc", S(64, 2))
            b.I("v_add_u32", vg, sG0, vg)
            b.I("v_lshrrev_b32", t0, 1, vg)
            b.I("v_lshlrev_b32", t0, 10, t0)
            b.I("v_and_b32", t1, 1, vg)
            b.I("v_lshlrev_b32", t1, 9, t1)
            b.I("v_add3_u32", vad, vdb, t0, t1)
            b.I("v_mov_b32", t0, hex(OOB))
            b.I("v_cndmask_b32", vad, t0, vad, "vcc")
            for q in range(4):
                b.I("v_perm_b32", U[q], Lr[it][2 * q + 1], Lr[it][2 * q], selLo)
                b.I("v_perm_b32", U2[q], Lr[it][2 * q + 1], Lr[it][2 * q], selHi)
            for j in range(8):
                b.I("s_mov_b32", sOff, j * 163840)
                b.I("buffer_store_dwordx4", U, vad, WS, sOff, mods="offen")
                b.I("buffer_store_dwordx4", U2, vad, WS, sOff, mods="offen offset:16")
            for e in range(8):
                b.I("v_cndmask_b32", t1, 0, Lr[it][e], "vcc")
                b.I("v_lshlrev_b32", t0, 16, t1)
                b.I("v_and_b32", t1, "0xffff0000", t1)
                b.I("v_add_f32", csA, csA, t0)
                b.I("v_add_f32", csB, csB, t1)
        b.I("v_lshlrev_b32", t0, 8, slot)
        b.I("v_lshl_add_u32", t0, cp, 3, t0)
        b.I("ds_write_b64", t0, V(20, 2))
        b.wait(lg=0)
        b.barrier()
        S8 = [V(36 + 2 * s_, 2) for s_ in range(8)]
        b.I("v_lshlrev_b32", t0, 3, cp)
        for s_ in range(8): b.I("ds_read_b64", S8[s_], t0, mods=f"offset:{256 * s_}")
        for s_ in range(1, 8):
            b.I("v_add_f32", S8[0][0], S8[0][0], S8[s_][0])
            b.I("v_add_f32", S8[0][1], S8[0][1], S8[s_][1])
        b.I("v_add_u32", t0, 2 * ps, vwl)
        b.I("v_lshlrev_b32", vad, 7, t0)
        b.I("v_lshl_add_u32", vad, vm_, 2, vad)
        b.I("v_cmp_gt_u32", "vcc", 10, V(0))
        b.I("v_mov_b32", t0, hex(OOB))
        b.I("v_cndmask_b32", vad, t0, vad, "vcc")
        b.I("s_lshl_b32", sT, sKr, 12)
        b.I("s_add_u32", sT, sT, hex(off["CSQ"]))
        for j in range(8):
            b.I("buffer_store_dwordx2", S8[0], vad, WS, sT, mods="offen")
            b.I("s_add_u32", sT, sT, 512)
        b.wait(lg=0)
        b.barrier()
    b.label("L0_end")
```

```python
from asmb import *
import layout as L
import math
off = L.off
WS_BYTES = 268435456
OOB = 0x40000000
LS = L.LAYER_STRIDE

LDS_X = 0
LDS_WO = 0
LDS_KVIMG = 102400
LDS_RED_O = 110592
LDS_RED_F = 0
TAB = 159744
T_CSQ, T_CS1, T_B1, T_B2 = TAB, TAB + 512, TAB + 1280, TAB + 2048
LDS_BYTES = 163840

WS = S(8, 4); OUT = S(12, 4)
sG, sJ, sW, sL = S(16), S(17), S(18), S(19)
sLO = S(20)
sT0, sT1, sT2, sT3 = S(21), S(22), S(23), S(24)
sXIN = S(25)
sP = [S(26 + i) for i in range(10)]
P_B1, P_B2 = S(36, 2), S(38, 2)
SRDT = S(40, 4)
sEX = S(44, 2)
sSC = S(46)
vL, vL16, vX16, vX32, vEpi = V(1), V(2), V(3), V(4), V(5)
vt0, vt1, vt2, vt3 = V(6), V(7), V(8), V(9)
QM = [V(10, 4), V(16, 4)]
QT = [V(14, 2), V(20, 2)]
VB = 22

def srd(b, dst, lo, hi, size):
    b.I("s_mov_b32", dst[0], lo)
    b.I("s_and_b32", dst[1], hi, "0xffff")
    b.I("s_mov_b32", dst[2], hex(size))
    b.I("s_mov_b32", dst[3], "0x20000")

def setup(b, endlabel, layer=None):
    b.I("s_cmp_ge_u32", S(2), 256)
    b.I("s_cbranch_scc1", endlabel)
    b.I("s_load_dwordx2", S(4, 2), S(0, 2), 96)
    b.I("s_load_dwordx2", S(6, 2), S(0, 2), 80)
    b.I("s_load_dwordx2", P_B1, S(0, 2), 56)
    b.I("s_load_dwordx2", P_B2, S(0, 2), 72)
    b.I("v_lshrrev_b32", vt0, 6, V(0))
    b.I("v_and_b32", vL, 63, V(0))
    b.I("v_readfirstlane_b32", sW, vt0)
    b.I("s_and_b32", sT0, S(2), 7)
    b.I("s_lshr_b32", sT1, S(2), 3)
    b.I("s_lshl_b32", sG, sT0, 2)
    b.I("s_lshr_b32", sT2, sT1, 3)
    b.I("s_add_u32", sG, sG, sT2)
    b.I("s_and_b32", sJ, sT1, 7)
    b.I("v_lshlrev_b32", vL16, 4, vL)
    b.I("v_lshrrev_b32", vt0, 4, vL)
    b.I("v_and_b32", vt1, 15, vL)
    b.I("v_lshlrev_b32", vt1, 4, vt1)
    b.I("v_lshl_add_u32", vX16, vt0, 10, vt1)
    b.I("v_lshrrev_b32", vt2, 1, vt0)
    b.I("v_lshl_add_u32", vEpi, vt2, 10, vt1)
    b.I("v_and_b32", vt2, 1, vt0)
    b.I("v_lshl_add_u32", vEpi, vt2, 3, vEpi)
    b.I("v_lshrrev_b32", vt0, 5, vL)
    b.I("v_and_b32", vt1, 31, vL)
    b.I("v_lshlrev_b32", vt1, 4, vt1)
    b.I("v_lshl_add_u32", vX32, vt0, 10, vt1)
    b.wait(lg=0)
    srd(b, WS, S(4), S(5), WS_BYTES)
    srd(b, OUT, S(6), S(7), 2048 * 1280)
    if layer is not None:
        b.I("s_mov_b32", sL, layer)
        b.I("s_mov_b32", sLO, hex(layer * LS))

def tables(b):
    a = [V(VB + i) for i in range(12)]
    vo = V(VB + 12); vo2 = V(VB + 13)
    b.I("v_lshlrev_b32", vo, 2, V(0))
    b.I("s_lshl_b32", sT0, sJ, 9)
    b.I("s_add_u32", sT0, sT0, hex(off["CSQ"]))
    for kr in range(4):
        b.I("buffer_load_dword", a[kr], vo, WS, sT0, mods="offen")
        if kr < 3: b.I("s_add_u32", sT0, sT0, 4096)
    b.I("s_mul_i32", sT1, sJ, 768)
    b.I("s_add_u32", sT0, sT1, hex(off["CS1"]))
    for kr in range(4):
        b.I("buffer_load_dword", a[4 + kr], vo, WS, sT0, mods="offen")
        if kr < 3: b.I("s_add_u32", sT0, sT0, 6144)
    b.I("v_lshlrev_b32", vo2, 1, V(0))
    srd(b, SRDT, P_B1[0], P_B1[1], 1536 * 2)
    b.I("s_mul_i32", sT1, sJ, 384)
    b.I("buffer_load_ushort", a[8], vo2, SRDT, sT1, mods="offen")
    srd(b, SRDT, P_B2[0], P_B2[1], 640 * 2)
    b.I("s_mul_i32", sT1, sJ, 160)
    b.I("buffer_load_ushort", a[9], vo2, SRDT, sT1, mods="offen")
    for base in (0, 4):
        b.I("v_add_f32", a[base], a[base], a[base + 1])
        b.I("v_add_f32", a[base + 2], a[base + 2], a[base + 3])
        b.I("v_add_f32", a[base], a[base], a[base + 2])
    b.I("v_lshlrev_b32", a[8], 16, a[8])
    b.I("v_lshlrev_b32", a[9], 16, a[9])
    for cnt, reg, dst in ((128, a[0], T_CSQ), (192, a[4], T_CS1), (192, a[8], T_B1), (80, a[9], T_B2)):
        b.I("v_cmp_gt_u32", "vcc", cnt, V(0))
        b.I("v_mov_b32", vt0, 0x27F00)
        b.I("v_add_u32", vt1, dst, vo)
        b.I("v_cndmask_b32", vt1, vt0, vt1, "vcc")
        b.I("ds_write_b32", vt1, reg)
    b.wait(lg=0)
    b.barrier()

def stats_load(b, base_sgpr, regs):
    b.I("v_lshlrev_b32", vt0, 3, vL)
    for s_ in range(8):
        b.I("buffer_load_dwordx2", regs[s_], vt0, WS, base_sgpr, mods=f"offen offset:{s_ * 512} sc1")
def stats_finish(b, regs, mean, rstd):
    for c in range(2):
        b.I("v_add_f32", regs[0][c], regs[0][c], regs[1][c])
        b.I("v_add_f32", regs[2][c], regs[2][c], regs[3][c])
        b.I("v_add_f32", regs[4][c], regs[4][c], regs[5][c])
        b.I("v_add_f32", regs[6][c], regs[6][c], regs[7][c])
        b.I("v_add_f32", regs[0][c], regs[0][c], regs[2][c])
        b.I("v_add_f32", regs[4][c], regs[4][c], regs[6][c])
        b.I("v_add_f32", regs[0][c], regs[0][c], regs[4][c])
    b.I("s_mov_b32", sT0, hex(f2u(1.0 / 640)))
    b.I("v_mul_f32", mean, sT0, regs[0][0])
    b.I("v_mul_f32", rstd, sT0, regs[0][1])
    b.I("v_fma_f32", rstd, -mean if False else f"-{mean}", mean, rstd)
    b.I("v_max_f32", rstd, 0, rstd)
    b.I("v_add_f32", rstd, hex(f2u(1e-5)), rstd)
    b.I("v_rsq_f32", rstd, rstd)

import struct
def f2u(x): return struct.unpack("<I", struct.pack("<f", x))[0]

def dma_tile(b, sbase, nchunk_instr, first_unit, lds_base, sc="sc1", tagname="dma"):
    b.I("s_mul_i32", sT0, sW, nchunk_instr * 1024)
    b.I("s_add_u32", sT1, sT0, lds_base + first_unit * 1024)
    b.I("s_add_u32", sT0, sT0, sbase)
    b.I("s_add_u32", sT0, sT0, first_unit * 1024)
    tag = None
    for q in range(nchunk_instr):
        b.I("s_mov_b32", "m0", sT1)
        tag = b.I("buffer_load_dwordx4", vL16, WS, sT0, mods=f"offen {sc} lds")
        if q < nchunk_instr - 1:
            b.I("s_add_u32", sT1, sT1, 1024)
            b.I("s_add_u32", sT0, sT0, 1024)
    return tag

def qkv_wload(b, rng=range(40)):
    b.I("s_lshl_b32", sT2, sJ, 2)
    b.I("s_add_u32", sT2, sT2, sW)
    b.I("s_mul_i32", sT2, sT2, 40960)
    b.I("s_add_u32", sT2, sT2, hex(off["WQP"] + (rng[0] // 4) * 4096))
    for s_ in rng:
        if s_ % 4 == 0 and s_ != rng[0]: b.I("s_add_u32", sT2, sT2, 4096)
        b.I("buffer_load_dwordx4", A(4 * s_, 4), vL16, WS, sT2, mods=f"offen offset:{(s_ % 4) * 1024}")

def qkv_phase(b, uid):
    sX = sP[0]; sSt = sP[1]
    b.I("s_mul_i32", sX, sG, 81920)
    b.I("s_add_u32", sX, sX, sLO)
    b.I("s_add_u32", sX, sX, hex(off["XB0"]))
    b.I("s_lshl_b32", sSt, sG, 12)
    b.I("s_add_u32", sSt, sSt, sLO)
    b.I("s_add_u32", sSt, sSt, hex(off["STI0"]))
    tags = [dma_tile(b, sX, 4, 16 * c, LDS_X) for c in range(5)]
    ST = [V(VB + 2 * i, 2) for i in range(8)]
    stats_load(b, sSt, ST)
    ACC = [V(64, 16), V(80, 16)]
    XF = [[V(96 + 8 * p + 4 * th, 4) for th in range(2)] for p in range(4)]
    vXa, vXb = V(VB + 16), V(VB + 17)
    b.I("v_add_u32", vXa, LDS_X, vX32)
    b.I("v_add_u32", vXb, LDS_X + 65536, vX32)
    def xread(s_, th):
        o = s_ * 2048 + th * 512
        base, o = (vXa, o) if o < 65536 else (vXb, o - 65536)
        b.I("ds_read_b128", XF[s_ % 4][th], base, mods=f"offset:{o}")
    for c in range(5):
        b.wait_vm_tag(tags[c])
        b.barrier()
        for s_ in range(8 * c, 8 * c + 2):
            for th in range(2): xread(s_, th)
        for s_ in range(8 * c, 8 * c + 8):
            if s_ + 2 < 8 * c + 8:
                for th in range(2): xread(s_ + 2, th)
            for th in range(2):
                b.I("v_mfma_f32_32x32x16_bf16", ACC[th], A(4 * s_, 4), XF[s_ % 4][th], (0 if s_ == 0 else ACC[th]))
    mean, rstd = V(VB + 18), V(VB + 19)
    stats_finish(b, ST, mean, rstd)
    mT = [V(VB + 20), V(VB + 21)]; rT = [V(VB + 22), V(VB + 23)]
    b.I("v_mov_b32", mT[0], mean); b.I("v_mov_b32", mT[1], mean)
    b.I("v_mov_b32", rT[0], rstd); b.I("v_mov_b32", rT[1], rstd)
    b.I("v_permlane32_swap_b32", mT[0], mT[1])
    b.I("v_permlane32_swap_b32", rT[0], rT[1])
    CS = V(112, 16)
    b.I("v_lshrrev_b32", vt0, 5, vL)
    b.I("v_lshlrev_b32", vt0, 4, vt0)
    b.I("s_lshl_b32", sT0, sW, 7)
    b.I("v_add_u32", vt0, sT0, vt0)
    b.I("v_add_u32", vt0, T_CSQ, vt0)
    for c in range(4): b.I("ds_read_b128", CS[4 * c:4 * c + 4], vt0, mods=f"offset:{32 * c}")
    b.I("s_mov_b32", sT1, hex(f2u(math.log2(math.e) / math.sqrt(20.0))))
    rq, rm = V(VB + 24), V(VB + 25)
    PK = [V(128, 4), V(132, 4)]
    b.I("v_cmp_gt_u32", "vcc", 32, vL)
    for th in range(2):
        b.I("v_mul_f32", rq, sT1, rT[th])
        b.I("v_cndmask_b32", rm, rT[th], rq, "vcc")
        for i in range(16):
            b.I("v_fma_f32", ACC[th][i], f"-{mT[th]}", CS[i], ACC[th][i])
            b.I("v_mul_f32", ACC[th][i], (rq if i < 8 else rm if i < 12 else rT[th]), ACC[th][i])
        for q in range(4): b.I("v_cvt_pk_bf16_f32", QM[th][q], ACC[th][2 * q], ACC[th][2 * q + 1])
        for q in range(2): b.I("v_cvt_pk_bf16_f32", QT[th][q], ACC[th][8 + 2 * q], ACC[th][9 + 2 * q])
        for q in range(2): b.I("v_cvt_pk_bf16_f32", PK[th][2 + q], ACC[th][12 + 2 * q], ACC[th][13 + 2 * q])
    vkey, vh, vaT, vaU = V(VB + 26), V(VB + 27), V(VB + 28), V(VB + 29)
    PARK = 0x27F00
    b.I("v_and_b32", vkey, 31, vL)
    b.I("v_lshrrev_b32", vh, 5, vL)
    b.I("s_and_b32", sT0, sW, 1)
    b.I("s_mul_i32", sT0, sT0, 3)
    b.I("v_mov_b32", vaT, sT0)
    b.I("v_add_u32", vaU, 1, vh)
    b.I("v_add_u32", vaU, sT0, vaU)
    b.I("s_cmp_ge_u32", sW, 2)
    b.I("s_cbranch_scc1", f"QKV_V_{uid}")
    for va in (vaT, vaU):
        b.I("v_lshrrev_b32", vt0, 1, va)
        b.I("v_lshlrev_b32", vt0, 9, vt0)
        b.I("v_and_b32", vt1, 1, va)
        b.I("v_lshl_add_u32", vt0, vt1, 3, vt0)
        b.I("v_lshl_add_u32", vt0, vkey, 4, vt0)
        b.I("v_lshlrev_b32", vt1, 3, vkey)
        b.I("v_add_u32", vt1, 1024, vt1)
        b.I("v_cmp_eq_u32", "vcc", 4, va)
        b.I("v_cndmask_b32", vt0, vt0, vt1, "vcc")
        b.I("v_add_u32", vt0, LDS_KVIMG, vt0)
        b.I("v_cmp_lt_u32", "vcc", 4, va)
        b.I("v_mov_b32", vt1, PARK)
        b.I("v_cndmask_b32", va, vt0, vt1, "vcc")
    b.I("v_cmp_gt_u32", "vcc", 32, vL)
    b.I("v_mov_b32", vt1, PARK)
    b.I("v_cndmask_b32", vaT, vaT, vt1, "vcc")
    b.I("v_mov_b32", vt2, PARK)
    for th in range(2):
        b.I("ds_write_b64", vaT, QT[th])
        b.I("ds_write_b64", vaU, PK[th][2:4])
        if th == 0:
            for va in (vaT, vaU):
                b.I("v_add_u32", vt0, 3072, va)
                b.I("v_cmp_eq_u32", "vcc", va, vt2)
                b.I("v_cndmask_b32", va, vt0, va, "vcc")
    b.I("s_branch", f"QKV_J_{uid}")
    b.label(f"QKV_V_{uid}")
    snap = b.snapshot()
    b.I("v_lshrrev_b32", vt0, 4, vkey)
    b.I("v_mul_u32_u24", vt0, 768, vt0)
    b.I("v_bfe_u32", vt1, vkey, 2, 1)
    b.I("v_mul_u32_u24", vt1, 384, vt1)
    b.I("v_add_u32", vt0, vt0, vt1)
    b.I("v_and_b32", vt1, 3, vkey)
    b.I("v_lshl_add_u32", vt0, vt1, 1, vt0)
    b.I("v_bfe_u32", vt1, vkey, 3, 1)
    b.I("v_lshl_add_u32", vt0, vt1, 3, vt0)
    b.I("v_add_u32", vt3, LDS_KVIMG + 1280, vt0)
    for va in (vaT, vaU):
        b.I("v_lshl_add_u32", vt0, va, 6, vt3)
        b.I("v_cmp_lt_u32", "vcc", 4, va)
        b.I("v_mov_b32", vt1, PARK)
        b.I("v_cndmask_b32", va, vt0, vt1, "vcc")
    b.I("v_cmp_gt_u32", "vcc", 32, vL)
    b.I("v_mov_b32", vt1, PARK)
    b.I("v_cndmask_b32", vaT, vaT, vt1, "vcc")
    b.I("v_mov_b32", vt2, PARK)
    for th in range(2):
        for va, rr in ((vaT, QT[th]), (vaU, PK[th][2:4])):
            for q in range(2):
                b.I("ds_write_b16", va, rr[q], mods=f"offset:{32 * q}")
                b.I("ds_write_b16_d16_hi", va, rr[q], mods=f"offset:{32 * q + 16}")
        if th == 0:
            for va in (vaT, vaU):
                b.I("v_add_u32", vt0, 3072, va)
                b.I("v_cmp_eq_u32", "vcc", va, vt2)
                b.I("v_cndmask_b32", va, vt0, va, "vcc")
    b.I("v_and_b32", vt0, 3, vL)
    b.I("v_mul_u32_u24", vt0, 384, vt0)
    b.I("v_bfe_u32", vt1, vL, 2, 1)
    b.I("v_mul_u32_u24", vt1, 3072, vt1)
    b.I("v_add_u32", vt0, vt0, vt1)
    b.I("v_add_u32", vt0, LDS_KVIMG + 1280 + 320, vt0)
    ONE = V(136, 4)
    for e in range(4): b.I("v_mov_b32", ONE[e], "0x3f803f80")
    b.I("ds_write_b128", vt0, ONE)
    b.label(f"QKV_J_{uid}")
    b.clear_hist()
    b.wait(lg=0)
    b.barrier()
    b.I("s_cmp_lg_u32", sW, 0)
    b.I("s_cbranch_scc1", f"QKV_E_{uid}")
    b.I("s_mul_i32", sT0, sJ, 768)
    b.I("v_add_u32", vt0, sT0, vL16)
    b.I("v_add_u32", vt1, LDS_KVIMG, vt0)
    b.I("ds_read_b128", ONE, vt1)
    b.I("v_cmp_gt_u32", "vcc", 48, vL)
    b.I("v_mov_b32", vt1, hex(OOB))
    b.I("v_cndmask_b32", vt0, vt1, vt0, "vcc")
    b.I("s_mul_i32", sT0, sG, 6144)
    b.I("s_add_u32", sT0, sT0, sLO)
    b.I("s_add_u32", sT0, sT0, hex(off["KV0"]))
    b.I("buffer_store_dwordx4", ONE, vt0, WS, sT0, mods="offen sc1")
    b.label(f"QKV_E_{uid}")
    b.clear_hist()

def q_spill(b, load):
    b.I("s_lshl_b32", sT0, S(2), 2)
    b.I("s_add_u32", sT0, sT0, sW)
    b.I("s_mul_i32", sT0, sT0, 3072)
    b.I("s_add_u32", sT0, sT0, sLO)
    b.I("s_add_u32", sT0, sT0, hex(off["QS0"]))
    for q in range(3):
        b.I("buffer_load_dwordx4" if load else "buffer_store_dwordx4", V(10 + 4 * q, 4), vL16, WS, sT0, mods=f"offen offset:{q * 1024}")

def attn_phase(b, uid):
    KVS = [dict(km=V(64 + 16 * p, 4), kt=V(68 + 16 * p, 2), v=[V(72 + 16 * p, 4), V(76 + 16 * p, 4)]) for p in range(4)]
    Sx = [V(128, 16), V(144, 16)]
    Oa = [V(160, 16), V(176, 16)]
    NM = [V(192, 16), V(208, 16)]
    Pp = [V(224, 8), V(232, 8)]
    vKt, vV, vmx = V(VB), V(VB + 1), V(VB + 2)
    sKV = sP[0]; sOff = sP[1]; sCnt = sP[2]; sRetry = sP[3]
    b.I("s_add_u32", sKV, sLO, hex(off["KV0"]))
    b.I("v_and_b32", vt0, 31, vL)
    b.I("v_lshlrev_b32", vKt, 3, vt0)
    b.I("v_add_u32", vKt, 1024, vKt)
    b.I("v_cmp_gt_u32", "vcc", 32, vL)
    b.I("v_mov_b32", vt1, hex(OOB))
    b.I("v_cndmask_b32", vKt, vt1, vKt, "vcc")
    b.I("v_lshrrev_b32", vt2, 5, vL)
    b.I("v_mul_u32_u24", vt2, 384, vt2)
    b.I("v_lshl_add_u32", vV, vt0, 4, vt2)
    b.I("v_add_u32", vV, 1280, vV)
    b.I("v_cmp_ge_u32", "vcc", 20, vt0)
    b.I("v_cndmask_b32", vV, vt1, vV, "vcc")
    def loadk(p, soff):
        b.I("buffer_load_dwordx4", KVS[p]["km"], vL16, WS, soff, mods="offen sc1")
        b.I("buffer_load_dwordx2", KVS[p]["kt"], vKt, WS, soff, mods="offen sc1")
    def loadv(p, soff):
        b.I("buffer_load_dwordx4", KVS[p]["v"][0], vV, WS, soff, mods="offen sc1")
        b.I("buffer_load_dwordx4", KVS[p]["v"][1], vV, WS, soff, mods="offen offset:768 sc1")
    def qk_main(q, p, C): b.I("v_mfma_f32_32x32x16_bf16", Sx[q], KVS[p]["km"], QM[q], C)
    def qk_tail(q, p): b.I("v_mfma_f32_32x32x8_bf16", Sx[q], KVS[p]["kt"], QT[q], Sx[q])
    def pv(q, p, mf): b.I("v_mfma_f32_32x32x16_bf16", Oa[q], KVS[p]["v"][mf], Pp[q][4 * mf:4 * mf + 4], Oa[q])
    b.I("s_mov_b32", sRetry, 0)
    loadk(0, sKV)
    for q in range(2): qk_main(q, 0, 0)
    for q in range(2): qk_tail(q, 0)
    for q in range(2):
        m = V(VB + 3 + q)
        b.I("v_max3_f32", m, Sx[q][0], Sx[q][1], Sx[q][2])
        for i in range(3, 15, 2): b.I("v_max3_f32", m, m, Sx[q][i], Sx[q][i + 1])
        b.I("v_max_f32", m, m, Sx[q][15])
        b.I("v_mov_b32", vt0, m)
        b.I("v_permlane32_swap_b32", m, vt0)
        b.I("v_max_f32", m, m, vt0)
    b.label(f"ATT_RUN_{uid}")
    b.clear_hist(); b.nop(2)
    for q in range(2):
        m = V(VB + 3 + q)
        for i in range(16):
            b.I("v_sub_f32", NM[q][i], 0, m)
            b.I("v_mov_b32", Oa[q][i], 0)
    for q in range(2):
        for i in range(8): b.I("v_mov_b32", Pp[q][i], 0)
    b.wait(vm=0)
    for e in range(8): b.I("v_mov_b32", V(KVS[3]["v"][0].i + e), 0)
    b.I("s_mov_b32", sOff, sKV)
    for p in range(3):
        loadk(p, sOff); loadv(p, sOff)
        b.I("s_add_u32", sOff, sOff, 3072)
    qk_main(0, 0, NM[0])
    b.nop(10)
    qk_tail(0, 0)
    b.nop(12)
    b.I("s_mov_b32", sCnt, 16)
    b.align(6)
    b.label(f"ATT_LOOP_{uid}")
    b.clear_hist()
    b.vm = [(("kv", 0), KVS[0]["km"].regs() | KVS[0]["kt"].regs()), (("kv", 0), KVS[0]["km"].regs() | KVS[0]["kt"].regs()),
            (("kv", 0), KVS[0]["v"][0].regs()), (("kv", 0), KVS[0]["v"][1].regs()),
            (("kv", 1), KVS[1]["km"].regs()), (("kv", 1), KVS[1]["kt"].regs()), (("kv", 1), KVS[1]["v"][0].regs()), (("kv", 1), KVS[1]["v"][1].regs()),
            (("kv", 2), KVS[2]["km"].regs()), (("kv", 2), KVS[2]["kt"].regs()), (("kv", 2), KVS[2]["v"][0].regs()), (("kv", 2), KVS[2]["v"][1].regs())]
    entry_state = [e[1] for e in b.vm]
    def valu_stream(q):
        ops = []
        for g in range(4):
            for i in range(4): ops.append(lambda q=q, i=4 * g + i: b.I("v_exp_f32", Sx[q][i], Sx[q][i]))
            for i in range(2): ops.append(lambda q=q, i=2 * g + i: b.I("v_cvt_pk_bf16_f32", Pp[q][i], Sx[q][2 * i], Sx[q][2 * i + 1]))
        return ops
    def half(q, mf, extra):
        vs = valu_stream(q)
        for k in range(4):
            mf[k]()
            for x in vs[6 * k:6 * k + 6]: x()
            for x in extra.get(k, []): x()
    for u in range(4):
        p, pn, pp = u, (u + 1) % 4, (u + 3) % 4
        half(0, [lambda: qk_main(1, p, NM[1]), lambda: pv(1, pp, 0), lambda: qk_tail(1, p), lambda: pv(1, pp, 1)], {})
        half(1, [lambda: qk_main(0, pn, NM[0]), lambda: pv(0, p, 0), lambda: qk_tail(0, pn), lambda: pv(0, p, 1)],
             {0: [lambda: loadk(pp, sOff)], 1: [lambda: loadv(pp, sOff), lambda: b.I("s_add_u32", sOff, sOff, 3072)]})
    b.I("s_sub_u32", sCnt, sCnt, 1)
    b.I("s_cmp_lg_u32", sCnt, 0)
    b.I("s_cbranch_scc1", f"ATT_LOOP_{uid}")
    exit_state = [e[1] for e in b.vm]
    b.loop_states = (entry_state, exit_state)
    pv(1, 3, 0); pv(1, 3, 1)
    b.wait(vm=0)
    lreg = [V(VB + 5), V(VB + 6)]
    for q in range(2):
        b.I("v_mov_b32", lreg[q], Oa[q][8])
        b.I("v_mov_b32", vt0, Oa[q][8])
        b.I("v_permlane32_swap_b32", vt0, lreg[q])
    b.I("s_cmp_eq_u32", sRetry, 1)
    b.I("s_cbranch_scc1", f"ATT_OK_{uid}")
    b.I("v_mov_b32", vt1, 0)
    for q in range(2):
        for i in range(0, 12, 2): b.I("v_max3_f32", vt1, f"abs({Oa[q][i]})", f"abs({Oa[q][i+1]})", vt1)
    b.I("v_mov_b32", vt2, hex(f2u(2.0 ** 60)))
    b.I("v_mov_b32", vt3, hex(f2u(3.0e38)))
    b.I("v_cmp_nlt_f32", S(48, 2), lreg[0], vt2)
    b.I("v_cmp_nlt_f32", S(50, 2), lreg[1], vt2)
    b.I("v_cmp_nlt_f32", "vcc", vt1, vt3)
    b.I("s_or_b64", S(48, 2), S(48, 2), S(50, 2))
    b.I("s_or_b64", S(48, 2), S(48, 2), "vcc")
    b.I("v_mov_b32", vt1, 0)
    for q in range(2):
        for i in range(12): b.I("v_fmac_f32", vt1, 0, Oa[q][i])
    b.I("v_cmp_neq_f32", "vcc", 0, vt1)
    b.I("v_cmp_u_f32", S(50, 2), vt1, vt1)
    b.I("s_or_b64", S(48, 2), S(48, 2), S(50, 2))
    b.I("s_cmp_eq_u64", S(48, 2), 0)
    b.I("s_cbranch_scc1", f"ATT_OK_{uid}")
    b.I("s_mov_b32", sRetry, 1)
    for q in range(2): b.I("v_mov_b32", V(VB + 3 + q), hex(f2u(-3.0e38)))
    b.I("s_mov_b32", sOff, sKV)
    b.I("s_mov_b32", sCnt, 64)
    b.label(f"ATT_MAX_{uid}")
    b.clear_hist()
    loadk(0, sOff)
    b.I("s_add_u32", sOff, sOff, 3072)
    for q in range(2): qk_main(q, 0, 0)
    for q in range(2): qk_tail(q, 0)
    for q in range(2):
        m = V(VB + 3 + q)
        for i in range(0, 16, 2): b.I("v_max3_f32", m, m, Sx[q][i], Sx[q][i + 1])
    b.I("s_sub_u32", sCnt, sCnt, 1)
    b.I("s_cmp_lg_u32", sCnt, 0)
    b.I("s_cbranch_scc1", f"ATT_MAX_{uid}")
    for q in range(2):
        m = V(VB + 3 + q)
        b.I("v_mov_b32", vt0, m)
        b.I("v_permlane32_swap_b32", m, vt0)
        b.I("v_max_f32", m, m, vt0)
    b.I("s_branch", f"ATT_RUN_{uid}")
    b.label(f"ATT_OK_{uid}")
    b.clear_hist(); b.nop(2)
    sO = sP[0]
    b.I("s_mul_i32", sO, sG, 81920)
    b.I("s_add_u32", sO, sO, sLO)
    b.I("s_mul_i32", sT0, sJ, 10240)
    b.I("s_add_u32", sO, sO, sT0)
    b.I("s_add_u32", sO, sO, hex(off["O0"]))
    vo = V(VB + 7)
    b.I("s_mul_i32", sT0, sW, 5)
    b.I("v_lshrrev_b32", vt0, 5, vL)
    b.I("v_add_u32", vt0, sT0, vt0)
    b.I("v_lshrrev_b32", vt1, 1, vt0)
    b.I("v_lshlrev_b32", vo, 10, vt1)
    b.I("v_and_b32", vt1, 1, vt0)
    b.I("v_lshl_add_u32", vo, vt1, 3, vo)
    b.I("v_and_b32", vt1, 31, vL)
    b.I("v_lshl_add_u32", vo, vt1, 4, vo)
    vo2 = V(VB + 8)
    b.I("v_cmp_gt_u32", "vcc", 32, vL)
    b.I("v_mov_b32", vt1, hex(OOB))
    b.I("v_cndmask_b32", vo2, vt1, vo, "vcc")
    for q in range(2):
        b.I("v_rcp_f32", lreg[q], lreg[q])
        for i in range(12): b.I("v_mul_f32", Oa[q][i], lreg[q], Oa[q][i])
        for i in range(6): b.I("v_cvt_pk_bf16_f32", Pp[q][i], Oa[q][2 * i], Oa[q][2 * i + 1])
        for c in range(3):
            b.I("buffer_store_dwordx2", Pp[q][2 * c:2 * c + 2], (vo if c < 2 else vo2), WS, sO, mods=f"offen offset:{c * 1024 + q * 512} sc1")

def resid_load(b, sbase, RES):
    for fb in range(5):
        b.I("s_add_u32", sT0, sbase, fb * 2048)
        b.I("buffer_load_dwordx2", RES[fb], vEpi, WS, sT0, mods="offen sc1")

def resid_epilogue(b, ACC, RES, bias, sdst, sstat, final=False, sTB=None):
    tA, tB = vt0, vt1
    ssum, ssq = V(VB), V(VB + 1)
    if bias:
        BI = V(VB + 4, 20)
        b.I("v_lshrrev_b32", tA, 4, vL)
        b.I("v_lshlrev_b32", tA, 4, tA)
        b.I("v_add_u32", tA, T_B2, tA)
        for fb in range(5): b.I("ds_read_b128", BI[4 * fb:4 * fb + 4], tA, mods=f"offset:{64 * fb}")
    b.I("v_mov_b32", ssum, 0); b.I("v_mov_b32", ssq, 0)
    for fb in range(5):
        for q in range(2):
            b.I("v_lshlrev_b32", tA, 16, RES[fb][q])
            b.I("v_and_b32", tB, "0xffff0000", RES[fb][q])
            b.I("v_add_f32", ACC[fb][2 * q], ACC[fb][2 * q], tA)
            b.I("v_add_f32", ACC[fb][2 * q + 1], ACC[fb][2 * q + 1], tB)
        if bias:
            for r in range(4): b.I("v_add_f32", ACC[fb][r], ACC[fb][r], BI[4 * fb + r])
        if not final:
            for r in range(4):
                b.I("v_add_f32", ssum, ssum, ACC[fb][r])
                b.I("v_fmac_f32", ssq, ACC[fb][r], ACC[fb][r])
        for q in range(2): b.I("v_cvt_pk_bf16_f32", RES[fb][q], ACC[fb][2 * q], ACC[fb][2 * q + 1])
    if final:
        vo = V(VB + 2)
        b.I("v_and_b32", tA, 15, vL)
        b.I("v_mul_u32_u24", vo, 1280, tA)
        b.I("v_lshrrev_b32", tA, 4, vL)
        b.I("v_lshl_add_u32", vo, tA, 3, vo)
        for fb in range(5): b.I("buffer_store_dwordx2", RES[fb], vo, OUT, sdst, mods=f"offen offset:{32 * fb}")
        return
    for fb in range(5):
        b.I("s_add_u32", sT0, sdst, fb * 2048)
        b.I("buffer_store_dwordx2", RES[fb], vEpi, WS, sT0, mods="offen sc1")
    for r in (ssum, ssq):
        b.I("v_mov_b32", tA, r)
        b.I("v_permlane16_swap_b32", r, tA)
        b.I("v_add_f32", r, r, tA)
        b.I("v_mov_b32", tA, r)
        b.I("v_permlane32_swap_b32", r, tA)
        b.I("v_add_f32", r, r, tA)
    b.I("v_lshlrev_b32", tA, 3, vL)
    b.I("v_cmp_gt_u32", "vcc", 16, vL)
    b.I("v_mov_b32", tB, hex(OOB))
    b.I("v_cndmask_b32", tA, tB, tA, "vcc")
    b.I("buffer_store_dwordx2", V(VB, 2), tA, WS, sstat, mods="offen sc1")

def oproj_wdma(b):
    b.I("s_mul_i32", sT2, sJ, 102400)
    b.I("s_add_u32", sT2, sT2, hex(off["WOP"]))
    return dma_tile(b, sT2, 25, 0, LDS_WO, sc="")

def oproj_phase(b, uid, wtag):
    sO, sRes, sTB, sDst, sSt = sP[0], sP[1], sP[2], sP[3], sP[4]
    XF = [[V(64 + 8 * s_ + 4 * a, 4) for a in range(2)] for s_ in range(10)]
    ACC = [[V(144 + 20 * a + 4 * fb, 4) for fb in range(5)] for a in range(2)]
    WF = [[V(184 + 20 * p + 4 * fb, 4) for fb in range(5)] for p in range(2)]
    RES = [V(224 + 2 * fb, 2) for fb in range(5)]
    vXa = [V(VB + 30), V(VB + 31)]; vWa = V(VB + 32)
    b.I("s_and_b32", sT0, sW, 1)
    b.I("s_lshr_b32", sT1, sW, 1)
    b.I("s_lshl_b32", sT0, sT0, 1)
    b.I("s_add_u32", sTB, sT0, sT1)
    b.I("s_xor_b32", sT2, sTB, 1)
    b.I("s_lshl_b32", sT3, sTB, 8)
    b.I("v_add_u32", vXa[0], sT3, vX16)
    b.I("s_lshl_b32", sT2, sT2, 8)
    b.I("v_add_u32", vXa[1], sT2, vX16)
    b.I("s_mul_i32", sO, sG, 81920)
    b.I("s_add_u32", sO, sO, sLO)
    b.I("s_add_u32", sRes, sO, hex(off["XB0"]))
    b.I("s_add_u32", sDst, sO, hex(off["X10"]))
    b.I("s_add_u32", sO, sO, hex(off["O0"]))
    b.I("s_mul_i32", sT1, sT1, 40960)
    b.I("s_add_u32", sO, sO, sT1)
    for s_ in range(10):
        for a in range(2): b.I("buffer_load_dwordx4", XF[s_][a], vXa[a], WS, sO, mods="offen sc1")
        if s_ < 9: b.I("s_add_u32", sO, sO, 4096)
    b.I("s_mul_i32", sT0, sJ, 10240)
    b.I("s_add_u32", sT0, sT0, sT3)
    b.I("s_add_u32", sRes, sRes, sT0)
    b.I("s_add_u32", sDst, sDst, sT0)
    resid_load(b, sRes, RES)
    b.I("v_lshrrev_b32", vt0, 4, vL)
    b.I("v_mul_u32_u24", vt0, 1280, vt0)
    b.I("v_and_b32", vt1, 15, vL)
    b.I("v_lshl_add_u32", vWa, vt1, 4, vt0)
    b.I("s_lshr_b32", sT1, sW, 1)
    b.I("s_mul_i32", sT1, sT1, 51200)
    b.I("v_add_u32", vWa, sT1, vWa)
    b.I("v_add_u32", vWa, LDS_WO, vWa)
    if wtag is not None: b.wait_vm_tag(wtag)
    b.barrier()
    def wread(s_):
        for fb in range(5): b.I("ds_read_b128", WF[s_ % 2][fb], vWa, mods=f"offset:{s_ * 5120 + fb * 256}")
    wread(0)
    for s_ in range(10):
        if s_ < 9: wread(s_ + 1)
        for fb in range(5):
            for a in range(2):
                b.I("v_mfma_f32_16x16x32_bf16", ACC[a][fb], WF[s_ % 2][fb], XF[s_][a], (0 if s_ == 0 else ACC[a][fb]))
    vR = V(VB + 33)
    b.I("s_mul_i32", sT0, sW, 5120)
    b.I("v_add_u32", vR, sT0, vL16)
    b.I("v_add_u32", vR, LDS_RED_O, vR)
    for fb in range(5): b.I("ds_write_b128", vR, ACC[1][fb], mods=f"offset:{fb * 1024}")
    b.I("s_xor_b32", sT0, sW, 2)
    b.I("s_mul_i32", sT0, sT0, 5120)
    b.I("v_add_u32", vR, sT0, vL16)
    b.I("v_add_u32", vR, LDS_RED_O, vR)
    b.wait(lg=0)
    b.barrier()
    for fb in range(5): b.I("ds_read_b128", WF[0][fb], vR, mods=f"offset:{fb * 1024}")
    for fb in range(5):
        for r in range(4): b.I("v_add_f32", ACC[0][fb][r], ACC[0][fb][r], WF[0][fb][r])
    b.I("s_lshl_b32", sSt, sG, 12)
    b.I("s_add_u32", sSt, sSt, sLO)
    b.I("s_lshl_b32", sT0, sJ, 9)
    b.I("s_add_u32", sSt, sSt, sT0)
    b.I("s_lshl_b32", sT0, sTB, 7)
    b.I("s_add_u32", sSt, sSt, sT0)
    b.I("s_add_u32", sSt, sSt, hex(off["ST10"]))
    resid_epilogue(b, ACC[0], RES, False, sDst, sSt)

def ffn1_wload(b, rng=range(60)):
    b.I("s_lshl_b32", sT2, sJ, 2)
    b.I("s_add_u32", sT2, sT2, sW)
    b.I("s_mul_i32", sT2, sT2, 61440)
    b.I("s_add_u32", sT2, sT2, hex(off["W1P"] + (rng[0] // 4) * 4096))
    for f in rng:
        if f % 4 == 0 and f != rng[0]: b.I("s_add_u32", sT2, sT2, 4096)
        b.I("buffer_load_dwordx4", A(4 * f, 4), vL16, WS, sT2, mods=f"offen offset:{(f % 4) * 1024}")

def bcast4(b, src, dst4):
    b.I("v_mov_b32", dst4[0], src); b.I("v_mov_b32", dst4[2], src)
    b.I("v_permlane32_swap_b32", dst4[0], dst4[2])
    b.I("v_mov_b32", dst4[1], dst4[0]); b.I("v_mov_b32", dst4[3], dst4[2])
    b.I("v_permlane16_swap_b32", dst4[0], dst4[1])
    b.I("v_permlane16_swap_b32", dst4[2], dst4[3])

def ffn1_phase(b, uid):
    sX, sSt, sH = sP[0], sP[1], sP[2]
    b.I("s_mul_i32", sX, sG, 81920)
    b.I("s_add_u32", sX, sX, sLO)
    b.I("s_add_u32", sX, sX, hex(off["X10"]))
    b.I("s_lshl_b32", sSt, sG, 12)
    b.I("s_add_u32", sSt, sSt, sLO)
    b.I("s_add_u32", sSt, sSt, hex(off["ST10"]))
    tags = [dma_tile(b, sX, 4, 16 * c, LDS_X) for c in range(5)]
    ST = [V(VB + 2 * i, 2) for i in range(8)]
    stats_load(b, sSt, ST)
    ACC = [[V(64 + 16 * fb + 4 * tb, 4) for tb in range(4)] for fb in range(3)]
    XF = [[V(112 + 16 * p + 4 * tb, 4) for tb in range(4)] for p in range(2)]
    vXa, vXb = V(VB + 16), V(VB + 17)
    b.I("v_add_u32", vXa, LDS_X, vX16)
    b.I("v_add_u32", vXb, LDS_X + 65536, vX16)
    def xread(s_):
        for tb in range(4):
            o = s_ * 4096 + tb * 256
            base, o = (vXa, o) if o < 65536 else (vXb, o - 65536)
            b.I("ds_read_b128", XF[s_ % 2][tb], base, mods=f"offset:{o}")
    for c in range(5):
        b.wait_vm_tag(tags[c])
        b.barrier()
        xread(4 * c)
        for s_ in range(4 * c, 4 * c + 4):
            if s_ + 1 < 4 * c + 4: xread(s_ + 1)
            for fb in range(3):
                for tb in range(4):
                    b.I("v_mfma_f32_16x16x32_bf16", ACC[fb][tb], A(4 * (3 * s_ + fb), 4), XF[s_ % 2][tb], (0 if s_ == 0 else ACC[fb][tb]))
    mean, rstd = V(VB + 18), V(VB + 19)
    stats_finish(b, ST, mean, rstd)
    b.I("v_mul_f32", mean, mean, rstd)
    MR = [V(VB + 20 + i) for i in range(4)]; RS = [V(VB + 24 + i) for i in range(4)]
    bcast4(b, mean, MR); bcast4(b, rstd, RS)
    CS = V(144, 12); BI = V(156, 12)
    b.I("v_lshrrev_b32", vt0, 4, vL)
    b.I("v_lshlrev_b32", vt0, 4, vt0)
    b.I("s_mul_i32", sT0, sW, 192)
    b.I("v_add_u32", vt0, sT0, vt0)
    b.I("v_add_u32", vt1, T_CS1, vt0)
    b.I("v_add_u32", vt2, T_B1, vt0)
    for fb in range(3):
        b.I("ds_read_b128", CS[4 * fb:4 * fb + 4], vt1, mods=f"offset:{64 * fb}")
        b.I("ds_read_b128", BI[4 * fb:4 * fb + 4], vt2, mods=f"offset:{64 * fb}")
    b.I("s_mul_i32", sH, sG, 196608)
    b.I("s_add_u32", sH, sH, sLO)
    b.I("s_mul_i32", sT0, sJ, 24576)
    b.I("s_add_u32", sH, sH, sT0)
    b.I("s_mul_i32", sT0, sW, 6144)
    b.I("s_add_u32", sH, sH, sT0)
    b.I("s_add_u32", sH, sH, hex(off["H0"]))
    c0 = -2.0 * math.sqrt(2.0 / math.pi) * math.log2(math.e)
    sC0, sC1 = sP[3], sP[4]
    b.I("s_mov_b32", sC0, hex(f2u(c0))); b.I("s_mov_b32", sC1, hex(f2u(c0 * 0.044715)))
    vC0 = V(VB + 28)
    b.I("v_mov_b32", vC0, sC0)
    T = [V(168 + i) for i in range(4)]; U = [V(172 + i) for i in range(4)]; PKD = V(176, 2)
    for fb in range(3):
        for tb in range(4):
            a = ACC[fb][tb]
            for r in range(4): b.I("v_fma_f32", T[r], f"-{MR[tb]}", CS[4 * fb + r], BI[4 * fb + r])
            for r in range(4): b.I("v_fma_f32", a[r], RS[tb], a[r], T[r])
            for r in range(4): b.I("v_mul_f32", T[r], a[r], a[r])
            for r in range(4): b.I("v_fma_f32", T[r], T[r], sC1, vC0)
            for r in range(4): b.I("v_mul_f32", T[r], T[r], a[r])
            for r in range(4): b.I("v_exp_f32", T[r], T[r])
            for r in range(4): b.I("v_add_f32", T[r], 1.0, T[r])
            for r in range(4): b.I("v_rcp_f32", T[r], T[r])
            for r in range(4): b.I("v_mul_f32", a[r], a[r], T[r])
            for q in range(2): b.I("v_cvt_pk_bf16_f32", a[q], a[2 * q], a[2 * q + 1])
            b.I("buffer_store_dwordx2", a[0:2], vEpi, WS, sH, mods=f"offen offset:{tb * 256} sc1")
        if fb < 2: b.I("s_add_u32", sH, sH, 2048)

def ffn2_wload(b, rng=range(60)):
    b.I("s_lshl_b32", sT2, sJ, 2)
    b.I("s_add_u32", sT2, sT2, sW)
    b.I("s_mul_i32", sT2, sT2, 61440)
    b.I("s_add_u32", sT2, sT2, hex(off["W2P"] + (rng[0] // 4) * 4096))
    for f in rng:
        if f % 4 == 0 and f != rng[0]: b.I("s_add_u32", sT2, sT2, 4096)
        b.I("buffer_load_dwordx4", A(4 * f, 4), vL16, WS, sT2, mods=f"offen offset:{(f % 4) * 1024}")

def ffn2_phase(b, uid, final):
    sH, sRes, sDst, sSt = sP[0], sP[1], sP[2], sP[3]
    NB = 4
    XF = [[V(64 + 16 * p + 4 * a, 4) for a in range(4)] for p in range(NB)]
    ACC = [[V(128 + 20 * a + 4 * fb, 4) for fb in range(5)] for a in range(4)]
    RES = [V(208 + 2 * fb, 2) for fb in range(5)]
    vXa = [V(VB + 26 + a) for a in range(4)]
    for a in range(4):
        b.I("s_add_u32", sT0, sW, a)
        b.I("s_and_b32", sT0, sT0, 3)
        b.I("s_lshl_b32", sT0, sT0, 8)
        b.I("v_add_u32", vXa[a], sT0, vX16)
    b.I("s_mul_i32", sH, sG, 196608)
    b.I("s_add_u32", sH, sH, sLO)
    b.I("s_mul_i32", sT0, sW, 49152)
    b.I("s_add_u32", sH, sH, sT0)
    b.I("s_add_u32", sH, sH, hex(off["H0"]))
    def xload(s_):
        for a in range(4): b.I("buffer_load_dwordx4", XF[s_ % NB][a], vXa[a], WS, sH, mods="offen sc1")
        b.I("s_add_u32", sH, sH, 4096)
    for s_ in range(NB - 1): xload(s_)
    b.I("s_mul_i32", sRes, sG, 81920)
    b.I("s_add_u32", sRes, sRes, sLO)
    b.I("s_mul_i32", sT0, sJ, 10240)
    b.I("s_add_u32", sRes, sRes, sT0)
    b.I("s_lshl_b32", sT0, sW, 8)
    b.I("s_add_u32", sRes, sRes, sT0)
    b.I("s_add_u32", sDst, sRes, hex(off["XB0"] + LS))
    b.I("s_add_u32", sRes, sRes, hex(off["X10"]))
    resid_load(b, sRes, RES)
    for s_ in range(12):
        if s_ + NB - 1 < 12: xload(s_ + NB - 1)
        for fb in range(5):
            for a in range(4):
                b.I("v_mfma_f32_16x16x32_bf16", ACC[a][fb], A(4 * (5 * s_ + fb), 4), XF[s_ % NB][a], (0 if s_ == 0 else ACC[a][fb]))
    vR = V(VB + 30)
    b.barrier()
    for a in range(1, 4):
        b.I("s_add_u32", sT0, sW, a)
        b.I("s_and_b32", sT0, sT0, 3)
        b.I("s_mul_i32", sT0, sT0, 15360)
        b.I("s_add_u32", sT0, sT0, LDS_RED_F + (a - 1) * 5120)
        b.I("v_add_u32", vR, sT0, vL16)
        for fb in range(5): b.I("ds_write_b128", vR, ACC[a][fb], mods=f"offset:{fb * 1024}")
    b.I("s_mul_i32", sT0, sW, 15360)
    b.I("s_add_u32", sT0, sT0, LDS_RED_F)
    b.I("v_add_u32", vR, sT0, vL16)
    b.wait(lg=0)
    b.barrier()
    for a in range(1, 4):
        for fb in range(5): b.I("ds_read_b128", ACC[a][fb], vR, mods=f"offset:{(a - 1) * 5120 + fb * 1024}")
    for a in range(1, 4):
        for fb in range(5):
            for r in range(4): b.I("v_add_f32", ACC[0][fb][r], ACC[0][fb][r], ACC[a][fb][r])
    if final:
        b.I("s_lshl_b32", sT0, sG, 6)
        b.I("s_lshl_b32", sT1, sW, 4)
        b.I("s_add_u32", sT0, sT0, sT1)
        b.I("s_mul_i32", sDst, sT0, 1280)
        b.I("s_mul_i32", sT0, sJ, 160)
        b.I("s_add_u32", sDst, sDst, sT0)
        resid_epilogue(b, ACC[0], RES, True, sDst, None, final=True)
    else:
        b.I("s_lshl_b32", sSt, sG, 12)
        b.I("s_lshl_b32", sT0, sJ, 9)
        b.I("s_add_u32", sSt, sSt, sT0)
        b.I("s_lshl_b32", sT0, sW, 7)
        b.I("s_add_u32", sSt, sSt, sT0)
        b.I("s_add_u32", sSt, sSt, hex(off["STI0"] + LS))
        resid_epilogue(b, ACC[0], RES, True, sDst, sSt)
```

```python
import numpy as np
S_, D_, F_, H_, DH = 2048, 640, 1536, 32, 20
NG = 32
KB = 1024
def al(x, a=4096): return (x + a - 1) // a * a
off = {}
_cur = 0
def alloc(name, n):
    global _cur
    off[name] = _cur; _cur = al(_cur + n)
alloc("FLAGS", 64 * KB)
alloc("PROF", 256 * 4 * 128 * 4)
alloc("WQP", 8 * 4 * 40 * KB)
alloc("WOP", 8 * 100 * KB)
alloc("W1P", 8 * 4 * 60 * KB)
alloc("W2P", 8 * 4 * 60 * KB)
alloc("CSQ", 4 * 8 * 4 * 32 * 4)
alloc("CS1", 4 * 1536 * 4)
XB_SZ = NG * 80 * KB
ST_SZ = NG * 8 * 64 * 8
KV_REC = 3072
KV_SZ = 64 * KV_REC
H_SZ = NG * 192 * KB
QS_SZ = 256 * 4 * 3 * KB
for l in range(2):
    alloc(f"XB{l}", XB_SZ); alloc(f"STI{l}", ST_SZ); alloc(f"KV{l}", KV_SZ); alloc(f"QS{l}", QS_SZ); alloc(f"Q48_{l}", 256 * 4 * 12 * KB)
    alloc(f"O{l}", XB_SZ); alloc(f"X1{l}", XB_SZ); alloc(f"ST1{l}", ST_SZ); alloc(f"H{l}", H_SZ)
WS_USED = _cur
LAYER_STRIDE = off["XB1"] - off["XB0"]
for k in ("XB", "STI", "KV", "QS", "O", "X1", "ST1", "H"):
    assert off[k + "1"] - off[k + "0"] == LAYER_STRIDE

def swap23(d): return (d & 3) | ((d & 4) << 1) | ((d & 8) >> 1)

def blocked(x, nf):
    return x.reshape(NG, 64, nf // 8, 8).transpose(0, 2, 1, 3)
def unblocked(b, nf):
    return b.reshape(NG, nf // 8, 64, 8).transpose(0, 2, 1, 3).reshape(S_, nf)

def kvcol_slot(c):
    qq = (c % 20) >> 2
    w = 2 * (c >= 20) + (qq >= 3)
    return w, 20 + 4 * (qq % 3) + (c & 3)

def pack_wq(wq, wk, wv):
    out = np.zeros((8, 4, 40, 64, 8), wq.dtype); ok = np.zeros((8, 4, 40, 64), bool)
    wkv = np.concatenate([wk, wv], axis=1)
    for n in range(640):
        H, d = divmod(n, 20); j, w = H >> 2, H & 3
        m = swap23(d) if d < 16 else d
        col = wq[:, n].reshape(40, 2, 8)
        for h in range(2):
            out[j, w, :, h * 32 + m] = col[:, h]; ok[j, w, :, h * 32 + m] = True
    for c in range(40):
        w, m = kvcol_slot(c)
        col = wkv[:, c].reshape(40, 2, 8)
        for h in range(2):
            out[:, w, :, h * 32 + m] = col[None, :, h]; ok[:, w, :, h * 32 + m] = True
    return out, ok
def pack_wo(wo):
    return wo.reshape(80, 8, 8, 80).transpose(2, 0, 3, 1)
def pack_w1(w1):
    return w1.reshape(20, 4, 8, 8, 4, 3, 16).transpose(3, 4, 0, 5, 1, 6, 2)
def pack_w2(w2):
    return w2.reshape(4, 12, 4, 8, 8, 5, 16).transpose(4, 0, 1, 5, 2, 6, 3)
```

```python
from build import *
from k_l0 import gen_l0
import k_main as M

def split_kernels():
    ks = []; launches = []
    b = B(); gen_l0(b); ks.append(("l0_kernel", b.text(), 128, 0, 102)); launches.append(("l0_kernel", 256, 256, 8192))
    for l in range(2):
        def mk(name, fn):
            b = B(); M.setup(b, f"END_{name}", layer=l); fn(b); b.label(f"END_{name}")
            ks.append((name, b.text(), 256, 256, 102)); launches.append((name, 256, 256, M.LDS_BYTES))
            return b
        mk(f"qkv{l}_kernel", lambda b: (M.tables(b), M.qkv_wload(b), M.qkv_phase(b, f"q{l}"), M.q_spill(b, False)))
        ba = mk(f"att{l}_kernel", lambda b: (M.q_spill(b, True), M.attn_phase(b, f"a{l}")))
        e, x = ba.loop_states
        if l == 0:
            print("attention loop entry/exit pending:", len(e), len(x), "match:", e[-len(x):] == x if len(x) <= len(e) else False)
        mk(f"opr{l}_kernel", lambda b: M.oproj_phase(b, f"o{l}", M.oproj_wdma(b)))
        mk(f"ff1{l}_kernel", lambda b: (M.tables(b), M.ffn1_wload(b), M.ffn1_phase(b, f"f{l}")))
        mk(f"ff2{l}_kernel", lambda b: (M.tables(b), M.ffn2_wload(b), M.ffn2_phase(b, f"g{l}", final=(l == 1))))
    return launches, ks
if __name__ == "__main__":
    launches, ks = split_kernels()
    s = assemble_file(launches, ks)
    open("split.s", "w").write(s)
    print("bytes", len(s))
```

```python
from asmb import *
import layout as L
import k_main as M
from k_main import *

LDS_Q = 86016
LDS_PART = 86016
LDS_FLAG = TAB + 2560
LDS_MAX = 86016

def standin_fold(b, q, m, t0, t1, t2):
    b.I("v_sub_f32", t0, 0, m)
    b.I("v_and_b32", t1, "0xffff0000", t0)
    b.I("v_sub_f32", t0, t0, t1)
    b.I("v_and_b32", t2, "0xffff0000", t0)
    b.I("v_sub_f32", t0, t0, t2)
    b.I("v_lshrrev_b32", t1, 16, t1)
    b.I("v_or_b32", t1, t1, t2)
    b.I("v_lshrrev_b32", t0, 16, t0)
    b.I("v_cmp_gt_u32", "vcc", 32, vL)
    b.I("v_cndmask_b32", q[0], t1, q[0], "vcc")
    b.I("v_cndmask_b32", q[1], t0, q[1], "vcc")

def attn_pre(b, uid):
    km = V(64, 4); kt = V(68, 2); Sx = [V(72, 16), V(88, 16)]
    va = V(VB)
    b.I("v_add_u32", va, LDS_KVIMG, vL16)
    b.I("ds_read_b128", km, va)
    b.I("v_lshlrev_b32", vt0, 3, vL)
    b.I("v_add_u32", vt0, LDS_KVIMG + 1024, vt0)
    b.I("ds_read_b64", kt, vt0)
    b.I("v_cmp_gt_u32", "vcc", 32, vL)
    for th in range(2):
        for e in range(2): b.I("v_cndmask_b32", QT[th][e], 0, QT[th][e], "vcc")
    for th in range(2): b.I("v_mfma_f32_32x32x16_bf16", Sx[th], km, QM[th], 0)
    for th in range(2): b.I("v_mfma_f32_32x32x8_bf16", Sx[th], kt, QT[th], Sx[th])
    for th in range(2):
        m = V(VB + 1 + th)
        b.I("v_max3_f32", m, Sx[th][0], Sx[th][1], Sx[th][2])
        for i in range(3, 15, 2): b.I("v_max3_f32", m, m, Sx[th][i], Sx[th][i + 1])
        b.I("v_max_f32", m, m, Sx[th][15])
        b.I("v_mov_b32", vt0, m)
        b.I("v_permlane32_swap_b32", m, vt0)
        b.I("v_max_f32", m, m, vt0)
        standin_fold(b, QT[th], m, vt0, vt1, vt2)
    b.I("s_lshl_b32", sT0, sW, 12)
    b.I("v_add_u32", va, sT0, vL16)
    b.I("v_add_u32", va, LDS_Q, va)
    b.I("v_lshlrev_b32", vt1, 3, vL)
    b.I("v_add_u32", vt1, sT0, vt1)
    b.I("v_add_u32", vt1, LDS_Q + 1024, vt1)
    for th in range(2):
        b.I("ds_write_b128", va, QM[th], mods=f"offset:{2048 * th}")
        b.I("ds_write_b64", vt1, QT[th], mods=f"offset:{2048 * th}")
    b.wait(lg=0)
    b.barrier()
    for hd in range(4):
        b.I("s_add_u32", sT0, sW, hd)
        b.I("s_and_b32", sT0, sT0, 3)
        b.I("s_lshl_b32", sT0, sT0, 12)
        b.I("v_add_u32", va, sT0, vL16)
        b.I("v_add_u32", va, LDS_Q, va)
        b.I("v_lshlrev_b32", vt1, 3, vL)
        b.I("v_add_u32", vt1, sT0, vt1)
        b.I("v_add_u32", vt1, LDS_Q + 1024, vt1)
        for th in range(2):
            b.I("ds_read_b128", QA[2 * hd + th], va, mods=f"offset:{2048 * th}")
            b.I("ds_read_b64", QB[2 * hd + th], vt1, mods=f"offset:{2048 * th}")
    b.wait(lg=0)
    b.barrier()

QA = [V(128 + 4 * a, 4) for a in range(8)]
QB = [V(160 + 2 * a, 2) for a in range(8)]
KV2 = [dict(km=V(64 + 16 * p, 4), kt=V(68 + 16 * p, 2), v=[V(72 + 16 * p, 4), V(76 + 16 * p, 4)]) for p in range(2)]
SX = [V(96, 16), V(112, 16)]
PP = [V(176, 8), V(184, 8)]
OA = [A(16 * a, 16) for a in range(8)]

def attn_main(b, uid, sc="sc1", hook=None, fused=False, on_run=None):
    vKt, vV = V(VB), V(VB + 1)
    sKV, sOff, sCnt, sRetry = sP[0], sP[1], sP[2], sP[3]
    b.I("s_add_u32", sKV, sLO, hex(off["KV0"]))
    b.I("s_mul_i32", sT0, sW, 16 * 3072)
    b.I("s_add_u32", sKV, sKV, sT0)
    b.I("v_lshlrev_b32", vKt, 3, vL)
    b.I("v_add_u32", vKt, 1024, vKt)
    b.I("v_and_b32", vt0, 31, vL)
    b.I("v_lshrrev_b32", vt2, 5, vL)
    b.I("v_mul_u32_u24", vt2, 384, vt2)
    b.I("v_lshl_add_u32", vV, vt0, 4, vt2)
    b.I("v_add_u32", vV, 1536, vV)
    b.I("v_mov_b32", vt1, hex(OOB))
    b.I("v_cmp_ge_u32", "vcc", 20, vt0)
    b.I("v_cndmask_b32", vV, vt1, vV, "vcc")
    def loadk(p):
        b.I("buffer_load_dwordx4", KV2[p]["km"], vL16, WS, sOff, mods="offen " + sc)
        b.I("buffer_load_dwordx2", KV2[p]["kt"], vKt, WS, sOff, mods="offen " + sc)
    def loadv(p):
        b.I("buffer_load_dwordx4", KV2[p]["v"][0], vV, WS, sOff, mods="offen " + sc)
        b.I("buffer_load_dwordx4", KV2[p]["v"][1], vV, WS, sOff, mods="offen offset:768 " + sc)
    def qk_main(a, p): b.I("v_mfma_f32_32x32x16_bf16", SX[a % 2], KV2[p]["km"], QA[a], 0)
    def qk_tail(a, p): b.I("v_mfma_f32_32x32x8_bf16", SX[a % 2], KV2[p]["kt"], QB[a], SX[a % 2])
    def pv(a, p, mf): b.I("v_mfma_f32_32x32x16_bf16", OA[a], KV2[p]["v"][mf], PP[a % 2][4 * mf:4 * mf + 4], OA[a])
    b.I("s_mov_b32", sRetry, 0)
    if not fused:
        for a in range(8):
            for i in range(16): b.I("v_accvgpr_write_b32", OA[a][i], 0)
    b.label(f"ATT_RUN_{uid}")
    b.clear_hist(); b.nop(2)
    if not fused: stamp(b, "run")
    if on_run: on_run()
    b.I("s_mov_b32", sOff, sKV)
    loadk(0); loadv(0)
    b.I("s_add_u32", sOff, sOff, 3072)
    loadk(1)
    for i in range(8): b.I("v_mov_b32", PP[1][i], 0)
    for e in range(8): b.I("v_mov_b32", V(KV2[1]["v"][0].i + e), 0)
    for i in range(12, 16): b.I("v_mov_b32", SX[1][i], 0)
    qk_main(0, 0)
    b.nop(10)
    qk_tail(0, 0)
    b.nop(12)
    stamp(b, "loop_in")
    b.I("s_mov_b32", sCnt, 8)
    b.align(6)
    b.label(f"ATT_LOOP_{uid}")
    b.clear_hist()
    b.vm = [(("kv", 9), KV2[0]["v"][0].regs()), (("kv", 9), KV2[0]["v"][1].regs()),
            (("kv", 8), KV2[1]["km"].regs()), (("kv", 8), KV2[1]["kt"].regs())]
    entry = [e[1] for e in b.vm]
    def step(a, p, extra):
        s_ = SX[a % 2]; P_ = PP[a % 2]; sprev = SX[(a + 1) % 2]; Pprev = PP[(a + 1) % 2]
        an, pn = (a + 1) % 8, (p if a < 7 else 1 - p)
        ap, pp_ = (a - 1) % 8, (p if a > 0 else 1 - p)
        ex = lambda i: b.I("v_exp_f32", s_[i], s_[i])
        cv = lambda i: b.I("v_cvt_pk_bf16_f32", P_[i], s_[2 * i], s_[2 * i + 1])
        b.I("v_cvt_pk_bf16_f32", Pprev[6], sprev[12], sprev[13])
        ex(0)
        b.I("v_cvt_pk_bf16_f32", Pprev[7], sprev[14], sprev[15])
        ex(1)
        qk_main(an, pn)
        ex(2); ex(3); ex(4); ex(5); cv(0); cv(1)
        pv(ap, pp_, 0)
        for x in extra.get(0, []): x()
        ex(6); ex(7); ex(8); ex(9)
        qk_tail(an, pn)
        cv(2); ex(10); ex(11); cv(3); ex(12); ex(13); cv(4)
        pv(ap, pp_, 1)
        ex(14); ex(15); cv(5)
        for x in extra.get(1, []): x()
    for p in range(2):
        for a in range(8):
            extra = {}
            if a == 1: extra = {0: [lambda p=p: loadv(1 - p)], 1: [lambda: b.I("s_add_u32", sOff, sOff, 3072)]}
            if a == 7: extra = {1: [lambda p=p: loadk(p)]}
            if hook: hook(p, a, extra)
            step(a, p, extra)
    b.I("s_sub_u32", sCnt, sCnt, 1)
    b.I("s_cmp_lg_u32", sCnt, 0)
    b.I("s_cbranch_scc1", f"ATT_LOOP_{uid}")
    b.loop_states = (entry, [e[1] for e in b.vm])
    stamp(b, "loop_out")
    b.I("v_cvt_pk_bf16_f32", PP[1][6], SX[1][12], SX[1][13])
    b.I("v_cvt_pk_bf16_f32", PP[1][7], SX[1][14], SX[1][15])
    pv(7, 1, 0); pv(7, 1, 1)
    b.wait(vm=0)
    stamp(b, "drain")
    vR = V(VB + 2)
    b.barrier()
    for hd in range(1, 4):
        b.I("s_add_u32", sT0, sW, hd)
        b.I("s_and_b32", sT0, sT0, 3)
        b.I("s_mul_i32", sT0, sT0, 18432)
        b.I("s_add_u32", sT0, sT0, LDS_PART + (hd - 1) * 6144)
        b.I("v_add_u32", vR, sT0, vL16)
        for th in range(2):
            for c in range(3): b.I("ds_write_b128", vR, OA[2 * hd + th][4 * c:4 * c + 4], mods=f"offset:{th * 3072 + c * 1024}")
    OO = [V(192, 12), V(204, 12)]
    TT = [V(64, 12), V(76, 12), V(88, 12)]
    for th in range(2):
        for i in range(12): b.I("v_accvgpr_read_b32", OO[th][i], OA[th][i])
    b.I("s_mul_i32", sT0, sW, 18432)
    b.I("s_add_u32", sT0, sT0, LDS_PART)
    b.I("v_add_u32", vR, sT0, vL16)
    b.wait(lg=0)
    b.barrier()
    for th in range(2):
        for sl in range(3):
            for c in range(3): b.I("ds_read_b128", TT[sl][4 * c:4 * c + 4], vR, mods=f"offset:{sl * 6144 + th * 3072 + c * 1024}")
        for sl in range(3):
            for i in range(12): b.I("v_add_f32", OO[th][i], OO[th][i], TT[sl][i])
    stamp(b, "reduced")
    lreg = [V(VB + 5), V(VB + 6)]
    for q in range(2):
        b.I("v_mov_b32", lreg[q], OO[q][8])
        b.I("v_mov_b32", vt0, OO[q][8])
        b.I("v_permlane32_swap_b32", vt0, lreg[q])
    b.I("v_mov_b32", vt2, hex(f2u(2.0 ** 60)))
    b.I("v_cmp_nlt_f32", S(48, 2), lreg[0], vt2)
    b.I("v_cmp_nlt_f32", S(50, 2), lreg[1], vt2)
    b.I("v_mov_b32", vt1, 0)
    for q in range(2):
        for i in range(12): b.I("v_fmac_f32", vt1, 0, OO[q][i])
    b.I("v_cmp_u_f32", "vcc", vt1, vt1)
    b.I("s_or_b64", S(48, 2), S(48, 2), S(50, 2))
    b.I("s_or_b64", S(48, 2), S(48, 2), "vcc")
    b.I("s_cmp_lg_u64", S(48, 2), 0)
    b.I("s_cselect_b32", sT0, 1, 0)
    b.I("s_cmp_eq_u32", sRetry, 1)
    b.I("s_cselect_b32", sT0, 0, sT0)
    b.I("v_mov_b32", vt0, sT0)
    b.I("s_lshl_b32", sT1, sW, 2)
    b.I("s_add_u32", sT1, sT1, LDS_FLAG)
    b.I("v_mov_b32", vt1, sT1)
    b.I("ds_write_b32", vt1, vt0)
    b.wait(lg=0)
    b.barrier()
    b.I("v_mov_b32", vt1, LDS_FLAG)
    FL = V(VB + 8, 4)
    b.I("ds_read_b128", FL, vt1)
    b.I("v_or_b32", FL[0], FL[0], FL[1]); b.I("v_or_b32", FL[2], FL[2], FL[3]); b.I("v_or_b32", FL[0], FL[0], FL[2])
    b.I("v_readfirstlane_b32", sT0, FL[0])
    b.I("s_cmp_eq_u32", sT0, 0)
    b.I("s_cbranch_scc1", f"ATT_OK_{uid}")
    b.I("s_mov_b32", sRetry, 1)
    MX = [V(192 + a) for a in range(8)]
    QZ = V(200, 2)
    for a in range(8): b.I("v_mov_b32", MX[a], hex(f2u(-3.0e38)))
    b.I("s_mov_b32", sOff, sKV)
    b.I("s_mov_b32", sCnt, 16)
    b.label(f"ATT_MAX_{uid}")
    b.clear_hist()
    loadk(0)
    b.I("s_add_u32", sOff, sOff, 3072)
    b.I("v_cmp_gt_u32", "vcc", 32, vL)
    for a in range(8):
        for e in range(2): b.I("v_cndmask_b32", QZ[e], 0, QB[a][e], "vcc")
        b.I("v_mfma_f32_32x32x16_bf16", SX[0], KV2[0]["km"], QA[a], 0)
        b.nop(10)
        b.I("v_mfma_f32_32x32x8_bf16", SX[0], KV2[0]["kt"], QZ, SX[0])
        for i in range(0, 16, 2): b.I("v_max3_f32", MX[a], MX[a], SX[0][i], SX[0][i + 1])
    b.I("s_sub_u32", sCnt, sCnt, 1)
    b.I("s_cmp_lg_u32", sCnt, 0)
    b.I("s_cbranch_scc1", f"ATT_MAX_{uid}")
    b.barrier()
    for a in range(8):
        b.I("v_mov_b32", vt0, MX[a])
        b.I("v_permlane32_swap_b32", MX[a], vt0)
        b.I("v_max_f32", MX[a], MX[a], vt0)
        b.I("s_add_u32", sT0, sW, a // 2)
        b.I("s_and_b32", sT0, sT0, 3)
        b.I("s_lshl_b32", sT0, sT0, 9)
        b.I("s_lshl_b32", sT1, sW, 11)
        b.I("s_add_u32", sT0, sT0, sT1)
        b.I("s_add_u32", sT0, sT0, LDS_MAX + (a & 1) * 256)
        b.I("v_lshlrev_b32", vt1, 2, vL)
        b.I("v_add_u32", vt1, sT0, vt1)
        b.I("ds_write_b32", vt1, MX[a])
    b.wait(lg=0)
    b.barrier()
    for a in range(8):
        b.I("s_add_u32", sT0, sW, a // 2)
        b.I("s_and_b32", sT0, sT0, 3)
        b.I("s_lshl_b32", sT0, sT0, 9)
        b.I("s_add_u32", sT0, sT0, LDS_MAX + (a & 1) * 256)
        b.I("v_lshlrev_b32", vt1, 2, vL)
        b.I("v_add_u32", vt1, sT0, vt1)
        T4 = V(204, 4)
        for ww in range(4): b.I("ds_read_b32", T4[ww], vt1, mods=f"offset:{2048 * ww}")
        b.I("v_max3_f32", T4[0], T4[0], T4[1], T4[2])
        b.I("v_max_f32", T4[0], T4[0], T4[3])
        standin_fold(b, QB[a], T4[0], vt0, vt2, vt3)
    for a in range(8):
        for i in range(16): b.I("v_accvgpr_write_b32", OA[a][i], 0)
    b.wait(lg=0)
    b.barrier()
    b.I("s_branch", f"ATT_RUN_{uid}")
    b.label(f"ATT_OK_{uid}")
    b.clear_hist(); b.nop(2)
    sO = sP[0]
    b.I("s_mul_i32", sO, sG, 81920)
    b.I("s_add_u32", sO, sO, sLO)
    b.I("s_mul_i32", sT0, sJ, 10240)
    b.I("s_add_u32", sO, sO, sT0)
    b.I("s_add_u32", sO, sO, hex(off["O0"]))
    vo = V(VB + 7); vo2 = V(VB + 8)
    b.I("s_mul_i32", sT0, sW, 5)
    b.I("v_lshrrev_b32", vt0, 5, vL)
    b.I("v_add_u32", vt0, sT0, vt0)
    b.I("v_lshrrev_b32", vt1, 1, vt0)
    b.I("v_lshlrev_b32", vo, 10, vt1)
    b.I("v_and_b32", vt1, 1, vt0)
    b.I("v_lshl_add_u32", vo, vt1, 3, vo)
    b.I("v_and_b32", vt1, 31, vL)
    b.I("v_lshl_add_u32", vo, vt1, 4, vo)
    b.I("v_cmp_gt_u32", "vcc", 32, vL)
    b.I("v_mov_b32", vt1, hex(OOB))
    b.I("v_cndmask_b32", vo2, vt1, vo, "vcc")
    for q in range(2):
        b.I("v_rcp_f32", lreg[q], lreg[q])
        for i in range(12): b.I("v_mul_f32", OO[q][i], lreg[q], OO[q][i])
        for i in range(6): b.I("v_cvt_pk_bf16_f32", PP[q][i], OO[q][2 * i], OO[q][2 * i + 1])
        for c in range(3):
            tag = b.I("buffer_store_dwordx2", PP[q][2 * c:2 * c + 2], (vo if c < 2 else vo2), WS, sO, mods=f"offen offset:{c * 1024 + q * 512} sc1")
    return tag


def attn_main2(b, uid, wo_dma, on_run, sc="sc1"):
    fused = True
    ORDER = [2, 3, 4, 5, 6, 7, 0, 1]
    vKt, vV = V(VB), V(VB + 1)
    sKV, sOff, sCnt, sRetry = sP[0], sP[1], sP[2], sP[3]
    b.I("s_add_u32", sKV, sLO, hex(off["KV0"]))
    b.I("s_mul_i32", sT0, sW, 16 * 3072)
    b.I("s_add_u32", sKV, sKV, sT0)
    b.I("v_lshlrev_b32", vKt, 3, vL)
    b.I("v_add_u32", vKt, 1024, vKt)
    b.I("v_and_b32", vt0, 31, vL)
    b.I("v_lshrrev_b32", vt2, 5, vL)
    b.I("v_mul_u32_u24", vt2, 384, vt2)
    b.I("v_lshl_add_u32", vV, vt0, 4, vt2)
    b.I("v_add_u32", vV, 1536, vV)
    b.I("v_mov_b32", vt1, hex(OOB))
    b.I("v_cmp_ge_u32", "vcc", 20, vt0)
    b.I("v_cndmask_b32", vV, vt1, vV, "vcc")
    def loadk(p):
        b.I("buffer_load_dwordx4", KV2[p]["km"], vL16, WS, sOff, mods="offen " + sc)
        b.I("buffer_load_dwordx2", KV2[p]["kt"], vKt, WS, sOff, mods="offen " + sc)
    def loadv(p):
        b.I("buffer_load_dwordx4", KV2[p]["v"][0], vV, WS, sOff, mods="offen " + sc)
        b.I("buffer_load_dwordx4", KV2[p]["v"][1], vV, WS, sOff, mods="offen offset:768 " + sc)
    def qk_main(i, p): b.I("v_mfma_f32_32x32x16_bf16", SX[i % 2], KV2[p]["km"], QA[ORDER[i]], 0)
    def qk_tail(i, p): b.I("v_mfma_f32_32x32x8_bf16", SX[i % 2], KV2[p]["kt"], QB[ORDER[i]], SX[i % 2])
    def pv(i, p, mf): b.I("v_mfma_f32_32x32x16_bf16", OA[ORDER[i]], KV2[p]["v"][mf], PP[i % 2][4 * mf:4 * mf + 4], OA[ORDER[i]])
    b.I("s_mov_b32", sRetry, 0)
    if not fused:
        for a in range(8):
            for i in range(16): b.I("v_accvgpr_write_b32", OA[a][i], 0)
    b.label(f"ATT_RUN_{uid}")
    b.clear_hist(); b.nop(2)
    if not fused: stamp(b, "run")
    if on_run: on_run()
    b.I("s_mov_b32", sOff, sKV)
    loadk(0); loadv(0)
    b.I("s_add_u32", sOff, sOff, 3072)
    loadk(1)
    for i in range(8): b.I("v_mov_b32", PP[1][i], 0)
    for e in range(8): b.I("v_mov_b32", V(KV2[1]["v"][0].i + e), 0)
    for i in range(12, 16): b.I("v_mov_b32", SX[1][i], 0)
    qk_main(0, 0)
    b.nop(10)
    qk_tail(0, 0)
    b.nop(12)
    stamp(b, "loop_in")
    b.I("s_mov_b32", sCnt, 7)
    vRw = [V(VB + 2 + hd) for hd in range(3)]; vR = V(VB + 9)
    for hd in range(1, 4):
        b.I("s_add_u32", sT0, sW, hd)
        b.I("s_and_b32", sT0, sT0, 3)
        b.I("s_mul_i32", sT0, sT0, 18432)
        b.I("s_add_u32", sT0, sT0, LDS_PART + (hd - 1) * 6144)
        b.I("v_add_u32", vRw[hd - 1], sT0, vL16)
    b.I("s_mul_i32", sT0, sW, 18432)
    b.I("s_add_u32", sT0, sT0, LDS_PART)
    b.I("v_add_u32", vR, sT0, vL16)
    b.align(6)
    b.label(f"ATT_LOOP_{uid}")
    b.clear_hist()
    b.vm = [(("kv", 9), KV2[0]["v"][0].regs()), (("kv", 9), KV2[0]["v"][1].regs()),
            (("kv", 8), KV2[1]["km"].regs()), (("kv", 8), KV2[1]["kt"].regs())]
    entry = [e[1] for e in b.vm]
    def step(a, p, extra):
        s_ = SX[a % 2]; P_ = PP[a % 2]; sprev = SX[(a + 1) % 2]; Pprev = PP[(a + 1) % 2]
        an, pn = (a + 1) % 8, (p if a < 7 else 1 - p)
        ap, pp_ = (a - 1) % 8, (p if a > 0 else 1 - p)
        ex = lambda i: b.I("v_exp_f32", s_[i], s_[i])
        cv = lambda i: b.I("v_cvt_pk_bf16_f32", P_[i], s_[2 * i], s_[2 * i + 1])
        b.I("v_cvt_pk_bf16_f32", Pprev[6], sprev[12], sprev[13])
        ex(0)
        b.I("v_cvt_pk_bf16_f32", Pprev[7], sprev[14], sprev[15])
        ex(1)
        qk_main(an, pn)
        ex(2); ex(3); ex(4); ex(5); cv(0); cv(1)
        pv(ap, pp_, 0)
        for x in extra.get(0, []): x()
        ex(6); ex(7); ex(8); ex(9)
        qk_tail(an, pn)
        cv(2); ex(10); ex(11); cv(3); ex(12); ex(13); cv(4)
        pv(ap, pp_, 1)
        ex(14); ex(15); cv(5)
        for x in extra.get(1, []): x()
    def part_writes(a):
        hd, th = a // 2, a % 2
        return [lambda c=c: b.I("ds_write_b128", vRw[hd - 1], OA[a][4 * c:4 * c + 4], mods=f"offset:{th * 3072 + c * 1024}") for c in range(3)]
    def body(last):
        for p in range(2):
            for a in range(8):
                extra = {}
                if a == 1 and not (last and p == 1): extra = {0: [lambda p=p: loadv(1 - p)], 1: [lambda: b.I("s_add_u32", sOff, sOff, 3072)]}
                if a == 7 and not last: extra = {1: [lambda p=p: loadk(p)]}
                if not last and p == 0 and a == 3: extra.setdefault(0, []).append(wo_dma)
                if last and p == 1 and a >= 2:
                    w = part_writes(ORDER[a - 2])
                    extra.setdefault(0, []).extend(w[:2]); extra.setdefault(1, []).append(w[2])
                step(a, p, extra)
    body(False)
    b.I("s_sub_u32", sCnt, sCnt, 1)
    b.I("s_cmp_lg_u32", sCnt, 0)
    b.I("s_cbranch_scc1", f"ATT_LOOP_{uid}")
    b.loop_states = (entry, [e[1] for e in b.vm])
    body(True)
    stamp(b, "loop_out")
    b.I("v_cvt_pk_bf16_f32", PP[1][6], SX[1][12], SX[1][13])
    b.I("v_cvt_pk_bf16_f32", PP[1][7], SX[1][14], SX[1][15])
    pv(7, 1, 0); pv(7, 1, 1)
    OO = [V(192, 12), V(204, 12)]
    TT = [V(64, 12), V(76, 12), V(88, 12)]
    for i in range(12): b.I("v_accvgpr_read_b32", OO[0][i], OA[0][i])
    for i in range(12): b.I("v_accvgpr_read_b32", OO[1][i], OA[1][i])
    b.wait(vm=0, lg=0)
    stamp(b, "drain")
    b.barrier()
    for th in range(2):
        for sl in range(3):
            for c in range(3): b.I("ds_read_b128", TT[sl][4 * c:4 * c + 4], vR, mods=f"offset:{sl * 6144 + th * 3072 + c * 1024}")
        for sl in range(3):
            for i in range(0, 12, 2): b.I("v_pk_add_f32", OO[th][i:i + 2], OO[th][i:i + 2], TT[sl][i:i + 2])
    stamp(b, "reduced")
    lreg = [V(VB + 5), V(VB + 6)]
    for q in range(2):
        b.I("v_mov_b32", lreg[q], OO[q][8])
        b.I("v_mov_b32", vt0, OO[q][8])
        b.I("v_permlane32_swap_b32", vt0, lreg[q])
    b.I("v_mov_b32", vt2, hex(f2u(2.0 ** 60)))
    b.I("v_cmp_nlt_f32", S(48, 2), lreg[0], vt2)
    b.I("v_cmp_nlt_f32", S(50, 2), lreg[1], vt2)
    b.I("v_mov_b32", vt1, 0)
    for q in range(2):
        for i in range(12): b.I("v_fmac_f32", vt1, 0, OO[q][i])
    b.I("v_cmp_u_f32", "vcc", vt1, vt1)
    b.I("s_or_b64", S(48, 2), S(48, 2), S(50, 2))
    b.I("s_or_b64", S(48, 2), S(48, 2), "vcc")
    b.I("s_cmp_lg_u64", S(48, 2), 0)
    b.I("s_cselect_b32", sT0, 1, 0)
    b.I("s_cmp_eq_u32", sRetry, 1)
    b.I("s_cselect_b32", sT0, 0, sT0)
    b.I("v_mov_b32", vt0, sT0)
    b.I("s_lshl_b32", sT1, sW, 2)
    b.I("s_add_u32", sT1, sT1, LDS_FLAG)
    b.I("v_mov_b32", vt1, sT1)
    b.I("ds_write_b32", vt1, vt0)
    b.wait(lg=0)
    b.barrier()
    b.I("v_mov_b32", vt1, LDS_FLAG)
    FL = V(VB + 8, 4)
    b.I("ds_read_b128", FL, vt1)
    b.I("v_or_b32", FL[0], FL[0], FL[1]); b.I("v_or_b32", FL[2], FL[2], FL[3]); b.I("v_or_b32", FL[0], FL[0], FL[2])
    b.I("v_readfirstlane_b32", sT0, FL[0])
    b.I("s_cmp_eq_u32", sT0, 0)
    b.I("s_cbranch_scc1", f"ATT_OK_{uid}")
    b.I("s_mov_b32", sRetry, 1)
    MX = [V(192 + a) for a in range(8)]
    QZ = V(200, 2)
    for a in range(8): b.I("v_mov_b32", MX[a], hex(f2u(-3.0e38)))
    b.I("s_mov_b32", sOff, sKV)
    b.I("s_mov_b32", sCnt, 16)
    b.label(f"ATT_MAX_{uid}")
    b.clear_hist()
    loadk(0)
    b.I("s_add_u32", sOff, sOff, 3072)
    b.I("v_cmp_gt_u32", "vcc", 32, vL)
    for a in range(8):
        for e in range(2): b.I("v_cndmask_b32", QZ[e], 0, QB[a][e], "vcc")
        b.I("v_mfma_f32_32x32x16_bf16", SX[0], KV2[0]["km"], QA[a], 0)
        b.nop(10)
        b.I("v_mfma_f32_32x32x8_bf16", SX[0], KV2[0]["kt"], QZ, SX[0])
        for i in range(0, 16, 2): b.I("v_max3_f32", MX[a], MX[a], SX[0][i], SX[0][i + 1])
    b.I("s_sub_u32", sCnt, sCnt, 1)
    b.I("s_cmp_lg_u32", sCnt, 0)
    b.I("s_cbranch_scc1", f"ATT_MAX_{uid}")
    b.barrier()
    for a in range(8):
        b.I("v_mov_b32", vt0, MX[a])
        b.I("v_permlane32_swap_b32", MX[a], vt0)
        b.I("v_max_f32", MX[a], MX[a], vt0)
        b.I("s_add_u32", sT0, sW, a // 2)
        b.I("s_and_b32", sT0, sT0, 3)
        b.I("s_lshl_b32", sT0, sT0, 9)
        b.I("s_lshl_b32", sT1, sW, 11)
        b.I("s_add_u32", sT0, sT0, sT1)
        b.I("s_add_u32", sT0, sT0, LDS_MAX + (a & 1) * 256)
        b.I("v_lshlrev_b32", vt1, 2, vL)
        b.I("v_add_u32", vt1, sT0, vt1)
        b.I("ds_write_b32", vt1, MX[a])
    b.wait(lg=0)
    b.barrier()
    for a in range(8):
        b.I("s_add_u32", sT0, sW, a // 2)
        b.I("s_and_b32", sT0, sT0, 3)
        b.I("s_lshl_b32", sT0, sT0, 9)
        b.I("s_add_u32", sT0, sT0, LDS_MAX + (a & 1) * 256)
        b.I("v_lshlrev_b32", vt1, 2, vL)
        b.I("v_add_u32", vt1, sT0, vt1)
        T4 = V(204, 4)
        for ww in range(4): b.I("ds_read_b32", T4[ww], vt1, mods=f"offset:{2048 * ww}")
        b.I("v_max3_f32", T4[0], T4[0], T4[1], T4[2])
        b.I("v_max_f32", T4[0], T4[0], T4[3])
        standin_fold(b, QB[a], T4[0], vt0, vt2, vt3)
    for a in range(8):
        for i in range(16): b.I("v_accvgpr_write_b32", OA[a][i], 0)
    b.wait(lg=0)
    b.barrier()
    b.I("s_branch", f"ATT_RUN_{uid}")
    b.label(f"ATT_OK_{uid}")
    b.clear_hist(); b.nop(2)
    sO = sP[0]
    b.I("s_mul_i32", sO, sG, 81920)
    b.I("s_add_u32", sO, sO, sLO)
    b.I("s_mul_i32", sT0, sJ, 10240)
    b.I("s_add_u32", sO, sO, sT0)
    b.I("s_add_u32", sO, sO, hex(off["O0"]))
    vo = V(VB + 7); vo2 = V(VB + 8)
    b.I("s_mul_i32", sT0, sW, 5)
    b.I("v_lshrrev_b32", vt0, 5, vL)
    b.I("v_add_u32", vt0, sT0, vt0)
    b.I("v_lshrrev_b32", vt1, 1, vt0)
    b.I("v_lshlrev_b32", vo, 10, vt1)
    b.I("v_and_b32", vt1, 1, vt0)
    b.I("v_lshl_add_u32", vo, vt1, 3, vo)
    b.I("v_and_b32", vt1, 31, vL)
    b.I("v_lshl_add_u32", vo, vt1, 4, vo)
    b.I("v_cmp_gt_u32", "vcc", 32, vL)
    b.I("v_mov_b32", vt1, hex(OOB))
    b.I("v_cndmask_b32", vo2, vt1, vo, "vcc")
    for q in range(2):
        b.I("v_rcp_f32", lreg[q], lreg[q])
        for i in range(12): b.I("v_mul_f32", OO[q][i], lreg[q], OO[q][i])
        for i in range(6): b.I("v_cvt_pk_bf16_f32", PP[q][i], OO[q][2 * i], OO[q][2 * i + 1])
        for c in range(3):
            tag = b.I("buffer_store_dwordx2", PP[q][2 * c:2 * c + 2], (vo if c < 2 else vo2), WS, sO, mods=f"offen offset:{c * 1024 + q * 512} sc1")
    return tag
```

```python
from asmb import *
import layout as L
import k_main as M
from k_main import *
import k_att2 as A2
from k_att2 import QA, QB, KV2, SX, PP, OA, standin_fold, LDS_Q, LDS_PART, LDS_FLAG, LDS_MAX

SPIN_MAX = 400000
sGS, sFG, sFA, sGT = S(52), S(53), S(54), S(55)
sWQ, sW1, sW2 = S(40), S(41), S(42)
sBX = S(43)
sWp = S(47)
F_GRID = off["FLAGS"] + 32768
PARK = 0x27F00
def slot(f): return A(4 * ((f + 32) % 64), 4)

class Fill:
    def __init__(self): self.q = []; self.credit = 0
    def add(self, c, f): self.q.append((c, f))
    def v(self, b, *a, **k): self.add(4, lambda: b.I(*a, **k))
    def run(self, budget):
        self.credit += budget
        while self.q and self.q[0][0] <= self.credit:
            c, f = self.q.pop(0); self.credit -= c; f()
    def flush(self):
        for c, f in self.q: f()
        self.q = []; self.credit = 0

def wops(b, sbase, frs):
    ops = []
    cur = None
    for f in frs:
        def one(f=f, cur=cur):
            if cur is None: b.I("s_add_u32", sWp, sbase, (f // 4) * 4096)
            elif f // 4 != cur: b.I("s_add_u32", sWp, sWp, (f // 4 - cur) * 4096)
            b.I("buffer_load_dwordx4", slot(f), vL16, WS, sWp, mods=f"offen offset:{(f % 4) * 1024}")
        ops.append(one); cur = f // 4
    return ops

def dma_ops(b, ssrc, slds, n, sc):
    tags = []
    def one(q):
        if q == 0: b.I("s_mov_b32", "m0", slds)
        tags.append(b.I("buffer_load_dwordx4", vL16, WS, ssrc, mods=f"offen offset:{q * 1024} {sc} lds"))
    return [lambda q=q: one(q) for q in range(n)], tags

class XTile:
    def __init__(self, b, sX, lds_base, s0, s1):
        self.b = b; self.s0, self.s1 = s0, s1; self.tags = {}
        b.I("s_lshl_b32", s0, sW, 12)
        b.I("s_add_u32", s1, s0, lds_base)
        b.I("s_add_u32", s0, s0, sX)
    def ops(self, c):
        b = self.b
        ops, tags = dma_ops(b, self.s0, self.s1, 4, "sc1")
        self.tags[c] = tags
        last = ops[3]
        def fin():
            last()
            b.I("s_add_u32", self.s0, self.s0, 16384)
            b.I("s_add_u32", self.s1, self.s1, 16384)
        ops[3] = fin
        return ops
    def wait(self, c):
        self.b.wait_vm_tag(self.tags[c][-1])
        self.b.barrier()

def arrive(b, sflag, uid):
    b.I("s_cmp_lg_u32", sW, 0)
    b.I("s_cbranch_scc1", f"ARR_{uid}")
    b.I("v_mov_b32", vt0, 0); b.I("v_mov_b32", vt1, 1)
    b.I("s_mov_b64", "exec", 1)
    b.I("buffer_atomic_add", vt1, vt0, WS, sflag, mods="offen sc1")
    b.vm.pop()
    b.I("s_mov_b64", "exec", -1)
    b.label(f"ARR_{uid}")
    b.clear_hist(); b.nop(1)

def window_poll(b, sflag, starget, uid, window, late=3):
    window = list(window)
    late = min(late, len(window))
    for op in window[:len(window) - late]: op()
    vP = V(254)
    b.I("s_cmp_lg_u32", sW, 0)
    b.I("s_cbranch_scc1", f"PL0_{uid}")
    b.I("v_mov_b32", vt0, 0)
    b.I("buffer_load_dword", vP, vt0, WS, sflag, mods="offen sc1")
    b.vm.pop()
    b.label(f"PL0_{uid}")
    b.clear_hist()
    for op in window[len(window) - late:]: op()
    snap = b.snapshot()
    b.I("s_cmp_lg_u32", sW, 0)
    b.I("s_cbranch_scc1", f"POLLE_{uid}")
    b.wait(vm=late)
    b.I("s_mov_b32", sT2, 0)
    b.I("v_readfirstlane_b32", sT3, vP)
    b.I("s_cmp_ge_u32", sT3, starget)
    b.I("s_cbranch_scc1", f"POLLE_{uid}")
    b.I("v_mov_b32", vt0, 0)
    b.label(f"POLL_{uid}")
    b.I("buffer_load_dword", vP, vt0, WS, sflag, mods="offen sc1")
    b.wait(vm=0)
    b.I("v_readfirstlane_b32", sT3, vP)
    b.I("s_add_u32", sT2, sT2, 1)
    b.I("s_cmp_ge_u32", sT3, starget)
    b.I("s_cbranch_scc1", f"POLLE_{uid}")
    b.I("s_cmp_lt_u32", sT2, SPIN_MAX)
    b.I("s_cbranch_scc1", f"POLL_{uid}")
    b.label(f"POLLE_{uid}")
    b.restore(snap)
    b.clear_hist()
    b.barrier()

def group_sync(b, store_tag, uid, window):
    b.wait_vm_tag(store_tag)
    stamp(b, uid + "_drained")
    b.barrier()
    arrive(b, sFG, uid)
    b.I("s_add_u32", sGS, sGS, 8)
    window_poll(b, sFG, sGS, uid, window)

def grid_arrive(b, store_tag, uid):
    b.wait_vm_tag(store_tag)
    b.barrier()
    b.I("s_add_u32", sGT, sGT, 32)
    b.I("s_cmp_lg_u32", sW, 0)
    b.I("s_cbranch_scc1", f"GA_{uid}")
    snap = b.snapshot()
    b.I("v_mov_b32", vt0, 0); b.I("v_mov_b32", vt1, 1)
    b.I("s_mov_b64", "exec", 1)
    b.I("buffer_atomic_add", vt1, vt0, WS, sFA, mods="offen sc0 sc1")
    b.wait(vm=0)
    b.I("v_readfirstlane_b32", sT0, vt1)
    b.I("s_mov_b64", "exec", -1)
    b.I("s_and_b32", sT0, sT0, 7)
    b.I("s_cmp_lg_u32", sT0, 7)
    b.I("s_cbranch_scc1", f"GA_{uid}")
    b.I("v_mov_b32", vt1, 1)
    b.I("s_mov_b64", "exec", 1)
    b.I("s_mov_b32", sT0, hex(F_GRID))
    b.I("buffer_atomic_add", vt1, vt0, WS, sT0, mods="offen sc1")
    b.I("s_mov_b64", "exec", -1)
    b.label(f"GA_{uid}")
    b.restore(snap)
    b.clear_hist(); b.nop(1)

def stats_ops(b, base_sgpr, ST, va):
    ops = [lambda: b.I("v_lshlrev_b32", va, 3, vL)]
    for s_ in range(8):
        ops.append(lambda s_=s_: b.I("buffer_load_dwordx2", ST[s_], va, WS, base_sgpr, mods=f"offen offset:{s_ * 512} sc1"))
    return ops
def stats_fill(b, f, ST, mean, rstd):
    for (x, y) in ((0, 1), (2, 3), (4, 5), (6, 7), (0, 2), (4, 6), (0, 4)): f.v(b, "v_pk_add_f32", ST[x], ST[x], ST[y])
    f.v(b, "v_mul_f32", mean, hex(f2u(1.0 / 640)), ST[0][0])
    f.v(b, "v_mul_f32", rstd, hex(f2u(1.0 / 640)), ST[0][1])
    f.v(b, "v_fma_f32", rstd, f"-{mean}", mean, rstd)
    f.v(b, "v_max_f32", rstd, 0, rstd)
    f.v(b, "v_add_f32", rstd, hex(f2u(1e-5)), rstd)
    f.add(8, lambda: b.I("v_rsq_f32", rstd, rstd))

def pk(b, op, d, *src, mods=""): b.I(op, d, *src, mods=mods)

def qkv(b):
    uid = "q"
    sX, sSt, sD0, sD1, sSc = sP[0], sP[1], sP[2], sP[3], sP[4]
    b.I("s_add_u32", sX, sBX, hex(off["XB0"]))
    xt = XTile(b, sX, LDS_X, sD0, sD1)
    for c in range(2):
        for op in xt.ops(c): op()
    for op in wops(b, sWQ, range(20, 28)): op()
    b.I("s_lshl_b32", sSt, sG, 12)
    b.I("s_add_u32", sSt, sSt, sLO)
    b.I("s_add_u32", sSt, sSt, hex(off["STI0"]))
    ST = [V(VB + 2 * i, 2) for i in range(8)]
    ACC = [V(64, 16), V(80, 16)]
    XF = [[V(96 + 8 * p + 4 * th, 4) for th in range(2)] for p in range(4)]
    vXa, vXb = V(VB + 16), V(VB + 17)
    mean, rstd = V(VB + 18), V(VB + 19)
    mT = [V(VB + 20, 2), V(VB + 22, 2)]; rT = [V(VB + 24, 2), V(VB + 26, 2)]
    rq, rm = [V(VB + 28, 2), V(VB + 30, 2)], [V(VB + 32, 2), V(VB + 34, 2)]
    vkey, vh, vaT, vaU, vaT1, vaU1 = (V(VB + 36 + i) for i in range(6))
    vst = V(150)
    CS = V(128, 16)
    b.I("v_add_u32", vXa, LDS_X, vX32)
    b.I("v_add_u32", vXb, LDS_X + 65536, vX32)
    b.I("v_lshrrev_b32", vt0, 5, vL)
    b.I("v_lshlrev_b32", vt0, 4, vt0)
    b.I("s_lshl_b32", sT0, sW, 7)
    b.I("v_add_u32", vt0, sT0, vt0)
    b.I("v_add_u32", vt0, T_CSQ, vt0)
    for c in range(4): b.I("ds_read_b128", CS[4 * c:4 * c + 4], vt0, mods=f"offset:{32 * c}")
    b.I("v_and_b32", vkey, 31, vL)
    b.I("v_lshrrev_b32", vh, 5, vL)
    b.I("s_and_b32", sT0, sW, 1)
    b.I("s_mul_i32", sT0, sT0, 3)
    b.I("v_mov_b32", vaT, sT0)
    b.I("v_add_u32", vaU, 1, vh)
    b.I("v_add_u32", vaU, sT0, vaU)
    b.I("s_cmp_ge_u32", sW, 2)
    b.I("s_cbranch_scc1", f"QKV_AV_{uid}")
    for va in (vaT, vaU):
        b.I("v_lshrrev_b32", vt0, 1, va)
        b.I("v_lshlrev_b32", vt0, 9, vt0)
        b.I("v_and_b32", vt1, 1, va)
        b.I("v_lshl_add_u32", vt0, vt1, 3, vt0)
        b.I("v_lshl_add_u32", vt0, vkey, 4, vt0)
        b.I("v_lshlrev_b32", vt1, 3, vkey)
        b.I("v_add_u32", vt1, 1024, vt1)
        b.I("v_cmp_eq_u32", "vcc", 4, va)
        b.I("v_cndmask_b32", vt0, vt0, vt1, "vcc")
        b.I("v_add_u32", vt0, LDS_KVIMG, vt0)
        b.I("v_cmp_lt_u32", "vcc", 4, va)
        b.I("v_mov_b32", vt1, PARK)
        b.I("v_cndmask_b32", va, vt0, vt1, "vcc")
    b.I("s_branch", f"QKV_AJ_{uid}")
    b.label(f"QKV_AV_{uid}")
    b.I("v_lshrrev_b32", vt0, 4, vkey)
    b.I("v_mul_u32_u24", vt0, 768, vt0)
    b.I("v_bfe_u32", vt1, vkey, 2, 1)
    b.I("v_mul_u32_u24", vt1, 384, vt1)
    b.I("v_add_u32", vt0, vt0, vt1)
    b.I("v_and_b32", vt1, 3, vkey)
    b.I("v_lshl_add_u32", vt0, vt1, 1, vt0)
    b.I("v_bfe_u32", vt1, vkey, 3, 1)
    b.I("v_lshl_add_u32", vt0, vt1, 3, vt0)
    b.I("v_add_u32", vt3, LDS_KVIMG + 1536, vt0)
    for va in (vaT, vaU):
        b.I("v_lshl_add_u32", vt0, va, 6, vt3)
        b.I("v_cmp_lt_u32", "vcc", 4, va)
        b.I("v_mov_b32", vt1, PARK)
        b.I("v_cndmask_b32", va, vt0, vt1, "vcc")
    ONE = V(144, 4)
    b.I("v_and_b32", vt0, 3, vL)
    b.I("v_mul_u32_u24", vt0, 384, vt0)
    b.I("v_bfe_u32", vt1, vL, 2, 1)
    b.I("v_mul_u32_u24", vt1, 3072, vt1)
    b.I("v_add_u32", vt0, vt0, vt1)
    b.I("v_add_u32", vt0, LDS_KVIMG + 1536 + 320, vt0)
    for e in range(4): b.I("v_mov_b32", ONE[e], "0x3f803f80")
    b.I("ds_write_b128", vt0, ONE)
    b.I("v_lshlrev_b32", vt0, 3, vkey)
    b.I("v_mul_u32_u24", vt1, 3072, vh)
    b.I("v_add_u32", vt0, vt0, vt1)
    b.I("v_add_u32", vt0, LDS_KVIMG + 1280, vt0)
    b.I("v_mov_b32", V(148), "0x3f803f80"); b.I("v_mov_b32", V(149), "0x00003f80")
    b.I("ds_write_b64", vt0, V(148, 2))
    b.label(f"QKV_AJ_{uid}")
    b.clear_hist(); b.nop(1)
    b.I("v_cmp_gt_u32", "vcc", 32, vL)
    b.I("v_mov_b32", vt1, PARK)
    b.I("v_cndmask_b32", vaT, vaT, vt1, "vcc")
    for va, va1 in ((vaT, vaT1), (vaU, vaU1)):
        b.I("v_add_u32", vt0, 3072, va)
        b.I("v_cmp_eq_u32", "vcc", va, vt1)
        b.I("v_cndmask_b32", va1, vt0, va, "vcc")
    mem = {0: xt.ops(2) + wops(b, sWQ, range(28, 32)), 1: xt.ops(3) + wops(b, sWQ, range(32, 36)),
           2: xt.ops(4) + wops(b, sWQ, range(36, 40)), 3: stats_ops(b, sSt, ST, vst), 4: []}
    f = Fill()
    stats_fill(b, f, ST, mean, rstd)
    f.v(b, "v_mov_b32", mT[0][0], mean); f.v(b, "v_mov_b32", mT[1][0], mean)
    f.v(b, "v_mov_b32", rT[0][0], rstd); f.v(b, "v_mov_b32", rT[1][0], rstd)
    f.v(b, "v_permlane32_swap_b32", mT[0][0], mT[1][0]); f.v(b, "v_permlane32_swap_b32", rT[0][0], rT[1][0])
    f.add(4, lambda: b.I("s_mov_b32", sSc, hex(f2u(math.log2(math.e) / math.sqrt(20.0)))))
    f.add(4, lambda: b.I("v_cmp_gt_u32", S(48, 2), 32, vL))
    for th in range(2):
        f.v(b, "v_mul_f32", rq[th][0], sSc, rT[th][0])
        f.v(b, "v_cndmask_b32", rm[th][0], rT[th][0], rq[th][0], S(48, 2))
    def xread(s_, th):
        o = s_ * 2048 + th * 512
        base, o = (vXa, o) if o < 65536 else (vXb, o - 65536)
        b.I("ds_read_b128", XF[s_ % 4][th], base, mods=f"offset:{o}")
    stamp(b, "q_pre")
    for c in range(5):
        xt.wait(c)
        stamp(b, f"q_c{c}")
        m = list(mem[c])
        for s_ in range(8 * c, 8 * c + 2):
            for th in range(2): xread(s_, th)
        k = 0
        for s_ in range(8 * c, 8 * c + 8):
            for th in range(2):
                b.I("v_mfma_f32_32x32x16_bf16", ACC[th], slot(s_), XF[s_ % 4][th], (0 if s_ == 0 else ACC[th]))
                if s_ + 2 < 8 * c + 8: xread(s_ + 2, th)
                if m and (k % 2 == 1 or k >= 12): m.pop(0)()
                if c == 4 and k >= 2: f.run(12)
                k += 1
        for op in m: op()
    f.flush()
    stamp(b, "q_mm")
    PK = [V(152, 2), V(154, 2)]
    for th in range(2):
        for i in range(8, 16, 2):
            pk(b, "v_pk_fma_f32", ACC[th][i:i + 2], mT[th], CS[i:i + 2], ACC[th][i:i + 2], mods="op_sel_hi:[0,1,1] neg_lo:[1,0,0] neg_hi:[1,0,0]")
        for i in range(8, 16, 2):
            pk(b, "v_pk_mul_f32", ACC[th][i:i + 2], ACC[th][i:i + 2], (rm[th] if i < 12 else rT[th]), mods="op_sel_hi:[1,0]")
        for q in range(2): b.I("v_cvt_pk_bf16_f32", QT[th][q], ACC[th][8 + 2 * q], ACC[th][9 + 2 * q])
        for q in range(2): b.I("v_cvt_pk_bf16_f32", PK[th][q], ACC[th][12 + 2 * q], ACC[th][13 + 2 * q])
    b.I("s_cmp_ge_u32", sW, 2)
    b.I("s_cbranch_scc1", f"QKV_V_{uid}")
    for th in range(2):
        b.I("ds_write_b64", (vaT, vaT1)[th], QT[th])
        b.I("ds_write_b64", (vaU, vaU1)[th], PK[th])
    b.I("s_branch", f"QKV_J_{uid}")
    b.label(f"QKV_V_{uid}")
    for th in range(2):
        for va, rr in (((vaT, vaT1)[th], QT[th]), ((vaU, vaU1)[th], PK[th])):
            for q in range(2):
                b.I("ds_write_b16", va, rr[q], mods=f"offset:{32 * q}")
                b.I("ds_write_b16_d16_hi", va, rr[q], mods=f"offset:{32 * q + 16}")
    b.label(f"QKV_J_{uid}")
    b.clear_hist()
    IM = V(144, 4)
    b.I("s_mul_i32", sT0, sJ, 768)
    b.I("v_add_u32", vt0, sT0, vL16)
    b.I("v_add_u32", vt2, LDS_KVIMG, vt0)
    b.I("s_cmp_eq_u32", sW, 0)
    b.I("s_cselect_b32", sT1, 48, 0)
    b.I("v_cmp_gt_u32", "vcc", sT1, vL)
    b.I("v_mov_b32", vt1, hex(OOB))
    b.I("v_cndmask_b32", vt0, vt1, vt0, "vcc")
    b.I("s_mul_i32", sT0, sG, 6144)
    b.I("s_add_u32", sT0, sT0, sLO)
    b.I("s_add_u32", sT0, sT0, hex(off["KV0"]))
    b.wait(lg=0)
    b.barrier()
    b.I("ds_read_b128", IM, vt2)
    tag = b.I("buffer_store_dwordx4", IM, vt0, WS, sT0, mods="offen sc1")
    stamp(b, "q_kv")
    for th in range(2):
        for i in range(0, 8, 2):
            pk(b, "v_pk_fma_f32", ACC[th][i:i + 2], mT[th], CS[i:i + 2], ACC[th][i:i + 2], mods="op_sel_hi:[0,1,1] neg_lo:[1,0,0] neg_hi:[1,0,0]")
        for i in range(0, 8, 2):
            pk(b, "v_pk_mul_f32", ACC[th][i:i + 2], ACC[th][i:i + 2], rq[th], mods="op_sel_hi:[1,0]")
        for q in range(4): b.I("v_cvt_pk_bf16_f32", QM[th][q], ACC[th][2 * q], ACC[th][2 * q + 1])
    return tag

def attention(b):
    uid = "a"
    A2.attn_pre(b, "p")
    for a in range(8):
        for i in range(16): b.I("v_accvgpr_write_b32", OA[a][i], 0)
    b.I("s_mov_b32", sP[9], hex(F_GRID))
    window_poll(b, sP[9], sGT, "gw", wops(b, sW1, range(0, 32)), late=3)
    stamp(b, "grid_ok")
    sWo, sWl = sP[5], sP[6]
    def on_run():
        b.I("s_mul_i32", sWo, sJ, 102400)
        b.I("s_mul_i32", sT0, sW, 3072)
        b.I("s_add_u32", sWo, sWo, sT0)
        b.I("s_add_u32", sWo, sWo, hex(off["WOP"]))
        b.I("s_add_u32", sWl, sT0, LDS_WO)
    def wo():
        ops, _ = dma_ops(b, sWo, sWl, 3, "")
        for op in ops: op()
        b.I("s_add_u32", sWo, sWo, 12288)
        b.I("s_add_u32", sWl, sWl, 12288)
    return A2.attn_main2(b, uid, wo, on_run)

def wo_rest(b):
    b.I("s_mul_i32", sT0, sJ, 102400)
    b.I("s_lshl_b32", sT1, sW, 12)
    b.I("s_add_u32", sT0, sT0, sT1)
    b.I("s_add_u32", sT0, sT0, hex(off["WOP"] + 84 * 1024))
    b.I("s_add_u32", sT1, sT1, LDS_WO + 84 * 1024)
    ops, tags = dma_ops(b, sT0, sT1, 4, "")
    for op in ops: op()
    return tags[-1]

def resid_epi(b, ACC, RES, BI, sdst, sstat, out_natural=None):
    U = V(VB + 4, 2)
    ssum, ssq = V(VB, 2), V(VB + 2, 2)
    tA, tB = vt0, vt1
    for fb in range(5):
        for q in range(2):
            b.I("v_lshlrev_b32", U[0], 16, RES[fb][q])
            b.I("v_and_b32", U[1], "0xffff0000", RES[fb][q])
            pk(b, "v_pk_add_f32", ACC[fb][2 * q:2 * q + 2], ACC[fb][2 * q:2 * q + 2], U)
            if BI is not None: pk(b, "v_pk_add_f32", ACC[fb][2 * q:2 * q + 2], ACC[fb][2 * q:2 * q + 2], BI[4 * fb + 2 * q:4 * fb + 2 * q + 2])
        for q in range(2): b.I("v_cvt_pk_bf16_f32", RES[fb][q], ACC[fb][2 * q], ACC[fb][2 * q + 1])
        if out_natural is not None:
            b.I("buffer_store_dwordx2", RES[fb], out_natural, OUT, sdst, mods=f"offen offset:{32 * fb}")
            continue
        if fb in (2, 4): b.I("s_add_u32", sdst, sdst, 4096)
        b.I("buffer_store_dwordx2", RES[fb], vEpi, WS, sdst, mods=f"offen offset:{(fb % 2) * 2048} sc1")
        for q in range(2):
            a2 = ACC[fb][2 * q:2 * q + 2]
            if fb == 0 and q == 0:
                pk(b, "v_pk_mul_f32", ssq, a2, a2); b.I("v_mov_b32", ssum[0], a2[0]); b.I("v_mov_b32", ssum[1], a2[1])
            else:
                pk(b, "v_pk_add_f32", ssum, ssum, a2); pk(b, "v_pk_fma_f32", ssq, a2, a2, ssq)
    if out_natural is not None: return None
    b.I("v_add_f32", ssum[0], ssum[0], ssum[1])
    b.I("v_add_f32", ssum[1], ssq[0], ssq[1])
    for r in (ssum[0], ssum[1]):
        b.I("v_mov_b32", tA, r)
        b.I("v_permlane16_swap_b32", r, tA)
        b.I("v_add_f32", r, r, tA)
        b.I("v_mov_b32", tA, r)
        b.I("v_permlane32_swap_b32", r, tA)
        b.I("v_add_f32", r, r, tA)
    return b.I("buffer_store_dwordx2", ssum, V(VB + 6), WS, sstat, mods="offen sc1")

def stat_addr(b):
    b.I("v_lshlrev_b32", vt0, 3, vL)
    b.I("v_cmp_gt_u32", "vcc", 16, vL)
    b.I("v_mov_b32", vt1, hex(OOB))
    b.I("v_cndmask_b32", V(VB + 6), vt1, vt0, "vcc")

def resid_ops(b, sbase, RES):
    ops = []
    for fb in range(5):
        def one(fb=fb):
            if fb in (2, 4): b.I("s_add_u32", sbase, sbase, 4096)
            b.I("buffer_load_dwordx2", RES[fb], vEpi, WS, sbase, mods=f"offen offset:{(fb % 2) * 2048} sc1")
        ops.append(one)
    return ops

def oproj(b):
    sO, sRes, sTB, sDst, sSt = sP[0], sP[1], sP[2], sP[3], sP[4]
    XF = [[V(64 + 8 * s_ + 4 * a, 4) for a in range(2)] for s_ in range(10)]
    ACC = [[V(144 + 20 * a + 4 * fb, 4) for fb in range(5)] for a in range(2)]
    WF = [[V(184 + 20 * p + 4 * fb, 4) for fb in range(5)] for p in range(2)]
    RES = [V(224 + 2 * fb, 2) for fb in range(5)]
    vXa = [V(VB + 30), V(VB + 31)]; vWa = V(VB + 32); vR = V(VB + 33); vR2 = V(VB + 34)
    b.I("s_and_b32", sT0, sW, 1)
    b.I("s_lshr_b32", sT1, sW, 1)
    b.I("s_lshl_b32", sT0, sT0, 1)
    b.I("s_add_u32", sTB, sT0, sT1)
    b.I("s_xor_b32", sT2, sTB, 1)
    b.I("s_lshl_b32", sT3, sTB, 8)
    b.I("v_add_u32", vXa[0], sT3, vX16)
    b.I("s_lshl_b32", sT2, sT2, 8)
    b.I("v_add_u32", vXa[1], sT2, vX16)
    b.I("s_mul_i32", sT1, sT1, 40960)
    b.I("s_add_u32", sO, sBX, sT1)
    b.I("s_add_u32", sO, sO, hex(off["O0"]))
    def xload(s_):
        for a in range(2): b.I("buffer_load_dwordx4", XF[s_][a], vXa[a], WS, sO, mods="offen sc1")
        if s_ < 9: b.I("s_add_u32", sO, sO, 4096)
    def xops(s_):
        return [lambda: b.I("buffer_load_dwordx4", XF[s_][0], vXa[0], WS, sO, mods="offen sc1"),
                lambda: (b.I("buffer_load_dwordx4", XF[s_][1], vXa[1], WS, sO, mods="offen sc1"), b.I("s_add_u32", sO, sO, 4096))]
    for s_ in range(3): xload(s_)
    b.I("s_mul_i32", sT0, sJ, 10240)
    b.I("s_add_u32", sT0, sT0, sT3)
    b.I("s_add_u32", sRes, sBX, sT0)
    b.I("s_add_u32", sDst, sRes, hex(off["X10"]))
    b.I("s_add_u32", sRes, sRes, hex(off["XB0"]))
    b.I("v_lshrrev_b32", vt0, 4, vL)
    b.I("v_mul_u32_u24", vt0, 1280, vt0)
    b.I("v_and_b32", vt1, 15, vL)
    b.I("v_lshl_add_u32", vWa, vt1, 4, vt0)
    b.I("s_lshr_b32", sT1, sW, 1)
    b.I("s_mul_i32", sT1, sT1, 51200)
    b.I("v_add_u32", vWa, sT1, vWa)
    b.I("v_add_u32", vWa, LDS_WO, vWa)
    b.I("s_mul_i32", sT0, sW, 5120)
    b.I("v_add_u32", vR, sT0, vL16)
    b.I("v_add_u32", vR, LDS_RED_O, vR)
    b.I("s_xor_b32", sT0, sW, 2)
    b.I("s_mul_i32", sT0, sT0, 5120)
    b.I("v_add_u32", vR2, sT0, vL16)
    b.I("v_add_u32", vR2, LDS_RED_O, vR2)
    b.I("s_lshl_b32", sSt, sG, 12)
    b.I("s_add_u32", sSt, sSt, sLO)
    b.I("s_lshl_b32", sT0, sJ, 9)
    b.I("s_add_u32", sSt, sSt, sT0)
    b.I("s_lshl_b32", sT0, sTB, 7)
    b.I("s_add_u32", sSt, sSt, sT0)
    b.I("s_add_u32", sSt, sSt, hex(off["ST10"]))
    stat_addr(b)
    def wread(s_, fb): b.I("ds_read_b128", WF[s_ % 2][fb], vWa, mods=f"offset:{s_ * 5120 + fb * 256}")
    for fb in range(5): wread(0, fb)
    stamp(b, "o_pre")
    res = resid_ops(b, sRes, RES)
    for s_ in range(10):
        m = (xops(s_ + 3) if s_ + 3 < 10 else []) + ([res.pop(0), res.pop(0)] if s_ in (7, 8) else [res.pop(0)] if s_ == 9 else [])
        order = [(fb, a) for fb in range(5) for a in range(2)] if s_ < 9 else [(fb, 1) for fb in range(5)] + [(fb, 0) for fb in range(5)]
        seen = set()
        for k, (fb, a) in enumerate(order):
            b.I("v_mfma_f32_16x16x32_bf16", ACC[a][fb], WF[s_ % 2][fb], XF[s_][a], (0 if s_ == 0 else ACC[a][fb]))
            if s_ < 9 and a == 1: wread(s_ + 1, fb)
            if m and k in (2, 6): m.pop(0)()
            if s_ == 9 and k >= 7: b.I("ds_write_b128", vR, ACC[1][k - 7], mods=f"offset:{(k - 7) * 1024}")
        for op in m: op()
        if s_ == 0: stamp(b, "o_s0")
    for fb in (3, 4): b.I("ds_write_b128", vR, ACC[1][fb], mods=f"offset:{fb * 1024}")
    stamp(b, "o_mm")
    b.wait(lg=0)
    b.barrier()
    for fb in range(5): b.I("ds_read_b128", WF[0][fb], vR2, mods=f"offset:{fb * 1024}")
    for fb in range(5):
        for q in range(2): pk(b, "v_pk_add_f32", ACC[0][fb][2 * q:2 * q + 2], ACC[0][fb][2 * q:2 * q + 2], WF[0][fb][2 * q:2 * q + 2])
    stamp(b, "o_red")
    return resid_epi(b, ACC[0], RES, None, sDst, sSt)

def ffn1(b):
    sX, sSt, sH, sD0, sD1 = sP[0], sP[1], sP[2], sP[5], sP[6]
    b.I("s_add_u32", sX, sBX, hex(off["X10"]))
    xt = XTile(b, sX, LDS_X, sD0, sD1)
    for c in range(2):
        for op in xt.ops(c): op()
    b.I("s_lshl_b32", sSt, sG, 12)
    b.I("s_add_u32", sSt, sSt, sLO)
    b.I("s_add_u32", sSt, sSt, hex(off["ST10"]))
    ST = [V(VB + 2 * i, 2) for i in range(8)]
    ACC = [[V(64 + 16 * fb + 4 * tb, 4) for tb in range(4)] for fb in range(3)]
    XF = [[V(112 + 16 * p + 4 * tb, 4) for tb in range(4)] for p in range(2)]
    vXa, vXb = V(VB + 16), V(VB + 17)
    mean, rstd, vst = V(VB + 18), V(VB + 19), V(VB + 21)
    MR = [V(176 + 2 * i, 2) for i in range(4)]; RS = [V(184 + 2 * i, 2) for i in range(4)]
    CS = V(144, 12); BI = V(156, 12)
    b.I("v_add_u32", vXa, LDS_X, vX16)
    b.I("v_add_u32", vXb, LDS_X + 65536, vX16)
    b.I("v_lshrrev_b32", vt0, 4, vL)
    b.I("v_lshlrev_b32", vt0, 4, vt0)
    b.I("s_mul_i32", sT0, sW, 192)
    b.I("v_add_u32", vt0, sT0, vt0)
    b.I("v_add_u32", vt1, T_CS1, vt0)
    b.I("v_add_u32", vt2, T_B1, vt0)
    for fb in range(3):
        b.I("ds_read_b128", CS[4 * fb:4 * fb + 4], vt1, mods=f"offset:{64 * fb}")
        b.I("ds_read_b128", BI[4 * fb:4 * fb + 4], vt2, mods=f"offset:{64 * fb}")
    b.I("s_mul_i32", sH, sG, 196608)
    b.I("s_add_u32", sH, sH, sLO)
    b.I("s_mul_i32", sT0, sJ, 24576)
    b.I("s_add_u32", sH, sH, sT0)
    b.I("s_mul_i32", sT0, sW, 6144)
    b.I("s_add_u32", sH, sH, sT0)
    b.I("s_add_u32", sH, sH, hex(off["H0"]))
    c0 = -2.0 * math.sqrt(2.0 / math.pi) * math.log2(math.e)
    sC = S(50, 2)
    vC0 = V(192, 2)
    b.I("s_mov_b32", sC[0], hex(f2u(c0 * 0.044715)))
    b.I("v_mov_b32", vC0[0], hex(f2u(c0)))
    for op in stats_ops(b, sSt, ST, vst): op()
    f = Fill()
    stats_fill(b, f, ST, mean, rstd)
    f.v(b, "v_mul_f32", mean, mean, rstd)
    for src, d4 in ((mean, MR), (rstd, RS)):
        d = [x[0] for x in d4]
        f.v(b, "v_mov_b32", d[0], src); f.v(b, "v_mov_b32", d[2], src)
        f.v(b, "v_permlane32_swap_b32", d[0], d[2])
        f.v(b, "v_mov_b32", d[1], d[0]); f.v(b, "v_mov_b32", d[3], d[2])
        f.v(b, "v_permlane16_swap_b32", d[0], d[1]); f.v(b, "v_permlane16_swap_b32", d[2], d[3])
    def xread(s_, tb):
        o = s_ * 4096 + tb * 256
        base, o = (vXa, o) if o < 65536 else (vXb, o - 65536)
        b.I("ds_read_b128", XF[s_ % 2][tb], base, mods=f"offset:{o}")
    stamp(b, "f_pre")
    mem = []
    w2q = wops(b, sW2, range(0, 40)); w2n = 0
    for c in range(5):
        xt.wait(c)
        stamp(b, f"f_c{c}")
        if c + 2 < 5: mem += xt.ops(c + 2)
        for tb in range(4): xread(4 * c, tb)
        for s_ in range(4 * c, 4 * c + 4):
            k = 0
            for fb in range(3):
                for tb in range(4):
                    b.I("v_mfma_f32_16x16x32_bf16", ACC[fb][tb], slot(3 * s_ + fb), XF[s_ % 2][tb], (0 if s_ == 0 else ACC[fb][tb]))
                    if k < 4 and s_ + 1 < 4 * c + 4: xread(s_ + 1, k)
                    elif k in (5, 8, 11):
                        if mem: mem.pop(0)()
                        elif w2n < min(40, 3 * s_ + (k + 1) // 4) and (k != 8 or w2n < 2 * s_): w2q[w2n](); w2n += 1
                    elif c >= 2 and f.q: f.run(6)
                    k += 1
    f.flush()
    while w2n < 40: w2q[w2n](); w2n += 1
    stamp(b, "f_mm")
    T = [V(168 + 2 * i, 2) for i in range(4)]
    tag = None
    for fb in range(3):
        for tp in range(2):
            el = [(ACC[fb][2 * tp + u][2 * q:2 * q + 2], T[2 * u + q], 2 * tp + u, q) for u in range(2) for q in range(2)]
            for a, t, tb, q in el: pk(b, "v_pk_fma_f32", t, MR[tb], CS[4 * fb + 2 * q:4 * fb + 2 * q + 2], BI[4 * fb + 2 * q:4 * fb + 2 * q + 2], mods="op_sel_hi:[0,1,1] neg_lo:[1,0,0] neg_hi:[1,0,0]")
            for a, t, tb, q in el: pk(b, "v_pk_fma_f32", a, RS[tb], a, t, mods="op_sel_hi:[0,1,1]")
            for a, t, tb, q in el: pk(b, "v_pk_mul_f32", t, a, a)
            for a, t, tb, q in el: pk(b, "v_pk_fma_f32", t, t, sC, vC0, mods="op_sel_hi:[1,0,0]")
            for a, t, tb, q in el: pk(b, "v_pk_mul_f32", t, t, a)
            for a, t, tb, q in el:
                for e in range(2): b.I("v_exp_f32", t[e], t[e])
            for a, t, tb, q in el: pk(b, "v_pk_add_f32", t, t, 1.0, mods="op_sel_hi:[1,0]")
            for a, t, tb, q in el:
                for e in range(2): b.I("v_rcp_f32", t[e], t[e])
            for a, t, tb, q in el: pk(b, "v_pk_mul_f32", a, a, t)
            for u in range(2):
                a4 = ACC[fb][2 * tp + u]
                for q in range(2): b.I("v_cvt_pk_bf16_f32", a4[q], a4[2 * q], a4[2 * q + 1])
                tag = b.I("buffer_store_dwordx2", a4[0:2], vEpi, WS, sH, mods=f"offen offset:{(2 * tp + u) * 256} sc1")
        if fb < 2: b.I("s_add_u32", sH, sH, 2048)
    return tag

def ffn2(b):
    sH, sRes, sDst, sSt = sP[0], sP[1], sP[2], sP[3]
    NB = 4
    XF = [[V(64 + 16 * p + 4 * a, 4) for a in range(4)] for p in range(NB)]
    ACC = [[V(128 + 20 * a + 4 * fb, 4) for fb in range(5)] for a in range(4)]
    RES = [V(208 + 2 * fb, 2) for fb in range(5)]
    BI = V(220, 20)
    vXa = [V(VB + 26 + a) for a in range(4)]
    vRw = [V(VB + 30 + a) for a in range(3)]; vRr = V(VB + 33)
    for a in range(4):
        b.I("s_add_u32", sT0, sW, a)
        b.I("s_and_b32", sT0, sT0, 3)
        b.I("s_lshl_b32", sT0, sT0, 8)
        b.I("v_add_u32", vXa[a], sT0, vX16)
    b.I("s_mul_i32", sH, sG, 196608)
    b.I("s_add_u32", sH, sH, sLO)
    b.I("s_mul_i32", sT0, sW, 49152)
    b.I("s_add_u32", sH, sH, sT0)
    b.I("s_add_u32", sH, sH, hex(off["H0"]))
    def xops(s_):
        ops = [lambda a=a: b.I("buffer_load_dwordx4", XF[s_ % NB][a], vXa[a], WS, sH, mods="offen sc1") for a in range(3)]
        ops.append(lambda: (b.I("buffer_load_dwordx4", XF[s_ % NB][3], vXa[3], WS, sH, mods="offen sc1"), b.I("s_add_u32", sH, sH, 4096)))
        return ops
    for s_ in range(2):
        for op in xops(s_): op()
    b.I("s_mul_i32", sT0, sJ, 10240)
    b.I("s_add_u32", sRes, sBX, sT0)
    b.I("s_lshl_b32", sT0, sW, 8)
    b.I("s_add_u32", sRes, sRes, sT0)
    b.I("s_add_u32", sDst, sRes, hex(off["XB0"] + LS))
    b.I("s_add_u32", sRes, sRes, hex(off["X10"]))
    b.I("v_lshrrev_b32", vt0, 4, vL)
    b.I("v_lshlrev_b32", vt0, 4, vt0)
    b.I("v_add_u32", vt0, T_B2, vt0)
    for fb in range(5): b.I("ds_read_b128", BI[4 * fb:4 * fb + 4], vt0, mods=f"offset:{64 * fb}")
    for a in range(1, 4):
        b.I("s_add_u32", sT0, sW, a)
        b.I("s_and_b32", sT0, sT0, 3)
        b.I("s_mul_i32", sT0, sT0, 15360)
        b.I("s_add_u32", sT0, sT0, LDS_RED_F + (a - 1) * 5120)
        b.I("v_add_u32", vRw[a - 1], sT0, vL16)
    b.I("s_mul_i32", sT0, sW, 15360)
    b.I("s_add_u32", sT0, sT0, LDS_RED_F)
    b.I("v_add_u32", vRr, sT0, vL16)
    b.I("s_lshl_b32", sSt, sG, 12)
    b.I("s_lshl_b32", sT0, sJ, 9)
    b.I("s_add_u32", sSt, sSt, sT0)
    b.I("s_lshl_b32", sT0, sW, 7)
    b.I("s_add_u32", sSt, sSt, sT0)
    b.I("s_add_u32", sSt, sSt, hex(off["STI0"] + LS))
    stat_addr(b)
    stamp(b, "g_pre")
    res = resid_ops(b, sRes, RES)
    mem = xops(2)
    for s_ in range(9):
        if s_ + 3 < 12: mem += xops(s_ + 3)
        k = 0
        for fb in range(5):
            for a in range(4):
                b.I("v_mfma_f32_16x16x32_bf16", ACC[a][fb], slot(5 * s_ + fb), XF[s_ % NB][a], (0 if s_ == 0 else ACC[a][fb]))
                if mem and k % 4 == 2 and (k < 16 or s_ == 0): mem.pop(0)()
                k += 1
        if s_ in (0, 5): stamp(b, f"g_s{s_}")
    for op in mem: op()
    pend = []
    for a in (1, 2, 3, 0):
        k = 0
        for s_ in range(9, 12):
            for fb in range(5):
                b.I("v_mfma_f32_16x16x32_bf16", ACC[a][fb], slot(5 * s_ + fb), XF[s_ % NB][a], ACC[a][fb])
                if pend and k >= 3 and k % 2 == 1: pend.pop(0)()
                elif a == 1 and res and k % 3 == 0: res.pop(0)()
                k += 1
        for op in pend: op()
        pend = [lambda fb=fb, a=a: b.I("ds_write_b128", vRw[a - 1], ACC[a][fb], mods=f"offset:{fb * 1024}") for fb in range(5)] if a else []
    stamp(b, "g_mm")
    b.wait(lg=0)
    b.barrier()
    for a in range(1, 4):
        for fb in range(5): b.I("ds_read_b128", ACC[a][fb], vRr, mods=f"offset:{(a - 1) * 5120 + fb * 1024}")
    for a in range(1, 4):
        for fb in range(5):
            for q in range(2): pk(b, "v_pk_add_f32", ACC[0][fb][2 * q:2 * q + 2], ACC[0][fb][2 * q:2 * q + 2], ACC[a][fb][2 * q:2 * q + 2])
    stamp(b, "g_red")
    b.I("s_cmp_eq_u32", sL, 1)
    b.I("s_cbranch_scc1", "FFN2_FINAL")
    snap = b.snapshot(); hist = list(b.hist)
    tag = resid_epi(b, ACC[0], RES, BI, sDst, sSt)
    def final():
        b.label("FFN2_FINAL")
        b.restore(snap); b.hist = hist
        b.I("s_lshl_b32", sT0, sG, 6)
        b.I("s_lshl_b32", sT1, sW, 4)
        b.I("s_add_u32", sT0, sT0, sT1)
        b.I("s_mul_i32", sDst, sT0, 1280)
        b.I("s_mul_i32", sT0, sJ, 160)
        b.I("s_add_u32", sDst, sDst, sT0)
        vo = V(VB + 8)
        b.I("v_and_b32", vt0, 15, vL)
        b.I("v_mul_u32_u24", vo, 1280, vt0)
        b.I("v_lshrrev_b32", vt0, 4, vL)
        b.I("v_lshl_add_u32", vo, vt0, 3, vo)
        resid_epi(b, ACC[0], RES, BI, sDst, None, out_natural=vo)
    return tag, final

def gen_fused(b):
    setup(b, "MAIN_END")
    b.I("s_mov_b32", sL, 0); b.I("s_mov_b32", sLO, 0)
    b.I("s_mov_b32", sGS, 0); b.I("s_mov_b32", sGT, 0)
    b.I("s_lshl_b32", sFG, sG, 8)
    b.I("s_add_u32", sFG, sFG, hex(off["FLAGS"]))
    b.I("s_add_u32", sFA, sFG, 16384)
    stamp(b, "start")
    b.I("s_lshl_b32", sT0, sJ, 2)
    b.I("s_add_u32", sT0, sT0, sW)
    b.I("s_mul_i32", S(57), sT0, 40960)
    b.I("s_add_u32", S(57), S(57), hex(off["WQP"]))
    for op in wops(b, S(57), range(0, 20)): op()
    tables(b)
    b.I("s_lshl_b32", sT0, sJ, 2)
    b.I("s_add_u32", sT0, sT0, sW)
    b.I("s_mul_i32", sWQ, sT0, 40960)
    b.I("s_add_u32", sWQ, sWQ, hex(off["WQP"]))
    b.I("s_mul_i32", sW1, sT0, 61440)
    b.I("s_add_u32", sW2, sW1, hex(off["W2P"]))
    b.I("s_add_u32", sW1, sW1, hex(off["W1P"]))
    b.I("s_mul_i32", sBX, sG, 81920)
    b.label("LAYER")
    b.clear_hist()
    stamp(b, "layer")
    tag = qkv(b)
    stamp(b, "qkv_end")
    grid_arrive(b, tag, "g")
    otag = attention(b)
    stamp(b, "att_end")
    wo_tag = wo_rest(b)
    group_sync(b, otag, "s1", wops(b, sW1, range(32, 48)))
    b.wait_vm_tag(wo_tag); b.barrier()
    stamp(b, "s1_ok")
    tag = oproj(b)
    stamp(b, "opr_end")
    group_sync(b, tag, "s2", wops(b, sW1, range(48, 60)))
    stamp(b, "s2_ok")
    tag = ffn1(b)
    stamp(b, "ff1_end")
    group_sync(b, tag, "s3", wops(b, sW2, range(40, 60)))
    stamp(b, "s3_ok")
    tag, final = ffn2(b)
    stamp(b, "ff2_end")
    group_sync(b, tag, "s4", wops(b, sWQ, range(0, 20)))
    stamp(b, "s4_ok")
    b.I("s_mov_b32", sL, 1)
    b.I("s_mov_b32", sLO, hex(LS))
    b.I("s_add_u32", sBX, sBX, hex(LS))
    if M.PROFILE: M.stamp_flush(b, 0)
    b.I("s_branch", "LAYER")
    final()
    if M.PROFILE:
        b.wait(vm=0); stamp(b, "ff2_end"); stamp(b, "end"); M.stamp_flush(b, 20)
    b.label("MAIN_END")
```

```python
from asmb import *
import layout as L
import math
off = L.off
WS_BYTES = 268435456
OOB = 0x40000000
LS = L.LAYER_STRIDE

LDS_X = 0
LDS_WO = 0
LDS_KVIMG = 102400
LDS_RED_O = 110592
LDS_RED_F = 0
TAB = 159744
T_CSQ, T_CS1, T_B1, T_B2 = TAB, TAB + 512, TAB + 1280, TAB + 2048
LDS_BYTES = 163840

WS = S(8, 4); OUT = S(12, 4)
sG, sJ, sW, sL = S(16), S(17), S(18), S(19)
sLO = S(20)
sT0, sT1, sT2, sT3 = S(21), S(22), S(23), S(24)
sXIN = S(25)
sP = [S(26 + i) for i in range(10)]
P_B1, P_B2 = S(36, 2), S(38, 2)
SRDT = S(40, 4)
sEX = S(44, 2)
sSC = S(46)
vL, vL16, vX16, vX32, vEpi = V(1), V(2), V(3), V(4), V(5)
vt0, vt1, vt2, vt3 = V(6), V(7), V(8), V(9)
QM = [V(10, 4), V(16, 4)]
QT = [V(14, 2), V(20, 2)]
VB = 22

def srd(b, dst, lo, hi, size):
    b.I("s_mov_b32", dst[0], lo)
    b.I("s_and_b32", dst[1], hi, "0xffff")
    b.I("s_mov_b32", dst[2], hex(size))
    b.I("s_mov_b32", dst[3], "0x20000")

def setup(b, endlabel, layer=None):
    b.I("s_cmp_ge_u32", S(2), 256)
    b.I("s_cbranch_scc1", endlabel)
    b.I("s_load_dwordx2", S(4, 2), S(0, 2), 96)
    b.I("s_load_dwordx2", S(6, 2), S(0, 2), 80)
    b.I("s_load_dwordx2", P_B1, S(0, 2), 56)
    b.I("s_load_dwordx2", P_B2, S(0, 2), 72)
    b.I("v_lshrrev_b32", vt0, 6, V(0))
    b.I("v_and_b32", vL, 63, V(0))
    b.I("v_readfirstlane_b32", sW, vt0)
    b.I("s_and_b32", sT0, S(2), 7)
    b.I("s_lshr_b32", sT1, S(2), 3)
    b.I("s_lshl_b32", sG, sT0, 2)
    b.I("s_lshr_b32", sT2, sT1, 3)
    b.I("s_add_u32", sG, sG, sT2)
    b.I("s_and_b32", sJ, sT1, 7)
    b.I("v_lshlrev_b32", vL16, 4, vL)
    b.I("v_lshrrev_b32", vt0, 4, vL)
    b.I("v_and_b32", vt1, 15, vL)
    b.I("v_lshlrev_b32", vt1, 4, vt1)
    b.I("v_lshl_add_u32", vX16, vt0, 10, vt1)
    b.I("v_lshrrev_b32", vt2, 1, vt0)
    b.I("v_lshl_add_u32", vEpi, vt2, 10, vt1)
    b.I("v_and_b32", vt2, 1, vt0)
    b.I("v_lshl_add_u32", vEpi, vt2, 3, vEpi)
    b.I("v_lshrrev_b32", vt0, 5, vL)
    b.I("v_and_b32", vt1, 31, vL)
    b.I("v_lshlrev_b32", vt1, 4, vt1)
    b.I("v_lshl_add_u32", vX32, vt0, 10, vt1)
    b.wait(lg=0)
    srd(b, WS, S(4), S(5), WS_BYTES)
    srd(b, OUT, S(6), S(7), 2048 * 1280)
    if layer is not None:
        b.I("s_mov_b32", sL, layer)
        b.I("s_mov_b32", sLO, hex(layer * LS))

def tables(b):
    a = [V(VB + i) for i in range(12)]
    vo = V(VB + 12); vo2 = V(VB + 13)
    b.I("v_lshlrev_b32", vo, 2, V(0))
    b.I("s_lshl_b32", sT0, sJ, 9)
    b.I("s_add_u32", sT0, sT0, hex(off["CSQ"]))
    for kr in range(4):
        b.I("buffer_load_dword", a[kr], vo, WS, sT0, mods="offen")
        if kr < 3: b.I("s_add_u32", sT0, sT0, 4096)
    b.I("s_mul_i32", sT1, sJ, 768)
    b.I("s_add_u32", sT0, sT1, hex(off["CS1"]))
    for kr in range(4):
        b.I("buffer_load_dword", a[4 + kr], vo, WS, sT0, mods="offen")
        if kr < 3: b.I("s_add_u32", sT0, sT0, 6144)
    b.I("v_lshlrev_b32", vo2, 1, V(0))
    srd(b, SRDT, P_B1[0], P_B1[1], 1536 * 2)
    b.I("s_mul_i32", sT1, sJ, 384)
    b.I("buffer_load_ushort", a[8], vo2, SRDT, sT1, mods="offen")
    srd(b, SRDT, P_B2[0], P_B2[1], 640 * 2)
    b.I("s_mul_i32", sT1, sJ, 160)
    b.I("buffer_load_ushort", a[9], vo2, SRDT, sT1, mods="offen")
    for base in (0, 4):
        b.I("v_add_f32", a[base], a[base], a[base + 1])
        b.I("v_add_f32", a[base + 2], a[base + 2], a[base + 3])
        b.I("v_add_f32", a[base], a[base], a[base + 2])
    b.I("v_lshlrev_b32", a[8], 16, a[8])
    b.I("v_lshlrev_b32", a[9], 16, a[9])
    for cnt, reg, dst in ((128, a[0], T_CSQ), (192, a[4], T_CS1), (192, a[8], T_B1), (80, a[9], T_B2)):
        b.I("v_cmp_gt_u32", "vcc", cnt, V(0))
        b.I("v_mov_b32", vt0, 0x27F00)
        b.I("v_add_u32", vt1, dst, vo)
        b.I("v_cndmask_b32", vt1, vt0, vt1, "vcc")
        b.I("ds_write_b32", vt1, reg)
    b.wait(lg=0)
    b.barrier()

def stats_load(b, base_sgpr, regs):
    b.I("v_lshlrev_b32", vt0, 3, vL)
    for s_ in range(8):
        b.I("buffer_load_dwordx2", regs[s_], vt0, WS, base_sgpr, mods=f"offen offset:{s_ * 512} sc1")
def stats_finish(b, regs, mean, rstd):
    for c in range(2):
        b.I("v_add_f32", regs[0][c], regs[0][c], regs[1][c])
        b.I("v_add_f32", regs[2][c], regs[2][c], regs[3][c])
        b.I("v_add_f32", regs[4][c], regs[4][c], regs[5][c])
        b.I("v_add_f32", regs[6][c], regs[6][c], regs[7][c])
        b.I("v_add_f32", regs[0][c], regs[0][c], regs[2][c])
        b.I("v_add_f32", regs[4][c], regs[4][c], regs[6][c])
        b.I("v_add_f32", regs[0][c], regs[0][c], regs[4][c])
    b.I("s_mov_b32", sT0, hex(f2u(1.0 / 640)))
    b.I("v_mul_f32", mean, sT0, regs[0][0])
    b.I("v_mul_f32", rstd, sT0, regs[0][1])
    b.I("v_fma_f32", rstd, -mean if False else f"-{mean}", mean, rstd)
    b.I("v_max_f32", rstd, 0, rstd)
    b.I("v_add_f32", rstd, hex(f2u(1e-5)), rstd)
    b.I("v_rsq_f32", rstd, rstd)

import struct
def f2u(x): return struct.unpack("<I", struct.pack("<f", x))[0]

def dma_tile(b, sbase, nchunk_instr, first_unit, lds_base, sc="sc1", tagname="dma"):
    b.I("s_mul_i32", sT0, sW, nchunk_instr * 1024)
    b.I("s_add_u32", sT1, sT0, lds_base + first_unit * 1024)
    b.I("s_add_u32", sT0, sT0, sbase)
    b.I("s_add_u32", sT0, sT0, first_unit * 1024)
    tag = None
    for q in range(nchunk_instr):
        b.I("s_mov_b32", "m0", sT1)
        tag = b.I("buffer_load_dwordx4", vL16, WS, sT0, mods=f"offen {sc} lds")
        if q < nchunk_instr - 1:
            b.I("s_add_u32", sT1, sT1, 1024)
            b.I("s_add_u32", sT0, sT0, 1024)
    return tag

def qkv_wload(b, rng=range(40)):
    b.I("s_lshl_b32", sT2, sJ, 2)
    b.I("s_add_u32", sT2, sT2, sW)
    b.I("s_mul_i32", sT2, sT2, 40960)
    b.I("s_add_u32", sT2, sT2, hex(off["WQP"] + (rng[0] // 4) * 4096))
    for s_ in rng:
        if s_ % 4 == 0 and s_ != rng[0]: b.I("s_add_u32", sT2, sT2, 4096)
        b.I("buffer_load_dwordx4", A(4 * s_, 4), vL16, WS, sT2, mods=f"offen offset:{(s_ % 4) * 1024}")

def qkv_phase(b, uid):
    sX = sP[0]; sSt = sP[1]
    b.I("s_mul_i32", sX, sG, 81920)
    b.I("s_add_u32", sX, sX, sLO)
    b.I("s_add_u32", sX, sX, hex(off["XB0"]))
    b.I("s_lshl_b32", sSt, sG, 12)
    b.I("s_add_u32", sSt, sSt, sLO)
    b.I("s_add_u32", sSt, sSt, hex(off["STI0"]))
    tags = [dma_tile(b, sX, 4, 16 * c, LDS_X) for c in range(5)]
    ST = [V(VB + 2 * i, 2) for i in range(8)]
    stats_load(b, sSt, ST)
    ACC = [V(64, 16), V(80, 16)]
    XF = [[V(96 + 8 * p + 4 * th, 4) for th in range(2)] for p in range(4)]
    vXa, vXb = V(VB + 16), V(VB + 17)
    b.I("v_add_u32", vXa, LDS_X, vX32)
    b.I("v_add_u32", vXb, LDS_X + 65536, vX32)
    def xread(s_, th):
        o = s_ * 2048 + th * 512
        base, o = (vXa, o) if o < 65536 else (vXb, o - 65536)
        b.I("ds_read_b128", XF[s_ % 4][th], base, mods=f"offset:{o}")
    for c in range(5):
        b.wait_vm_tag(tags[c])
        b.barrier()
        for s_ in range(8 * c, 8 * c + 2):
            for th in range(2): xread(s_, th)
        for s_ in range(8 * c, 8 * c + 8):
            if s_ + 2 < 8 * c + 8:
                for th in range(2): xread(s_ + 2, th)
            for th in range(2):
                b.I("v_mfma_f32_32x32x16_bf16", ACC[th], A(4 * s_, 4), XF[s_ % 4][th], (0 if s_ == 0 else ACC[th]))
    mean, rstd = V(VB + 18), V(VB + 19)
    stats_finish(b, ST, mean, rstd)
    mT = [V(VB + 20), V(VB + 21)]; rT = [V(VB + 22), V(VB + 23)]
    b.I("v_mov_b32", mT[0], mean); b.I("v_mov_b32", mT[1], mean)
    b.I("v_mov_b32", rT[0], rstd); b.I("v_mov_b32", rT[1], rstd)
    b.I("v_permlane32_swap_b32", mT[0], mT[1])
    b.I("v_permlane32_swap_b32", rT[0], rT[1])
    CS = V(112, 16)
    b.I("v_lshrrev_b32", vt0, 5, vL)
    b.I("v_lshlrev_b32", vt0, 4, vt0)
    b.I("s_lshl_b32", sT0, sW, 7)
    b.I("v_add_u32", vt0, sT0, vt0)
    b.I("v_add_u32", vt0, T_CSQ, vt0)
    for c in range(4): b.I("ds_read_b128", CS[4 * c:4 * c + 4], vt0, mods=f"offset:{32 * c}")
    b.I("s_mov_b32", sT1, hex(f2u(math.log2(math.e) / math.sqrt(20.0))))
    rq, rm = V(VB + 24), V(VB + 25)
    PK = [V(128, 4), V(132, 4)]
    b.I("v_cmp_gt_u32", "vcc", 32, vL)
    for th in range(2):
        b.I("v_mul_f32", rq, sT1, rT[th])
        b.I("v_cndmask_b32", rm, rT[th], rq, "vcc")
        for i in range(16):
            b.I("v_fma_f32", ACC[th][i], f"-{mT[th]}", CS[i], ACC[th][i])
            b.I("v_mul_f32", ACC[th][i], (rq if i < 8 else rm if i < 12 else rT[th]), ACC[th][i])
        for q in range(4): b.I("v_cvt_pk_bf16_f32", QM[th][q], ACC[th][2 * q], ACC[th][2 * q + 1])
        for q in range(2): b.I("v_cvt_pk_bf16_f32", QT[th][q], ACC[th][8 + 2 * q], ACC[th][9 + 2 * q])
        for q in range(2): b.I("v_cvt_pk_bf16_f32", PK[th][2 + q], ACC[th][12 + 2 * q], ACC[th][13 + 2 * q])
    vkey, vh, vaT, vaU = V(VB + 26), V(VB + 27), V(VB + 28), V(VB + 29)
    PARK = 0x27F00
    b.I("v_and_b32", vkey, 31, vL)
    b.I("v_lshrrev_b32", vh, 5, vL)
    b.I("s_and_b32", sT0, sW, 1)
    b.I("s_mul_i32", sT0, sT0, 3)
    b.I("v_mov_b32", vaT, sT0)
    b.I("v_add_u32", vaU, 1, vh)
    b.I("v_add_u32", vaU, sT0, vaU)
    b.I("s_cmp_ge_u32", sW, 2)
    b.I("s_cbranch_scc1", f"QKV_V_{uid}")
    for va in (vaT, vaU):
        b.I("v_lshrrev_b32", vt0, 1, va)
        b.I("v_lshlrev_b32", vt0, 9, vt0)
        b.I("v_and_b32", vt1, 1, va)
        b.I("v_lshl_add_u32", vt0, vt1, 3, vt0)
        b.I("v_lshl_add_u32", vt0, vkey, 4, vt0)
        b.I("v_lshlrev_b32", vt1, 3, vkey)
        b.I("v_add_u32", vt1, 1024, vt1)
        b.I("v_cmp_eq_u32", "vcc", 4, va)
        b.I("v_cndmask_b32", vt0, vt0, vt1, "vcc")
        b.I("v_add_u32", vt0, LDS_KVIMG, vt0)
        b.I("v_cmp_lt_u32", "vcc", 4, va)
        b.I("v_mov_b32", vt1, PARK)
        b.I("v_cndmask_b32", va, vt0, vt1, "vcc")
    b.I("v_cmp_gt_u32", "vcc", 32, vL)
    b.I("v_mov_b32", vt1, PARK)
    b.I("v_cndmask_b32", vaT, vaT, vt1, "vcc")
    b.I("v_mov_b32", vt2, PARK)
    for th in range(2):
        b.I("ds_write_b64", vaT, QT[th])
        b.I("ds_write_b64", vaU, PK[th][2:4])
        if th == 0:
            for va in (vaT, vaU):
                b.I("v_add_u32", vt0, 3072, va)
                b.I("v_cmp_eq_u32", "vcc", va, vt2)
                b.I("v_cndmask_b32", va, vt0, va, "vcc")
    b.I("s_branch", f"QKV_J_{uid}")
    b.label(f"QKV_V_{uid}")
    snap = b.snapshot()
    b.I("v_lshrrev_b32", vt0, 4, vkey)
    b.I("v_mul_u32_u24", vt0, 768, vt0)
    b.I("v_bfe_u32", vt1, vkey, 2, 1)
    b.I("v_mul_u32_u24", vt1, 384, vt1)
    b.I("v_add_u32", vt0, vt0, vt1)
    b.I("v_and_b32", vt1, 3, vkey)
    b.I("v_lshl_add_u32", vt0, vt1, 1, vt0)
    b.I("v_bfe_u32", vt1, vkey, 3, 1)
    b.I("v_lshl_add_u32", vt0, vt1, 3, vt0)
    b.I("v_add_u32", vt3, LDS_KVIMG + 1536, vt0)
    for va in (vaT, vaU):
        b.I("v_lshl_add_u32", vt0, va, 6, vt3)
        b.I("v_cmp_lt_u32", "vcc", 4, va)
        b.I("v_mov_b32", vt1, PARK)
        b.I("v_cndmask_b32", va, vt0, vt1, "vcc")
    b.I("v_cmp_gt_u32", "vcc", 32, vL)
    b.I("v_mov_b32", vt1, PARK)
    b.I("v_cndmask_b32", vaT, vaT, vt1, "vcc")
    b.I("v_mov_b32", vt2, PARK)
    for th in range(2):
        for va, rr in ((vaT, QT[th]), (vaU, PK[th][2:4])):
            for q in range(2):
                b.I("ds_write_b16", va, rr[q], mods=f"offset:{32 * q}")
                b.I("ds_write_b16_d16_hi", va, rr[q], mods=f"offset:{32 * q + 16}")
        if th == 0:
            for va in (vaT, vaU):
                b.I("v_add_u32", vt0, 3072, va)
                b.I("v_cmp_eq_u32", "vcc", va, vt2)
                b.I("v_cndmask_b32", va, vt0, va, "vcc")
    b.I("v_and_b32", vt0, 3, vL)
    b.I("v_mul_u32_u24", vt0, 384, vt0)
    b.I("v_bfe_u32", vt1, vL, 2, 1)
    b.I("v_mul_u32_u24", vt1, 3072, vt1)
    b.I("v_add_u32", vt0, vt0, vt1)
    b.I("v_add_u32", vt0, LDS_KVIMG + 1536 + 320, vt0)
    ONE = V(136, 4)
    for e in range(4): b.I("v_mov_b32", ONE[e], "0x3f803f80")
    b.I("ds_write_b128", vt0, ONE)
    b.I("v_and_b32", vt0, 31, vL)
    b.I("v_lshlrev_b32", vt0, 3, vt0)
    b.I("v_lshrrev_b32", vt1, 5, vL)
    b.I("v_mul_u32_u24", vt1, 3072, vt1)
    b.I("v_add_u32", vt0, vt0, vt1)
    b.I("v_add_u32", vt0, LDS_KVIMG + 1280, vt0)
    b.I("v_mov_b32", ONE[1], "0x00003f80")
    b.I("ds_write_b64", vt0, ONE[0:2])
    b.label(f"QKV_J_{uid}")
    b.clear_hist()
    b.wait(lg=0)
    b.barrier()
    b.I("s_cmp_lg_u32", sW, 0)
    b.I("s_cbranch_scc1", f"QKV_E_{uid}")
    b.I("s_mul_i32", sT0, sJ, 768)
    b.I("v_add_u32", vt0, sT0, vL16)
    b.I("v_add_u32", vt1, LDS_KVIMG, vt0)
    b.I("ds_read_b128", ONE, vt1)
    b.I("v_cmp_gt_u32", "vcc", 48, vL)
    b.I("v_mov_b32", vt1, hex(OOB))
    b.I("v_cndmask_b32", vt0, vt1, vt0, "vcc")
    b.I("s_mul_i32", sT0, sG, 6144)
    b.I("s_add_u32", sT0, sT0, sLO)
    b.I("s_add_u32", sT0, sT0, hex(off["KV0"]))
    b.I("buffer_store_dwordx4", ONE, vt0, WS, sT0, mods="offen sc1")
    b.label(f"QKV_E_{uid}")
    b.clear_hist()

def q_spill(b, load):
    b.I("s_lshl_b32", sT0, S(2), 2)
    b.I("s_add_u32", sT0, sT0, sW)
    b.I("s_mul_i32", sT0, sT0, 3072)
    b.I("s_add_u32", sT0, sT0, sLO)
    b.I("s_add_u32", sT0, sT0, hex(off["QS0"]))
    for q in range(3):
        b.I("buffer_load_dwordx4" if load else "buffer_store_dwordx4", V(10 + 4 * q, 4), vL16, WS, sT0, mods=f"offen offset:{q * 1024}")

ATT_OPT = dict(sc="sc1", noload=False, warm=False, noexp=False, nomfma=False)
def attn_phase(b, uid):
    opt = ATT_OPT
    KVS = [dict(km=V(64 + 16 * p, 4), kt=V(68 + 16 * p, 2), v=[V(72 + 16 * p, 4), V(76 + 16 * p, 4)]) for p in range(4)]
    Sx = [V(128, 16), V(144, 16)]
    Oa = [V(160, 16), V(176, 16)]
    NM = [V(192, 16), V(208, 16)]
    Pp = [V(224, 8), V(232, 8)]
    vKt, vV, vmx = V(VB), V(VB + 1), V(VB + 2)
    sKV = sP[0]; sOff = sP[1]; sCnt = sP[2]; sRetry = sP[3]
    b.I("s_add_u32", sKV, sLO, hex(off["KV0"]))
    b.I("v_and_b32", vt0, 31, vL)
    b.I("v_lshlrev_b32", vKt, 3, vt0)
    b.I("v_add_u32", vKt, 1024, vKt)
    b.I("v_cmp_gt_u32", "vcc", 32, vL)
    b.I("v_mov_b32", vt1, hex(OOB))
    b.I("v_cndmask_b32", vKt, vt1, vKt, "vcc")
    b.I("v_lshrrev_b32", vt2, 5, vL)
    b.I("v_mul_u32_u24", vt2, 384, vt2)
    b.I("v_lshl_add_u32", vV, vt0, 4, vt2)
    b.I("v_add_u32", vV, 1280, vV)
    b.I("v_cmp_ge_u32", "vcc", 20, vt0)
    b.I("v_cndmask_b32", vV, vt1, vV, "vcc")
    sc = opt["sc"]
    def loadk(p, soff):
        b.I("buffer_load_dwordx4", KVS[p]["km"], vL16, WS, soff, mods="offen " + sc)
        b.I("buffer_load_dwordx2", KVS[p]["kt"], vKt, WS, soff, mods="offen " + sc)
    def loadv(p, soff):
        b.I("buffer_load_dwordx4", KVS[p]["v"][0], vV, WS, soff, mods="offen " + sc)
        b.I("buffer_load_dwordx4", KVS[p]["v"][1], vV, WS, soff, mods="offen offset:768 " + sc)
    if opt["warm"]:
        b.I("s_lshr_b32", sT0, S(2), 3)
        b.I("s_mul_i32", sT0, sT0, 6144)
        b.I("s_mul_i32", sT1, sW, 1536)
        b.I("s_add_u32", sT0, sT0, sT1)
        b.I("s_add_u32", sT0, sT0, sKV)
        b.I("buffer_load_dwordx4", V(240, 4), vL16, WS, sT0, mods="offen " + sc)
        b.I("buffer_load_dwordx4", V(244, 4), vL16, WS, sT0, mods="offen offset:512 " + sc)
    def qk_main(q, p, C): b.I("v_mfma_f32_32x32x16_bf16", Sx[q], KVS[p]["km"], QM[q], C)
    def qk_tail(q, p): b.I("v_mfma_f32_32x32x8_bf16", Sx[q], KVS[p]["kt"], QT[q], Sx[q])
    def pv(q, p, mf): b.I("v_mfma_f32_32x32x16_bf16", Oa[q], KVS[p]["v"][mf], Pp[q][4 * mf:4 * mf + 4], Oa[q])
    b.I("s_mov_b32", sRetry, 0)
    loadk(0, sKV)
    for q in range(2): qk_main(q, 0, 0)
    for q in range(2): qk_tail(q, 0)
    for q in range(2):
        m = V(VB + 3 + q)
        b.I("v_max3_f32", m, Sx[q][0], Sx[q][1], Sx[q][2])
        for i in range(3, 15, 2): b.I("v_max3_f32", m, m, Sx[q][i], Sx[q][i + 1])
        b.I("v_max_f32", m, m, Sx[q][15])
        b.I("v_mov_b32", vt0, m)
        b.I("v_permlane32_swap_b32", m, vt0)
        b.I("v_max_f32", m, m, vt0)
    b.label(f"ATT_RUN_{uid}")
    b.clear_hist(); b.nop(2)
    for q in range(2):
        m = V(VB + 3 + q)
        for i in range(16):
            b.I("v_sub_f32", NM[q][i], 0, m)
            b.I("v_mov_b32", Oa[q][i], 0)
    for q in range(2):
        for i in range(8): b.I("v_mov_b32", Pp[q][i], 0)
    b.wait(vm=0)
    stamp(b, 2)
    for e in range(8): b.I("v_mov_b32", V(KVS[3]["v"][0].i + e), 0)
    b.I("s_mov_b32", sOff, sKV)
    for p in range(3):
        loadk(p, sOff); loadv(p, sOff)
        b.I("s_add_u32", sOff, sOff, 3072)
    qk_main(0, 0, NM[0])
    b.nop(10)
    qk_tail(0, 0)
    b.nop(12)
    b.I("s_mov_b32", sCnt, 16)
    b.align(6)
    b.label(f"ATT_LOOP_{uid}")
    b.clear_hist()
    b.vm = [(("kv", 0), KVS[0]["km"].regs() | KVS[0]["kt"].regs()), (("kv", 0), KVS[0]["km"].regs() | KVS[0]["kt"].regs()),
            (("kv", 0), KVS[0]["v"][0].regs()), (("kv", 0), KVS[0]["v"][1].regs()),
            (("kv", 1), KVS[1]["km"].regs()), (("kv", 1), KVS[1]["kt"].regs()), (("kv", 1), KVS[1]["v"][0].regs()), (("kv", 1), KVS[1]["v"][1].regs()),
            (("kv", 2), KVS[2]["km"].regs()), (("kv", 2), KVS[2]["kt"].regs()), (("kv", 2), KVS[2]["v"][0].regs()), (("kv", 2), KVS[2]["v"][1].regs())]
    entry_state = [e[1] for e in b.vm]
    def valu_stream(q):
        ops = []
        for g in range(4):
            for i in range(4): ops.append(lambda q=q, i=4 * g + i: b.I("v_exp_f32", Sx[q][i], Sx[q][i]))
            for i in range(2): ops.append(lambda q=q, i=2 * g + i: b.I("v_cvt_pk_bf16_f32", Pp[q][i], Sx[q][2 * i], Sx[q][2 * i + 1]))
        return ops
    def half(q, mf, extra):
        vs = valu_stream(q)
        for k in range(4):
            mf[k]()
            for x in vs[6 * k:6 * k + 6]: x()
            for x in extra.get(k, []): x()
    for u in range(4):
        p, pn, pp = u, (u + 1) % 4, (u + 3) % 4
        half(0, [lambda: qk_main(1, p, NM[1]), lambda: pv(1, pp, 0), lambda: qk_tail(1, p), lambda: pv(1, pp, 1)], {})
        half(1, [lambda: qk_main(0, pn, NM[0]), lambda: pv(0, p, 0), lambda: qk_tail(0, pn), lambda: pv(0, p, 1)],
             ({} if opt["noload"] else {0: [lambda: loadk(pp, sOff)], 1: [lambda: loadv(pp, sOff), lambda: b.I("s_add_u32", sOff, sOff, 3072)]}))
    b.I("s_sub_u32", sCnt, sCnt, 1)
    b.I("s_cmp_lg_u32", sCnt, 0)
    b.I("s_cbranch_scc1", f"ATT_LOOP_{uid}")
    exit_state = [e[1] for e in b.vm]
    b.loop_states = (entry_state, exit_state)
    stamp(b, 3)
    pv(1, 3, 0); pv(1, 3, 1)
    b.wait(vm=0)
    lreg = [V(VB + 5), V(VB + 6)]
    for q in range(2):
        b.I("v_mov_b32", lreg[q], Oa[q][8])
        b.I("v_mov_b32", vt0, Oa[q][8])
        b.I("v_permlane32_swap_b32", vt0, lreg[q])
    b.I("s_cmp_eq_u32", sRetry, 1)
    b.I("s_cbranch_scc1", f"ATT_OK_{uid}")
    b.I("v_mov_b32", vt1, 0)
    for q in range(2):
        for i in range(0, 12, 2): b.I("v_max3_f32", vt1, f"abs({Oa[q][i]})", f"abs({Oa[q][i+1]})", vt1)
    b.I("v_mov_b32", vt2, hex(f2u(2.0 ** 60)))
    b.I("v_mov_b32", vt3, hex(f2u(3.0e38)))
    b.I("v_cmp_nlt_f32", S(48, 2), lreg[0], vt2)
    b.I("v_cmp_nlt_f32", S(50, 2), lreg[1], vt2)
    b.I("v_cmp_nlt_f32", "vcc", vt1, vt3)
    b.I("s_or_b64", S(48, 2), S(48, 2), S(50, 2))
    b.I("s_or_b64", S(48, 2), S(48, 2), "vcc")
    b.I("v_mov_b32", vt1, 0)
    for q in range(2):
        for i in range(12): b.I("v_fmac_f32", vt1, 0, Oa[q][i])
    b.I("v_cmp_neq_f32", "vcc", 0, vt1)
    b.I("v_cmp_u_f32", S(50, 2), vt1, vt1)
    b.I("s_or_b64", S(48, 2), S(48, 2), S(50, 2))
    b.I("s_cmp_eq_u64", S(48, 2), 0)
    b.I("s_cbranch_scc1", f"ATT_OK_{uid}")
    b.I("s_mov_b32", sRetry, 1)
    for q in range(2): b.I("v_mov_b32", V(VB + 3 + q), hex(f2u(-3.0e38)))
    b.I("s_mov_b32", sOff, sKV)
    b.I("s_mov_b32", sCnt, 64)
    b.label(f"ATT_MAX_{uid}")
    b.clear_hist()
    loadk(0, sOff)
    b.I("s_add_u32", sOff, sOff, 3072)
    for q in range(2): qk_main(q, 0, 0)
    for q in range(2): qk_tail(q, 0)
    for q in range(2):
        m = V(VB + 3 + q)
        for i in range(0, 16, 2): b.I("v_max3_f32", m, m, Sx[q][i], Sx[q][i + 1])
    b.I("s_sub_u32", sCnt, sCnt, 1)
    b.I("s_cmp_lg_u32", sCnt, 0)
    b.I("s_cbranch_scc1", f"ATT_MAX_{uid}")
    for q in range(2):
        m = V(VB + 3 + q)
        b.I("v_mov_b32", vt0, m)
        b.I("v_permlane32_swap_b32", m, vt0)
        b.I("v_max_f32", m, m, vt0)
    b.I("s_branch", f"ATT_RUN_{uid}")
    b.label(f"ATT_OK_{uid}")
    b.clear_hist(); b.nop(2)
    sO = sP[0]
    b.I("s_mul_i32", sO, sG, 81920)
    b.I("s_add_u32", sO, sO, sLO)
    b.I("s_mul_i32", sT0, sJ, 10240)
    b.I("s_add_u32", sO, sO, sT0)
    b.I("s_add_u32", sO, sO, hex(off["O0"]))
    vo = V(VB + 7)
    b.I("s_mul_i32", sT0, sW, 5)
    b.I("v_lshrrev_b32", vt0, 5, vL)
    b.I("v_add_u32", vt0, sT0, vt0)
    b.I("v_lshrrev_b32", vt1, 1, vt0)
    b.I("v_lshlrev_b32", vo, 10, vt1)
    b.I("v_and_b32", vt1, 1, vt0)
    b.I("v_lshl_add_u32", vo, vt1, 3, vo)
    b.I("v_and_b32", vt1, 31, vL)
    b.I("v_lshl_add_u32", vo, vt1, 4, vo)
    vo2 = V(VB + 8)
    b.I("v_cmp_gt_u32", "vcc", 32, vL)
    b.I("v_mov_b32", vt1, hex(OOB))
    b.I("v_cndmask_b32", vo2, vt1, vo, "vcc")
    for q in range(2):
        b.I("v_rcp_f32", lreg[q], lreg[q])
        for i in range(12): b.I("v_mul_f32", Oa[q][i], lreg[q], Oa[q][i])
        for i in range(6): b.I("v_cvt_pk_bf16_f32", Pp[q][i], Oa[q][2 * i], Oa[q][2 * i + 1])
        for c in range(3):
            b.I("buffer_store_dwordx2", Pp[q][2 * c:2 * c + 2], (vo if c < 2 else vo2), WS, sO, mods=f"offen offset:{c * 1024 + q * 512} sc1")

def resid_load(b, sbase, RES):
    for fb in range(5):
        b.I("s_add_u32", sT0, sbase, fb * 2048)
        b.I("buffer_load_dwordx2", RES[fb], vEpi, WS, sT0, mods="offen sc1")

def resid_epilogue(b, ACC, RES, bias, sdst, sstat, final=False, sTB=None):
    tA, tB = vt0, vt1
    ssum, ssq = V(VB), V(VB + 1)
    if bias:
        BI = V(VB + 4, 20)
        b.I("v_lshrrev_b32", tA, 4, vL)
        b.I("v_lshlrev_b32", tA, 4, tA)
        b.I("v_add_u32", tA, T_B2, tA)
        for fb in range(5): b.I("ds_read_b128", BI[4 * fb:4 * fb + 4], tA, mods=f"offset:{64 * fb}")
    b.I("v_mov_b32", ssum, 0); b.I("v_mov_b32", ssq, 0)
    for fb in range(5):
        for q in range(2):
            b.I("v_lshlrev_b32", tA, 16, RES[fb][q])
            b.I("v_and_b32", tB, "0xffff0000", RES[fb][q])
            b.I("v_add_f32", ACC[fb][2 * q], ACC[fb][2 * q], tA)
            b.I("v_add_f32", ACC[fb][2 * q + 1], ACC[fb][2 * q + 1], tB)
        if bias:
            for r in range(4): b.I("v_add_f32", ACC[fb][r], ACC[fb][r], BI[4 * fb + r])
        if not final:
            for r in range(4):
                b.I("v_add_f32", ssum, ssum, ACC[fb][r])
                b.I("v_fmac_f32", ssq, ACC[fb][r], ACC[fb][r])
        for q in range(2): b.I("v_cvt_pk_bf16_f32", RES[fb][q], ACC[fb][2 * q], ACC[fb][2 * q + 1])
    if final:
        vo = V(VB + 2)
        b.I("v_and_b32", tA, 15, vL)
        b.I("v_mul_u32_u24", vo, 1280, tA)
        b.I("v_lshrrev_b32", tA, 4, vL)
        b.I("v_lshl_add_u32", vo, tA, 3, vo)
        for fb in range(5): b.I("buffer_store_dwordx2", RES[fb], vo, OUT, sdst, mods=f"offen offset:{32 * fb}")
        return
    for fb in range(5):
        b.I("s_add_u32", sT0, sdst, fb * 2048)
        b.I("buffer_store_dwordx2", RES[fb], vEpi, WS, sT0, mods="offen sc1")
    for r in (ssum, ssq):
        b.I("v_mov_b32", tA, r)
        b.I("v_permlane16_swap_b32", r, tA)
        b.I("v_add_f32", r, r, tA)
        b.I("v_mov_b32", tA, r)
        b.I("v_permlane32_swap_b32", r, tA)
        b.I("v_add_f32", r, r, tA)
    b.I("v_lshlrev_b32", tA, 3, vL)
    b.I("v_cmp_gt_u32", "vcc", 16, vL)
    b.I("v_mov_b32", tB, hex(OOB))
    b.I("v_cndmask_b32", tA, tB, tA, "vcc")
    b.I("buffer_store_dwordx2", V(VB, 2), tA, WS, sstat, mods="offen sc1")

def oproj_wdma(b):
    b.I("s_mul_i32", sT2, sJ, 102400)
    b.I("s_add_u32", sT2, sT2, hex(off["WOP"]))
    return dma_tile(b, sT2, 25, 0, LDS_WO, sc="")

def oproj_phase(b, uid, wtag):
    sO, sRes, sTB, sDst, sSt = sP[0], sP[1], sP[2], sP[3], sP[4]
    XF = [[V(64 + 8 * s_ + 4 * a, 4) for a in range(2)] for s_ in range(10)]
    ACC = [[V(144 + 20 * a + 4 * fb, 4) for fb in range(5)] for a in range(2)]
    WF = [[V(184 + 20 * p + 4 * fb, 4) for fb in range(5)] for p in range(2)]
    RES = [V(224 + 2 * fb, 2) for fb in range(5)]
    vXa = [V(VB + 30), V(VB + 31)]; vWa = V(VB + 32)
    b.I("s_and_b32", sT0, sW, 1)
    b.I("s_lshr_b32", sT1, sW, 1)
    b.I("s_lshl_b32", sT0, sT0, 1)
    b.I("s_add_u32", sTB, sT0, sT1)
    b.I("s_xor_b32", sT2, sTB, 1)
    b.I("s_lshl_b32", sT3, sTB, 8)
    b.I("v_add_u32", vXa[0], sT3, vX16)
    b.I("s_lshl_b32", sT2, sT2, 8)
    b.I("v_add_u32", vXa[1], sT2, vX16)
    b.I("s_mul_i32", sO, sG, 81920)
    b.I("s_add_u32", sO, sO, sLO)
    b.I("s_add_u32", sRes, sO, hex(off["XB0"]))
    b.I("s_add_u32", sDst, sO, hex(off["X10"]))
    b.I("s_add_u32", sO, sO, hex(off["O0"]))
    b.I("s_mul_i32", sT1, sT1, 40960)
    b.I("s_add_u32", sO, sO, sT1)
    for s_ in range(10):
        for a in range(2): b.I("buffer_load_dwordx4", XF[s_][a], vXa[a], WS, sO, mods="offen sc1")
        if s_ < 9: b.I("s_add_u32", sO, sO, 4096)
    b.I("s_mul_i32", sT0, sJ, 10240)
    b.I("s_add_u32", sT0, sT0, sT3)
    b.I("s_add_u32", sRes, sRes, sT0)
    b.I("s_add_u32", sDst, sDst, sT0)
    resid_load(b, sRes, RES)
    b.I("v_lshrrev_b32", vt0, 4, vL)
    b.I("v_mul_u32_u24", vt0, 1280, vt0)
    b.I("v_and_b32", vt1, 15, vL)
    b.I("v_lshl_add_u32", vWa, vt1, 4, vt0)
    b.I("s_lshr_b32", sT1, sW, 1)
    b.I("s_mul_i32", sT1, sT1, 51200)
    b.I("v_add_u32", vWa, sT1, vWa)
    b.I("v_add_u32", vWa, LDS_WO, vWa)
    if wtag is not None: b.wait_vm_tag(wtag)
    b.barrier()
    def wread(s_):
        for fb in range(5): b.I("ds_read_b128", WF[s_ % 2][fb], vWa, mods=f"offset:{s_ * 5120 + fb * 256}")
    wread(0)
    for s_ in range(10):
        if s_ < 9: wread(s_ + 1)
        for fb in range(5):
            for a in range(2):
                b.I("v_mfma_f32_16x16x32_bf16", ACC[a][fb], WF[s_ % 2][fb], XF[s_][a], (0 if s_ == 0 else ACC[a][fb]))
    vR = V(VB + 33)
    b.I("s_mul_i32", sT0, sW, 5120)
    b.I("v_add_u32", vR, sT0, vL16)
    b.I("v_add_u32", vR, LDS_RED_O, vR)
    for fb in range(5): b.I("ds_write_b128", vR, ACC[1][fb], mods=f"offset:{fb * 1024}")
    b.I("s_xor_b32", sT0, sW, 2)
    b.I("s_mul_i32", sT0, sT0, 5120)
    b.I("v_add_u32", vR, sT0, vL16)
    b.I("v_add_u32", vR, LDS_RED_O, vR)
    b.wait(lg=0)
    b.barrier()
    for fb in range(5): b.I("ds_read_b128", WF[0][fb], vR, mods=f"offset:{fb * 1024}")
    for fb in range(5):
        for r in range(4): b.I("v_add_f32", ACC[0][fb][r], ACC[0][fb][r], WF[0][fb][r])
    b.I("s_lshl_b32", sSt, sG, 12)
    b.I("s_add_u32", sSt, sSt, sLO)
    b.I("s_lshl_b32", sT0, sJ, 9)
    b.I("s_add_u32", sSt, sSt, sT0)
    b.I("s_lshl_b32", sT0, sTB, 7)
    b.I("s_add_u32", sSt, sSt, sT0)
    b.I("s_add_u32", sSt, sSt, hex(off["ST10"]))
    resid_epilogue(b, ACC[0], RES, False, sDst, sSt)

def ffn1_wload(b, rng=range(60)):
    b.I("s_lshl_b32", sT2, sJ, 2)
    b.I("s_add_u32", sT2, sT2, sW)
    b.I("s_mul_i32", sT2, sT2, 61440)
    b.I("s_add_u32", sT2, sT2, hex(off["W1P"] + (rng[0] // 4) * 4096))
    for f in rng:
        if f % 4 == 0 and f != rng[0]: b.I("s_add_u32", sT2, sT2, 4096)
        b.I("buffer_load_dwordx4", A(4 * f, 4), vL16, WS, sT2, mods=f"offen offset:{(f % 4) * 1024}")

def bcast4(b, src, dst4):
    b.I("v_mov_b32", dst4[0], src); b.I("v_mov_b32", dst4[2], src)
    b.I("v_permlane32_swap_b32", dst4[0], dst4[2])
    b.I("v_mov_b32", dst4[1], dst4[0]); b.I("v_mov_b32", dst4[3], dst4[2])
    b.I("v_permlane16_swap_b32", dst4[0], dst4[1])
    b.I("v_permlane16_swap_b32", dst4[2], dst4[3])

def ffn1_phase(b, uid):
    sX, sSt, sH = sP[0], sP[1], sP[2]
    b.I("s_mul_i32", sX, sG, 81920)
    b.I("s_add_u32", sX, sX, sLO)
    b.I("s_add_u32", sX, sX, hex(off["X10"]))
    b.I("s_lshl_b32", sSt, sG, 12)
    b.I("s_add_u32", sSt, sSt, sLO)
    b.I("s_add_u32", sSt, sSt, hex(off["ST10"]))
    tags = [dma_tile(b, sX, 4, 16 * c, LDS_X) for c in range(5)]
    ST = [V(VB + 2 * i, 2) for i in range(8)]
    stats_load(b, sSt, ST)
    ACC = [[V(64 + 16 * fb + 4 * tb, 4) for tb in range(4)] for fb in range(3)]
    XF = [[V(112 + 16 * p + 4 * tb, 4) for tb in range(4)] for p in range(2)]
    vXa, vXb = V(VB + 16), V(VB + 17)
    b.I("v_add_u32", vXa, LDS_X, vX16)
    b.I("v_add_u32", vXb, LDS_X + 65536, vX16)
    def xread(s_):
        for tb in range(4):
            o = s_ * 4096 + tb * 256
            base, o = (vXa, o) if o < 65536 else (vXb, o - 65536)
            b.I("ds_read_b128", XF[s_ % 2][tb], base, mods=f"offset:{o}")
    for c in range(5):
        b.wait_vm_tag(tags[c])
        b.barrier()
        xread(4 * c)
        for s_ in range(4 * c, 4 * c + 4):
            if s_ + 1 < 4 * c + 4: xread(s_ + 1)
            for fb in range(3):
                for tb in range(4):
                    b.I("v_mfma_f32_16x16x32_bf16", ACC[fb][tb], A(4 * (3 * s_ + fb), 4), XF[s_ % 2][tb], (0 if s_ == 0 else ACC[fb][tb]))
    mean, rstd = V(VB + 18), V(VB + 19)
    stats_finish(b, ST, mean, rstd)
    b.I("v_mul_f32", mean, mean, rstd)
    MR = [V(VB + 20 + i) for i in range(4)]; RS = [V(VB + 24 + i) for i in range(4)]
    bcast4(b, mean, MR); bcast4(b, rstd, RS)
    CS = V(144, 12); BI = V(156, 12)
    b.I("v_lshrrev_b32", vt0, 4, vL)
    b.I("v_lshlrev_b32", vt0, 4, vt0)
    b.I("s_mul_i32", sT0, sW, 192)
    b.I("v_add_u32", vt0, sT0, vt0)
    b.I("v_add_u32", vt1, T_CS1, vt0)
    b.I("v_add_u32", vt2, T_B1, vt0)
    for fb in range(3):
        b.I("ds_read_b128", CS[4 * fb:4 * fb + 4], vt1, mods=f"offset:{64 * fb}")
        b.I("ds_read_b128", BI[4 * fb:4 * fb + 4], vt2, mods=f"offset:{64 * fb}")
    b.I("s_mul_i32", sH, sG, 196608)
    b.I("s_add_u32", sH, sH, sLO)
    b.I("s_mul_i32", sT0, sJ, 24576)
    b.I("s_add_u32", sH, sH, sT0)
    b.I("s_mul_i32", sT0, sW, 6144)
    b.I("s_add_u32", sH, sH, sT0)
    b.I("s_add_u32", sH, sH, hex(off["H0"]))
    c0 = -2.0 * math.sqrt(2.0 / math.pi) * math.log2(math.e)
    sC0, sC1 = sP[3], sP[4]
    b.I("s_mov_b32", sC0, hex(f2u(c0))); b.I("s_mov_b32", sC1, hex(f2u(c0 * 0.044715)))
    vC0 = V(VB + 28)
    b.I("v_mov_b32", vC0, sC0)
    T = [V(168 + i) for i in range(4)]; U = [V(172 + i) for i in range(4)]; PKD = V(176, 2)
    for fb in range(3):
        for tb in range(4):
            a = ACC[fb][tb]
            for r in range(4): b.I("v_fma_f32", T[r], f"-{MR[tb]}", CS[4 * fb + r], BI[4 * fb + r])
            for r in range(4): b.I("v_fma_f32", a[r], RS[tb], a[r], T[r])
            for r in range(4): b.I("v_mul_f32", T[r], a[r], a[r])
            for r in range(4): b.I("v_fma_f32", T[r], T[r], sC1, vC0)
            for r in range(4): b.I("v_mul_f32", T[r], T[r], a[r])
            for r in range(4): b.I("v_exp_f32", T[r], T[r])
            for r in range(4): b.I("v_add_f32", T[r], 1.0, T[r])
            for r in range(4): b.I("v_rcp_f32", T[r], T[r])
            for r in range(4): b.I("v_mul_f32", a[r], a[r], T[r])
            for q in range(2): b.I("v_cvt_pk_bf16_f32", a[q], a[2 * q], a[2 * q + 1])
            b.I("buffer_store_dwordx2", a[0:2], vEpi, WS, sH, mods=f"offen offset:{tb * 256} sc1")
        if fb < 2: b.I("s_add_u32", sH, sH, 2048)

def ffn2_wload(b, rng=range(60)):
    b.I("s_lshl_b32", sT2, sJ, 2)
    b.I("s_add_u32", sT2, sT2, sW)
    b.I("s_mul_i32", sT2, sT2, 61440)
    b.I("s_add_u32", sT2, sT2, hex(off["W2P"] + (rng[0] // 4) * 4096))
    for f in rng:
        if f % 4 == 0 and f != rng[0]: b.I("s_add_u32", sT2, sT2, 4096)
        b.I("buffer_load_dwordx4", A(4 * f, 4), vL16, WS, sT2, mods=f"offen offset:{(f % 4) * 1024}")

def ffn2_phase(b, uid, final):
    sH, sRes, sDst, sSt = sP[0], sP[1], sP[2], sP[3]
    NB = 4
    XF = [[V(64 + 16 * p + 4 * a, 4) for a in range(4)] for p in range(NB)]
    ACC = [[V(128 + 20 * a + 4 * fb, 4) for fb in range(5)] for a in range(4)]
    RES = [V(208 + 2 * fb, 2) for fb in range(5)]
    vXa = [V(VB + 26 + a) for a in range(4)]
    for a in range(4):
        b.I("s_add_u32", sT0, sW, a)
        b.I("s_and_b32", sT0, sT0, 3)
        b.I("s_lshl_b32", sT0, sT0, 8)
        b.I("v_add_u32", vXa[a], sT0, vX16)
    b.I("s_mul_i32", sH, sG, 196608)
    b.I("s_add_u32", sH, sH, sLO)
    b.I("s_mul_i32", sT0, sW, 49152)
    b.I("s_add_u32", sH, sH, sT0)
    b.I("s_add_u32", sH, sH, hex(off["H0"]))
    def xload(s_):
        for a in range(4): b.I("buffer_load_dwordx4", XF[s_ % NB][a], vXa[a], WS, sH, mods="offen sc1")
        b.I("s_add_u32", sH, sH, 4096)
    for s_ in range(NB - 1): xload(s_)
    b.I("s_mul_i32", sRes, sG, 81920)
    b.I("s_add_u32", sRes, sRes, sLO)
    b.I("s_mul_i32", sT0, sJ, 10240)
    b.I("s_add_u32", sRes, sRes, sT0)
    b.I("s_lshl_b32", sT0, sW, 8)
    b.I("s_add_u32", sRes, sRes, sT0)
    b.I("s_add_u32", sDst, sRes, hex(off["XB0"] + LS))
    b.I("s_add_u32", sRes, sRes, hex(off["X10"]))
    resid_load(b, sRes, RES)
    for s_ in range(12):
        if s_ + NB - 1 < 12: xload(s_ + NB - 1)
        for fb in range(5):
            for a in range(4):
                b.I("v_mfma_f32_16x16x32_bf16", ACC[a][fb], A(4 * (5 * s_ + fb), 4), XF[s_ % NB][a], (0 if s_ == 0 else ACC[a][fb]))
    vR = V(VB + 30)
    b.barrier()
    for a in range(1, 4):
        b.I("s_add_u32", sT0, sW, a)
        b.I("s_and_b32", sT0, sT0, 3)
        b.I("s_mul_i32", sT0, sT0, 15360)
        b.I("s_add_u32", sT0, sT0, LDS_RED_F + (a - 1) * 5120)
        b.I("v_add_u32", vR, sT0, vL16)
        for fb in range(5): b.I("ds_write_b128", vR, ACC[a][fb], mods=f"offset:{fb * 1024}")
    b.I("s_mul_i32", sT0, sW, 15360)
    b.I("s_add_u32", sT0, sT0, LDS_RED_F)
    b.I("v_add_u32", vR, sT0, vL16)
    b.wait(lg=0)
    b.barrier()
    for a in range(1, 4):
        for fb in range(5): b.I("ds_read_b128", ACC[a][fb], vR, mods=f"offset:{(a - 1) * 5120 + fb * 1024}")
    for a in range(1, 4):
        for fb in range(5):
            for r in range(4): b.I("v_add_f32", ACC[0][fb][r], ACC[0][fb][r], ACC[a][fb][r])
    if final:
        b.I("s_lshl_b32", sT0, sG, 6)
        b.I("s_lshl_b32", sT1, sW, 4)
        b.I("s_add_u32", sT0, sT0, sT1)
        b.I("s_mul_i32", sDst, sT0, 1280)
        b.I("s_mul_i32", sT0, sJ, 160)
        b.I("s_add_u32", sDst, sDst, sT0)
        resid_epilogue(b, ACC[0], RES, True, sDst, None, final=True)
    else:
        b.I("s_lshl_b32", sSt, sG, 12)
        b.I("s_lshl_b32", sT0, sJ, 9)
        b.I("s_add_u32", sSt, sSt, sT0)
        b.I("s_lshl_b32", sT0, sW, 7)
        b.I("s_add_u32", sSt, sSt, sT0)
        b.I("s_add_u32", sSt, sSt, hex(off["STI0"] + LS))
        resid_epilogue(b, ACC[0], RES, True, sDst, sSt)


PROFILE = False
NSLOT = 20
def stamp(b, name):
    if not PROFILE or name not in PROFILE: return
    slot = PROFILE.index(name)
    b.I("s_memtime", S(56, 2))
    b.I("s_memrealtime", S(58, 2))
    b.wait(lg=0)
    b.I("s_mov_b32", S(60 + slot), S(56))
    b.I("s_mov_b32", S(80 + slot), S(58))
def stamp_flush(b, base_slot=0):
    if not PROFILE: return
    b.I("s_lshl_b32", S(56), S(2), 2)
    b.I("s_add_u32", S(56), S(56), sW)
    b.I("s_lshl_b32", S(56), S(56), 9)
    b.I("s_add_u32", S(56), S(56), off["PROF"] + base_slot * 8)
    b.I("v_mov_b32", V(252), 0)
    for slot in range(NSLOT):
        b.I("v_mov_b32", V(250), S(60 + slot)); b.I("v_mov_b32", V(251), S(80 + slot))
        b.I("buffer_store_dwordx2", V(250, 2), V(252), WS, S(56), mods=f"offen offset:{slot * 8}")
```

```python
from build import *
from k_l0 import gen_l0
import k_main as M
import k_f2 as F
def build(prof=False):
    M.PROFILE = prof
    ks = []; launches = []
    b = B(); gen_l0(b); ks.append(("l0_kernel", b.text(), 128, 0, 102)); launches.append(("l0_kernel", 256, 256, 8192))
    b = B(); F.gen_fused(b); ks.append(("main_kernel", b.text(), 256, 256, 102)); launches.append(("main_kernel", 256, 256, M.LDS_BYTES))
    e, x = b.loop_states
    assert e == x, "attention loop state mismatch"
    return assemble_file(launches, ks), b
if __name__ == "__main__":
    SETS = dict(
        prof="start layer qkv_end grid_ok loop_in loop_out drain reduced att_end s1_ok opr_end s2_ok ff1_end s3_ok ff2_end s4_ok end".split(),
        pa="layer q_pre q_c0 q_c1 q_c4 q_mm q_kv qkv_end grid_ok att_end s1_drained s1_win s1_ok o_pre o_s0 o_mm o_red opr_end end".split(),
        pb="opr_end s2_drained s2_win s2_ok f_pre f_c0 f_c1 f_c4 f_mm ff1_end s3_drained s3_win s3_ok g_pre g_s0 g_s5 g_mm g_red ff2_end end".split())
    prof = SETS.get(sys.argv[1]) if len(sys.argv) > 1 else False
    s, b = build(prof)
    if prof: s = "; stamps: " + " ".join(prof) + "\n" + s
    open(f"fused_{sys.argv[1]}.s" if prof else "fused.s", "w").write(s)
    print("bytes", len(s), "nops", b.nops, "instrs", sum(b.stats.values()))
```

```python
import re

class R:
    __slots__ = ("k", "i", "n")
    def __init__(self, k, i, n=1): self.k, self.i, self.n = k, i, n
    def __str__(self):
        return f"{self.k}{self.i}" if self.n == 1 else f"{self.k}[{self.i}:{self.i+self.n-1}]"
    __repr__ = __str__
    def __getitem__(self, x):
        if isinstance(x, slice):
            a = x.start or 0; b = self.n if x.stop is None else x.stop
            assert 0 <= a < b <= self.n, (self, x)
            return R(self.k, self.i + a, b - a)
        assert 0 <= x < self.n, (self, x)
        return R(self.k, self.i + x, 1)
    def regs(self): return {(self.k, self.i + j) for j in range(self.n)}
def V(i, n=1): return R("v", i, n)
def A(i, n=1): return R("a", i, n)
def S(i, n=1): return R("s", i, n)

_REG_RE = re.compile(r"^(-|abs\()?([vas])(?:(\d+)|\[(\d+):(\d+)\])\)?$")
def opregs(x):
    if isinstance(x, R): return x.regs()
    x = str(x).strip()
    m = _REG_RE.match(x)
    if m:
        if m.group(3) is not None: return {(m.group(2), int(m.group(3)))}
        return {(m.group(2), j) for j in range(int(m.group(4)), int(m.group(5)) + 1)}
    if x == "vcc": return {("s", "vcc")}
    if x == "exec": return {("s", "exec")}
    if x == "m0": return {("s", "m0")}
    if x == "scc": return {("s", "scc")}
    return set()

TRANS = ("v_exp_f32", "v_log_f32", "v_rcp_f32", "v_rsq_f32", "v_sqrt_f32", "v_sin_f32", "v_cos_f32")
MFMA_PASSES = {"v_mfma_f32_32x32x16_bf16": 8, "v_mfma_f32_32x32x8_bf16": 8, "v_mfma_f32_16x16x32_bf16": 4}
D_TO_VALU = {4: 8, 8: 12}
D_TO_AB = {4: 8, 8: 12}
D_TO_C_OVERLAP = {4: 6, 8: 10}
C_WAR = {4: 3, 8: 7}

class Inst:
    __slots__ = ("op", "text", "rd", "wr", "cls", "ws")
    def __init__(self, op, text, rd, wr, cls, ws=1):
        self.op, self.text, self.rd, self.wr, self.cls, self.ws = op, text, rd, wr, cls, ws

def classify(op):
    if op.startswith("v_mfma"): return "mfma"
    if op.startswith("buffer_") or op.startswith("global_"): return "vmem"
    if op.startswith("ds_"): return "ds"
    if op.startswith("s_load") or op.startswith("s_memtime") or op.startswith("s_memrealtime"): return "smem"
    if op.startswith("v_"): return "valu"
    return "salu"

class B:
    def __init__(self):
        self.out = []
        self.hist = []
        self.vm = []
        self.lg = []
        self.ntag = 0
        self.nops = 0
        self.nvm = 0
        self.stats = {}
        self.auto = True
    def raw(self, text): self.out.append(text)
    def comment(self, t): self.out.append(f"  ; {t}")
    def label(self, name):
        self.out.append(f"{name}:")
    def align(self, n): self.out.append(f".p2align {n}")
    def _emit_wait(self, vm=None, lg=None):
        parts = []
        if vm is not None:
            parts.append(f"vmcnt({min(vm,63)})")
            if vm <= 63: self.vm = self.vm[len(self.vm) - vm:] if vm < len(self.vm) else self.vm
            else: self.vm = self.vm[max(0, len(self.vm) - 63):]
        if lg is not None:
            parts.append(f"lgkmcnt({min(lg,15)})")
            keep = min(lg, 15)
            self.lg = self.lg[len(self.lg) - keep:] if keep < len(self.lg) else self.lg
            if keep == 0: self.lg = []
        t = "s_waitcnt " + " ".join(parts)
        self.out.append("  " + t)
        self._push(Inst("s_waitcnt", t, set(), set(), "salu"))
    def wait(self, vm=None, lg=None):
        self._emit_wait(vm, lg)
    def wait_vm_tag(self, tag):
        idx = [i for i, e in enumerate(self.vm) if e[0] == tag]
        if idx: self._emit_wait(vm=len(self.vm) - 1 - idx[-1])
    def wait_lg_tag(self, tag):
        idx = [i for i, e in enumerate(self.lg) if e[0] == tag]
        if idx:
            if any(e[2] for e in self.lg): self._emit_wait(lg=0)
            else: self._emit_wait(lg=len(self.lg) - 1 - idx[-1])
    def _need(self, regs):
        vmi = -1
        for i, e in enumerate(self.vm):
            if e[1] & regs: vmi = i
        lgi = -1
        for i, e in enumerate(self.lg):
            if e[1] & regs: lgi = i
        vm = lg = None
        if vmi >= 0: vm = len(self.vm) - 1 - vmi
        if lgi >= 0:
            lg = 0 if any(e[2] for e in self.lg) else len(self.lg) - 1 - lgi
        if vm is not None or lg is not None: self._emit_wait(vm, lg)
    def _push(self, ins):
        self.hist.append(ins)
        if len(self.hist) > 40: self.hist.pop(0)
    def _required(self, c):
        need = 0; dist = 0
        touched = c.rd | c.wr
        for p in reversed(self.hist):
            req = 0
            if p.cls == "mfma":
                ps = MFMA_PASSES[p.op]; D = p.wr
                if c.cls == "mfma":
                    cA, cB, cC = c.ab, c.ab, c.c
                    if D & cA: req = max(req, D_TO_AB[ps])
                    if D & cC:
                        same = (D == cC) and MFMA_PASSES[c.op] == ps
                        if not same: req = max(req, D_TO_C_OVERLAP[ps])
                    if (D & c.wr) and not (D & cC): req = max(req, D_TO_C_OVERLAP[ps])
                elif c.cls in ("valu", "vmem", "ds"):
                    if D & touched: req = max(req, D_TO_VALU[ps])
                if c.cls == "valu" and (p.c & c.wr): req = max(req, C_WAR[ps])
                if c.cls in ("ds", "vmem") and (p.c & c.wr): req = max(req, C_WAR[ps])
            elif p.cls == "valu":
                vw = {r for r in p.wr if r[0] in "va"}
                sw = {r for r in p.wr if r[0] == "s"}
                if c.cls == "mfma" and (vw & c.rd): req = max(req, 2)
                if c.cls == "mfma" and ("s", "exec") in sw: req = max(req, 4)
                if p.op in TRANS and c.cls in ("valu",) and c.op not in TRANS and (vw & c.rd): req = max(req, 1)
                if p.op in TRANS and c.cls in ("valu",) and c.op in TRANS and (vw & c.rd): req = max(req, 1)
                if p.op in TRANS and c.cls in ("ds", "vmem") and (vw & c.rd): req = max(req, 1)
                if c.cls == "vmem" and (sw & c.rd): req = max(req, 5)
                if c.cls == "valu" and (sw & c.rd):
                    req = max(req, 4 if c.op in ("v_readlane_b32", "v_writelane_b32") else 2)
                if c.op in ("v_readfirstlane_b32", "v_readlane_b32") and (vw & c.rd): req = max(req, 1)
                if c.cls == "valu" and ("dpp" in c.op or "_dpp" in c.text or "row_" in c.text or "quad_perm" in c.text) and (vw & c.rd): req = max(req, 2)
                if c.op.startswith("v_permlane") and (vw & (c.rd | c.wr)): req = max(req, 2)
                if ("s", "exec") in sw and c.cls == "valu" and ("row_" in c.text or "quad_perm" in c.text): req = max(req, 5)
                if ("s", "exec") in sw and (c.op.startswith("v_permlane") or c.op.startswith("v_read")): req = max(req, 4)
                if "sdwa" in p.text and c.cls == "valu" and (vw & c.rd): req = max(req, 1)
                if c.cls == "salu" and (sw & c.rd): req = max(req, 4)
            elif p.cls == "vmem":
                if getattr(p, "wide_store", None) and c.cls in ("valu", "ds", "vmem", "mfma") and (p.wide_store & c.wr): req = max(req, 2)
            elif p.cls == "salu":
                if ("s", "m0") in p.wr and c.cls == "vmem" and ("s", "m0") in c.rd: req = max(req, 1)
            need = max(need, req - dist)
            dist += p.ws
            if dist > 20: break
        return need
    def nop(self, n):
        while n > 0:
            k = min(n, 16)
            t = f"s_nop {k-1}"
            self.out.append("  " + t); self._push(Inst("s_nop", t, set(), set(), "salu", ws=k)); n -= k
            self.nops += 1
    def I(self, op, *ops, mods="", rd=None, wr=None, tag=None):
        cls = classify(op)
        text = op + (" " + ", ".join(str(o) for o in ops) if ops else "") + (" " + mods if mods else "")
        Rd, Wr = set(), set()
        dest = set()
        ins = InstX(op, text, cls)
        base = op.replace("_e32", "").replace("_e64", "").replace("_dpp", "").replace("_sdwa", "")
        ins.op = base if cls != "salu" else op
        o = [opregs(x) for x in ops]
        lds_dma = cls == "vmem" and " lds" in (" " + mods)
        if cls == "mfma":
            Wr = o[0]; ins.ab = o[1] | o[2]; ins.c = o[3]; Rd = o[1] | o[2] | o[3]
        elif cls == "vmem":
            Rd |= {("s", "exec")}
            if "load" in op:
                if lds_dma:
                    for x in o: Rd |= x
                    Rd |= {("s", "m0")}
                else:
                    dest = o[0]; Wr = set(o[0])
                    for x in o[1:]: Rd |= x
            elif "store" in op:
                for x in o: Rd |= x
                if "x4" in op or "x3" in op:
                    ins.wide_store = o[0] if op.startswith("buffer_") else o[1]
            elif "atomic" in op:
                ret = "sc0" in mods.split()
                if ret:
                    dest = o[0]; Wr = set(o[0])
                    for x in o[1:]: Rd |= x
                    if op.startswith("buffer_"): Rd |= o[0]
                else:
                    for x in o: Rd |= x
            else:
                for x in o: Rd |= x
        elif cls == "ds":
            if op.startswith("ds_read") or op.startswith("ds_bpermute") or op.startswith("ds_swizzle") or op.startswith("ds_permute"):
                dest = o[0]; Wr = set(o[0])
                for x in o[1:]: Rd |= x
            else:
                for x in o: Rd |= x
        elif cls == "smem":
            dest = o[0]; Wr = set(o[0])
            for x in o[1:]: Rd |= x
        elif cls == "valu":
            if base.startswith("v_cmp"):
                Wr = set(o[0])
                for x in o[1:]: Rd |= x
                if base.startswith("v_cmpx"): Wr |= {("s", "exec")}
            elif base in ("v_permlane32_swap_b32", "v_permlane16_swap_b32", "v_swap_b32"):
                Wr = o[0] | o[1]; Rd = o[0] | o[1]
            elif base in ("v_add_co_u32", "v_sub_co_u32", "v_addc_co_u32", "v_subb_co_u32"):
                Wr = o[0] | o[1]
                for x in o[2:]: Rd |= x
            else:
                Wr = set(o[0])
                for x in o[1:]: Rd |= x
                if base in ("v_fmac_f32", "v_pk_fmac_f16", "v_dot2c_f32_bf16", "v_writelane_b32") or "UNUSED_PRESERVE" in mods or ("row_" in mods or "quad_perm" in mods): Rd |= o[0]
                if base == "v_cndmask_b32" and len(ops) == 3: Rd |= {("s", "vcc")}
            Rd |= {("s", "exec")}
        else:
            nodst = ("s_cmp", "s_cbranch", "s_branch", "s_barrier", "s_nop", "s_sleep", "s_setprio", "s_endpgm", "s_bitcmp", "s_waitcnt", "s_setpc")
            if op.startswith(nodst):
                for x in o: Rd |= x
                if op.startswith("s_cbranch_vcc"): Rd |= {("s", "vcc")}
                if op.startswith("s_cbranch_exec"): Rd |= {("s", "exec")}
            else:
                Wr = set(o[0])
                for x in o[1:]: Rd |= x
                if "saveexec" in op: Wr |= {("s", "exec")}; Rd |= {("s", "exec")}
                if op.startswith("s_add") and op.endswith("k_i32"): Rd |= o[0]
        if rd: Rd |= rd
        if wr: Wr |= wr
        ins.rd, ins.wr = Rd, Wr
        if self.auto:
            self._need(Rd | Wr)
            n = self._required(ins)
            if n > 0: self.nop(n)
        self.out.append("  " + text)
        self._push(ins)
        self.stats[ins.op] = self.stats.get(ins.op, 0) + 1
        self.ntag += 1
        t = tag if tag is not None else ("_", self.ntag)
        if cls == "vmem":
            self.nvm += 1
            self.vm.append((t, dest))
            if len(self.vm) > 63 + 64: self.vm.pop(0)
        elif cls == "ds": self.lg.append((t, dest, False))
        elif cls == "smem": self.lg.append((t, set(o[0]), True))
        return t
    def need(self, *ranges):
        regs = set()
        for r in ranges: regs |= r.regs()
        self._need(regs)
    def barrier(self): self.I("s_barrier")
    def snapshot(self): return (list(self.vm), list(self.lg))
    def restore(self, snap): self.vm, self.lg = list(snap[0]), list(snap[1])
    def clear_hist(self): self.hist = []
    def text(self): return "\n".join(self.out) + "\n"

class InstX(Inst):
    __slots__ = ("ab", "c", "wide_store")
    def __init__(self, op, text, cls):
        Inst.__init__(self, op, text, set(), set(), cls)
        self.ab = set(); self.c = set(); self.wide_store = None

def interleave(main, fill, start=0):
    out = []
    n, m = len(main), len(fill)
    j = 0
    for i, x in enumerate(main):
        out.append(x)
        tgt = (m * (i + 1 - start)) // max(1, n - start) if i >= start else 0
        while j < min(tgt, m):
            out.append(fill[j]); j += 1
    out += fill[j:]
    return out
```

```python
from asmb import *
import layout as L
import k_main as M
from k_main import *

LDS_Q = 86016
LDS_PART = 86016
LDS_FLAG = TAB + 2560
LDS_MAX = 86016

def standin_fold(b, q, m, t0, t1, t2):
    b.I("v_sub_f32", t0, 0, m)
    b.I("v_and_b32", t1, "0xffff0000", t0)
    b.I("v_sub_f32", t0, t0, t1)
    b.I("v_and_b32", t2, "0xffff0000", t0)
    b.I("v_sub_f32", t0, t0, t2)
    b.I("v_lshrrev_b32", t1, 16, t1)
    b.I("v_or_b32", t1, t1, t2)
    b.I("v_lshrrev_b32", t0, 16, t0)
    b.I("v_cmp_gt_u32", "vcc", 32, vL)
    b.I("v_cndmask_b32", q[0], t1, q[0], "vcc")
    b.I("v_cndmask_b32", q[1], t0, q[1], "vcc")

def attn_pre(b, uid, trailing_barrier=True):
    km = V(64, 4); kt = V(68, 2); Sx = [V(72, 16), V(88, 16)]
    va = V(VB)
    b.I("v_add_u32", va, LDS_KVIMG, vL16)
    b.I("ds_read_b128", km, va)
    b.I("v_lshlrev_b32", vt0, 3, vL)
    b.I("v_add_u32", vt0, LDS_KVIMG + 1024, vt0)
    b.I("ds_read_b64", kt, vt0)
    b.I("v_cmp_gt_u32", "vcc", 32, vL)
    for th in range(2):
        for e in range(2): b.I("v_cndmask_b32", QT[th][e], 0, QT[th][e], "vcc")
    for th in range(2): b.I("v_mfma_f32_32x32x16_bf16", Sx[th], km, QM[th], 0)
    for th in range(2): b.I("v_mfma_f32_32x32x8_bf16", Sx[th], kt, QT[th], Sx[th])
    for th in range(2):
        m = V(VB + 1 + th)
        b.I("v_max3_f32", m, Sx[th][0], Sx[th][1], Sx[th][2])
        for i in range(3, 15, 2): b.I("v_max3_f32", m, m, Sx[th][i], Sx[th][i + 1])
        b.I("v_max_f32", m, m, Sx[th][15])
        b.I("v_mov_b32", vt0, m)
        b.I("v_permlane32_swap_b32", m, vt0)
        b.I("v_max_f32", m, m, vt0)
        standin_fold(b, QT[th], m, vt0, vt1, vt2)
    vb, vb2 = V(VB + 3), V(VB + 4)
    b.I("v_add_u32", vb, LDS_Q, vL16)
    b.I("v_lshlrev_b32", vb2, 3, vL)
    b.I("v_add_u32", vb2, LDS_Q + 1024, vb2)
    b.I("s_lshl_b32", sT0, sW, 12)
    b.I("v_add_u32", va, sT0, vb)
    b.I("v_add_u32", vt1, sT0, vb2)
    for th in range(2):
        b.I("ds_write_b128", va, QM[th], mods=f"offset:{2048 * th}")
        b.I("ds_write_b64", vt1, QT[th], mods=f"offset:{2048 * th}")
    b.wait(lg=0)
    b.barrier()
    for hd in range(4):
        if hd:
            b.I("s_add_u32", sT0, sW, hd)
            b.I("s_and_b32", sT0, sT0, 3)
            b.I("s_lshl_b32", sT0, sT0, 12)
            b.I("v_add_u32", va, sT0, vb)
            b.I("v_add_u32", vt1, sT0, vb2)
        for th in range(2):
            b.I("ds_read_b128", QA[2 * hd + th], va, mods=f"offset:{2048 * th}")
            b.I("ds_read_b64", QB[2 * hd + th], vt1, mods=f"offset:{2048 * th}")
    b.wait(lg=0)
    if trailing_barrier: b.barrier()

QA = [V(128 + 4 * a, 4) for a in range(8)]
QB = [V(160 + 2 * a, 2) for a in range(8)]
KV2 = [dict(km=V(64 + 16 * p, 4), kt=V(68 + 16 * p, 2), v=[V(72 + 16 * p, 4), V(76 + 16 * p, 4)]) for p in range(2)]
SX = [V(96, 16), V(112, 16)]
PP = [V(176, 8), V(184, 8)]
OA = [A(16 * a, 16) for a in range(8)]

def attn_main(b, uid, sc="sc1", hook=None, fused=False, on_run=None):
    vKt, vV = V(VB), V(VB + 1)
    sKV, sOff, sCnt, sRetry = sP[0], sP[1], sP[2], sP[3]
    b.I("s_add_u32", sKV, sLO, hex(off["KV0"]))
    b.I("s_mul_i32", sT0, sW, 16 * 3072)
    b.I("s_add_u32", sKV, sKV, sT0)
    b.I("v_lshlrev_b32", vKt, 3, vL)
    b.I("v_add_u32", vKt, 1024, vKt)
    b.I("v_and_b32", vt0, 31, vL)
    b.I("v_lshrrev_b32", vt2, 5, vL)
    b.I("v_mul_u32_u24", vt2, 384, vt2)
    b.I("v_lshl_add_u32", vV, vt0, 4, vt2)
    b.I("v_add_u32", vV, 1536, vV)
    b.I("v_mov_b32", vt1, hex(OOB))
    b.I("v_cmp_ge_u32", "vcc", 20, vt0)
    b.I("v_cndmask_b32", vV, vt1, vV, "vcc")
    def loadk(p):
        b.I("buffer_load_dwordx4", KV2[p]["km"], vL16, WS, sOff, mods="offen " + sc)
        b.I("buffer_load_dwordx2", KV2[p]["kt"], vKt, WS, sOff, mods="offen " + sc)
    def loadv(p):
        b.I("buffer_load_dwordx4", KV2[p]["v"][0], vV, WS, sOff, mods="offen " + sc)
        b.I("buffer_load_dwordx4", KV2[p]["v"][1], vV, WS, sOff, mods="offen offset:768 " + sc)
    def qk_main(a, p): b.I("v_mfma_f32_32x32x16_bf16", SX[a % 2], KV2[p]["km"], QA[a], 0)
    def qk_tail(a, p): b.I("v_mfma_f32_32x32x8_bf16", SX[a % 2], KV2[p]["kt"], QB[a], SX[a % 2])
    def pv(a, p, mf): b.I("v_mfma_f32_32x32x16_bf16", OA[a], KV2[p]["v"][mf], PP[a % 2][4 * mf:4 * mf + 4], OA[a])
    b.I("s_mov_b32", sRetry, 0)
    if not fused:
        for a in range(8):
            for i in range(16): b.I("v_accvgpr_write_b32", OA[a][i], 0)
    b.label(f"ATT_RUN_{uid}")
    b.clear_hist(); b.nop(2)
    if not fused: stamp(b, "run")
    if on_run: on_run()
    b.I("s_mov_b32", sOff, sKV)
    loadk(0); loadv(0)
    b.I("s_add_u32", sOff, sOff, 3072)
    loadk(1)
    for i in range(8): b.I("v_mov_b32", PP[1][i], 0)
    for e in range(8): b.I("v_mov_b32", V(KV2[1]["v"][0].i + e), 0)
    for i in range(12, 16): b.I("v_mov_b32", SX[1][i], 0)
    qk_main(0, 0)
    b.nop(10)
    qk_tail(0, 0)
    b.nop(12)
    stamp(b, "loop_in")
    b.I("s_mov_b32", sCnt, 8)
    b.align(6)
    b.label(f"ATT_LOOP_{uid}")
    b.clear_hist()
    b.vm = [(("kv", 9), KV2[0]["v"][0].regs()), (("kv", 9), KV2[0]["v"][1].regs()),
            (("kv", 8), KV2[1]["km"].regs()), (("kv", 8), KV2[1]["kt"].regs())]
    entry = [e[1] for e in b.vm]
    def step(a, p, extra):
        s_ = SX[a % 2]; P_ = PP[a % 2]; sprev = SX[(a + 1) % 2]; Pprev = PP[(a + 1) % 2]
        an, pn = (a + 1) % 8, (p if a < 7 else 1 - p)
        ap, pp_ = (a - 1) % 8, (p if a > 0 else 1 - p)
        ex = lambda i: b.I("v_exp_f32", s_[i], s_[i])
        cv = lambda i: b.I("v_cvt_pk_bf16_f32", P_[i], s_[2 * i], s_[2 * i + 1])
        b.I("v_cvt_pk_bf16_f32", Pprev[6], sprev[12], sprev[13])
        ex(0)
        b.I("v_cvt_pk_bf16_f32", Pprev[7], sprev[14], sprev[15])
        ex(1)
        qk_main(an, pn)
        ex(2); ex(3); ex(4); ex(5); cv(0); cv(1)
        pv(ap, pp_, 0)
        for x in extra.get(0, []): x()
        ex(6); ex(7); ex(8); ex(9)
        qk_tail(an, pn)
        cv(2); ex(10); ex(11); cv(3); ex(12); ex(13); cv(4)
        pv(ap, pp_, 1)
        ex(14); ex(15); cv(5)
        for x in extra.get(1, []): x()
    for p in range(2):
        for a in range(8):
            extra = {}
            if a == 1: extra = {0: [lambda p=p: loadv(1 - p)], 1: [lambda: b.I("s_add_u32", sOff, sOff, 3072)]}
            if a == 7: extra = {1: [lambda p=p: loadk(p)]}
            if hook: hook(p, a, extra)
            step(a, p, extra)
    b.I("s_sub_u32", sCnt, sCnt, 1)
    b.I("s_cmp_lg_u32", sCnt, 0)
    b.I("s_cbranch_scc1", f"ATT_LOOP_{uid}")
    b.loop_states = (entry, [e[1] for e in b.vm])
    stamp(b, "loop_out")
    b.I("v_cvt_pk_bf16_f32", PP[1][6], SX[1][12], SX[1][13])
    b.I("v_cvt_pk_bf16_f32", PP[1][7], SX[1][14], SX[1][15])
    pv(7, 1, 0); pv(7, 1, 1)
    b.wait(vm=0)
    stamp(b, "drain")
    vR = V(VB + 2)
    b.barrier()
    for hd in range(1, 4):
        b.I("s_add_u32", sT0, sW, hd)
        b.I("s_and_b32", sT0, sT0, 3)
        b.I("s_mul_i32", sT0, sT0, 18432)
        b.I("s_add_u32", sT0, sT0, LDS_PART + (hd - 1) * 6144)
        b.I("v_add_u32", vR, sT0, vL16)
        for th in range(2):
            for c in range(3): b.I("ds_write_b128", vR, OA[2 * hd + th][4 * c:4 * c + 4], mods=f"offset:{th * 3072 + c * 1024}")
    OO = [V(192, 12), V(204, 12)]
    TT = [V(64, 12), V(76, 12), V(88, 12)]
    for th in range(2):
        for i in range(12): b.I("v_accvgpr_read_b32", OO[th][i], OA[th][i])
    b.I("s_mul_i32", sT0, sW, 18432)
    b.I("s_add_u32", sT0, sT0, LDS_PART)
    b.I("v_add_u32", vR, sT0, vL16)
    b.wait(lg=0)
    b.barrier()
    for th in range(2):
        for sl in range(3):
            for c in range(3): b.I("ds_read_b128", TT[sl][4 * c:4 * c + 4], vR, mods=f"offset:{sl * 6144 + th * 3072 + c * 1024}")
        for sl in range(3):
            for i in range(12): b.I("v_add_f32", OO[th][i], OO[th][i], TT[sl][i])
    stamp(b, "reduced")
    lreg = [V(VB + 5), V(VB + 6)]
    for q in range(2):
        b.I("v_mov_b32", lreg[q], OO[q][8])
        b.I("v_mov_b32", vt0, OO[q][8])
        b.I("v_permlane32_swap_b32", vt0, lreg[q])
    b.I("v_mov_b32", vt2, hex(f2u(2.0 ** 60)))
    b.I("v_cmp_nlt_f32", S(48, 2), lreg[0], vt2)
    b.I("v_cmp_nlt_f32", S(50, 2), lreg[1], vt2)
    b.I("v_mov_b32", vt1, 0)
    for q in range(2):
        for i in range(12): b.I("v_fmac_f32", vt1, 0, OO[q][i])
    b.I("v_cmp_u_f32", "vcc", vt1, vt1)
    b.I("s_or_b64", S(48, 2), S(48, 2), S(50, 2))
    b.I("s_or_b64", S(48, 2), S(48, 2), "vcc")
    b.I("s_cmp_lg_u64", S(48, 2), 0)
    b.I("s_cselect_b32", sT0, 1, 0)
    b.I("s_cmp_eq_u32", sRetry, 1)
    b.I("s_cselect_b32", sT0, 0, sT0)
    b.I("v_mov_b32", vt0, sT0)
    b.I("s_lshl_b32", sT1, sW, 2)
    b.I("s_add_u32", sT1, sT1, LDS_FLAG)
    b.I("v_mov_b32", vt1, sT1)
    b.I("ds_write_b32", vt1, vt0)
    b.wait(lg=0)
    b.barrier()
    b.I("v_mov_b32", vt1, LDS_FLAG)
    FL = V(VB + 8, 4)
    b.I("ds_read_b128", FL, vt1)
    b.I("v_or_b32", FL[0], FL[0], FL[1]); b.I("v_or_b32", FL[2], FL[2], FL[3]); b.I("v_or_b32", FL[0], FL[0], FL[2])
    b.I("v_readfirstlane_b32", sT0, FL[0])
    b.I("s_cmp_eq_u32", sT0, 0)
    b.I("s_cbranch_scc1", f"ATT_OK_{uid}")
    b.I("s_mov_b32", sRetry, 1)
    MX = [V(192 + a) for a in range(8)]
    QZ = V(200, 2)
    for a in range(8): b.I("v_mov_b32", MX[a], hex(f2u(-3.0e38)))
    b.I("s_mov_b32", sOff, sKV)
    b.I("s_mov_b32", sCnt, 16)
    b.label(f"ATT_MAX_{uid}")
    b.clear_hist()
    loadk(0)
    b.I("s_add_u32", sOff, sOff, 3072)
    b.I("v_cmp_gt_u32", "vcc", 32, vL)
    for a in range(8):
        for e in range(2): b.I("v_cndmask_b32", QZ[e], 0, QB[a][e], "vcc")
        b.I("v_mfma_f32_32x32x16_bf16", SX[0], KV2[0]["km"], QA[a], 0)
        b.nop(10)
        b.I("v_mfma_f32_32x32x8_bf16", SX[0], KV2[0]["kt"], QZ, SX[0])
        for i in range(0, 16, 2): b.I("v_max3_f32", MX[a], MX[a], SX[0][i], SX[0][i + 1])
    b.I("s_sub_u32", sCnt, sCnt, 1)
    b.I("s_cmp_lg_u32", sCnt, 0)
    b.I("s_cbranch_scc1", f"ATT_MAX_{uid}")
    b.barrier()
    for a in range(8):
        b.I("v_mov_b32", vt0, MX[a])
        b.I("v_permlane32_swap_b32", MX[a], vt0)
        b.I("v_max_f32", MX[a], MX[a], vt0)
        b.I("s_add_u32", sT0, sW, a // 2)
        b.I("s_and_b32", sT0, sT0, 3)
        b.I("s_lshl_b32", sT0, sT0, 9)
        b.I("s_lshl_b32", sT1, sW, 11)
        b.I("s_add_u32", sT0, sT0, sT1)
        b.I("s_add_u32", sT0, sT0, LDS_MAX + (a & 1) * 256)
        b.I("v_lshlrev_b32", vt1, 2, vL)
        b.I("v_add_u32", vt1, sT0, vt1)
        b.I("ds_write_b32", vt1, MX[a])
    b.wait(lg=0)
    b.barrier()
    for a in range(8):
        b.I("s_add_u32", sT0, sW, a // 2)
        b.I("s_and_b32", sT0, sT0, 3)
        b.I("s_lshl_b32", sT0, sT0, 9)
        b.I("s_add_u32", sT0, sT0, LDS_MAX + (a & 1) * 256)
        b.I("v_lshlrev_b32", vt1, 2, vL)
        b.I("v_add_u32", vt1, sT0, vt1)
        T4 = V(204, 4)
        for ww in range(4): b.I("ds_read_b32", T4[ww], vt1, mods=f"offset:{2048 * ww}")
        b.I("v_max3_f32", T4[0], T4[0], T4[1], T4[2])
        b.I("v_max_f32", T4[0], T4[0], T4[3])
        standin_fold(b, QB[a], T4[0], vt0, vt2, vt3)
    for a in range(8):
        for i in range(16): b.I("v_accvgpr_write_b32", OA[a][i], 0)
    b.wait(lg=0)
    b.barrier()
    b.I("s_branch", f"ATT_RUN_{uid}")
    b.label(f"ATT_OK_{uid}")
    b.clear_hist(); b.nop(2)
    sO = sP[0]
    b.I("s_mul_i32", sO, sG, 81920)
    b.I("s_add_u32", sO, sO, sLO)
    b.I("s_mul_i32", sT0, sJ, 10240)
    b.I("s_add_u32", sO, sO, sT0)
    b.I("s_add_u32", sO, sO, hex(off["O0"]))
    vo = V(VB + 7); vo2 = V(VB + 8)
    b.I("s_mul_i32", sT0, sW, 5)
    b.I("v_lshrrev_b32", vt0, 5, vL)
    b.I("v_add_u32", vt0, sT0, vt0)
    b.I("v_lshrrev_b32", vt1, 1, vt0)
    b.I("v_lshlrev_b32", vo, 10, vt1)
    b.I("v_and_b32", vt1, 1, vt0)
    b.I("v_lshl_add_u32", vo, vt1, 3, vo)
    b.I("v_and_b32", vt1, 31, vL)
    b.I("v_lshl_add_u32", vo, vt1, 4, vo)
    b.I("v_cmp_gt_u32", "vcc", 32, vL)
    b.I("v_mov_b32", vt1, hex(OOB))
    b.I("v_cndmask_b32", vo2, vt1, vo, "vcc")
    for q in range(2):
        b.I("v_rcp_f32", lreg[q], lreg[q])
        for i in range(12): b.I("v_mul_f32", OO[q][i], lreg[q], OO[q][i])
        for i in range(6): b.I("v_cvt_pk_bf16_f32", PP[q][i], OO[q][2 * i], OO[q][2 * i + 1])
        for c in range(3):
            tag = b.I("buffer_store_dwordx2", PP[q][2 * c:2 * c + 2], (vo if c < 2 else vo2), WS, sO, mods=f"offen offset:{c * 1024 + q * 512} sc1")
    return tag


def attn_main2(b, uid, wo_dma, on_run, sc="sc1", last_extra=(), freed=None, store_sc="sc1", sBX_=None):
    last_extra = list(last_extra)
    fused = True
    ORDER = [2, 3, 4, 5, 6, 7, 0, 1]
    vKt, vV = V(VB), V(VB + 1)
    sKV, sOff, sCnt, sRetry = sP[0], sP[1], sP[2], sP[3]
    b.I("s_add_u32", sKV, sLO, hex(off["KV0"]))
    b.I("s_mul_i32", sT0, sW, 16 * 3072)
    b.I("s_add_u32", sKV, sKV, sT0)
    b.I("v_lshlrev_b32", vKt, 3, vL)
    b.I("v_add_u32", vKt, 1024, vKt)
    b.I("v_and_b32", vt0, 31, vL)
    b.I("v_lshrrev_b32", vt2, 5, vL)
    b.I("v_mul_u32_u24", vt2, 384, vt2)
    b.I("v_lshl_add_u32", vV, vt0, 4, vt2)
    b.I("v_add_u32", vV, 1536, vV)
    b.I("v_mov_b32", vt1, hex(OOB))
    b.I("v_cmp_ge_u32", "vcc", 20, vt0)
    b.I("v_cndmask_b32", vV, vt1, vV, "vcc")
    def loadk(p):
        b.I("buffer_load_dwordx4", KV2[p]["km"], vL16, WS, sOff, mods="offen " + sc)
        b.I("buffer_load_dwordx2", KV2[p]["kt"], vKt, WS, sOff, mods="offen " + sc)
    def loadv(p):
        b.I("buffer_load_dwordx4", KV2[p]["v"][0], vV, WS, sOff, mods="offen " + sc)
        b.I("buffer_load_dwordx4", KV2[p]["v"][1], vV, WS, sOff, mods="offen offset:768 " + sc)
    def qk_main(i, p): b.I("v_mfma_f32_32x32x16_bf16", SX[i % 2], KV2[p]["km"], QA[ORDER[i]], 0)
    def qk_tail(i, p): b.I("v_mfma_f32_32x32x8_bf16", SX[i % 2], KV2[p]["kt"], QB[ORDER[i]], SX[i % 2])
    def pv(i, p, mf): b.I("v_mfma_f32_32x32x16_bf16", OA[ORDER[i]], KV2[p]["v"][mf], PP[i % 2][4 * mf:4 * mf + 4], OA[ORDER[i]])
    b.I("s_mov_b32", sRetry, 0)
    if not fused:
        for a in range(8):
            for i in range(16): b.I("v_accvgpr_write_b32", OA[a][i], 0)
    b.label(f"ATT_RUN_{uid}")
    b.clear_hist(); b.nop(2)
    if not fused: stamp(b, "run")
    if on_run: on_run()
    b.I("s_mov_b32", sOff, sKV)
    loadk(0); loadv(0)
    b.I("s_add_u32", sOff, sOff, 3072)
    loadk(1)
    for i in range(8): b.I("v_mov_b32", PP[1][i], 0)
    for e in range(8): b.I("v_mov_b32", V(KV2[1]["v"][0].i + e), 0)
    for i in range(12, 16): b.I("v_mov_b32", SX[1][i], 0)
    qk_main(0, 0)
    b.nop(10)
    qk_tail(0, 0)
    b.nop(12)
    stamp(b, "loop_in")
    b.I("s_mov_b32", sCnt, 7)
    vRw = [V(VB + 2 + hd) for hd in range(3)]; vR = V(VB + 9)
    for hd in range(1, 4):
        b.I("s_add_u32", sT0, sW, hd)
        b.I("s_and_b32", sT0, sT0, 3)
        b.I("s_mul_i32", sT0, sT0, 18432)
        b.I("s_add_u32", sT0, sT0, LDS_PART + (hd - 1) * 6144)
        b.I("v_add_u32", vRw[hd - 1], sT0, vL16)
    b.I("s_mul_i32", sT0, sW, 18432)
    b.I("s_add_u32", sT0, sT0, LDS_PART)
    b.I("v_add_u32", vR, sT0, vL16)
    vOo, vOo2, vFl = V(216), V(217), V(218)
    sO = S(45)
    b.I("s_mul_i32", sT0, sJ, 10240)
    b.I("s_add_u32", sO, sBX_, sT0)
    b.I("s_add_u32", sO, sO, hex(off["O0"]))
    b.I("s_mul_i32", sT0, sW, 5)
    b.I("v_lshrrev_b32", vt0, 5, vL)
    b.I("v_add_u32", vt0, sT0, vt0)
    b.I("v_lshrrev_b32", vt1, 1, vt0)
    b.I("v_lshlrev_b32", vOo, 10, vt1)
    b.I("v_and_b32", vt1, 1, vt0)
    b.I("v_lshl_add_u32", vOo, vt1, 3, vOo)
    b.I("v_and_b32", vt1, 31, vL)
    b.I("v_lshl_add_u32", vOo, vt1, 4, vOo)
    b.I("v_cmp_gt_u32", "vcc", 32, vL)
    b.I("v_mov_b32", vt1, hex(OOB))
    b.I("v_cndmask_b32", vOo2, vt1, vOo, "vcc")
    b.I("s_lshl_b32", sT1, sW, 2)
    b.I("s_add_u32", sT1, sT1, LDS_FLAG)
    b.I("v_mov_b32", vFl, sT1)
    b.align(6)
    b.label(f"ATT_LOOP_{uid}")
    b.clear_hist()
    b.vm = [(("kv", 9), KV2[0]["v"][0].regs()), (("kv", 9), KV2[0]["v"][1].regs()),
            (("kv", 8), KV2[1]["km"].regs()), (("kv", 8), KV2[1]["kt"].regs())]
    entry = [e[1] for e in b.vm]
    def step(a, p, extra):
        s_ = SX[a % 2]; P_ = PP[a % 2]; sprev = SX[(a + 1) % 2]; Pprev = PP[(a + 1) % 2]
        an, pn = (a + 1) % 8, (p if a < 7 else 1 - p)
        ap, pp_ = (a - 1) % 8, (p if a > 0 else 1 - p)
        ex = lambda i: b.I("v_exp_f32", s_[i], s_[i])
        cv = lambda i: b.I("v_cvt_pk_bf16_f32", P_[i], s_[2 * i], s_[2 * i + 1])
        b.I("v_cvt_pk_bf16_f32", Pprev[6], sprev[12], sprev[13])
        ex(0)
        b.I("v_cvt_pk_bf16_f32", Pprev[7], sprev[14], sprev[15])
        ex(1)
        qk_main(an, pn)
        ex(2); ex(3); ex(4); ex(5); cv(0); cv(1)
        pv(ap, pp_, 0)
        for x in extra.get(0, []): x()
        ex(6); ex(7); ex(8); ex(9)
        qk_tail(an, pn)
        cv(2); ex(10); ex(11); cv(3); ex(12); ex(13); cv(4)
        pv(ap, pp_, 1)
        ex(14); ex(15); cv(5)
        for x in extra.get(1, []): x()
    def part_writes(a):
        hd, th = a // 2, a % 2
        return [lambda c=c: b.I("ds_write_b128", vRw[hd - 1], OA[a][4 * c:4 * c + 4], mods=f"offset:{th * 3072 + c * 1024}", tag=("pw", a)) for c in range(3)]
    def body(last):
        for p in range(2):
            for a in range(8):
                extra = {}
                if a == 1 and not (last and p == 1): extra = {0: [lambda p=p: loadv(1 - p)], 1: [lambda: b.I("s_add_u32", sOff, sOff, 3072)]}
                if a == 7 and not last: extra = {1: [lambda p=p: loadk(p)]}
                if not last and p == 0 and a == 3: extra.setdefault(0, []).append(wo_dma)
                if last:
                    for _ in range(2 if p == 0 else (4 if a < 2 else 0)):
                        if last_extra: extra.setdefault(1, []).append(last_extra.pop(0))
                if last and p == 1 and a >= 2:
                    w = part_writes(ORDER[a - 2])
                    extra.setdefault(0, []).extend(w[:2]); extra.setdefault(1, []).append(w[2])
                if last and p == 1 and a >= 4 and freed:
                    extra.setdefault(0, []).insert(0, lambda a=a: b.wait_lg_tag(("pw", ORDER[a - 4])))
                    fr = freed(ORDER[a - 4])
                    extra[0] = extra[0][:1] + fr[:2] + extra[0][1:]
                    extra.setdefault(1, []).extend(fr[2:])
                step(a, p, extra)
    body(False)
    b.I("s_sub_u32", sCnt, sCnt, 1)
    b.I("s_cmp_lg_u32", sCnt, 0)
    b.I("s_cbranch_scc1", f"ATT_LOOP_{uid}")
    b.loop_states = (entry, [e[1] for e in b.vm])
    body(True)
    assert not last_extra
    stamp(b, "loop_out")
    b.I("v_cvt_pk_bf16_f32", PP[1][6], SX[1][12], SX[1][13])
    b.I("v_cvt_pk_bf16_f32", PP[1][7], SX[1][14], SX[1][15])
    pv(7, 1, 0); pv(7, 1, 1)
    OO = [V(192, 12), V(204, 12)]
    TT = [V(64, 12), V(76, 12), V(88, 12)]
    for i in range(12): b.I("v_accvgpr_read_b32", OO[0][i], OA[0][i])
    for i in range(12): b.I("v_accvgpr_read_b32", OO[1][i], OA[1][i])
    b.wait(lg=0)
    if freed:
        for op in freed(6): op()
    stamp(b, "drain")
    b.barrier()
    for th in range(2):
        for sl in range(3):
            for c in range(3): b.I("ds_read_b128", TT[sl][4 * c:4 * c + 4], vR, mods=f"offset:{sl * 6144 + th * 3072 + c * 1024}")
        for sl in range(3):
            for i in range(0, 12, 2): b.I("v_pk_add_f32", OO[th][i:i + 2], OO[th][i:i + 2], TT[sl][i:i + 2])
    stamp(b, "reduced")
    lreg = [V(VB + 6), V(VB + 8)]
    sO = S(45)
    vo = V(VB + 10); vo2 = V(VB + 11); Z2 = V(VB + 12, 2)
    for q in range(2):
        b.I("v_mov_b32", lreg[q], OO[q][8])
        b.I("v_mov_b32", vt0, OO[q][8])
        b.I("v_permlane32_swap_b32", vt0, lreg[q])
    b.I("v_mov_b32", vt2, hex(f2u(2.0 ** 60)))
    b.I("v_cmp_nlt_f32", S(48, 2), lreg[0], vt2)
    b.I("v_cmp_nlt_f32", S(50, 2), lreg[1], vt2)
    b.I("v_mov_b32", Z2[0], 0); b.I("v_mov_b32", Z2[1], 0)
    for q in range(2):
        for i_ in range(0, 12, 2): b.I("v_pk_fma_f32", Z2, OO[q][i_:i_ + 2], 0, Z2, mods="op_sel_hi:[1,0,1]")
    for q in range(2): b.I("v_rcp_f32", lreg[q], lreg[q])
    b.I("v_add_f32", Z2[0], Z2[0], Z2[1])
    b.I("v_cmp_u_f32", "vcc", Z2[0], Z2[0])
    tag = None
    for q in range(2):
        l2 = V(lreg[q].i, 2)
        for i_ in range(0, 12, 2): b.I("v_pk_mul_f32", OO[q][i_:i_ + 2], OO[q][i_:i_ + 2], l2, mods="op_sel_hi:[1,0]")
        for i_ in range(6): b.I("v_cvt_pk_bf16_f32", PP[q][i_], OO[q][2 * i_], OO[q][2 * i_ + 1])
        for c in range(3):
            tag = b.I("buffer_store_dwordx2", PP[q][2 * c:2 * c + 2], (vOo if c < 2 else vOo2), WS, sO, mods=f"offen offset:{c * 1024 + q * 512} {store_sc}")
    b.I("s_or_b64", S(48, 2), S(48, 2), S(50, 2))
    b.I("s_or_b64", S(48, 2), S(48, 2), "vcc")
    b.I("s_cmp_lg_u64", S(48, 2), 0)
    b.I("s_cselect_b32", sT0, 1, 0)
    b.I("s_cmp_eq_u32", sRetry, 1)
    b.I("s_cselect_b32", sT0, 0, sT0)
    b.I("v_mov_b32", vt0, sT0)
    b.I("ds_write_b32", vFl, vt0)
    stamp(b, "att_end")
    b.wait_vm_tag(tag)
    b.wait(lg=0)
    stamp(b, "s1_drained")
    b.barrier()
    b.I("v_mov_b32", vt1, LDS_FLAG)
    FL = V(VB + 12, 4)
    b.I("ds_read_b128", FL, vt1)
    b.I("v_or_b32", FL[0], FL[0], FL[1]); b.I("v_or_b32", FL[2], FL[2], FL[3]); b.I("v_or_b32", FL[0], FL[0], FL[2])
    b.I("v_readfirstlane_b32", sT0, FL[0])
    b.I("s_cmp_eq_u32", sT0, 0)
    b.I("s_cbranch_scc1", f"ATT_OK_{uid}")
    b.I("s_mov_b32", sRetry, 1)
    b.wait(vm=0)
    MX = [V(192 + a) for a in range(8)]
    QZ = V(200, 2)
    for a in range(8): b.I("v_mov_b32", MX[a], hex(f2u(-3.0e38)))
    b.I("s_mov_b32", sOff, sKV)
    b.I("s_mov_b32", sCnt, 16)
    b.label(f"ATT_MAX_{uid}")
    b.clear_hist()
    loadk(0)
    b.I("s_add_u32", sOff, sOff, 3072)
    b.I("v_cmp_gt_u32", "vcc", 32, vL)
    for a in range(8):
        for e in range(2): b.I("v_cndmask_b32", QZ[e], 0, QB[a][e], "vcc")
        b.I("v_mfma_f32_32x32x16_bf16", SX[0], KV2[0]["km"], QA[a], 0)
        b.nop(10)
        b.I("v_mfma_f32_32x32x8_bf16", SX[0], KV2[0]["kt"], QZ, SX[0])
        for i in range(0, 16, 2): b.I("v_max3_f32", MX[a], MX[a], SX[0][i], SX[0][i + 1])
    b.I("s_sub_u32", sCnt, sCnt, 1)
    b.I("s_cmp_lg_u32", sCnt, 0)
    b.I("s_cbranch_scc1", f"ATT_MAX_{uid}")
    b.barrier()
    for a in range(8):
        b.I("v_mov_b32", vt0, MX[a])
        b.I("v_permlane32_swap_b32", MX[a], vt0)
        b.I("v_max_f32", MX[a], MX[a], vt0)
        b.I("s_add_u32", sT0, sW, a // 2)
        b.I("s_and_b32", sT0, sT0, 3)
        b.I("s_lshl_b32", sT0, sT0, 9)
        b.I("s_lshl_b32", sT1, sW, 11)
        b.I("s_add_u32", sT0, sT0, sT1)
        b.I("s_add_u32", sT0, sT0, LDS_MAX + (a & 1) * 256)
        b.I("v_lshlrev_b32", vt1, 2, vL)
        b.I("v_add_u32", vt1, sT0, vt1)
        b.I("ds_write_b32", vt1, MX[a])
    b.wait(lg=0)
    b.barrier()
    for a in range(8):
        b.I("s_add_u32", sT0, sW, a // 2)
        b.I("s_and_b32", sT0, sT0, 3)
        b.I("s_lshl_b32", sT0, sT0, 9)
        b.I("s_add_u32", sT0, sT0, LDS_MAX + (a & 1) * 256)
        b.I("v_lshlrev_b32", vt1, 2, vL)
        b.I("v_add_u32", vt1, sT0, vt1)
        T4 = V(204, 4)
        for ww in range(4): b.I("ds_read_b32", T4[ww], vt1, mods=f"offset:{2048 * ww}")
        b.I("v_max3_f32", T4[0], T4[0], T4[1], T4[2])
        b.I("v_max_f32", T4[0], T4[0], T4[3])
        standin_fold(b, QB[a], T4[0], vt0, vt2, vt3)
    for a in range(8):
        for i in range(16): b.I("v_accvgpr_write_b32", OA[a][i], 0)
    b.wait(lg=0)
    b.barrier()
    b.I("s_branch", f"ATT_RUN_{uid}")
    b.label(f"ATT_OK_{uid}")
    b.clear_hist(); b.nop(2)
```

```python
from asmb import *
import layout as L
import k_main as M
from k_main import *
import k_att2 as A2
from k_att2 import QA, QB, KV2, SX, PP, OA, standin_fold, LDS_Q, LDS_PART, LDS_FLAG, LDS_MAX

SPIN_MAX = 400000
EXP = {}
sGS, sFG, sFA, sGT = S(52), S(53), S(54), S(55)
sWQ, sW1, sW2 = S(40), S(41), S(42)
sBX = S(43)
sWp = S(47)
F_GRID = off["FLAGS"] + 32768
PARK = 0x27F00
RESID = [V(240 + 2 * fb, 2) for fb in range(5)]
def slot(f): return A(4 * ((f + 32) % 64), 4)

class Fill:
    def __init__(self): self.q = []; self.credit = 0
    def add(self, c, f): self.q.append((c, f))
    def v(self, b, *a, **k): self.add(4, lambda: b.I(*a, **k))
    def run(self, budget):
        self.credit += budget
        while self.q and self.q[0][0] <= self.credit:
            c, f = self.q.pop(0); self.credit -= c; f()
    def flush(self):
        for c, f in self.q: f()
        self.q = []; self.credit = 0

sWA = S(58, 2)
def wops(b, sbase, frs):
    ops = []
    cur = None
    glob = EXP.get("glob", 1) and not M.PROFILE_USES_58
    for f in frs:
        def one(f=f, cur=cur):
            if glob:
                if cur is None:
                    b.I("s_add_u32", sWp, sbase, (f // 4) * 4096)
                    b.I("s_add_u32", sWA[0], S(4), sWp)
                    b.I("s_addc_u32", sWA[1], S(5), 0)
                elif f // 4 != cur:
                    b.I("s_add_u32", sWA[0], sWA[0], (f // 4 - cur) * 4096)
                    b.I("s_addc_u32", sWA[1], sWA[1], 0)
                b.I("global_load_dwordx4", slot(f), vL16, sWA, mods=f"offset:{(f % 4) * 1024}")
                return
            if cur is None: b.I("s_add_u32", sWp, sbase, (f // 4) * 4096)
            elif f // 4 != cur: b.I("s_add_u32", sWp, sWp, (f // 4 - cur) * 4096)
            b.I("buffer_load_dwordx4", slot(f), vL16, WS, sWp, mods=f"offen offset:{(f % 4) * 1024}")
        ops.append(one); cur = f // 4
    return ops

def l2_warm(b, region, slice_bytes):
    if not EXP.get("warm", 0): return []
    n = slice_bytes // 4 // 4 // 8192
    rem = slice_bytes // 4 // 4 - n * 8192
    n += 1 if rem else 0
    ops = []
    def first():
        b.I("s_mul_i32", sT0, sJ, slice_bytes)
        b.I("s_and_b32", sT1, sG, 3)
        b.I("s_lshl_b32", sT1, sT1, 2)
        b.I("s_add_u32", sT1, sT1, sW)
        b.I("s_mul_i32", sT1, sT1, slice_bytes // 16)
        b.I("s_add_u32", sT0, sT0, sT1)
        b.I("s_add_u32", S(45), sT0, hex(off[region]))
        b.I("v_lshlrev_b32", V(251), 7, vL)
    for q in range(n):
        def one(q=q):
            if q == 0: first()
            else: b.I("s_add_u32", S(45), S(45), 8192)
            b.I("buffer_load_dword", V(250), V(251), WS, S(45), mods="offen")
        ops.append(one)
    return ops

def dma_ops(b, ssrc, slds, n, sc):
    tags = []
    def one(q):
        if q == 0: b.I("s_mov_b32", "m0", slds)
        tags.append(b.I("buffer_load_dwordx4", vL16, WS, ssrc, mods=f"offen offset:{q * 1024} {sc} lds"))
    return [lambda q=q: one(q) for q in range(n)], tags

class XTile:
    def __init__(self, b, sX, lds_base, s0, s1):
        self.b = b; self.s0, self.s1 = s0, s1; self.tags = {}
        b.I("s_lshl_b32", s0, sW, 12)
        b.I("s_add_u32", s1, s0, lds_base)
        b.I("s_add_u32", s0, s0, sX)
    def ops(self, c):
        b = self.b
        ops, tags = dma_ops(b, self.s0, self.s1, 4, "sc1")
        self.tags[c] = tags
        last = ops[3]
        def fin():
            last()
            b.I("s_add_u32", self.s0, self.s0, 16384)
            b.I("s_add_u32", self.s1, self.s1, 16384)
        ops[3] = fin
        return ops
    def wait(self, c):
        self.b.wait_vm_tag(self.tags[c][-1])
        self.b.barrier()

sLoc = S(46)
F_MASK = 49152
def arrive(b, uid):
    n0 = len(b.vm)
    b.I("s_cmp_lg_u32", sW, 0)
    b.I("s_cbranch_scc1", f"ARR_{uid}")
    snap = b.snapshot()
    b.I("v_mov_b32", vt0, 0); b.I("v_mov_b32", vt1, 1)
    b.I("s_mov_b64", "exec", 1)
    b.I("s_cmp_eq_u32", sLoc, 1)
    b.I("s_cbranch_scc1", f"ARRL_{uid}")
    b.I("buffer_wbl2", mods="sc1")
    b.wait(vm=0)
    b.I("buffer_atomic_add", vt1, vt0, WS, sFG, mods="offen sc1")
    b.I("s_branch", f"ARRX_{uid}")
    b.label(f"ARRL_{uid}")
    b.I("buffer_atomic_add", vt1, vt0, WS, sFG, mods="offen")
    b.label(f"ARRX_{uid}")
    b.I("s_mov_b64", "exec", -1)
    b.label(f"ARR_{uid}")
    b.restore(snap)
    b.clear_hist(); b.nop(1)

def window_poll(b, uid, window, grid=False, late=3):
    window = list(window)
    if EXP.get("nowin"): window = []
    late = min(late, len(window))
    for op in window[:len(window) - late]: op()
    vP, vA = V(254), V(253)
    soff = sP[9] if grid else sFG
    target = sGT if grid else sGS
    def issue():
        b.I("buffer_load_dword", vP, vA, WS, soff, mods="offen sc1")
        b.vm.pop()
    def test(lbl):
        b.I("v_cmp_le_u32", "vcc", target, vP)
        b.I("s_cmp_eq_u64", "vcc", "exec")
        b.I("s_cbranch_scc1", lbl)
    if grid:
        b.I("s_mov_b32", soff, hex(F_GRID))
        b.I("v_and_b32", vA, 7, vL)
        b.I("v_lshlrev_b32", vA, 8, vA)
    else: b.I("v_mov_b32", vA, 0)
    b.I("s_cmp_lg_u32", sW, 0)
    b.I("s_cbranch_scc1", f"PL0_{uid}")
    issue()
    b.label(f"PL0_{uid}")
    b.clear_hist()
    for op in window[len(window) - late:]: op()
    snap = b.snapshot()
    b.I("s_cmp_lg_u32", sW, 0)
    b.I("s_cbranch_scc1", f"POLLE_{uid}")
    b.wait(vm=late)
    b.I("s_mov_b32", sT2, 0)
    test(f"POLLD_{uid}")
    b.label(f"POLL_{uid}")
    issue()
    b.wait(vm=0)
    b.I("s_add_u32", sT2, sT2, 1)
    test(f"POLLD_{uid}")
    b.I("s_cmp_lt_u32", sT2, SPIN_MAX)
    b.I("s_cbranch_scc1", f"POLL_{uid}")
    b.label(f"POLLD_{uid}")
    if not grid:
        b.I("s_cmp_eq_u32", sLoc, 1)
        b.I("s_cbranch_scc1", f"POLLE_{uid}")
        b.I("buffer_inv", mods="sc1")
        b.wait(vm=0)
    b.label(f"POLLE_{uid}")
    b.restore(snap)
    b.clear_hist()
    b.barrier()

def arrive_wave(b, uid):
    snap = b.snapshot()
    b.I("v_mov_b32", vt0, 0); b.I("v_mov_b32", vt1, 1)
    b.I("s_mov_b64", "exec", 1)
    b.I("s_cmp_eq_u32", sLoc, 1)
    b.I("s_cbranch_scc1", f"ARRL_{uid}")
    b.I("buffer_wbl2", mods="sc1")
    b.wait(vm=0)
    b.I("buffer_atomic_add", vt1, vt0, WS, sFG, mods="offen sc1")
    b.I("s_branch", f"ARRX_{uid}")
    b.label(f"ARRL_{uid}")
    b.I("buffer_atomic_add", vt1, vt0, WS, sFG, mods="offen")
    b.label(f"ARRX_{uid}")
    b.I("s_mov_b64", "exec", -1)
    b.restore(snap)
    b.vm.append((("arr", uid), set()))
    b.clear_hist(); b.nop(1)

def group_sync(b, store_tag, uid, window):
    if EXP.get("wavearr", 0) and store_tag is not None:
        b.wait_vm_tag(store_tag)
        stamp(b, uid + "_drained")
        arrive_wave(b, uid)
        b.I("s_add_u32", sGS, sGS, 32)
        window_poll(b, uid, window)
        return
    if store_tag is not None:
        b.wait_vm_tag(store_tag)
        stamp(b, uid + "_drained")
        b.barrier()
    if EXP.get("wavearr", 0):
        arrive_wave(b, uid)
        b.I("s_add_u32", sGS, sGS, 32)
    else:
        arrive(b, uid)
        b.I("s_add_u32", sGS, sGS, 8)
    window_poll(b, uid, window)

def grid_arrive(b, store_tag, uid):
    b.wait_vm_tag(store_tag)
    b.barrier()
    b.I("s_add_u32", sGT, sGT, 32)
    b.I("s_cmp_lg_u32", sW, 0)
    b.I("s_cbranch_scc1", f"GA_{uid}")
    b.I("v_mov_b32", vt0, 0); b.I("v_mov_b32", vt1, 1)
    b.I("s_and_b32", sT0, sG, 7)
    b.I("s_lshl_b32", sT0, sT0, 8)
    b.I("s_add_u32", sT0, sT0, hex(F_GRID))
    b.I("s_mov_b64", "exec", 1)
    b.I("buffer_atomic_add", vt1, vt0, WS, sT0, mods="offen sc1")
    b.vm.pop()
    b.I("s_mov_b64", "exec", -1)
    b.label(f"GA_{uid}")
    b.clear_hist(); b.nop(1)

def xcd_publish(b):
    b.I("s_cmp_lg_u32", sW, 0)
    b.I("s_cbranch_scc1", "XP_END")
    b.I("s_getreg_b32", sT0, "hwreg(HW_REG_XCC_ID, 0, 4)")
    b.I("s_lshl_b32", sT0, 1, sT0)
    b.I("v_mov_b32", vt0, 0); b.I("v_mov_b32", vt1, sT0)
    b.I("s_add_u32", sT1, sFG, F_MASK)
    b.I("s_mov_b64", "exec", 1)
    b.I("buffer_atomic_or", vt1, vt0, WS, sT1, mods="offen sc1")
    b.vm.pop()
    b.I("s_mov_b64", "exec", -1)
    b.label("XP_END")
    b.clear_hist(); b.nop(1)
def xcd_mask_load(b):
    b.I("v_mov_b32", vt0, 0)
    b.I("s_add_u32", sT1, sFG, F_MASK)
    b.I("buffer_load_dword", V(252), vt0, WS, sT1, mods="offen sc1")
def xcd_mask_use(b):
    b.I("v_readfirstlane_b32", sT0, V(252))
    b.I("s_bcnt1_i32_b32", sT0, sT0)
    b.I("s_cmp_eq_u32", sT0, 1)
    b.I("s_cselect_b32", sLoc, 1, 0)

LDS_STX = 83968
class Stats:
    def __init__(self, b, region, regs):
        self.b = b; self.R = regs
        sS = self.sS = sP[1]
        b.I("s_lshl_b32", sS, sG, 12)
        b.I("s_add_u32", sS, sS, sLO)
        b.I("s_lshl_b32", sT0, sW, 10)
        b.I("s_add_u32", sS, sS, sT0)
        b.I("s_add_u32", sS, sS, hex(off[region]))
        self.va = V(regs.i + 8); self.vw = V(regs.i + 9)
        b.I("v_lshlrev_b32", self.va, 3, vL)
        b.I("s_lshl_b32", sT0, sW, 9)
        b.I("v_add_u32", self.vw, sT0, self.va)
        b.I("v_add_u32", self.vw, LDS_STX, self.vw)
    def load(self):
        for q in range(2): self.b.I("buffer_load_dwordx2", self.R[2 * q:2 * q + 2], self.va, WS, self.sS, mods=f"offen offset:{q * 512} sc1")
    def publish(self):
        b = self.b
        pk(b, "v_pk_add_f32", self.R[0:2], self.R[0:2], self.R[2:4])
        self.tag = b.I("ds_write_b64", self.vw, self.R[0:2])
        b.I("v_add_u32", self.va, LDS_STX, self.va)
    def before_barrier(self): self.b.wait_lg_tag(self.tag)
    def fill(self, f, mean, rstd):
        b = self.b
        for q in range(4): f.add(12, lambda q=q: b.I("ds_read_b64", self.R[2 * q:2 * q + 2], self.va, mods=f"offset:{q * 512}"))
        f.add(60, lambda: None)
        f.v(b, "v_pk_add_f32", self.R[0:2], self.R[0:2], self.R[2:4])
        f.v(b, "v_pk_add_f32", self.R[4:6], self.R[4:6], self.R[6:8])
        f.v(b, "v_pk_add_f32", self.R[0:2], self.R[0:2], self.R[4:6])
        f.v(b, "v_mul_f32", mean, hex(f2u(1.0 / 640)), self.R[0])
        f.v(b, "v_mul_f32", rstd, hex(f2u(1.0 / 640)), self.R[1])
        f.v(b, "v_fma_f32", rstd, f"-{mean}", mean, rstd)
        f.v(b, "v_max_f32", rstd, 0, rstd)
        f.v(b, "v_add_f32", rstd, hex(f2u(1e-5)), rstd)
        f.add(8, lambda: b.I("v_rsq_f32", rstd, rstd))

def pk(b, op, d, *src, mods=""): b.I(op, d, *src, mods=mods)

def qkv_start(b):
    sX, sD0, sD1 = sP[0], sP[2], sP[3]
    b.I("s_add_u32", sX, sBX, hex(off["XB0"]))
    xt = XTile(b, sX, LDS_X, sD0, sD1)
    for c in range(2):
        for op in xt.ops(c): op()
    return xt
def qkv(b, xt):
    uid = "q"
    sX, sSt, sD0, sD1, sSc = sP[0], sP[1], sP[2], sP[3], sP[4]
    st = Stats(b, "STI0", V(VB, 8))
    st.load()
    ACC = [V(64, 16), V(80, 16)]
    XF = [[V(96 + 8 * p + 4 * th, 4) for th in range(2)] for p in range(4)]
    vXa, vXb = V(VB + 16), V(VB + 17)
    mean, rstd = V(VB + 18), V(VB + 19)
    mT = [V(VB + 20, 2), V(VB + 22, 2)]; rT = [V(VB + 24, 2), V(VB + 26, 2)]
    rq, rm = [V(VB + 28, 2), V(VB + 30, 2)], [V(VB + 32, 2), V(VB + 34, 2)]
    vkey, vh, vaT, vaU, vaT1, vaU1 = (V(VB + 36 + i) for i in range(6))
    CS = V(128, 16)
    b.I("v_add_u32", vXa, LDS_X, vX32)
    b.I("v_add_u32", vXb, LDS_X + 65536, vX32)
    b.I("v_lshrrev_b32", vt0, 5, vL)
    b.I("v_lshlrev_b32", vt0, 4, vt0)
    b.I("s_lshl_b32", sT0, sW, 7)
    b.I("v_add_u32", vt0, sT0, vt0)
    b.I("v_add_u32", vt0, T_CSQ, vt0)
    for c in range(4): b.I("ds_read_b128", CS[4 * c:4 * c + 4], vt0, mods=f"offset:{32 * c}")
    b.I("v_and_b32", vkey, 31, vL)
    b.I("v_lshrrev_b32", vh, 5, vL)
    b.I("s_and_b32", sT0, sW, 1)
    b.I("s_mul_i32", sT0, sT0, 3)
    b.I("v_mov_b32", vaT, sT0)
    b.I("v_add_u32", vaU, 1, vh)
    b.I("v_add_u32", vaU, sT0, vaU)
    b.I("s_cmp_ge_u32", sW, 2)
    b.I("s_cbranch_scc1", f"QKV_AV_{uid}")
    for va in (vaT, vaU):
        b.I("v_lshrrev_b32", vt0, 1, va)
        b.I("v_lshlrev_b32", vt0, 9, vt0)
        b.I("v_and_b32", vt1, 1, va)
        b.I("v_lshl_add_u32", vt0, vt1, 3, vt0)
        b.I("v_lshl_add_u32", vt0, vkey, 4, vt0)
        b.I("v_lshlrev_b32", vt1, 3, vkey)
        b.I("v_add_u32", vt1, 1024, vt1)
        b.I("v_cmp_eq_u32", "vcc", 4, va)
        b.I("v_cndmask_b32", vt0, vt0, vt1, "vcc")
        b.I("v_add_u32", vt0, LDS_KVIMG, vt0)
        b.I("v_cmp_lt_u32", "vcc", 4, va)
        b.I("v_mov_b32", vt1, PARK)
        b.I("v_cndmask_b32", va, vt0, vt1, "vcc")
    b.I("s_branch", f"QKV_AJ_{uid}")
    b.label(f"QKV_AV_{uid}")
    b.I("v_lshrrev_b32", vt0, 4, vkey)
    b.I("v_mul_u32_u24", vt0, 768, vt0)
    b.I("v_bfe_u32", vt1, vkey, 2, 1)
    b.I("v_mul_u32_u24", vt1, 384, vt1)
    b.I("v_add_u32", vt0, vt0, vt1)
    b.I("v_and_b32", vt1, 3, vkey)
    b.I("v_lshl_add_u32", vt0, vt1, 1, vt0)
    b.I("v_bfe_u32", vt1, vkey, 3, 1)
    b.I("v_lshl_add_u32", vt0, vt1, 3, vt0)
    b.I("v_add_u32", vt3, LDS_KVIMG + 1536, vt0)
    for va in (vaT, vaU):
        b.I("v_lshl_add_u32", vt0, va, 6, vt3)
        b.I("v_cmp_lt_u32", "vcc", 4, va)
        b.I("v_mov_b32", vt1, PARK)
        b.I("v_cndmask_b32", va, vt0, vt1, "vcc")
    ONE = V(144, 4)
    b.I("v_and_b32", vt0, 3, vL)
    b.I("v_mul_u32_u24", vt0, 384, vt0)
    b.I("v_bfe_u32", vt1, vL, 2, 1)
    b.I("v_mul_u32_u24", vt1, 3072, vt1)
    b.I("v_add_u32", vt0, vt0, vt1)
    b.I("v_add_u32", vt0, LDS_KVIMG + 1536 + 320, vt0)
    for e in range(4): b.I("v_mov_b32", ONE[e], "0x3f803f80")
    b.I("ds_write_b128", vt0, ONE)
    b.I("v_lshlrev_b32", vt0, 3, vkey)
    b.I("v_mul_u32_u24", vt1, 3072, vh)
    b.I("v_add_u32", vt0, vt0, vt1)
    b.I("v_add_u32", vt0, LDS_KVIMG + 1280, vt0)
    b.I("v_mov_b32", V(148), "0x3f803f80"); b.I("v_mov_b32", V(149), "0x00003f80")
    b.I("ds_write_b64", vt0, V(148, 2))
    b.label(f"QKV_AJ_{uid}")
    b.clear_hist(); b.nop(1)
    b.I("v_cmp_gt_u32", "vcc", 32, vL)
    b.I("v_mov_b32", vt1, PARK)
    b.I("v_cndmask_b32", vaT, vaT, vt1, "vcc")
    for va, va1 in ((vaT, vaT1), (vaU, vaU1)):
        b.I("v_add_u32", vt0, 3072, va)
        b.I("v_cmp_eq_u32", "vcc", va, vt1)
        b.I("v_cndmask_b32", va1, vt0, va, "vcc")
    mem = {0: xt.ops(2) + wops(b, sWQ, range(16, 24)), 1: [st.publish] + wops(b, sWQ, range(24, 28)) + xt.ops(3),
           2: xt.ops(4) + wops(b, sWQ, range(28, 34)), 3: wops(b, sWQ, range(34, 40)), 4: l2_warm(b, "W1P", 245760)}
    z = Fill()
    for i in range(32, 128): z.v(b, "v_accvgpr_write_b32", A(i), 0)
    f = Fill()
    st.fill(f, mean, rstd)
    f.v(b, "v_mov_b32", mT[0][0], mean); f.v(b, "v_mov_b32", mT[1][0], mean)
    f.v(b, "v_mov_b32", rT[0][0], rstd); f.v(b, "v_mov_b32", rT[1][0], rstd)
    f.v(b, "v_permlane32_swap_b32", mT[0][0], mT[1][0]); f.v(b, "v_permlane32_swap_b32", rT[0][0], rT[1][0])
    f.add(4, lambda: b.I("s_mov_b32", sSc, hex(f2u(math.log2(math.e) / math.sqrt(20.0)))))
    f.add(4, lambda: b.I("v_cmp_gt_u32", S(48, 2), 32, vL))
    for th in range(2):
        f.v(b, "v_mul_f32", rq[th][0], sSc, rT[th][0])
        f.v(b, "v_cndmask_b32", rm[th][0], rT[th][0], rq[th][0], S(48, 2))
    def xread(s_, th):
        o = s_ * 2048 + th * 512
        base, o = (vXa, o) if o < 65536 else (vXb, o - 65536)
        b.I("ds_read_b128", XF[s_ % 4][th], base, mods=f"offset:{o}")
    stamp(b, "q_pre")
    xt.wait(0)
    stamp(b, "q_c0")
    for s_ in range(2):
        for th in range(2): xread(s_, th)
    for c in range(5):
        m = list(mem[c])
        k = 0
        for s_ in range(8 * c, 8 * c + 8):
            if s_ == 8 * c + 6 and c < 4:
                if c == 1: st.before_barrier()
                xt.wait(c + 1)
                stamp(b, f"q_c{c + 1}")
            b.need(XF[s_ % 4][0], XF[s_ % 4][1], slot(s_))
            for th in range(2):
                b.I("v_mfma_f32_32x32x16_bf16", ACC[th], slot(s_), XF[s_ % 4][th], (0 if s_ == 0 else ACC[th]))
                if s_ + 2 < 40: xread(s_ + 2, th)
                if m and (k % 4 != 0 or len(m) > 15 - k): m.pop(0)()
                else: z.run(8)
                if c >= 3: f.run(8)
                k += 1
        for op in m: op()
    f.flush(); z.flush()
    stamp(b, "q_mm")
    PK = [V(152, 2), V(154, 2)]
    for th in range(2):
        for i in range(8, 16, 2):
            pk(b, "v_pk_fma_f32", ACC[th][i:i + 2], mT[th], CS[i:i + 2], ACC[th][i:i + 2], mods="op_sel_hi:[0,1,1] neg_lo:[1,0,0] neg_hi:[1,0,0]")
        for i in range(8, 16, 2):
            pk(b, "v_pk_mul_f32", ACC[th][i:i + 2], ACC[th][i:i + 2], (rm[th] if i < 12 else rT[th]), mods="op_sel_hi:[1,0]")
        for q in range(2): b.I("v_cvt_pk_bf16_f32", QT[th][q], ACC[th][8 + 2 * q], ACC[th][9 + 2 * q])
        for q in range(2): b.I("v_cvt_pk_bf16_f32", PK[th][q], ACC[th][12 + 2 * q], ACC[th][13 + 2 * q])
    b.I("s_cmp_ge_u32", sW, 2)
    b.I("s_cbranch_scc1", f"QKV_V_{uid}")
    for th in range(2):
        b.I("ds_write_b64", (vaT, vaT1)[th], QT[th])
        b.I("ds_write_b64", (vaU, vaU1)[th], PK[th])
    b.I("s_branch", f"QKV_J_{uid}")
    b.label(f"QKV_V_{uid}")
    for th in range(2):
        for va, rr in (((vaT, vaT1)[th], QT[th]), ((vaU, vaU1)[th], PK[th])):
            for q in range(2):
                b.I("ds_write_b16", va, rr[q], mods=f"offset:{32 * q}")
                b.I("ds_write_b16_d16_hi", va, rr[q], mods=f"offset:{32 * q + 16}")
    b.label(f"QKV_J_{uid}")
    b.clear_hist()
    IM = V(144, 4)
    b.I("s_mul_i32", sT0, sJ, 768)
    b.I("v_add_u32", vt0, sT0, vL16)
    b.I("v_add_u32", vt2, LDS_KVIMG, vt0)
    b.I("s_cmp_eq_u32", sW, 0)
    b.I("s_cselect_b32", sT1, 48, 0)
    b.I("v_cmp_gt_u32", "vcc", sT1, vL)
    b.I("v_mov_b32", vt1, hex(OOB))
    b.I("v_cndmask_b32", vt0, vt1, vt0, "vcc")
    b.I("s_mul_i32", sT0, sG, 6144)
    b.I("s_add_u32", sT0, sT0, sLO)
    b.I("s_add_u32", sT0, sT0, hex(off["KV0"]))
    b.wait(lg=0)
    b.barrier()
    b.I("ds_read_b128", IM, vt2)
    tag = b.I("buffer_store_dwordx4", IM, vt0, WS, sT0, mods="offen sc1")
    stamp(b, "q_kv")
    for th in range(2):
        for i in range(0, 8, 2):
            pk(b, "v_pk_fma_f32", ACC[th][i:i + 2], mT[th], CS[i:i + 2], ACC[th][i:i + 2], mods="op_sel_hi:[0,1,1] neg_lo:[1,0,0] neg_hi:[1,0,0]")
        for i in range(0, 8, 2):
            pk(b, "v_pk_mul_f32", ACC[th][i:i + 2], ACC[th][i:i + 2], rq[th], mods="op_sel_hi:[1,0]")
        for q in range(4): b.I("v_cvt_pk_bf16_f32", QM[th][q], ACC[th][2 * q], ACC[th][2 * q + 1])
    return tag

def attention(b):
    uid = "a"
    A2.attn_pre(b, "p", trailing_barrier=False)
    for i in range(32): b.I("v_accvgpr_write_b32", A(i), 0)
    window_poll(b, "gw", wops(b, sW1, range(0, 8)), grid=True)
    xcd_mask_load(b)
    stamp(b, "grid_ok")
    sWo, sWl = sP[5], sP[6]
    def on_run():
        b.I("s_mul_i32", sWo, sJ, 102400)
        b.I("s_mul_i32", sT0, sW, 3072)
        b.I("s_add_u32", sWo, sWo, sT0)
        b.I("s_add_u32", sWo, sWo, hex(off["WOP"]))
        b.I("s_add_u32", sWl, sT0, LDS_WO)
    def wo():
        ops, _ = dma_ops(b, sWo, sWl, 3, "")
        for op in ops: op()
        b.I("s_add_u32", sWo, sWo, 12288)
        b.I("s_add_u32", sWl, sWl, 12288)
    tag = A2.attn_main2(b, uid, wo, on_run, last_extra=wops(b, sW1, range(8, 32)), freed=lambda a: wops(b, sW1, range(4 * a + 32, 4 * a + 36)), store_sc="", sBX_=sBX)
    xcd_mask_use(b)

def wo_rest(b):
    b.I("s_mul_i32", sT0, sJ, 102400)
    b.I("s_lshl_b32", sT1, sW, 12)
    b.I("s_add_u32", sT0, sT0, sT1)
    b.I("s_add_u32", sT0, sT0, hex(off["WOP"] + 84 * 1024))
    b.I("s_add_u32", sT1, sT1, LDS_WO + 84 * 1024)
    ops, tags = dma_ops(b, sT0, sT1, 4, "")
    for op in ops: op()
    return tags[-1]

def resid_epi(b, ACC, RES, BI, sdst, sstat, out_natural=None):
    U = V(VB + 4, 2)
    ssum, ssq = V(VB, 2), V(VB + 2, 2)
    tA, tB = vt0, vt1
    for fb in range(5):
        for q in range(2):
            b.I("v_lshlrev_b32", U[0], 16, RES[fb][q])
            b.I("v_and_b32", U[1], "0xffff0000", RES[fb][q])
            pk(b, "v_pk_add_f32", ACC[fb][2 * q:2 * q + 2], ACC[fb][2 * q:2 * q + 2], U)
            if BI is not None: pk(b, "v_pk_add_f32", ACC[fb][2 * q:2 * q + 2], ACC[fb][2 * q:2 * q + 2], BI[4 * fb + 2 * q:4 * fb + 2 * q + 2])
        for q in range(2): b.I("v_cvt_pk_bf16_f32", RES[fb][q], ACC[fb][2 * q], ACC[fb][2 * q + 1])
        if out_natural is not None:
            b.I("buffer_store_dwordx2", RES[fb], out_natural, OUT, sdst, mods=f"offen offset:{32 * fb}")
            continue
        if fb in (2, 4): b.I("s_add_u32", sdst, sdst, 4096)
        b.I("buffer_store_dwordx2", RES[fb], vEpi, WS, sdst, mods=f"offen offset:{(fb % 2) * 2048}")
        for q in range(2):
            a2 = ACC[fb][2 * q:2 * q + 2]
            if fb == 0 and q == 0:
                pk(b, "v_pk_mul_f32", ssq, a2, a2); b.I("v_mov_b32", ssum[0], a2[0]); b.I("v_mov_b32", ssum[1], a2[1])
            else:
                pk(b, "v_pk_add_f32", ssum, ssum, a2); pk(b, "v_pk_fma_f32", ssq, a2, a2, ssq)
    if out_natural is not None: return None
    b.I("v_add_f32", ssum[0], ssum[0], ssum[1])
    b.I("v_add_f32", ssum[1], ssq[0], ssq[1])
    for r in (ssum[0], ssum[1]):
        b.I("v_mov_b32", tA, r)
        b.I("v_permlane16_swap_b32", r, tA)
        b.I("v_add_f32", r, r, tA)
        b.I("v_mov_b32", tA, r)
        b.I("v_permlane32_swap_b32", r, tA)
        b.I("v_add_f32", r, r, tA)
    return b.I("buffer_store_dwordx2", ssum, V(VB + 6), WS, sstat, mods="offen")

def stat_addr(b):
    b.I("v_lshlrev_b32", vt0, 3, vL)
    b.I("v_cmp_gt_u32", "vcc", 16, vL)
    b.I("v_mov_b32", vt1, hex(OOB))
    b.I("v_cndmask_b32", V(VB + 6), vt1, vt0, "vcc")

def resid_ops(b, sbase, RES):
    ops = []
    for fb in range(5):
        def one(fb=fb):
            if fb in (2, 4): b.I("s_add_u32", sbase, sbase, 4096)
            b.I("buffer_load_dwordx2", RES[fb], vEpi, WS, sbase, mods=f"offen offset:{(fb % 2) * 2048} sc1")
        ops.append(one)
    return ops

def oproj(b):
    sO, sRes, sTB, sDst, sSt = sP[0], sP[1], sP[2], sP[3], sP[4]
    XF = [[V(64 + 8 * s_ + 4 * a, 4) for a in range(2)] for s_ in range(10)]
    ACC = [[V(144 + 20 * a + 4 * fb, 4) for fb in range(5)] for a in range(2)]
    WF = [[V(184 + 20 * p + 4 * fb, 4) for fb in range(5)] for p in range(2)]
    RES = RESID
    vXa = [V(VB + 30), V(VB + 31)]; vWa = V(VB + 32); vR = V(VB + 33); vR2 = V(VB + 34)
    b.I("s_and_b32", sT0, sW, 1)
    b.I("s_lshr_b32", sT1, sW, 1)
    b.I("s_lshl_b32", sT0, sT0, 1)
    b.I("s_add_u32", sTB, sT0, sT1)
    b.I("s_xor_b32", sT2, sTB, 1)
    b.I("s_lshl_b32", sT3, sTB, 8)
    b.I("v_add_u32", vXa[0], sT3, vX16)
    b.I("s_lshl_b32", sT2, sT2, 8)
    b.I("v_add_u32", vXa[1], sT2, vX16)
    b.I("s_mul_i32", sT1, sT1, 40960)
    b.I("s_add_u32", sO, sBX, sT1)
    b.I("s_add_u32", sO, sO, hex(off["O0"]))
    def xload(s_):
        for a in range(2): b.I("buffer_load_dwordx4", XF[s_][a], vXa[a], WS, sO, mods="offen sc1")
        if s_ < 9: b.I("s_add_u32", sO, sO, 4096)
    def xops(s_):
        return [lambda: b.I("buffer_load_dwordx4", XF[s_][0], vXa[0], WS, sO, mods="offen sc1"),
                lambda: (b.I("buffer_load_dwordx4", XF[s_][1], vXa[1], WS, sO, mods="offen sc1"), b.I("s_add_u32", sO, sO, 4096))]
    OL = EXP.get("olead", 5)
    for s_ in range(OL): xload(s_)
    b.I("s_mul_i32", sT0, sJ, 10240)
    b.I("s_add_u32", sT0, sT0, sT3)
    b.I("s_add_u32", sRes, sBX, sT0)
    b.I("s_add_u32", sDst, sRes, hex(off["X10"]))
    b.I("v_lshrrev_b32", vt0, 4, vL)
    b.I("v_mul_u32_u24", vt0, 1280, vt0)
    b.I("v_and_b32", vt1, 15, vL)
    b.I("v_lshl_add_u32", vWa, vt1, 4, vt0)
    b.I("s_lshr_b32", sT1, sW, 1)
    b.I("s_mul_i32", sT1, sT1, 51200)
    b.I("v_add_u32", vWa, sT1, vWa)
    b.I("v_add_u32", vWa, LDS_WO, vWa)
    b.I("s_mul_i32", sT0, sW, 5120)
    b.I("v_add_u32", vR, sT0, vL16)
    b.I("v_add_u32", vR, LDS_RED_O, vR)
    b.I("s_xor_b32", sT0, sW, 2)
    b.I("s_mul_i32", sT0, sT0, 5120)
    b.I("v_add_u32", vR2, sT0, vL16)
    b.I("v_add_u32", vR2, LDS_RED_O, vR2)
    b.I("s_lshl_b32", sSt, sG, 12)
    b.I("s_add_u32", sSt, sSt, sLO)
    b.I("s_lshl_b32", sT0, sJ, 9)
    b.I("s_add_u32", sSt, sSt, sT0)
    b.I("s_lshl_b32", sT0, sTB, 7)
    b.I("s_add_u32", sSt, sSt, sT0)
    b.I("s_add_u32", sSt, sSt, hex(off["ST10"]))
    stat_addr(b)
    def wread(s_, fb): b.I("ds_read_b128", WF[s_ % 2][fb], vWa, mods=f"offset:{s_ * 5120 + fb * 256}")
    for fb in range(5): wread(0, fb)
    stamp(b, "o_pre")
    for s_ in range(10):
        m = (xops(s_ + OL) if s_ + OL < 10 else [])
        if s_ == 6: m = m + l2_warm(b, "W2P", 245760)
        order = [(fb, a) for fb in range(5) for a in range(2)] if s_ < 9 else [(fb, 1) for fb in range(5)] + [(fb, 0) for fb in range(5)]
        b.need(*WF[s_ % 2], *XF[s_])
        for k, (fb, a) in enumerate(order):
            b.I("v_mfma_f32_16x16x32_bf16", ACC[a][fb], WF[s_ % 2][fb], XF[s_][a], (0 if s_ == 0 else ACC[a][fb]))
            if s_ < 9 and k < 5: wread(s_ + 1, k)
            if m and k in (5, 7): m.pop(0)()
            if s_ == 9 and k >= 7: b.I("ds_write_b128", vR, ACC[1][k - 7], mods=f"offset:{(k - 7) * 1024}")
        for op in m: op()
        if s_ == 0: stamp(b, "o_s0")
    for fb in (3, 4): b.I("ds_write_b128", vR, ACC[1][fb], mods=f"offset:{fb * 1024}")
    stamp(b, "o_mm")
    b.wait(lg=0)
    b.barrier()
    for fb in range(5): b.I("ds_read_b128", WF[0][fb], vR2, mods=f"offset:{fb * 1024}")
    for fb in range(5):
        for q in range(2): pk(b, "v_pk_add_f32", ACC[0][fb][2 * q:2 * q + 2], ACC[0][fb][2 * q:2 * q + 2], WF[0][fb][2 * q:2 * q + 2])
    stamp(b, "o_red")
    return resid_epi(b, ACC[0], RES, None, sDst, sSt)

def ffn1(b):
    sX, sSt, sH, sD0, sD1 = sP[0], sP[1], sP[2], sP[5], sP[6]
    b.I("s_add_u32", sX, sBX, hex(off["X10"]))
    xt = XTile(b, sX, LDS_X, sD0, sD1)
    for c in range(2):
        for op in xt.ops(c): op()
    st = Stats(b, "ST10", V(VB, 8))
    st.load()
    ACC = [[V(64 + 16 * fb + 4 * tb, 4) for tb in range(4)] for fb in range(3)]
    XF = [[V(112 + 16 * p + 4 * tb, 4) for tb in range(4)] for p in range(2)]
    vXa, vXb = V(VB + 16), V(VB + 17)
    mean, rstd = V(VB + 18), V(VB + 19)
    MR = [V(176 + 2 * i, 2) for i in range(4)]; RS = [V(184 + 2 * i, 2) for i in range(4)]
    CS = V(144, 12); BI = V(156, 12)
    b.I("v_add_u32", vXa, LDS_X, vX16)
    b.I("v_add_u32", vXb, LDS_X + 65536, vX16)
    b.I("v_lshrrev_b32", vt0, 4, vL)
    b.I("v_lshlrev_b32", vt0, 4, vt0)
    b.I("s_mul_i32", sT0, sW, 192)
    b.I("v_add_u32", vt0, sT0, vt0)
    b.I("v_add_u32", vt1, T_CS1, vt0)
    b.I("v_add_u32", vt2, T_B1, vt0)
    for fb in range(3):
        b.I("ds_read_b128", CS[4 * fb:4 * fb + 4], vt1, mods=f"offset:{64 * fb}")
        b.I("ds_read_b128", BI[4 * fb:4 * fb + 4], vt2, mods=f"offset:{64 * fb}")
    b.I("s_mul_i32", sH, sG, 196608)
    b.I("s_add_u32", sH, sH, sLO)
    b.I("s_mul_i32", sT0, sJ, 24576)
    b.I("s_add_u32", sH, sH, sT0)
    b.I("s_mul_i32", sT0, sW, 6144)
    b.I("s_add_u32", sH, sH, sT0)
    b.I("s_add_u32", sH, sH, hex(off["H0"]))
    c0 = -2.0 * math.sqrt(2.0 / math.pi) * math.log2(math.e)
    sC = S(50, 2)
    vC0 = V(192, 2)
    b.I("s_mov_b32", sC[0], hex(f2u(c0 * 0.044715)))
    b.I("v_mov_b32", vC0[0], hex(f2u(c0)))
    f = Fill()
    st.fill(f, mean, rstd)
    f.v(b, "v_mul_f32", mean, mean, rstd)
    for src, d4 in ((mean, MR), (rstd, RS)):
        d = [x[0] for x in d4]
        f.v(b, "v_mov_b32", d[0], src); f.v(b, "v_mov_b32", d[2], src)
        f.v(b, "v_permlane32_swap_b32", d[0], d[2])
        f.v(b, "v_mov_b32", d[1], d[0]); f.v(b, "v_mov_b32", d[3], d[2])
        f.v(b, "v_permlane16_swap_b32", d[0], d[1]); f.v(b, "v_permlane16_swap_b32", d[2], d[3])
    def xread(s_, tb):
        o = s_ * 4096 + tb * 256
        base, o = (vXa, o) if o < 65536 else (vXb, o - 65536)
        b.I("ds_read_b128", XF[s_ % 2][tb], base, mods=f"offset:{o}")
    stamp(b, "f_pre")
    mem = []
    w2q = wops(b, sW2, range(0, 52)); w2n = 0; NM_ = EXP.get('nm', 52)
    xt.wait(0)
    stamp(b, "f_c0")
    for tb in range(4): xread(0, tb)
    for c in range(5):
        if c + 2 < 5: mem += xt.ops(c + 2)
        if c == 4: mem += l2_warm(b, "WQP", 163840)
        for s_ in range(4 * c, 4 * c + 4):
            if s_ == 5: st.publish()
            if s_ == 4 * c + 3 and c < 4:
                if c == 1: st.before_barrier()
                xt.wait(c + 1)
                stamp(b, f"f_c{c + 1}")
            k = 0
            b.need(*XF[s_ % 2], slot(3 * s_), slot(3 * s_ + 1), slot(3 * s_ + 2))
            for fb in range(3):
                for tb in range(4):
                    b.I("v_mfma_f32_16x16x32_bf16", ACC[fb][tb], slot(3 * s_ + fb), XF[s_ % 2][tb], (0 if s_ == 0 else ACC[fb][tb]))
                    if k < 4 and s_ + 1 < 20: xread(s_ + 1, k)
                    elif k in ((5, 8, 11) if EXP.get("slots3", 1) else (6, 10)):
                        if mem: mem.pop(0)()
                        elif w2n < min(NM_, 3 * s_ + (k + 1) // 4): w2q[w2n](); w2n += 1
                    elif c >= 2 and f.q: f.run(5)
                    k += 1
    for op in mem: op()
    f.flush()
    stamp(b, "f_mm")
    T = [V(168 + 2 * i, 2) for i in range(4)]
    tag = None
    for fb in range(3):
        for tp in range(2):
            el = [(ACC[fb][2 * tp + u][2 * q:2 * q + 2], T[2 * u + q], 2 * tp + u, q) for u in range(2) for q in range(2)]
            for a, t, tb, q in el: pk(b, "v_pk_fma_f32", t, MR[tb], CS[4 * fb + 2 * q:4 * fb + 2 * q + 2], BI[4 * fb + 2 * q:4 * fb + 2 * q + 2], mods="op_sel_hi:[0,1,1] neg_lo:[1,0,0] neg_hi:[1,0,0]")
            for a, t, tb, q in el: pk(b, "v_pk_fma_f32", a, RS[tb], a, t, mods="op_sel_hi:[0,1,1]")
            for a, t, tb, q in el: pk(b, "v_pk_mul_f32", t, a, a)
            for a, t, tb, q in el: pk(b, "v_pk_fma_f32", t, t, sC, vC0, mods="op_sel_hi:[1,0,0]")
            for a, t, tb, q in el: pk(b, "v_pk_mul_f32", t, t, a)
            for _ in range(2):
                if w2n < 52: w2q[w2n](); w2n += 1
            for a, t, tb, q in el:
                for e in range(2): b.I("v_exp_f32", t[e], t[e])
            if w2n < 52: w2q[w2n](); w2n += 1
            for a, t, tb, q in el: pk(b, "v_pk_add_f32", t, t, 1.0, mods="op_sel_hi:[1,0]")
            for a, t, tb, q in el:
                for e in range(2): b.I("v_rcp_f32", t[e], t[e])
            for a, t, tb, q in el: pk(b, "v_pk_mul_f32", a, a, t)
            for _ in range(2):
                if w2n < 52: w2q[w2n](); w2n += 1
            for u in range(2):
                a4 = ACC[fb][2 * tp + u]
                for q in range(2): b.I("v_cvt_pk_bf16_f32", a4[q], a4[2 * q], a4[2 * q + 1])
                tag = b.I("buffer_store_dwordx2", a4[0:2], vEpi, WS, sH, mods=f"offen offset:{(2 * tp + u) * 256}")
        if fb < 2: b.I("s_add_u32", sH, sH, 2048)
    while w2n < 52: w2q[w2n](); w2n += 1
    return tag

def ffn2(b):
    sH, sRes, sDst, sSt, sH9 = sP[0], sP[1], sP[2], sP[3], sP[4]
    NB = 6
    XF = [[V(64 + 16 * p + 4 * a, 4) for a in range(4)] for p in range(NB)]
    ACC = [[V(160 + 20 * a + 4 * fb, 4) for fb in range(5)] for a in range(4)]
    RES = RESID
    BI = V(64, 20)
    vXa = [V(VB + 26 + a) for a in range(4)]
    vRw = [V(VB + 30 + a) for a in range(3)]; vRr = V(VB + 33); vB2 = V(VB + 34)
    sTB = sP[5]
    for a in range(4):
        b.I("s_add_u32", sT0, sW, a)
        b.I("s_and_b32", sT1, sT0, 1)
        b.I("s_lshl_b32", sT1, sT1, 1)
        b.I("s_bfe_u32", sT0, sT0, "0x10001")
        b.I("s_or_b32", sT0, sT0, sT1)
        if a == 0: b.I("s_mov_b32", sTB, sT0)
        b.I("s_lshl_b32", sT0, sT0, 8)
        b.I("v_add_u32", vXa[a], sT0, vX16)
    b.I("s_mul_i32", sH, sG, 196608)
    b.I("s_add_u32", sH, sH, sLO)
    b.I("s_mul_i32", sT0, sW, 49152)
    b.I("s_add_u32", sH, sH, sT0)
    b.I("s_add_u32", sH, sH, hex(off["H0"]))
    def xops(s_):
        ops = [lambda a=a: b.I("buffer_load_dwordx4", XF[s_ % NB][a], vXa[a], WS, sH, mods="offen sc1") for a in range(3)]
        ops.append(lambda: (b.I("buffer_load_dwordx4", XF[s_ % NB][3], vXa[3], WS, sH, mods="offen sc1"), b.I("s_add_u32", sH, sH, 4096)))
        return ops
    GL = EXP.get("glead", 2)
    for s_ in range(GL):
        for op in xops(s_): op()
    b.I("s_mul_i32", sT0, sJ, 10240)
    b.I("s_add_u32", sRes, sBX, sT0)
    b.I("s_lshl_b32", sT0, sTB, 8)
    b.I("s_add_u32", sRes, sRes, sT0)
    b.I("s_add_u32", sDst, sRes, hex(off["XB0"] + LS))
    b.I("v_lshrrev_b32", vt0, 4, vL)
    b.I("v_lshlrev_b32", vt0, 4, vt0)
    b.I("v_add_u32", vB2, T_B2, vt0)
    for a in range(1, 4):
        b.I("s_add_u32", sT0, sW, a)
        b.I("s_and_b32", sT0, sT0, 3)
        b.I("s_mul_i32", sT0, sT0, 15360)
        b.I("s_add_u32", sT0, sT0, LDS_RED_F + (a - 1) * 5120)
        b.I("v_add_u32", vRw[a - 1], sT0, vL16)
    b.I("s_mul_i32", sT0, sW, 15360)
    b.I("s_add_u32", sT0, sT0, LDS_RED_F)
    b.I("v_add_u32", vRr, sT0, vL16)
    b.I("s_lshl_b32", sSt, sG, 12)
    b.I("s_lshl_b32", sT0, sJ, 9)
    b.I("s_add_u32", sSt, sSt, sT0)
    b.I("s_lshl_b32", sT0, sTB, 7)
    b.I("s_add_u32", sSt, sSt, sT0)
    b.I("s_add_u32", sSt, sSt, hex(off["STI0"] + LS))
    stat_addr(b)
    stamp(b, "g_pre")
    mem = []
    for s_ in range(GL, 9): mem += xops(s_)
    for a in (1, 2, 3, 0):
        for s_ in range(9, 12):
            mem.append(lambda a=a, s_=s_: (b.I("s_add_u32", sH9, sH, (s_ - 9) * 4096), b.I("buffer_load_dwordx4", XF[s_ % NB][a], vXa[a], WS, sH9, mods="offen sc1")))
    issued = 4 * GL
    for s_ in range(9):
        k = 0
        b.need(*XF[s_ % NB], *[slot(5 * s_ + fb) for fb in range(5)])
        for fb in range(5):
            for a in range(4):
                b.I("v_mfma_f32_16x16x32_bf16", ACC[a][fb], slot(5 * s_ + fb), XF[s_ % NB][a], (0 if s_ == 0 else ACC[a][fb]))
                if mem and k % 4 == 2 and (issued // 4 if issued < 36 else 9 + (issued - 36) % 3) - NB < s_:
                    mem.pop(0)(); issued += 1
                k += 1
        if s_ in (0, 5): stamp(b, f"g_s{s_}")
    pend = []
    for a in (1, 2, 3, 0):
        k = 0
        for s_ in range(9, 12):
            for fb in range(5):
                b.I("v_mfma_f32_16x16x32_bf16", ACC[a][fb], slot(5 * s_ + fb), XF[s_ % NB][a], ACC[a][fb])
                if mem and k % 3 == 1: mem.pop(0)()
                elif pend and k >= 3 and k % 2 == 1: pend.pop(0)()
                k += 1
        for op in pend: op()
        pend = [lambda fb=fb, a=a: b.I("ds_write_b128", vRw[a - 1], ACC[a][fb], mods=f"offset:{fb * 1024}") for fb in range(5)] if a else []
    assert not mem
    stamp(b, "g_mm")
    wq = wops(b, sWQ, range(0, 8))
    for fb in range(5): b.I("ds_read_b128", BI[4 * fb:4 * fb + 4], vB2, mods=f"offset:{64 * fb}")
    for _ in range(4): wq.pop(0)()
    b.wait(lg=0)
    b.barrier()
    for a in range(1, 4):
        for fb in range(5): b.I("ds_read_b128", ACC[a][fb], vRr, mods=f"offset:{(a - 1) * 5120 + fb * 1024}")
    for _ in range(4): wq.pop(0)()
    for a in range(1, 4):
        for fb in range(5):
            for q in range(2): pk(b, "v_pk_add_f32", ACC[0][fb][2 * q:2 * q + 2], ACC[0][fb][2 * q:2 * q + 2], ACC[a][fb][2 * q:2 * q + 2])
    stamp(b, "g_red")
    b.I("s_cmp_eq_u32", sL, 1)
    b.I("s_cbranch_scc1", "FFN2_FINAL")
    snap = b.snapshot(); hist = list(b.hist)
    tag = resid_epi(b, ACC[0], RES, BI, sDst, sSt)
    assert not wq
    def final():
        b.label("FFN2_FINAL")
        b.restore(snap); b.hist = hist
        b.I("s_lshl_b32", sT0, sG, 6)
        b.I("s_lshl_b32", sT1, sTB, 4)
        b.I("s_add_u32", sT0, sT0, sT1)
        b.I("s_mul_i32", sDst, sT0, 1280)
        b.I("s_mul_i32", sT0, sJ, 160)
        b.I("s_add_u32", sDst, sDst, sT0)
        vo = V(VB + 8)
        b.I("v_and_b32", vt0, 15, vL)
        b.I("v_mul_u32_u24", vo, 1280, vt0)
        b.I("v_lshrrev_b32", vt0, 4, vL)
        b.I("v_lshl_add_u32", vo, vt0, 3, vo)
        resid_epi(b, ACC[0], RES, BI, sDst, None, out_natural=vo)
    return tag, final

def gen_fused(b):
    setup(b, "MAIN_END")
    b.I("s_mov_b32", sL, 0); b.I("s_mov_b32", sLO, 0)
    b.I("s_mov_b32", sGS, 0); b.I("s_mov_b32", sGT, 0)
    b.I("s_lshl_b32", sFG, sG, 8)
    b.I("s_add_u32", sFG, sFG, hex(off["FLAGS"]))
    b.I("s_mov_b32", sLoc, 0)
    xcd_publish(b)
    stamp(b, "start")
    b.I("s_lshl_b32", sT0, sJ, 2)
    b.I("s_add_u32", sT0, sT0, sW)
    b.I("s_mul_i32", S(57), sT0, 40960)
    b.I("s_add_u32", S(57), S(57), hex(off["WQP"]))
    b.I("s_mul_i32", sBX, sG, 81920)
    qkv_start(b)
    b.I("s_and_b32", sT0, sW, 1)
    b.I("s_lshl_b32", sT0, sT0, 1)
    b.I("s_lshr_b32", sT1, sW, 1)
    b.I("s_or_b32", sT0, sT0, sT1)
    b.I("s_lshl_b32", sT0, sT0, 8)
    b.I("s_mul_i32", sT1, sJ, 10240)
    b.I("s_add_u32", sT0, sT0, sT1)
    b.I("s_add_u32", sT0, sT0, sBX)
    b.I("s_add_u32", sP[8], sT0, hex(off["XB0"]))
    def after_table_loads():
        for op in wops(b, S(57), range(0, 16)): op()
        for op in resid_ops(b, sP[8], RESID): op()
    tables(b, after_loads=after_table_loads)
    b.I("s_lshl_b32", sT0, sJ, 2)
    b.I("s_add_u32", sT0, sT0, sW)
    b.I("s_mul_i32", sWQ, sT0, 40960)
    b.I("s_add_u32", sWQ, sWQ, hex(off["WQP"]))
    b.I("s_mul_i32", sW1, sT0, 61440)
    b.I("s_add_u32", sW2, sW1, hex(off["W2P"]))
    b.I("s_add_u32", sW1, sW1, hex(off["W1P"]))
    b.I("s_mul_i32", sBX, sG, 81920)
    if EXP.get("hotw"):
        b.I("s_mul_i32", sWQ, sW, 61440)
        b.I("s_add_u32", sWQ, sWQ, hex(off["WQP"]))
        b.I("s_mov_b32", sW1, sWQ); b.I("s_mov_b32", sW2, sWQ)
    b.I("s_branch", "LAYER_REST")
    b.label("LAYER")
    b.clear_hist()
    xt = qkv_start(b)
    b.label("LAYER_REST")
    b.clear_hist()
    stamp(b, "layer")
    tag = qkv(b, xt)
    stamp(b, "qkv_end")
    grid_arrive(b, tag, "g")
    attention(b)
    wo_tag = []
    group_sync(b, None, "s1", [lambda: wo_tag.append(wo_rest(b))] + wops(b, sW1, range(32, 40)))
    b.wait_vm_tag(wo_tag[0]); b.barrier()
    stamp(b, "s1_ok")
    tag = oproj(b)
    stamp(b, "opr_end")
    group_sync(b, tag, "s2", [])
    stamp(b, "s2_ok")
    tag = ffn1(b)
    stamp(b, "ff1_end")
    group_sync(b, tag, "s3", wops(b, sW2, range(52, 60)))
    stamp(b, "s3_ok")
    tag, final = ffn2(b)
    stamp(b, "ff2_end")
    group_sync(b, tag, "s4", wops(b, sWQ, range(8, 16)))
    stamp(b, "s4_ok")
    b.I("s_mov_b32", sL, 1)
    b.I("s_mov_b32", sLO, hex(LS))
    b.I("s_add_u32", sBX, sBX, hex(LS))
    if M.PROFILE: M.stamp_flush(b, 0)
    b.I("s_branch", "LAYER")
    final()
    if M.PROFILE:
        b.wait(vm=0); stamp(b, "ff2_end"); stamp(b, "end"); M.stamp_flush(b, 20)
    b.label("MAIN_END")
```

```python
from asmb import *
import layout as L
off = L.off
WS_BYTES = 268435456
OOB = 0x40000000

def srd(b, dst, lo, hi, size):
    b.I("s_mov_b32", dst[0], lo)
    b.I("s_and_b32", dst[1], hi, "0xffff")
    b.I("s_mov_b32", dst[2], hex(size))
    b.I("s_mov_b32", dst[3], "0x20000")

def unpack_sum(b, src, accA, accB, t0, t1):
    b.I("v_lshlrev_b32", t0, 16, src)
    b.I("v_and_b32", t1, "0xffff0000", src)
    b.I("v_add_f32", accA, accA, t0)
    b.I("v_add_f32", accB, accB, t1)

def gen_l0(b):
    P_X, P_WQ, P_WK, P_WV, P_WO, P_W1, P_W2, P_WS = S(36, 2), S(38, 2), S(40, 2), S(42, 2), S(44, 2), S(46, 2), S(48, 2), S(50, 2)
    WS = S(8, 4); SRC = S(12, 4)
    sRS, sG0, sNG, sN0, sOff = S(16), S(17), S(18), S(19), S(20)
    sA, sP, sQ, sGL0, sBase, sM, sDv, sHS, sLS, sSwap, sCs, sCB, sCH, sKr, sT, sMask = (S(i) for i in range(21, 37 - 0)) if False else [S(i) for i in (21, 22, 23, 24, 25, 26, 27, 28, 29, 30, 31, 32, 33, 34, 35, 52)]
    b.I("s_cmp_ge_u32", S(2), 256)
    b.I("s_cbranch_scc1", "L0_end")
    b.I("s_load_dwordx2", P_X, S(0, 2), 0)
    b.I("s_load_dwordx2", P_WQ, S(0, 2), 8)
    b.I("s_load_dwordx2", P_WK, S(0, 2), 16)
    b.I("s_load_dwordx2", P_WV, S(0, 2), 24)
    b.I("s_load_dwordx2", P_WO, S(0, 2), 32)
    b.I("s_load_dwordx2", P_W1, S(0, 2), 48)
    b.I("s_load_dwordx2", P_W2, S(0, 2), 64)
    b.I("s_load_dwordx2", P_WS, S(0, 2), 96)
    lane = V(1); cp = V(2); slot = V(3)
    b.I("v_and_b32", cp, 31, V(0))
    b.I("v_lshrrev_b32", slot, 5, V(0))
    b.wait(lg=0)
    srd(b, WS, P_WS[0], P_WS[1], WS_BYTES)
    XS = S(56, 4)
    srd(b, XS, P_X[0], P_X[1], 2048 * 1280)
    wv_id = S(53)
    vt, vgg, vxo, vxd = V(4), V(5), V(6), V(7)
    b.I("v_lshrrev_b32", V(8), 6, V(0))
    b.I("v_and_b32", vt, 7, V(0))
    b.I("v_readfirstlane_b32", wv_id, V(8))
    b.I("v_bfe_u32", vgg, V(0), 3, 3)
    b.I("s_mul_i32", sT, S(2), 8 * 1280)
    b.I("v_mul_u32_u24", vxo, 1280, vt)
    b.I("v_lshl_add_u32", vxo, vgg, 4, vxo)
    b.I("s_lshl_b32", sOff, wv_id, 7)
    b.I("s_add_u32", sOff, sOff, sT)
    XL = [V(64 + 4 * q, 4) for q in range(3)]
    v_oob = V(9)
    b.I("s_cmp_lt_u32", wv_id, 2)
    b.I("s_cselect_b32", S(54), 0, hex(OOB))
    for q in range(3):
        if q == 2:
            b.I("v_add_u32", v_oob, S(54), vxo)
            b.I("buffer_load_dwordx4", XL[q], v_oob, XS, sOff, mods=f"offen offset:{q*512}")
        else:
            b.I("buffer_load_dwordx4", XL[q], vxo, XS, sOff, mods=f"offen offset:{q*512}")
    def setp(name, base, rs, size, strips_shift, ng, a, P, Q, B0, Dv, HS, LS, swap, cs, CB, CK, CH, w2=False):
        b.label(name)
        b.I("s_sub_u32", sT, S(2), base)
        b.I("s_lshr_b32", sN0, sT, strips_shift)
        b.I("s_lshl_b32", sN0, sN0, 6)
        b.I("s_and_b32", sKr, sT, (1 << strips_shift) - 1)
        b.I("s_mul_i32", sG0, sKr, ng)
        b.I("s_mov_b32", sNG, ng)
        b.I("s_mov_b32", sRS, rs[0])
        srd(b, SRC, rs[1][0], rs[1][1], size)
        b.I("s_mov_b32", sA, a); b.I("s_mov_b32", sP, P); b.I("s_mov_b32", sQ, Q)
        b.I("s_mov_b32", sMask, (1 << a) - 1)
        if w2:
            b.I("s_and_b32", sGL0, sKr, 1)
            b.I("s_mul_i32", sGL0, sGL0, 24)
            b.I("s_lshr_b32", sBase, sKr, 1)
            b.I("s_mul_i32", sBase, sBase, 61440)
            b.I("s_add_u32", sBase, sBase, hex(B0))
        else:
            b.I("s_mov_b32", sGL0, sG0)
            b.I("s_mov_b32", sBase, hex(B0))
        b.I("s_mov_b32", sDv, Dv); b.I("s_mov_b32", sM, -(-65536 // Dv))
        b.I("s_mov_b32", sHS, HS); b.I("s_mov_b32", sLS, LS)
        b.I("s_mov_b32", sSwap, swap); b.I("s_mov_b32", sCs, cs)
        b.I("s_mul_i32", sCB, sKr, CK)
        b.I("s_add_u32", sCB, sCB, hex(CB))
        b.I("s_mov_b32", sCH, CH)
        b.I("s_branch", "L0_common")
    b.I("s_cmp_lt_u32", S(2), 40);  b.I("s_cbranch_scc1", "L0_wq")
    b.I("s_cmp_lt_u32", S(2), 80);  b.I("s_cbranch_scc1", "L0_wo")
    b.I("s_cmp_lt_u32", S(2), 176); b.I("s_cbranch_scc1", "L0_w1")
    b.I("s_branch", "L0_w2")
    setp("L0_wq", 0, (1280, P_WQ), 640 * 1280, 2, 20, 1, 1024, 512, off["WQP"], 20, 40960, 256, 1, 1, off["CSQ"], 4096, 128)
    setp("L0_wo", 40, (1280, P_WO), 640 * 1280, 2, 20, 0, 1280, 0, off["WOP"], 80, 102400, 256, 0, 0, 0, 0, 0)
    setp("L0_w1", 80, (3072, P_W1), 640 * 3072, 2, 20, 2, 3072, 256, off["W1P"], 48, 61440, 1024, 0, 1, off["CS1"], 6144, 192)
    setp("L0_w2", 176, (1280, P_W2), 1536 * 1280, 3, 24, 2, 5120, 256, off["W2P"], 80, 245760, 1024, 0, 0, 0, 0, 0, w2=True)
    b.label("L0_common")
    vsrc = V(10)
    b.I("v_add_u32", vsrc, sG0, slot)
    b.I("s_lshl_b32", sT, sRS, 3)
    b.I("v_mul_lo_u32", vsrc, vsrc, sT)
    b.I("s_lshl_b32", sT, sN0, 1)
    b.I("v_lshl_add_u32", vsrc, cp, 2, vsrc)
    b.I("v_add_u32", vsrc, sT, vsrc)
    Lr = [[V(80 + 8 * it + e) for e in range(8)] for it in range(3)]
    b.I("s_mov_b32", sOff, 0)
    for it in range(3):
        for e in range(8):
            b.I("buffer_load_dword", Lr[it][e], vsrc, SRC, sOff, mods="offen")
            if e < 7: b.I("s_add_u32", sOff, sOff, sRS)
        if it < 2:
            b.I("s_mul_i32", sT, sRS, 57)
            b.I("s_add_u32", sOff, sOff, sT)

    KL = [[V(104 + 8 * it + e) for e in range(8)] for it in range(3)]
    vka = V(60, 2); vkv = V(62)
    snap_kv = b.snapshot()
    b.I("s_cmp_lt_u32", S(2), 40); b.I("s_cbranch_scc1", "L0_nokvld")
    b.I("s_cmp_ge_u32", S(2), 44); b.I("s_cbranch_scc1", "L0_nokvld")
    b.I("s_sub_u32", S(66), S(2), 40)
    b.I("s_mul_i32", S(67), S(66), 20)
    b.I("v_cmp_gt_u32", "vcc", 10, cp)
    b.I("v_mov_b32", V(25), P_WV[0]); b.I("v_mov_b32", V(26), P_WK[0])
    b.I("v_cndmask_b32", vka[0], V(25), V(26), "vcc")
    b.I("v_mov_b32", V(25), P_WV[1]); b.I("v_mov_b32", V(26), P_WK[1])
    b.I("v_cndmask_b32", vka[1], V(25), V(26), "vcc")
    b.I("v_subrev_u32", V(25), 10, cp)
    b.I("v_cndmask_b32", V(25), V(25), cp, "vcc")
    b.I("v_cmp_gt_u32", "vcc", 20, cp)
    b.I("v_cndmask_b32", V(25), 0, V(25), "vcc")
    b.I("v_add_u32", V(26), S(67), slot)
    b.I("v_mul_u32_u24", V(26), 320, V(26))
    b.I("v_lshl_add_u32", V(26), V(25), 2, V(26))
    b.I("v_add_co_u32", vka[0], "vcc", vka[0], V(26))
    b.I("v_addc_co_u32", vka[1], "vcc", 0, vka[1], "vcc")
    for it in range(3):
        if it == 2:
            b.I("v_cmp_gt_u32", "vcc", 4, slot)
            b.I("v_mov_b32", V(25), 2560)
            b.I("v_cndmask_b32", V(25), 0, V(25), "vcc")
            b.I("v_add_co_u32", vka[0], "vcc", vka[0], V(25))
            b.I("v_addc_co_u32", vka[1], "vcc", 0, vka[1], "vcc")
        elif it == 1:
            b.I("v_add_co_u32", vka[0], "vcc", 2560, vka[0])
            b.I("v_addc_co_u32", vka[1], "vcc", 0, vka[1], "vcc")
        for e in range(8): b.I("global_load_dword", KL[it][e], vka, "off", mods=f"offset:{40 * e}")
    b.label("L0_nokvld")
    b.restore(snap_kv)
    b.clear_hist()

    def colmap(vn, vhi, vlo_hi, vlo_lo, t0, t1):
        b.I("v_mul_u32_u24", vhi, sM, vn)
        b.I("v_lshrrev_b32", vhi, 16, vhi)
        b.I("v_mul_u32_u24", t0, sDv, vhi)
        b.I("v_sub_u32", t0, vn, t0)
        b.I("v_lshrrev_b32", vlo_hi, 4, t0)
        b.I("v_and_b32", vlo_lo, 15, t0)
        b.I("v_and_b32", t0, 4, vlo_lo)
        b.I("v_and_b32", t1, 8, vlo_lo)
        b.I("v_lshlrev_b32", t0, 1, t0)
        b.I("v_lshrrev_b32", t1, 1, t1)
        b.I("v_or_b32", t0, t0, t1)
        b.I("v_and_b32", t1, 3, vlo_lo)
        b.I("v_or_b32", t0, t0, t1)
        b.I("s_cmp_eq_u32", sSwap, 1)
        b.I("s_cselect_b64", "vcc", -1, 0)
        b.I("v_cndmask_b32", vlo_lo, vlo_lo, t0, "vcc")
    vn, vhi, vlh, vll, t0, t1, vdb = V(11), V(12), V(13), V(14), V(15), V(16), V(17)
    b.I("v_lshlrev_b32", vn, 1, cp)
    b.I("v_add_u32", vn, sN0, vn)
    colmap(vn, vhi, vlh, vll, t0, t1)
    b.I("v_mul_lo_u32", vdb, vhi, sHS)
    b.I("v_mul_lo_u32", t0, vlh, sLS)
    b.I("v_add_u32", vdb, vdb, t0)
    b.I("v_lshl_add_u32", vdb, vll, 4, vdb)
    b.I("v_add_u32", vdb, sBase, vdb)
    sGrp = S(55)
    b.I("s_lshr_b32", sGrp, S(2), 3)
    b.I("s_mul_i32", sGrp, sGrp, 81920)
    b.I("s_and_b32", sT, S(2), 7)
    b.I("s_lshl_b32", sT, sT, 7)
    b.I("s_add_u32", sGrp, sGrp, sT)
    b.I("s_add_u32", sGrp, sGrp, hex(off["XB0"]))
    b.I("s_lshl_b32", sT, wv_id, 13)
    b.I("s_add_u32", sGrp, sGrp, sT)
    b.I("v_lshlrev_b32", vxd, 10, vgg)
    b.I("v_lshl_add_u32", vxd, vt, 4, vxd)
    b.I("v_add_u32", v_oob, S(54), vxd)
    ssum, ssq = V(18), V(19)
    b.I("v_mov_b32", ssum, 0); b.I("v_mov_b32", ssq, 0)
    for q in range(3):
        b.I("buffer_store_dwordx4", XL[q], (v_oob if q == 2 else vxd), WS, sGrp, mods="offen")
        if q < 2: b.I("s_add_u32", sGrp, sGrp, 32768)
        for e in range(4):
            b.I("v_lshlrev_b32", t0, 16, XL[q][e])
            b.I("v_and_b32", t1, "0xffff0000", XL[q][e])
            b.I("v_add_f32", ssum, ssum, t0)
            b.I("v_fmac_f32", ssq, t0, t0)
            b.I("v_add_f32", ssum, ssum, t1)
            b.I("v_fmac_f32", ssq, t1, t1)
    for r in (ssum, ssq):
        b.I("v_add_f32_dpp", r, r, r, mods="row_ror:8 row_mask:0xf bank_mask:0xf")
        b.I("v_mov_b32", t0, r)
        b.I("v_permlane16_swap_b32", r, t0)
        b.I("v_add_f32", r, r, t0)
        b.I("v_mov_b32", t0, r)
        b.I("v_permlane32_swap_b32", r, t0)
        b.I("v_add_f32", r, r, t0)
    b.I("v_lshlrev_b32", t0, 3, vt)
    b.I("s_lshl_b32", sT, wv_id, 6)
    b.I("v_add_u32", t0, sT, t0)
    b.I("ds_write_b64", t0, V(18, 2), mods="offset:4096")
    csA, csB = V(20), V(21)
    b.I("v_mov_b32", csA, 0); b.I("v_mov_b32", csB, 0)
    vg, vad, vval = V(22), V(23), V(24)
    U = V(28, 4); U2 = V(32, 4)
    selLo, selHi = S(60), S(61)
    b.I("s_mov_b32", selLo, "0x05040100"); b.I("s_mov_b32", selHi, "0x07060302")
    for it in range(3):
        b.I("v_add_u32", vg, 8 * it, slot)
        b.I("v_cmp_gt_u32", "vcc", sNG, vg)
        b.I("v_add_u32", vg, sGL0, vg)
        b.I("v_lshrrev_b32", t0, sA, vg)
        b.I("v_mul_lo_u32", t0, t0, sP)
        b.I("v_and_b32", t1, sMask, vg)
        b.I("v_mul_lo_u32", t1, t1, sQ)
        b.I("v_add3_u32", vad, vdb, t0, t1)
        b.I("v_mov_b32", t0, hex(OOB))
        b.I("v_cndmask_b32", vad, t0, vad, "vcc")
        for q in range(4):
            b.I("v_perm_b32", U[q], Lr[it][2 * q + 1], Lr[it][2 * q], selLo)
            b.I("v_perm_b32", U2[q], Lr[it][2 * q + 1], Lr[it][2 * q], selHi)
        b.I("buffer_store_dwordx4", U, vad, WS, 0, mods="offen")
        b.I("buffer_store_dwordx4", U2, vad, WS, 0, mods="offen offset:16")
        for e in range(8):
            b.I("v_cndmask_b32", t1, 0, Lr[it][e], "vcc")
            b.I("v_lshlrev_b32", t0, 16, t1)
            b.I("v_and_b32", t1, "0xffff0000", t1)
            b.I("v_add_f32", csA, csA, t0)
            b.I("v_add_f32", csB, csB, t1)
    b.I("v_lshlrev_b32", t0, 8, slot)
    b.I("v_lshl_add_u32", t0, cp, 3, t0)
    b.I("ds_write_b64", t0, V(20, 2))
    b.wait(lg=0)
    b.barrier()
    b.I("v_cmp_gt_u32", "vcc", 64, V(0))
    b.I("s_and_saveexec_b64", S(62, 2), "vcc")
    b.I("s_cbranch_execz", "L0_nocs")
    SW = [V(36 + 2 * w, 2) for w in range(4)]
    b.I("v_lshlrev_b32", t0, 3, vt)
    for w in range(4): b.I("ds_read_b64", SW[w], t0, mods=f"offset:{4096 + 64 * w}")
    for c in range(2):
        b.I("v_add_f32", SW[0][c], SW[0][c], SW[1][c])
        b.I("v_add_f32", SW[2][c], SW[2][c], SW[3][c])
        b.I("v_add_f32", SW[0][c], SW[0][c], SW[2][c])
    b.I("v_cmp_eq_u32", "vcc", 0, vgg)
    b.I("v_cndmask_b32", SW[0][0], 0, SW[0][0], "vcc")
    b.I("v_cndmask_b32", SW[0][1], 0, SW[0][1], "vcc")
    b.I("s_lshr_b32", sT, S(2), 3)
    b.I("s_lshl_b32", sT, sT, 12)
    b.I("s_and_b32", sOff, S(2), 7)
    b.I("s_lshl_b32", sOff, sOff, 6)
    b.I("s_add_u32", sT, sT, sOff)
    b.I("s_add_u32", sT, sT, hex(off["STI0"]))
    b.I("v_lshlrev_b32", t0, 9, vgg)
    b.I("v_lshl_add_u32", t0, vt, 3, t0)
    b.I("buffer_store_dwordx2", SW[0], t0, WS, sT, mods="offen")
    b.I("s_cmp_eq_u32", sCs, 0)
    b.I("s_cbranch_scc1", "L0_nocs")
    CW = [V(44 + s_) for s_ in range(8)]
    b.I("v_lshlrev_b32", t0, 2, V(0))
    for s_ in range(8): b.I("ds_read_b32", CW[s_], t0, mods=f"offset:{256 * s_}")
    b.I("v_add_u32", vn, sN0, V(0))
    colmap(vn, vhi, vlh, vll, t0, t1)
    for s_ in range(1, 8): b.I("v_add_f32", CW[0], CW[0], CW[s_])
    b.I("v_mul_lo_u32", vad, vhi, sCH)
    b.I("v_lshl_add_u32", vad, vlh, 6, vad)
    b.I("v_lshl_add_u32", vad, vll, 2, vad)
    b.I("buffer_store_dword", CW[0], vad, WS, sCB, mods="offen")
    b.label("L0_nocs")
    b.clear_hist(); b.nop(4)
    b.I("s_mov_b64", "exec", -1)
    b.I("s_cmp_ge_u32", S(2), 16)
    b.I("s_cbranch_scc1", "L0_noflag")
    Z = V(28, 4)
    for e in range(4): b.I("v_mov_b32", Z[e], 0)
    b.I("v_lshlrev_b32", t0, 4, V(0))
    b.I("s_lshl_b32", sT, S(2), 12)
    b.I("s_add_u32", sT, sT, hex(off["FLAGS"]))
    b.I("buffer_store_dwordx4", Z, t0, WS, sT, mods="offen")
    b.label("L0_noflag")
    b.I("s_cmp_lt_u32", S(2), 40); b.I("s_cbranch_scc1", "L0_end")
    b.I("s_cmp_ge_u32", S(2), 44); b.I("s_cbranch_scc1", "L0_end")
    b.wait(vm=0)
    b.barrier()
    sKr, sG0 = S(66), S(67)
    vcc_, vqq, vwl, vm_ = V(10), V(11), V(12), V(13)
    b.I("v_cmp_le_u32", "vcc", 10, cp)
    b.I("v_cndmask_b32", vwl, 0, 2, "vcc")
    b.I("v_cndmask_b32", t0, 0, 10, "vcc")
    b.I("v_sub_u32", vcc_, cp, t0)
    b.I("v_lshrrev_b32", vqq, 1, vcc_)
    b.I("v_cmp_le_u32", "vcc", 3, vqq)
    b.I("v_cndmask_b32", t0, 0, 1, "vcc")
    b.I("v_add_u32", vwl, vwl, t0)
    b.I("v_mul_u32_u24", t0, 3, t0)
    b.I("v_sub_u32", t0, vqq, t0)
    b.I("v_lshlrev_b32", t0, 2, t0)
    b.I("v_and_b32", t1, 1, vcc_)
    b.I("v_lshl_add_u32", t0, t1, 1, t0)
    b.I("v_add_u32", vm_, 20, t0)
    b.I("v_cmp_gt_u32", S(64, 2), 20, cp)
    b.I("v_mul_u32_u24", vdb, 40960, vwl)
    b.I("v_lshl_add_u32", vdb, vm_, 4, vdb)
    b.I("v_add_u32", vdb, hex(off["WQP"]), vdb)
    b.I("v_mov_b32", csA, 0); b.I("v_mov_b32", csB, 0)
    for it in range(3):
        b.I("v_add_u32", vg, 8 * it, slot)
        b.I("v_cmp_gt_u32", "vcc", 20, vg)
        b.I("s_and_b64", "vcc", "vcc", S(64, 2))
        b.I("v_add_u32", vg, sG0, vg)
        b.I("v_lshrrev_b32", t0, 1, vg)
        b.I("v_lshlrev_b32", t0, 10, t0)
        b.I("v_and_b32", t1, 1, vg)
        b.I("v_lshlrev_b32", t1, 9, t1)
        b.I("v_add3_u32", vad, vdb, t0, t1)
        b.I("v_mov_b32", t0, hex(OOB))
        b.I("v_cndmask_b32", vad, t0, vad, "vcc")
        for q in range(4):
            b.I("v_perm_b32", U[q], KL[it][2 * q + 1], KL[it][2 * q], selLo)
            b.I("v_perm_b32", U2[q], KL[it][2 * q + 1], KL[it][2 * q], selHi)
        for j in range(8):
            b.I("s_mov_b32", sOff, j * 163840)
            b.I("buffer_store_dwordx4", U, vad, WS, sOff, mods="offen")
            b.I("buffer_store_dwordx4", U2, vad, WS, sOff, mods="offen offset:16")
        for e in range(8):
            b.I("v_cndmask_b32", t1, 0, KL[it][e], "vcc")
            b.I("v_lshlrev_b32", t0, 16, t1)
            b.I("v_and_b32", t1, "0xffff0000", t1)
            b.I("v_add_f32", csA, csA, t0)
            b.I("v_add_f32", csB, csB, t1)
    b.I("v_lshlrev_b32", t0, 8, slot)
    b.I("v_lshl_add_u32", t0, cp, 3, t0)
    b.I("ds_write_b64", t0, V(20, 2))
    b.wait(lg=0)
    b.barrier()
    S8 = [V(36 + 2 * s_, 2) for s_ in range(8)]
    b.I("v_lshlrev_b32", t0, 3, cp)
    for s_ in range(8): b.I("ds_read_b64", S8[s_], t0, mods=f"offset:{256 * s_}")
    for s_ in range(1, 8):
        b.I("v_add_f32", S8[0][0], S8[0][0], S8[s_][0])
        b.I("v_add_f32", S8[0][1], S8[0][1], S8[s_][1])
    b.I("v_lshlrev_b32", vad, 7, vwl)
    b.I("v_lshl_add_u32", vad, vm_, 2, vad)
    b.I("v_cmp_gt_u32", "vcc", 20, V(0))
    b.I("v_mov_b32", t0, hex(OOB))
    b.I("v_cndmask_b32", vad, t0, vad, "vcc")
    b.I("s_lshl_b32", sT, sKr, 12)
    b.I("s_add_u32", sT, sT, hex(off["CSQ"]))
    for j in range(8):
        b.I("buffer_store_dwordx2", S8[0], vad, WS, sT, mods="offen")
        b.I("s_add_u32", sT, sT, 512)
    b.label("L0_end")
```

```python
from asmb import *
import layout as L
import math
off = L.off
WS_BYTES = 268435456
OOB = 0x40000000
LS = L.LAYER_STRIDE

LDS_X = 0
LDS_WO = 0
LDS_KVIMG = 102400
LDS_RED_O = 110592
LDS_RED_F = 0
TAB = 159744
T_CSQ, T_CS1, T_B1, T_B2 = TAB, TAB + 512, TAB + 1280, TAB + 2048
LDS_BYTES = 163840

WS = S(8, 4); OUT = S(12, 4)
sG, sJ, sW, sL = S(16), S(17), S(18), S(19)
sLO = S(20)
sT0, sT1, sT2, sT3 = S(21), S(22), S(23), S(24)
sXIN = S(25)
sP = [S(26 + i) for i in range(10)]
P_B1, P_B2 = S(36, 2), S(38, 2)
SRDT = S(40, 4)
sEX = S(44, 2)
sSC = S(46)
vL, vL16, vX16, vX32, vEpi = V(1), V(2), V(3), V(4), V(5)
vt0, vt1, vt2, vt3 = V(6), V(7), V(8), V(9)
QM = [V(10, 4), V(16, 4)]
QT = [V(14, 2), V(20, 2)]
VB = 22

def srd(b, dst, lo, hi, size):
    b.I("s_mov_b32", dst[0], lo)
    b.I("s_and_b32", dst[1], hi, "0xffff")
    b.I("s_mov_b32", dst[2], hex(size))
    b.I("s_mov_b32", dst[3], "0x20000")

CROSS_MAP = False
def setup(b, endlabel, layer=None):
    b.I("s_cmp_ge_u32", S(2), 256)
    b.I("s_cbranch_scc1", endlabel)
    b.I("s_load_dwordx2", S(4, 2), S(0, 2), 96)
    b.I("s_load_dwordx2", S(6, 2), S(0, 2), 80)
    b.I("s_load_dwordx2", P_B1, S(0, 2), 56)
    b.I("s_load_dwordx2", P_B2, S(0, 2), 72)
    b.I("v_lshrrev_b32", vt0, 6, V(0))
    b.I("v_and_b32", vL, 63, V(0))
    b.I("v_readfirstlane_b32", sW, vt0)
    if CROSS_MAP:
        b.I("s_lshr_b32", sG, S(2), 3)
        b.I("s_and_b32", sJ, S(2), 7)
    else:
        b.I("s_and_b32", sT0, S(2), 7)
        b.I("s_lshr_b32", sT1, S(2), 3)
        b.I("s_lshl_b32", sG, sT0, 2)
        b.I("s_lshr_b32", sT2, sT1, 3)
        b.I("s_add_u32", sG, sG, sT2)
        b.I("s_and_b32", sJ, sT1, 7)
    b.I("v_lshlrev_b32", vL16, 4, vL)
    b.I("v_lshrrev_b32", vt0, 4, vL)
    b.I("v_and_b32", vt1, 15, vL)
    b.I("v_lshlrev_b32", vt1, 4, vt1)
    b.I("v_lshl_add_u32", vX16, vt0, 10, vt1)
    b.I("v_lshrrev_b32", vt2, 1, vt0)
    b.I("v_lshl_add_u32", vEpi, vt2, 10, vt1)
    b.I("v_and_b32", vt2, 1, vt0)
    b.I("v_lshl_add_u32", vEpi, vt2, 3, vEpi)
    b.I("v_lshrrev_b32", vt0, 5, vL)
    b.I("v_and_b32", vt1, 31, vL)
    b.I("v_lshlrev_b32", vt1, 4, vt1)
    b.I("v_lshl_add_u32", vX32, vt0, 10, vt1)
    b.wait(lg=0)
    srd(b, WS, S(4), S(5), WS_BYTES)
    srd(b, OUT, S(6), S(7), 2048 * 1280)
    if layer is not None:
        b.I("s_mov_b32", sL, layer)
        b.I("s_mov_b32", sLO, hex(layer * LS))

def tables(b, after_loads=None):
    a = [V(VB + i) for i in range(12)]
    vo = V(VB + 12); vo2 = V(VB + 13)
    b.I("v_lshlrev_b32", vo, 2, V(0))
    b.I("s_lshl_b32", sT0, sJ, 9)
    b.I("s_add_u32", sT0, sT0, hex(off["CSQ"]))
    for kr in range(4):
        b.I("buffer_load_dword", a[kr], vo, WS, sT0, mods="offen")
        if kr < 3: b.I("s_add_u32", sT0, sT0, 4096)
    b.I("s_mul_i32", sT1, sJ, 768)
    b.I("s_add_u32", sT0, sT1, hex(off["CS1"]))
    for kr in range(4):
        b.I("buffer_load_dword", a[4 + kr], vo, WS, sT0, mods="offen")
        if kr < 3: b.I("s_add_u32", sT0, sT0, 6144)
    b.I("v_lshlrev_b32", vo2, 1, V(0))
    srd(b, SRDT, P_B1[0], P_B1[1], 1536 * 2)
    b.I("s_mul_i32", sT1, sJ, 384)
    b.I("buffer_load_ushort", a[8], vo2, SRDT, sT1, mods="offen")
    srd(b, SRDT, P_B2[0], P_B2[1], 640 * 2)
    b.I("s_mul_i32", sT1, sJ, 160)
    b.I("buffer_load_ushort", a[9], vo2, SRDT, sT1, mods="offen")
    if after_loads: after_loads()
    for base in (0, 4):
        b.I("v_add_f32", a[base], a[base], a[base + 1])
        b.I("v_add_f32", a[base + 2], a[base + 2], a[base + 3])
        b.I("v_add_f32", a[base], a[base], a[base + 2])
    b.I("v_lshlrev_b32", a[8], 16, a[8])
    b.I("v_lshlrev_b32", a[9], 16, a[9])
    for cnt, reg, dst in ((128, a[0], T_CSQ), (192, a[4], T_CS1), (192, a[8], T_B1), (80, a[9], T_B2)):
        b.I("v_cmp_gt_u32", "vcc", cnt, V(0))
        b.I("v_mov_b32", vt0, 0x27F00)
        b.I("v_add_u32", vt1, dst, vo)
        b.I("v_cndmask_b32", vt1, vt0, vt1, "vcc")
        b.I("ds_write_b32", vt1, reg)
    b.wait(lg=0)
    b.barrier()

def stats_load(b, base_sgpr, regs):
    b.I("v_lshlrev_b32", vt0, 3, vL)
    for s_ in range(8):
        b.I("buffer_load_dwordx2", regs[s_], vt0, WS, base_sgpr, mods=f"offen offset:{s_ * 512} sc1")
def stats_finish(b, regs, mean, rstd):
    for c in range(2):
        b.I("v_add_f32", regs[0][c], regs[0][c], regs[1][c])
        b.I("v_add_f32", regs[2][c], regs[2][c], regs[3][c])
        b.I("v_add_f32", regs[4][c], regs[4][c], regs[5][c])
        b.I("v_add_f32", regs[6][c], regs[6][c], regs[7][c])
        b.I("v_add_f32", regs[0][c], regs[0][c], regs[2][c])
        b.I("v_add_f32", regs[4][c], regs[4][c], regs[6][c])
        b.I("v_add_f32", regs[0][c], regs[0][c], regs[4][c])
    b.I("s_mov_b32", sT0, hex(f2u(1.0 / 640)))
    b.I("v_mul_f32", mean, sT0, regs[0][0])
    b.I("v_mul_f32", rstd, sT0, regs[0][1])
    b.I("v_fma_f32", rstd, -mean if False else f"-{mean}", mean, rstd)
    b.I("v_max_f32", rstd, 0, rstd)
    b.I("v_add_f32", rstd, hex(f2u(1e-5)), rstd)
    b.I("v_rsq_f32", rstd, rstd)

import struct
def f2u(x): return struct.unpack("<I", struct.pack("<f", x))[0]

def dma_tile(b, sbase, nchunk_instr, first_unit, lds_base, sc="sc1", tagname="dma"):
    b.I("s_mul_i32", sT0, sW, nchunk_instr * 1024)
    b.I("s_add_u32", sT1, sT0, lds_base + first_unit * 1024)
    b.I("s_add_u32", sT0, sT0, sbase)
    b.I("s_add_u32", sT0, sT0, first_unit * 1024)
    tag = None
    for q in range(nchunk_instr):
        b.I("s_mov_b32", "m0", sT1)
        tag = b.I("buffer_load_dwordx4", vL16, WS, sT0, mods=f"offen {sc} lds")
        if q < nchunk_instr - 1:
            b.I("s_add_u32", sT1, sT1, 1024)
            b.I("s_add_u32", sT0, sT0, 1024)
    return tag

def qkv_wload(b, rng=range(40)):
    b.I("s_lshl_b32", sT2, sJ, 2)
    b.I("s_add_u32", sT2, sT2, sW)
    b.I("s_mul_i32", sT2, sT2, 40960)
    b.I("s_add_u32", sT2, sT2, hex(off["WQP"] + (rng[0] // 4) * 4096))
    for s_ in rng:
        if s_ % 4 == 0 and s_ != rng[0]: b.I("s_add_u32", sT2, sT2, 4096)
        b.I("buffer_load_dwordx4", A(4 * s_, 4), vL16, WS, sT2, mods=f"offen offset:{(s_ % 4) * 1024}")

def qkv_phase(b, uid):
    sX = sP[0]; sSt = sP[1]
    b.I("s_mul_i32", sX, sG, 81920)
    b.I("s_add_u32", sX, sX, sLO)
    b.I("s_add_u32", sX, sX, hex(off["XB0"]))
    b.I("s_lshl_b32", sSt, sG, 12)
    b.I("s_add_u32", sSt, sSt, sLO)
    b.I("s_add_u32", sSt, sSt, hex(off["STI0"]))
    tags = [dma_tile(b, sX, 4, 16 * c, LDS_X) for c in range(5)]
    ST = [V(VB + 2 * i, 2) for i in range(8)]
    stats_load(b, sSt, ST)
    ACC = [V(64, 16), V(80, 16)]
    XF = [[V(96 + 8 * p + 4 * th, 4) for th in range(2)] for p in range(4)]
    vXa, vXb = V(VB + 16), V(VB + 17)
    b.I("v_add_u32", vXa, LDS_X, vX32)
    b.I("v_add_u32", vXb, LDS_X + 65536, vX32)
    def xread(s_, th):
        o = s_ * 2048 + th * 512
        base, o = (vXa, o) if o < 65536 else (vXb, o - 65536)
        b.I("ds_read_b128", XF[s_ % 4][th], base, mods=f"offset:{o}")
    for c in range(5):
        b.wait_vm_tag(tags[c])
        b.barrier()
        for s_ in range(8 * c, 8 * c + 2):
            for th in range(2): xread(s_, th)
        for s_ in range(8 * c, 8 * c + 8):
            if s_ + 2 < 8 * c + 8:
                for th in range(2): xread(s_ + 2, th)
            for th in range(2):
                b.I("v_mfma_f32_32x32x16_bf16", ACC[th], A(4 * s_, 4), XF[s_ % 4][th], (0 if s_ == 0 else ACC[th]))
    mean, rstd = V(VB + 18), V(VB + 19)
    stats_finish(b, ST, mean, rstd)
    mT = [V(VB + 20), V(VB + 21)]; rT = [V(VB + 22), V(VB + 23)]
    b.I("v_mov_b32", mT[0], mean); b.I("v_mov_b32", mT[1], mean)
    b.I("v_mov_b32", rT[0], rstd); b.I("v_mov_b32", rT[1], rstd)
    b.I("v_permlane32_swap_b32", mT[0], mT[1])
    b.I("v_permlane32_swap_b32", rT[0], rT[1])
    CS = V(112, 16)
    b.I("v_lshrrev_b32", vt0, 5, vL)
    b.I("v_lshlrev_b32", vt0, 4, vt0)
    b.I("s_lshl_b32", sT0, sW, 7)
    b.I("v_add_u32", vt0, sT0, vt0)
    b.I("v_add_u32", vt0, T_CSQ, vt0)
    for c in range(4): b.I("ds_read_b128", CS[4 * c:4 * c + 4], vt0, mods=f"offset:{32 * c}")
    b.I("s_mov_b32", sT1, hex(f2u(math.log2(math.e) / math.sqrt(20.0))))
    rq, rm = V(VB + 24), V(VB + 25)
    PK = [V(128, 4), V(132, 4)]
    b.I("v_cmp_gt_u32", "vcc", 32, vL)
    for th in range(2):
        b.I("v_mul_f32", rq, sT1, rT[th])
        b.I("v_cndmask_b32", rm, rT[th], rq, "vcc")
        for i in range(16):
            b.I("v_fma_f32", ACC[th][i], f"-{mT[th]}", CS[i], ACC[th][i])
            b.I("v_mul_f32", ACC[th][i], (rq if i < 8 else rm if i < 12 else rT[th]), ACC[th][i])
        for q in range(4): b.I("v_cvt_pk_bf16_f32", QM[th][q], ACC[th][2 * q], ACC[th][2 * q + 1])
        for q in range(2): b.I("v_cvt_pk_bf16_f32", QT[th][q], ACC[th][8 + 2 * q], ACC[th][9 + 2 * q])
        for q in range(2): b.I("v_cvt_pk_bf16_f32", PK[th][2 + q], ACC[th][12 + 2 * q], ACC[th][13 + 2 * q])
    vkey, vh, vaT, vaU = V(VB + 26), V(VB + 27), V(VB + 28), V(VB + 29)
    PARK = 0x27F00
    b.I("v_and_b32", vkey, 31, vL)
    b.I("v_lshrrev_b32", vh, 5, vL)
    b.I("s_and_b32", sT0, sW, 1)
    b.I("s_mul_i32", sT0, sT0, 3)
    b.I("v_mov_b32", vaT, sT0)
    b.I("v_add_u32", vaU, 1, vh)
    b.I("v_add_u32", vaU, sT0, vaU)
    b.I("s_cmp_ge_u32", sW, 2)
    b.I("s_cbranch_scc1", f"QKV_V_{uid}")
    for va in (vaT, vaU):
        b.I("v_lshrrev_b32", vt0, 1, va)
        b.I("v_lshlrev_b32", vt0, 9, vt0)
        b.I("v_and_b32", vt1, 1, va)
        b.I("v_lshl_add_u32", vt0, vt1, 3, vt0)
        b.I("v_lshl_add_u32", vt0, vkey, 4, vt0)
        b.I("v_lshlrev_b32", vt1, 3, vkey)
        b.I("v_add_u32", vt1, 1024, vt1)
        b.I("v_cmp_eq_u32", "vcc", 4, va)
        b.I("v_cndmask_b32", vt0, vt0, vt1, "vcc")
        b.I("v_add_u32", vt0, LDS_KVIMG, vt0)
        b.I("v_cmp_lt_u32", "vcc", 4, va)
        b.I("v_mov_b32", vt1, PARK)
        b.I("v_cndmask_b32", va, vt0, vt1, "vcc")
    b.I("v_cmp_gt_u32", "vcc", 32, vL)
    b.I("v_mov_b32", vt1, PARK)
    b.I("v_cndmask_b32", vaT, vaT, vt1, "vcc")
    b.I("v_mov_b32", vt2, PARK)
    for th in range(2):
        b.I("ds_write_b64", vaT, QT[th])
        b.I("ds_write_b64", vaU, PK[th][2:4])
        if th == 0:
            for va in (vaT, vaU):
                b.I("v_add_u32", vt0, 3072, va)
                b.I("v_cmp_eq_u32", "vcc", va, vt2)
                b.I("v_cndmask_b32", va, vt0, va, "vcc")
    b.I("s_branch", f"QKV_J_{uid}")
    b.label(f"QKV_V_{uid}")
    snap = b.snapshot()
    b.I("v_lshrrev_b32", vt0, 4, vkey)
    b.I("v_mul_u32_u24", vt0, 768, vt0)
    b.I("v_bfe_u32", vt1, vkey, 2, 1)
    b.I("v_mul_u32_u24", vt1, 384, vt1)
    b.I("v_add_u32", vt0, vt0, vt1)
    b.I("v_and_b32", vt1, 3, vkey)
    b.I("v_lshl_add_u32", vt0, vt1, 1, vt0)
    b.I("v_bfe_u32", vt1, vkey, 3, 1)
    b.I("v_lshl_add_u32", vt0, vt1, 3, vt0)
    b.I("v_add_u32", vt3, LDS_KVIMG + 1536, vt0)
    for va in (vaT, vaU):
        b.I("v_lshl_add_u32", vt0, va, 6, vt3)
        b.I("v_cmp_lt_u32", "vcc", 4, va)
        b.I("v_mov_b32", vt1, PARK)
        b.I("v_cndmask_b32", va, vt0, vt1, "vcc")
    b.I("v_cmp_gt_u32", "vcc", 32, vL)
    b.I("v_mov_b32", vt1, PARK)
    b.I("v_cndmask_b32", vaT, vaT, vt1, "vcc")
    b.I("v_mov_b32", vt2, PARK)
    for th in range(2):
        for va, rr in ((vaT, QT[th]), (vaU, PK[th][2:4])):
            for q in range(2):
                b.I("ds_write_b16", va, rr[q], mods=f"offset:{32 * q}")
                b.I("ds_write_b16_d16_hi", va, rr[q], mods=f"offset:{32 * q + 16}")
        if th == 0:
            for va in (vaT, vaU):
                b.I("v_add_u32", vt0, 3072, va)
                b.I("v_cmp_eq_u32", "vcc", va, vt2)
                b.I("v_cndmask_b32", va, vt0, va, "vcc")
    b.I("v_and_b32", vt0, 3, vL)
    b.I("v_mul_u32_u24", vt0, 384, vt0)
    b.I("v_bfe_u32", vt1, vL, 2, 1)
    b.I("v_mul_u32_u24", vt1, 3072, vt1)
    b.I("v_add_u32", vt0, vt0, vt1)
    b.I("v_add_u32", vt0, LDS_KVIMG + 1536 + 320, vt0)
    ONE = V(136, 4)
    for e in range(4): b.I("v_mov_b32", ONE[e], "0x3f803f80")
    b.I("ds_write_b128", vt0, ONE)
    b.I("v_and_b32", vt0, 31, vL)
    b.I("v_lshlrev_b32", vt0, 3, vt0)
    b.I("v_lshrrev_b32", vt1, 5, vL)
    b.I("v_mul_u32_u24", vt1, 3072, vt1)
    b.I("v_add_u32", vt0, vt0, vt1)
    b.I("v_add_u32", vt0, LDS_KVIMG + 1280, vt0)
    b.I("v_mov_b32", ONE[1], "0x00003f80")
    b.I("ds_write_b64", vt0, ONE[0:2])
    b.label(f"QKV_J_{uid}")
    b.clear_hist()
    b.wait(lg=0)
    b.barrier()
    b.I("s_cmp_lg_u32", sW, 0)
    b.I("s_cbranch_scc1", f"QKV_E_{uid}")
    b.I("s_mul_i32", sT0, sJ, 768)
    b.I("v_add_u32", vt0, sT0, vL16)
    b.I("v_add_u32", vt1, LDS_KVIMG, vt0)
    b.I("ds_read_b128", ONE, vt1)
    b.I("v_cmp_gt_u32", "vcc", 48, vL)
    b.I("v_mov_b32", vt1, hex(OOB))
    b.I("v_cndmask_b32", vt0, vt1, vt0, "vcc")
    b.I("s_mul_i32", sT0, sG, 6144)
    b.I("s_add_u32", sT0, sT0, sLO)
    b.I("s_add_u32", sT0, sT0, hex(off["KV0"]))
    b.I("buffer_store_dwordx4", ONE, vt0, WS, sT0, mods="offen sc1")
    b.label(f"QKV_E_{uid}")
    b.clear_hist()

def q_spill(b, load):
    b.I("s_lshl_b32", sT0, S(2), 2)
    b.I("s_add_u32", sT0, sT0, sW)
    b.I("s_mul_i32", sT0, sT0, 3072)
    b.I("s_add_u32", sT0, sT0, sLO)
    b.I("s_add_u32", sT0, sT0, hex(off["QS0"]))
    for q in range(3):
        b.I("buffer_load_dwordx4" if load else "buffer_store_dwordx4", V(10 + 4 * q, 4), vL16, WS, sT0, mods=f"offen offset:{q * 1024}")

ATT_OPT = dict(sc="sc1", noload=False, warm=False, noexp=False, nomfma=False)
def attn_phase(b, uid):
    opt = ATT_OPT
    KVS = [dict(km=V(64 + 16 * p, 4), kt=V(68 + 16 * p, 2), v=[V(72 + 16 * p, 4), V(76 + 16 * p, 4)]) for p in range(4)]
    Sx = [V(128, 16), V(144, 16)]
    Oa = [V(160, 16), V(176, 16)]
    NM = [V(192, 16), V(208, 16)]
    Pp = [V(224, 8), V(232, 8)]
    vKt, vV, vmx = V(VB), V(VB + 1), V(VB + 2)
    sKV = sP[0]; sOff = sP[1]; sCnt = sP[2]; sRetry = sP[3]
    b.I("s_add_u32", sKV, sLO, hex(off["KV0"]))
    b.I("v_and_b32", vt0, 31, vL)
    b.I("v_lshlrev_b32", vKt, 3, vt0)
    b.I("v_add_u32", vKt, 1024, vKt)
    b.I("v_cmp_gt_u32", "vcc", 32, vL)
    b.I("v_mov_b32", vt1, hex(OOB))
    b.I("v_cndmask_b32", vKt, vt1, vKt, "vcc")
    b.I("v_lshrrev_b32", vt2, 5, vL)
    b.I("v_mul_u32_u24", vt2, 384, vt2)
    b.I("v_lshl_add_u32", vV, vt0, 4, vt2)
    b.I("v_add_u32", vV, 1280, vV)
    b.I("v_cmp_ge_u32", "vcc", 20, vt0)
    b.I("v_cndmask_b32", vV, vt1, vV, "vcc")
    sc = opt["sc"]
    def loadk(p, soff):
        b.I("buffer_load_dwordx4", KVS[p]["km"], vL16, WS, soff, mods="offen " + sc)
        b.I("buffer_load_dwordx2", KVS[p]["kt"], vKt, WS, soff, mods="offen " + sc)
    def loadv(p, soff):
        b.I("buffer_load_dwordx4", KVS[p]["v"][0], vV, WS, soff, mods="offen " + sc)
        b.I("buffer_load_dwordx4", KVS[p]["v"][1], vV, WS, soff, mods="offen offset:768 " + sc)
    if opt["warm"]:
        b.I("s_lshr_b32", sT0, S(2), 3)
        b.I("s_mul_i32", sT0, sT0, 6144)
        b.I("s_mul_i32", sT1, sW, 1536)
        b.I("s_add_u32", sT0, sT0, sT1)
        b.I("s_add_u32", sT0, sT0, sKV)
        b.I("buffer_load_dwordx4", V(240, 4), vL16, WS, sT0, mods="offen " + sc)
        b.I("buffer_load_dwordx4", V(244, 4), vL16, WS, sT0, mods="offen offset:512 " + sc)
    def qk_main(q, p, C): b.I("v_mfma_f32_32x32x16_bf16", Sx[q], KVS[p]["km"], QM[q], C)
    def qk_tail(q, p): b.I("v_mfma_f32_32x32x8_bf16", Sx[q], KVS[p]["kt"], QT[q], Sx[q])
    def pv(q, p, mf): b.I("v_mfma_f32_32x32x16_bf16", Oa[q], KVS[p]["v"][mf], Pp[q][4 * mf:4 * mf + 4], Oa[q])
    b.I("s_mov_b32", sRetry, 0)
    loadk(0, sKV)
    for q in range(2): qk_main(q, 0, 0)
    for q in range(2): qk_tail(q, 0)
    for q in range(2):
        m = V(VB + 3 + q)
        b.I("v_max3_f32", m, Sx[q][0], Sx[q][1], Sx[q][2])
        for i in range(3, 15, 2): b.I("v_max3_f32", m, m, Sx[q][i], Sx[q][i + 1])
        b.I("v_max_f32", m, m, Sx[q][15])
        b.I("v_mov_b32", vt0, m)
        b.I("v_permlane32_swap_b32", m, vt0)
        b.I("v_max_f32", m, m, vt0)
    b.label(f"ATT_RUN_{uid}")
    b.clear_hist(); b.nop(2)
    for q in range(2):
        m = V(VB + 3 + q)
        for i in range(16):
            b.I("v_sub_f32", NM[q][i], 0, m)
            b.I("v_mov_b32", Oa[q][i], 0)
    for q in range(2):
        for i in range(8): b.I("v_mov_b32", Pp[q][i], 0)
    b.wait(vm=0)
    stamp(b, 2)
    for e in range(8): b.I("v_mov_b32", V(KVS[3]["v"][0].i + e), 0)
    b.I("s_mov_b32", sOff, sKV)
    for p in range(3):
        loadk(p, sOff); loadv(p, sOff)
        b.I("s_add_u32", sOff, sOff, 3072)
    qk_main(0, 0, NM[0])
    b.nop(10)
    qk_tail(0, 0)
    b.nop(12)
    b.I("s_mov_b32", sCnt, 16)
    b.align(6)
    b.label(f"ATT_LOOP_{uid}")
    b.clear_hist()
    b.vm = [(("kv", 0), KVS[0]["km"].regs() | KVS[0]["kt"].regs()), (("kv", 0), KVS[0]["km"].regs() | KVS[0]["kt"].regs()),
            (("kv", 0), KVS[0]["v"][0].regs()), (("kv", 0), KVS[0]["v"][1].regs()),
            (("kv", 1), KVS[1]["km"].regs()), (("kv", 1), KVS[1]["kt"].regs()), (("kv", 1), KVS[1]["v"][0].regs()), (("kv", 1), KVS[1]["v"][1].regs()),
            (("kv", 2), KVS[2]["km"].regs()), (("kv", 2), KVS[2]["kt"].regs()), (("kv", 2), KVS[2]["v"][0].regs()), (("kv", 2), KVS[2]["v"][1].regs())]
    entry_state = [e[1] for e in b.vm]
    def valu_stream(q):
        ops = []
        for g in range(4):
            for i in range(4): ops.append(lambda q=q, i=4 * g + i: b.I("v_exp_f32", Sx[q][i], Sx[q][i]))
            for i in range(2): ops.append(lambda q=q, i=2 * g + i: b.I("v_cvt_pk_bf16_f32", Pp[q][i], Sx[q][2 * i], Sx[q][2 * i + 1]))
        return ops
    def half(q, mf, extra):
        vs = valu_stream(q)
        for k in range(4):
            mf[k]()
            for x in vs[6 * k:6 * k + 6]: x()
            for x in extra.get(k, []): x()
    for u in range(4):
        p, pn, pp = u, (u + 1) % 4, (u + 3) % 4
        half(0, [lambda: qk_main(1, p, NM[1]), lambda: pv(1, pp, 0), lambda: qk_tail(1, p), lambda: pv(1, pp, 1)], {})
        half(1, [lambda: qk_main(0, pn, NM[0]), lambda: pv(0, p, 0), lambda: qk_tail(0, pn), lambda: pv(0, p, 1)],
             ({} if opt["noload"] else {0: [lambda: loadk(pp, sOff)], 1: [lambda: loadv(pp, sOff), lambda: b.I("s_add_u32", sOff, sOff, 3072)]}))
    b.I("s_sub_u32", sCnt, sCnt, 1)
    b.I("s_cmp_lg_u32", sCnt, 0)
    b.I("s_cbranch_scc1", f"ATT_LOOP_{uid}")
    exit_state = [e[1] for e in b.vm]
    b.loop_states = (entry_state, exit_state)
    stamp(b, 3)
    pv(1, 3, 0); pv(1, 3, 1)
    b.wait(vm=0)
    lreg = [V(VB + 5), V(VB + 6)]
    for q in range(2):
        b.I("v_mov_b32", lreg[q], Oa[q][8])
        b.I("v_mov_b32", vt0, Oa[q][8])
        b.I("v_permlane32_swap_b32", vt0, lreg[q])
    b.I("s_cmp_eq_u32", sRetry, 1)
    b.I("s_cbranch_scc1", f"ATT_OK_{uid}")
    b.I("v_mov_b32", vt1, 0)
    for q in range(2):
        for i in range(0, 12, 2): b.I("v_max3_f32", vt1, f"abs({Oa[q][i]})", f"abs({Oa[q][i+1]})", vt1)
    b.I("v_mov_b32", vt2, hex(f2u(2.0 ** 60)))
    b.I("v_mov_b32", vt3, hex(f2u(3.0e38)))
    b.I("v_cmp_nlt_f32", S(48, 2), lreg[0], vt2)
    b.I("v_cmp_nlt_f32", S(50, 2), lreg[1], vt2)
    b.I("v_cmp_nlt_f32", "vcc", vt1, vt3)
    b.I("s_or_b64", S(48, 2), S(48, 2), S(50, 2))
    b.I("s_or_b64", S(48, 2), S(48, 2), "vcc")
    b.I("v_mov_b32", vt1, 0)
    for q in range(2):
        for i in range(12): b.I("v_fmac_f32", vt1, 0, Oa[q][i])
    b.I("v_cmp_neq_f32", "vcc", 0, vt1)
    b.I("v_cmp_u_f32", S(50, 2), vt1, vt1)
    b.I("s_or_b64", S(48, 2), S(48, 2), S(50, 2))
    b.I("s_cmp_eq_u64", S(48, 2), 0)
    b.I("s_cbranch_scc1", f"ATT_OK_{uid}")
    b.I("s_mov_b32", sRetry, 1)
    for q in range(2): b.I("v_mov_b32", V(VB + 3 + q), hex(f2u(-3.0e38)))
    b.I("s_mov_b32", sOff, sKV)
    b.I("s_mov_b32", sCnt, 64)
    b.label(f"ATT_MAX_{uid}")
    b.clear_hist()
    loadk(0, sOff)
    b.I("s_add_u32", sOff, sOff, 3072)
    for q in range(2): qk_main(q, 0, 0)
    for q in range(2): qk_tail(q, 0)
    for q in range(2):
        m = V(VB + 3 + q)
        for i in range(0, 16, 2): b.I("v_max3_f32", m, m, Sx[q][i], Sx[q][i + 1])
    b.I("s_sub_u32", sCnt, sCnt, 1)
    b.I("s_cmp_lg_u32", sCnt, 0)
    b.I("s_cbranch_scc1", f"ATT_MAX_{uid}")
    for q in range(2):
        m = V(VB + 3 + q)
        b.I("v_mov_b32", vt0, m)
        b.I("v_permlane32_swap_b32", m, vt0)
        b.I("v_max_f32", m, m, vt0)
    b.I("s_branch", f"ATT_RUN_{uid}")
    b.label(f"ATT_OK_{uid}")
    b.clear_hist(); b.nop(2)
    sO = sP[0]
    b.I("s_mul_i32", sO, sG, 81920)
    b.I("s_add_u32", sO, sO, sLO)
    b.I("s_mul_i32", sT0, sJ, 10240)
    b.I("s_add_u32", sO, sO, sT0)
    b.I("s_add_u32", sO, sO, hex(off["O0"]))
    vo = V(VB + 7)
    b.I("s_mul_i32", sT0, sW, 5)
    b.I("v_lshrrev_b32", vt0, 5, vL)
    b.I("v_add_u32", vt0, sT0, vt0)
    b.I("v_lshrrev_b32", vt1, 1, vt0)
    b.I("v_lshlrev_b32", vo, 10, vt1)
    b.I("v_and_b32", vt1, 1, vt0)
    b.I("v_lshl_add_u32", vo, vt1, 3, vo)
    b.I("v_and_b32", vt1, 31, vL)
    b.I("v_lshl_add_u32", vo, vt1, 4, vo)
    vo2 = V(VB + 8)
    b.I("v_cmp_gt_u32", "vcc", 32, vL)
    b.I("v_mov_b32", vt1, hex(OOB))
    b.I("v_cndmask_b32", vo2, vt1, vo, "vcc")
    for q in range(2):
        b.I("v_rcp_f32", lreg[q], lreg[q])
        for i in range(12): b.I("v_mul_f32", Oa[q][i], lreg[q], Oa[q][i])
        for i in range(6): b.I("v_cvt_pk_bf16_f32", Pp[q][i], Oa[q][2 * i], Oa[q][2 * i + 1])
        for c in range(3):
            b.I("buffer_store_dwordx2", Pp[q][2 * c:2 * c + 2], (vo if c < 2 else vo2), WS, sO, mods=f"offen offset:{c * 1024 + q * 512} sc1")

def resid_load(b, sbase, RES):
    for fb in range(5):
        b.I("s_add_u32", sT0, sbase, fb * 2048)
        b.I("buffer_load_dwordx2", RES[fb], vEpi, WS, sT0, mods="offen sc1")

def resid_epilogue(b, ACC, RES, bias, sdst, sstat, final=False, sTB=None):
    tA, tB = vt0, vt1
    ssum, ssq = V(VB), V(VB + 1)
    if bias:
        BI = V(VB + 4, 20)
        b.I("v_lshrrev_b32", tA, 4, vL)
        b.I("v_lshlrev_b32", tA, 4, tA)
        b.I("v_add_u32", tA, T_B2, tA)
        for fb in range(5): b.I("ds_read_b128", BI[4 * fb:4 * fb + 4], tA, mods=f"offset:{64 * fb}")
    b.I("v_mov_b32", ssum, 0); b.I("v_mov_b32", ssq, 0)
    for fb in range(5):
        for q in range(2):
            b.I("v_lshlrev_b32", tA, 16, RES[fb][q])
            b.I("v_and_b32", tB, "0xffff0000", RES[fb][q])
            b.I("v_add_f32", ACC[fb][2 * q], ACC[fb][2 * q], tA)
            b.I("v_add_f32", ACC[fb][2 * q + 1], ACC[fb][2 * q + 1], tB)
        if bias:
            for r in range(4): b.I("v_add_f32", ACC[fb][r], ACC[fb][r], BI[4 * fb + r])
        if not final:
            for r in range(4):
                b.I("v_add_f32", ssum, ssum, ACC[fb][r])
                b.I("v_fmac_f32", ssq, ACC[fb][r], ACC[fb][r])
        for q in range(2): b.I("v_cvt_pk_bf16_f32", RES[fb][q], ACC[fb][2 * q], ACC[fb][2 * q + 1])
    if final:
        vo = V(VB + 2)
        b.I("v_and_b32", tA, 15, vL)
        b.I("v_mul_u32_u24", vo, 1280, tA)
        b.I("v_lshrrev_b32", tA, 4, vL)
        b.I("v_lshl_add_u32", vo, tA, 3, vo)
        for fb in range(5): b.I("buffer_store_dwordx2", RES[fb], vo, OUT, sdst, mods=f"offen offset:{32 * fb}")
        return
    for fb in range(5):
        b.I("s_add_u32", sT0, sdst, fb * 2048)
        b.I("buffer_store_dwordx2", RES[fb], vEpi, WS, sT0, mods="offen sc1")
    for r in (ssum, ssq):
        b.I("v_mov_b32", tA, r)
        b.I("v_permlane16_swap_b32", r, tA)
        b.I("v_add_f32", r, r, tA)
        b.I("v_mov_b32", tA, r)
        b.I("v_permlane32_swap_b32", r, tA)
        b.I("v_add_f32", r, r, tA)
    b.I("v_lshlrev_b32", tA, 3, vL)
    b.I("v_cmp_gt_u32", "vcc", 16, vL)
    b.I("v_mov_b32", tB, hex(OOB))
    b.I("v_cndmask_b32", tA, tB, tA, "vcc")
    b.I("buffer_store_dwordx2", V(VB, 2), tA, WS, sstat, mods="offen sc1")

def oproj_wdma(b):
    b.I("s_mul_i32", sT2, sJ, 102400)
    b.I("s_add_u32", sT2, sT2, hex(off["WOP"]))
    return dma_tile(b, sT2, 25, 0, LDS_WO, sc="")

def oproj_phase(b, uid, wtag):
    sO, sRes, sTB, sDst, sSt = sP[0], sP[1], sP[2], sP[3], sP[4]
    XF = [[V(64 + 8 * s_ + 4 * a, 4) for a in range(2)] for s_ in range(10)]
    ACC = [[V(144 + 20 * a + 4 * fb, 4) for fb in range(5)] for a in range(2)]
    WF = [[V(184 + 20 * p + 4 * fb, 4) for fb in range(5)] for p in range(2)]
    RES = [V(224 + 2 * fb, 2) for fb in range(5)]
    vXa = [V(VB + 30), V(VB + 31)]; vWa = V(VB + 32)
    b.I("s_and_b32", sT0, sW, 1)
    b.I("s_lshr_b32", sT1, sW, 1)
    b.I("s_lshl_b32", sT0, sT0, 1)
    b.I("s_add_u32", sTB, sT0, sT1)
    b.I("s_xor_b32", sT2, sTB, 1)
    b.I("s_lshl_b32", sT3, sTB, 8)
    b.I("v_add_u32", vXa[0], sT3, vX16)
    b.I("s_lshl_b32", sT2, sT2, 8)
    b.I("v_add_u32", vXa[1], sT2, vX16)
    b.I("s_mul_i32", sO, sG, 81920)
    b.I("s_add_u32", sO, sO, sLO)
    b.I("s_add_u32", sRes, sO, hex(off["XB0"]))
    b.I("s_add_u32", sDst, sO, hex(off["X10"]))
    b.I("s_add_u32", sO, sO, hex(off["O0"]))
    b.I("s_mul_i32", sT1, sT1, 40960)
    b.I("s_add_u32", sO, sO, sT1)
    for s_ in range(10):
        for a in range(2): b.I("buffer_load_dwordx4", XF[s_][a], vXa[a], WS, sO, mods="offen sc1")
        if s_ < 9: b.I("s_add_u32", sO, sO, 4096)
    b.I("s_mul_i32", sT0, sJ, 10240)
    b.I("s_add_u32", sT0, sT0, sT3)
    b.I("s_add_u32", sRes, sRes, sT0)
    b.I("s_add_u32", sDst, sDst, sT0)
    resid_load(b, sRes, RES)
    b.I("v_lshrrev_b32", vt0, 4, vL)
    b.I("v_mul_u32_u24", vt0, 1280, vt0)
    b.I("v_and_b32", vt1, 15, vL)
    b.I("v_lshl_add_u32", vWa, vt1, 4, vt0)
    b.I("s_lshr_b32", sT1, sW, 1)
    b.I("s_mul_i32", sT1, sT1, 51200)
    b.I("v_add_u32", vWa, sT1, vWa)
    b.I("v_add_u32", vWa, LDS_WO, vWa)
    if wtag is not None: b.wait_vm_tag(wtag)
    b.barrier()
    def wread(s_):
        for fb in range(5): b.I("ds_read_b128", WF[s_ % 2][fb], vWa, mods=f"offset:{s_ * 5120 + fb * 256}")
    wread(0)
    for s_ in range(10):
        if s_ < 9: wread(s_ + 1)
        for fb in range(5):
            for a in range(2):
                b.I("v_mfma_f32_16x16x32_bf16", ACC[a][fb], WF[s_ % 2][fb], XF[s_][a], (0 if s_ == 0 else ACC[a][fb]))
    vR = V(VB + 33)
    b.I("s_mul_i32", sT0, sW, 5120)
    b.I("v_add_u32", vR, sT0, vL16)
    b.I("v_add_u32", vR, LDS_RED_O, vR)
    for fb in range(5): b.I("ds_write_b128", vR, ACC[1][fb], mods=f"offset:{fb * 1024}")
    b.I("s_xor_b32", sT0, sW, 2)
    b.I("s_mul_i32", sT0, sT0, 5120)
    b.I("v_add_u32", vR, sT0, vL16)
    b.I("v_add_u32", vR, LDS_RED_O, vR)
    b.wait(lg=0)
    b.barrier()
    for fb in range(5): b.I("ds_read_b128", WF[0][fb], vR, mods=f"offset:{fb * 1024}")
    for fb in range(5):
        for r in range(4): b.I("v_add_f32", ACC[0][fb][r], ACC[0][fb][r], WF[0][fb][r])
    b.I("s_lshl_b32", sSt, sG, 12)
    b.I("s_add_u32", sSt, sSt, sLO)
    b.I("s_lshl_b32", sT0, sJ, 9)
    b.I("s_add_u32", sSt, sSt, sT0)
    b.I("s_lshl_b32", sT0, sTB, 7)
    b.I("s_add_u32", sSt, sSt, sT0)
    b.I("s_add_u32", sSt, sSt, hex(off["ST10"]))
    resid_epilogue(b, ACC[0], RES, False, sDst, sSt)

def ffn1_wload(b, rng=range(60)):
    b.I("s_lshl_b32", sT2, sJ, 2)
    b.I("s_add_u32", sT2, sT2, sW)
    b.I("s_mul_i32", sT2, sT2, 61440)
    b.I("s_add_u32", sT2, sT2, hex(off["W1P"] + (rng[0] // 4) * 4096))
    for f in rng:
        if f % 4 == 0 and f != rng[0]: b.I("s_add_u32", sT2, sT2, 4096)
        b.I("buffer_load_dwordx4", A(4 * f, 4), vL16, WS, sT2, mods=f"offen offset:{(f % 4) * 1024}")

def bcast4(b, src, dst4):
    b.I("v_mov_b32", dst4[0], src); b.I("v_mov_b32", dst4[2], src)
    b.I("v_permlane32_swap_b32", dst4[0], dst4[2])
    b.I("v_mov_b32", dst4[1], dst4[0]); b.I("v_mov_b32", dst4[3], dst4[2])
    b.I("v_permlane16_swap_b32", dst4[0], dst4[1])
    b.I("v_permlane16_swap_b32", dst4[2], dst4[3])

def ffn1_phase(b, uid):
    sX, sSt, sH = sP[0], sP[1], sP[2]
    b.I("s_mul_i32", sX, sG, 81920)
    b.I("s_add_u32", sX, sX, sLO)
    b.I("s_add_u32", sX, sX, hex(off["X10"]))
    b.I("s_lshl_b32", sSt, sG, 12)
    b.I("s_add_u32", sSt, sSt, sLO)
    b.I("s_add_u32", sSt, sSt, hex(off["ST10"]))
    tags = [dma_tile(b, sX, 4, 16 * c, LDS_X) for c in range(5)]
    ST = [V(VB + 2 * i, 2) for i in range(8)]
    stats_load(b, sSt, ST)
    ACC = [[V(64 + 16 * fb + 4 * tb, 4) for tb in range(4)] for fb in range(3)]
    XF = [[V(112 + 16 * p + 4 * tb, 4) for tb in range(4)] for p in range(2)]
    vXa, vXb = V(VB + 16), V(VB + 17)
    b.I("v_add_u32", vXa, LDS_X, vX16)
    b.I("v_add_u32", vXb, LDS_X + 65536, vX16)
    def xread(s_):
        for tb in range(4):
            o = s_ * 4096 + tb * 256
            base, o = (vXa, o) if o < 65536 else (vXb, o - 65536)
            b.I("ds_read_b128", XF[s_ % 2][tb], base, mods=f"offset:{o}")
    for c in range(5):
        b.wait_vm_tag(tags[c])
        b.barrier()
        xread(4 * c)
        for s_ in range(4 * c, 4 * c + 4):
            if s_ + 1 < 4 * c + 4: xread(s_ + 1)
            for fb in range(3):
                for tb in range(4):
                    b.I("v_mfma_f32_16x16x32_bf16", ACC[fb][tb], A(4 * (3 * s_ + fb), 4), XF[s_ % 2][tb], (0 if s_ == 0 else ACC[fb][tb]))
    mean, rstd = V(VB + 18), V(VB + 19)
    stats_finish(b, ST, mean, rstd)
    b.I("v_mul_f32", mean, mean, rstd)
    MR = [V(VB + 20 + i) for i in range(4)]; RS = [V(VB + 24 + i) for i in range(4)]
    bcast4(b, mean, MR); bcast4(b, rstd, RS)
    CS = V(144, 12); BI = V(156, 12)
    b.I("v_lshrrev_b32", vt0, 4, vL)
    b.I("v_lshlrev_b32", vt0, 4, vt0)
    b.I("s_mul_i32", sT0, sW, 192)
    b.I("v_add_u32", vt0, sT0, vt0)
    b.I("v_add_u32", vt1, T_CS1, vt0)
    b.I("v_add_u32", vt2, T_B1, vt0)
    for fb in range(3):
        b.I("ds_read_b128", CS[4 * fb:4 * fb + 4], vt1, mods=f"offset:{64 * fb}")
        b.I("ds_read_b128", BI[4 * fb:4 * fb + 4], vt2, mods=f"offset:{64 * fb}")
    b.I("s_mul_i32", sH, sG, 196608)
    b.I("s_add_u32", sH, sH, sLO)
    b.I("s_mul_i32", sT0, sJ, 24576)
    b.I("s_add_u32", sH, sH, sT0)
    b.I("s_mul_i32", sT0, sW, 6144)
    b.I("s_add_u32", sH, sH, sT0)
    b.I("s_add_u32", sH, sH, hex(off["H0"]))
    c0 = -2.0 * math.sqrt(2.0 / math.pi) * math.log2(math.e)
    sC0, sC1 = sP[3], sP[4]
    b.I("s_mov_b32", sC0, hex(f2u(c0))); b.I("s_mov_b32", sC1, hex(f2u(c0 * 0.044715)))
    vC0 = V(VB + 28)
    b.I("v_mov_b32", vC0, sC0)
    T = [V(168 + i) for i in range(4)]; U = [V(172 + i) for i in range(4)]; PKD = V(176, 2)
    for fb in range(3):
        for tb in range(4):
            a = ACC[fb][tb]
            for r in range(4): b.I("v_fma_f32", T[r], f"-{MR[tb]}", CS[4 * fb + r], BI[4 * fb + r])
            for r in range(4): b.I("v_fma_f32", a[r], RS[tb], a[r], T[r])
            for r in range(4): b.I("v_mul_f32", T[r], a[r], a[r])
            for r in range(4): b.I("v_fma_f32", T[r], T[r], sC1, vC0)
            for r in range(4): b.I("v_mul_f32", T[r], T[r], a[r])
            for r in range(4): b.I("v_exp_f32", T[r], T[r])
            for r in range(4): b.I("v_add_f32", T[r], 1.0, T[r])
            for r in range(4): b.I("v_rcp_f32", T[r], T[r])
            for r in range(4): b.I("v_mul_f32", a[r], a[r], T[r])
            for q in range(2): b.I("v_cvt_pk_bf16_f32", a[q], a[2 * q], a[2 * q + 1])
            b.I("buffer_store_dwordx2", a[0:2], vEpi, WS, sH, mods=f"offen offset:{tb * 256} sc1")
        if fb < 2: b.I("s_add_u32", sH, sH, 2048)

def ffn2_wload(b, rng=range(60)):
    b.I("s_lshl_b32", sT2, sJ, 2)
    b.I("s_add_u32", sT2, sT2, sW)
    b.I("s_mul_i32", sT2, sT2, 61440)
    b.I("s_add_u32", sT2, sT2, hex(off["W2P"] + (rng[0] // 4) * 4096))
    for f in rng:
        if f % 4 == 0 and f != rng[0]: b.I("s_add_u32", sT2, sT2, 4096)
        b.I("buffer_load_dwordx4", A(4 * f, 4), vL16, WS, sT2, mods=f"offen offset:{(f % 4) * 1024}")

def ffn2_phase(b, uid, final):
    sH, sRes, sDst, sSt = sP[0], sP[1], sP[2], sP[3]
    NB = 4
    XF = [[V(64 + 16 * p + 4 * a, 4) for a in range(4)] for p in range(NB)]
    ACC = [[V(128 + 20 * a + 4 * fb, 4) for fb in range(5)] for a in range(4)]
    RES = [V(208 + 2 * fb, 2) for fb in range(5)]
    vXa = [V(VB + 26 + a) for a in range(4)]
    for a in range(4):
        b.I("s_add_u32", sT0, sW, a)
        b.I("s_and_b32", sT0, sT0, 3)
        b.I("s_lshl_b32", sT0, sT0, 8)
        b.I("v_add_u32", vXa[a], sT0, vX16)
    b.I("s_mul_i32", sH, sG, 196608)
    b.I("s_add_u32", sH, sH, sLO)
    b.I("s_mul_i32", sT0, sW, 49152)
    b.I("s_add_u32", sH, sH, sT0)
    b.I("s_add_u32", sH, sH, hex(off["H0"]))
    def xload(s_):
        for a in range(4): b.I("buffer_load_dwordx4", XF[s_ % NB][a], vXa[a], WS, sH, mods="offen sc1")
        b.I("s_add_u32", sH, sH, 4096)
    for s_ in range(NB - 1): xload(s_)
    b.I("s_mul_i32", sRes, sG, 81920)
    b.I("s_add_u32", sRes, sRes, sLO)
    b.I("s_mul_i32", sT0, sJ, 10240)
    b.I("s_add_u32", sRes, sRes, sT0)
    b.I("s_lshl_b32", sT0, sW, 8)
    b.I("s_add_u32", sRes, sRes, sT0)
    b.I("s_add_u32", sDst, sRes, hex(off["XB0"] + LS))
    b.I("s_add_u32", sRes, sRes, hex(off["X10"]))
    resid_load(b, sRes, RES)
    for s_ in range(12):
        if s_ + NB - 1 < 12: xload(s_ + NB - 1)
        for fb in range(5):
            for a in range(4):
                b.I("v_mfma_f32_16x16x32_bf16", ACC[a][fb], A(4 * (5 * s_ + fb), 4), XF[s_ % NB][a], (0 if s_ == 0 else ACC[a][fb]))
    vR = V(VB + 30)
    b.barrier()
    for a in range(1, 4):
        b.I("s_add_u32", sT0, sW, a)
        b.I("s_and_b32", sT0, sT0, 3)
        b.I("s_mul_i32", sT0, sT0, 15360)
        b.I("s_add_u32", sT0, sT0, LDS_RED_F + (a - 1) * 5120)
        b.I("v_add_u32", vR, sT0, vL16)
        for fb in range(5): b.I("ds_write_b128", vR, ACC[a][fb], mods=f"offset:{fb * 1024}")
    b.I("s_mul_i32", sT0, sW, 15360)
    b.I("s_add_u32", sT0, sT0, LDS_RED_F)
    b.I("v_add_u32", vR, sT0, vL16)
    b.wait(lg=0)
    b.barrier()
    for a in range(1, 4):
        for fb in range(5): b.I("ds_read_b128", ACC[a][fb], vR, mods=f"offset:{(a - 1) * 5120 + fb * 1024}")
    for a in range(1, 4):
        for fb in range(5):
            for r in range(4): b.I("v_add_f32", ACC[0][fb][r], ACC[0][fb][r], ACC[a][fb][r])
    if final:
        b.I("s_lshl_b32", sT0, sG, 6)
        b.I("s_lshl_b32", sT1, sW, 4)
        b.I("s_add_u32", sT0, sT0, sT1)
        b.I("s_mul_i32", sDst, sT0, 1280)
        b.I("s_mul_i32", sT0, sJ, 160)
        b.I("s_add_u32", sDst, sDst, sT0)
        resid_epilogue(b, ACC[0], RES, True, sDst, None, final=True)
    else:
        b.I("s_lshl_b32", sSt, sG, 12)
        b.I("s_lshl_b32", sT0, sJ, 9)
        b.I("s_add_u32", sSt, sSt, sT0)
        b.I("s_lshl_b32", sT0, sW, 7)
        b.I("s_add_u32", sSt, sSt, sT0)
        b.I("s_add_u32", sSt, sSt, hex(off["STI0"] + LS))
        resid_epilogue(b, ACC[0], RES, True, sDst, sSt)


PROFILE = False
NSLOT = 20
PROFILE_USES_58 = False
def stamp(b, name):
    if not PROFILE or name not in PROFILE: return
    slot = PROFILE.index(name)
    b.I("s_memtime", S(56, 2))
    b.wait(lg=0)
    b.I("s_mov_b32", S(60 + slot), S(56))
    b.I("s_memrealtime", S(56, 2))
    b.wait(lg=0)
    b.I("s_mov_b32", S(80 + slot), S(56))
def stamp_flush(b, base_slot=0):
    if not PROFILE: return
    b.I("s_lshl_b32", S(56), S(2), 2)
    b.I("s_add_u32", S(56), S(56), sW)
    b.I("s_lshl_b32", S(56), S(56), 9)
    b.I("s_add_u32", S(56), S(56), off["PROF"] + base_slot * 8)
    b.I("v_mov_b32", V(252), 0)
    for slot in range(NSLOT):
        b.I("v_mov_b32", V(250), S(60 + slot)); b.I("v_mov_b32", V(251), S(80 + slot))
        b.I("buffer_store_dwordx2", V(250, 2), V(252), WS, S(56), mods=f"offen offset:{slot * 8}")
```

```python
from build import *
from k_l0 import gen_l0
import k_main as M
import k_f2 as F
def build(prof=False):
    M.PROFILE = prof
    ks = []; launches = []
    b = B(); gen_l0(b); ks.append(("l0_kernel", b.text(), 128, 0, 102)); launches.append(("l0_kernel", 256, 256, 8192))
    b = B(); F.gen_fused(b); ks.append(("main_kernel", b.text(), 256, 256, 102)); launches.append(("main_kernel", 256, 256, M.LDS_BYTES))
    e, x = b.loop_states
    assert e == x, "attention loop state mismatch"
    return assemble_file(launches, ks), b
if __name__ == "__main__":
    SETS = dict(
        prof="start layer qkv_end grid_ok loop_in loop_out drain reduced att_end s1_drained s1_ok opr_end s2_ok ff1_end s3_ok ff2_end s4_ok end".split(),
        pa="layer q_pre q_c0 q_c1 q_c4 q_mm q_kv qkv_end grid_ok att_end s1_drained s1_win s1_ok o_pre o_s0 o_mm o_red opr_end end".split(),
        pc="s1_ok o_pre o_s0 o_mm o_red opr_end s2_ok f_pre f_c0 f_mm ff1_end s3_ok g_pre g_s0 g_mm g_red ff2_end end".split(),
        pb="opr_end s2_drained s2_win s2_ok f_pre f_c0 f_c1 f_c4 f_mm ff1_end s3_drained s3_win s3_ok g_pre g_s0 g_s5 g_mm g_red ff2_end end".split())
    EXPS = sys.argv[2:]
    for e in EXPS:
        k_, _, v_ = e.partition("=")
        F.EXP[k_] = int(v_) if v_ else True
    prof = SETS.get(sys.argv[1]) if len(sys.argv) > 1 else False
    s, b = build(prof)
    if prof: s = "; stamps: " + " ".join(prof) + "\n" + s
    open((f"fused_{sys.argv[1]}" if prof else "fused") + "".join("_" + e.replace("=", "") for e in EXPS) + ".s", "w").write(s)
    print("bytes", len(s), "nops", b.nops, "instrs", sum(b.stats.values()))
```

```python
from asmb import *
import layout as L
off = L.off
WS_BYTES = 268435456
OOB = 0x40000000

def srd(b, dst, lo, hi, size):
    b.I("s_mov_b32", dst[0], lo)
    b.I("s_and_b32", dst[1], hi, "0xffff")
    b.I("s_mov_b32", dst[2], hex(size))
    b.I("s_mov_b32", dst[3], "0x20000")

def unpack_sum(b, src, accA, accB, t0, t1):
    b.I("v_lshlrev_b32", t0, 16, src)
    b.I("v_and_b32", t1, "0xffff0000", src)
    b.I("v_add_f32", accA, accA, t0)
    b.I("v_add_f32", accB, accB, t1)

def code_prefetch(b, label, endlabel, nbytes):
    per = (nbytes + 31) // 32
    per = (per + 255) // 256 * 256
    b.I("s_getpc_b64", S(70, 2))
    b.label("L0_PC")
    b.raw(f"  s_add_u32 s70, s70, ({label} - L0_PC) & 0xffffffff")
    b.raw(f"  s_addc_u32 s71, s71, 0")
    b.I("s_lshr_b32", S(72), S(2), 3)
    b.I("s_mul_i32", S(72), S(72), per)
    b.I("v_lshlrev_b32", V(58), 2, V(0))
    b.I("v_add_u32", V(58), S(72), V(58))
    n = per // 1024 + (1 if per % 1024 else 0)
    for q in range(n):
        if q: b.I("v_add_u32", V(58), 1024, V(58))
        b.raw(f"  v_min_u32 v57, {endlabel} - {label} - 4, v58")
        b.I("global_load_dword", V(59), V(57), S(70, 2))
        b.vm.pop()

def gen_l0(b, prefetch=None):
    P_X, P_WQ, P_WK, P_WV, P_WO, P_W1, P_W2, P_WS = S(36, 2), S(38, 2), S(40, 2), S(42, 2), S(44, 2), S(46, 2), S(48, 2), S(50, 2)
    WS = S(8, 4); SRC = S(12, 4)
    sRS, sG0, sNG, sN0, sOff = S(16), S(17), S(18), S(19), S(20)
    sA, sP, sQ, sGL0, sBase, sM, sDv, sHS, sLS, sSwap, sCs, sCB, sCH, sKr, sT, sMask = (S(i) for i in range(21, 37 - 0)) if False else [S(i) for i in (21, 22, 23, 24, 25, 26, 27, 28, 29, 30, 31, 32, 33, 34, 35, 52)]
    b.I("s_cmp_ge_u32", S(2), 256)
    b.I("s_cbranch_scc1", "L0_end")
    b.I("s_load_dwordx2", P_X, S(0, 2), 0)
    b.I("s_load_dwordx2", P_WQ, S(0, 2), 8)
    b.I("s_load_dwordx2", P_WK, S(0, 2), 16)
    b.I("s_load_dwordx2", P_WV, S(0, 2), 24)
    b.I("s_load_dwordx2", P_WO, S(0, 2), 32)
    b.I("s_load_dwordx2", P_W1, S(0, 2), 48)
    b.I("s_load_dwordx2", P_W2, S(0, 2), 64)
    b.I("s_load_dwordx2", P_WS, S(0, 2), 96)
    if prefetch: code_prefetch(b, *prefetch)
    lane = V(1); cp = V(2); slot = V(3)
    b.I("v_and_b32", cp, 31, V(0))
    b.I("v_lshrrev_b32", slot, 5, V(0))
    b.wait(lg=0)
    srd(b, WS, P_WS[0], P_WS[1], WS_BYTES)
    XS = S(56, 4)
    srd(b, XS, P_X[0], P_X[1], 2048 * 1280)
    wv_id = S(53)
    vt, vgg, vxo, vxd = V(4), V(5), V(6), V(7)
    b.I("v_lshrrev_b32", V(8), 6, V(0))
    b.I("v_and_b32", vt, 7, V(0))
    b.I("v_readfirstlane_b32", wv_id, V(8))
    b.I("v_bfe_u32", vgg, V(0), 3, 3)
    b.I("s_mul_i32", sT, S(2), 8 * 1280)
    b.I("v_mul_u32_u24", vxo, 1280, vt)
    b.I("v_lshl_add_u32", vxo, vgg, 4, vxo)
    b.I("s_lshl_b32", sOff, wv_id, 7)
    b.I("s_add_u32", sOff, sOff, sT)
    XL = [V(64 + 4 * q, 4) for q in range(3)]
    v_oob = V(9)
    b.I("s_cmp_lt_u32", wv_id, 2)
    b.I("s_cselect_b32", S(54), 0, hex(OOB))
    for q in range(3):
        if q == 2:
            b.I("v_add_u32", v_oob, S(54), vxo)
            b.I("buffer_load_dwordx4", XL[q], v_oob, XS, sOff, mods=f"offen offset:{q*512}")
        else:
            b.I("buffer_load_dwordx4", XL[q], vxo, XS, sOff, mods=f"offen offset:{q*512}")
    def setp(name, base, rs, size, strips_shift, ng, a, P, Q, B0, Dv, HS, LS, swap, cs, CB, CK, CH, w2=False):
        b.label(name)
        b.I("s_sub_u32", sT, S(2), base)
        b.I("s_lshr_b32", sN0, sT, strips_shift)
        b.I("s_lshl_b32", sN0, sN0, 6)
        b.I("s_and_b32", sKr, sT, (1 << strips_shift) - 1)
        b.I("s_mul_i32", sG0, sKr, ng)
        b.I("s_mov_b32", sNG, ng)
        b.I("s_mov_b32", sRS, rs[0])
        srd(b, SRC, rs[1][0], rs[1][1], size)
        b.I("s_mov_b32", sA, a); b.I("s_mov_b32", sP, P); b.I("s_mov_b32", sQ, Q)
        b.I("s_mov_b32", sMask, (1 << a) - 1)
        if w2:
            b.I("s_and_b32", sGL0, sKr, 1)
            b.I("s_mul_i32", sGL0, sGL0, 24)
            b.I("s_lshr_b32", sBase, sKr, 1)
            b.I("s_mul_i32", sBase, sBase, 61440)
            b.I("s_add_u32", sBase, sBase, hex(B0))
        else:
            b.I("s_mov_b32", sGL0, sG0)
            b.I("s_mov_b32", sBase, hex(B0))
        b.I("s_mov_b32", sDv, Dv); b.I("s_mov_b32", sM, -(-65536 // Dv))
        b.I("s_mov_b32", sHS, HS); b.I("s_mov_b32", sLS, LS)
        b.I("s_mov_b32", sSwap, swap); b.I("s_mov_b32", sCs, cs)
        b.I("s_mul_i32", sCB, sKr, CK)
        b.I("s_add_u32", sCB, sCB, hex(CB))
        b.I("s_mov_b32", sCH, CH)
        b.I("s_branch", "L0_common")
    b.I("s_cmp_lt_u32", S(2), 40);  b.I("s_cbranch_scc1", "L0_wq")
    b.I("s_cmp_lt_u32", S(2), 80);  b.I("s_cbranch_scc1", "L0_wo")
    b.I("s_cmp_lt_u32", S(2), 176); b.I("s_cbranch_scc1", "L0_w1")
    b.I("s_branch", "L0_w2")
    setp("L0_wq", 0, (1280, P_WQ), 640 * 1280, 2, 20, 1, 1024, 512, off["WQP"], 20, 40960, 256, 1, 1, off["CSQ"], 4096, 128)
    setp("L0_wo", 40, (1280, P_WO), 640 * 1280, 2, 20, 0, 1280, 0, off["WOP"], 80, 102400, 256, 0, 0, 0, 0, 0)
    setp("L0_w1", 80, (3072, P_W1), 640 * 3072, 2, 20, 2, 3072, 256, off["W1P"], 48, 61440, 1024, 0, 1, off["CS1"], 6144, 192)
    setp("L0_w2", 176, (1280, P_W2), 1536 * 1280, 3, 24, 2, 5120, 256, off["W2P"], 80, 245760, 1024, 0, 0, 0, 0, 0, w2=True)
    b.label("L0_common")
    vsrc = V(10)
    b.I("v_add_u32", vsrc, sG0, slot)
    b.I("s_lshl_b32", sT, sRS, 3)
    b.I("v_mul_lo_u32", vsrc, vsrc, sT)
    b.I("s_lshl_b32", sT, sN0, 1)
    b.I("v_lshl_add_u32", vsrc, cp, 2, vsrc)
    b.I("v_add_u32", vsrc, sT, vsrc)
    Lr = [[V(80 + 8 * it + e) for e in range(8)] for it in range(3)]
    b.I("s_mov_b32", sOff, 0)
    for it in range(3):
        for e in range(8):
            b.I("buffer_load_dword", Lr[it][e], vsrc, SRC, sOff, mods="offen")
            if e < 7: b.I("s_add_u32", sOff, sOff, sRS)
        if it < 2:
            b.I("s_mul_i32", sT, sRS, 57)
            b.I("s_add_u32", sOff, sOff, sT)

    KL = [[V(104 + 8 * it + e) for e in range(8)] for it in range(3)]
    vka = V(60, 2); vkv = V(62)
    snap_kv = b.snapshot()
    b.I("s_cmp_lt_u32", S(2), 40); b.I("s_cbranch_scc1", "L0_nokvld")
    b.I("s_cmp_ge_u32", S(2), 44); b.I("s_cbranch_scc1", "L0_nokvld")
    b.I("s_sub_u32", S(66), S(2), 40)
    b.I("s_mul_i32", S(67), S(66), 20)
    b.I("v_cmp_gt_u32", "vcc", 10, cp)
    b.I("v_mov_b32", V(25), P_WV[0]); b.I("v_mov_b32", V(26), P_WK[0])
    b.I("v_cndmask_b32", vka[0], V(25), V(26), "vcc")
    b.I("v_mov_b32", V(25), P_WV[1]); b.I("v_mov_b32", V(26), P_WK[1])
    b.I("v_cndmask_b32", vka[1], V(25), V(26), "vcc")
    b.I("v_subrev_u32", V(25), 10, cp)
    b.I("v_cndmask_b32", V(25), V(25), cp, "vcc")
    b.I("v_cmp_gt_u32", "vcc", 20, cp)
    b.I("v_cndmask_b32", V(25), 0, V(25), "vcc")
    b.I("v_add_u32", V(26), S(67), slot)
    b.I("v_mul_u32_u24", V(26), 320, V(26))
    b.I("v_lshl_add_u32", V(26), V(25), 2, V(26))
    b.I("v_add_co_u32", vka[0], "vcc", vka[0], V(26))
    b.I("v_addc_co_u32", vka[1], "vcc", 0, vka[1], "vcc")
    for it in range(3):
        if it == 2:
            b.I("v_cmp_gt_u32", "vcc", 4, slot)
            b.I("v_mov_b32", V(25), 2560)
            b.I("v_cndmask_b32", V(25), 0, V(25), "vcc")
            b.I("v_add_co_u32", vka[0], "vcc", vka[0], V(25))
            b.I("v_addc_co_u32", vka[1], "vcc", 0, vka[1], "vcc")
        elif it == 1:
            b.I("v_add_co_u32", vka[0], "vcc", 2560, vka[0])
            b.I("v_addc_co_u32", vka[1], "vcc", 0, vka[1], "vcc")
        for e in range(8): b.I("global_load_dword", KL[it][e], vka, "off", mods=f"offset:{40 * e}")
    b.label("L0_nokvld")
    b.restore(snap_kv)
    b.clear_hist()

    def colmap(vn, vhi, vlo_hi, vlo_lo, t0, t1):
        b.I("v_mul_u32_u24", vhi, sM, vn)
        b.I("v_lshrrev_b32", vhi, 16, vhi)
        b.I("v_mul_u32_u24", t0, sDv, vhi)
        b.I("v_sub_u32", t0, vn, t0)
        b.I("v_lshrrev_b32", vlo_hi, 4, t0)
        b.I("v_and_b32", vlo_lo, 15, t0)
        b.I("v_and_b32", t0, 4, vlo_lo)
        b.I("v_and_b32", t1, 8, vlo_lo)
        b.I("v_lshlrev_b32", t0, 1, t0)
        b.I("v_lshrrev_b32", t1, 1, t1)
        b.I("v_or_b32", t0, t0, t1)
        b.I("v_and_b32", t1, 3, vlo_lo)
        b.I("v_or_b32", t0, t0, t1)
        b.I("s_cmp_eq_u32", sSwap, 1)
        b.I("s_cselect_b64", "vcc", -1, 0)
        b.I("v_cndmask_b32", vlo_lo, vlo_lo, t0, "vcc")
    vn, vhi, vlh, vll, t0, t1, vdb = V(11), V(12), V(13), V(14), V(15), V(16), V(17)
    b.I("v_lshlrev_b32", vn, 1, cp)
    b.I("v_add_u32", vn, sN0, vn)
    colmap(vn, vhi, vlh, vll, t0, t1)
    b.I("v_mul_lo_u32", vdb, vhi, sHS)
    b.I("v_mul_lo_u32", t0, vlh, sLS)
    b.I("v_add_u32", vdb, vdb, t0)
    b.I("v_lshl_add_u32", vdb, vll, 4, vdb)
    b.I("v_add_u32", vdb, sBase, vdb)
    sGrp = S(55)
    b.I("s_lshr_b32", sGrp, S(2), 3)
    b.I("s_mul_i32", sGrp, sGrp, 81920)
    b.I("s_and_b32", sT, S(2), 7)
    b.I("s_lshl_b32", sT, sT, 7)
    b.I("s_add_u32", sGrp, sGrp, sT)
    b.I("s_add_u32", sGrp, sGrp, hex(off["XB0"]))
    b.I("s_lshl_b32", sT, wv_id, 13)
    b.I("s_add_u32", sGrp, sGrp, sT)
    b.I("v_lshlrev_b32", vxd, 10, vgg)
    b.I("v_lshl_add_u32", vxd, vt, 4, vxd)
    b.I("v_add_u32", v_oob, S(54), vxd)
    ssum, ssq = V(18), V(19)
    b.I("v_mov_b32", ssum, 0); b.I("v_mov_b32", ssq, 0)
    for q in range(3):
        b.I("buffer_store_dwordx4", XL[q], (v_oob if q == 2 else vxd), WS, sGrp, mods="offen")
        if q < 2: b.I("s_add_u32", sGrp, sGrp, 32768)
        for e in range(4):
            b.I("v_lshlrev_b32", t0, 16, XL[q][e])
            b.I("v_and_b32", t1, "0xffff0000", XL[q][e])
            b.I("v_add_f32", ssum, ssum, t0)
            b.I("v_fmac_f32", ssq, t0, t0)
            b.I("v_add_f32", ssum, ssum, t1)
            b.I("v_fmac_f32", ssq, t1, t1)
    for r in (ssum, ssq):
        b.I("v_add_f32_dpp", r, r, r, mods="row_ror:8 row_mask:0xf bank_mask:0xf")
        b.I("v_mov_b32", t0, r)
        b.I("v_permlane16_swap_b32", r, t0)
        b.I("v_add_f32", r, r, t0)
        b.I("v_mov_b32", t0, r)
        b.I("v_permlane32_swap_b32", r, t0)
        b.I("v_add_f32", r, r, t0)
    b.I("v_lshlrev_b32", t0, 3, vt)
    b.I("s_lshl_b32", sT, wv_id, 6)
    b.I("v_add_u32", t0, sT, t0)
    b.I("ds_write_b64", t0, V(18, 2), mods="offset:4096")
    csA, csB = V(20), V(21)
    b.I("v_mov_b32", csA, 0); b.I("v_mov_b32", csB, 0)
    vg, vad, vval = V(22), V(23), V(24)
    U = V(28, 4); U2 = V(32, 4)
    selLo, selHi = S(60), S(61)
    b.I("s_mov_b32", selLo, "0x05040100"); b.I("s_mov_b32", selHi, "0x07060302")
    for it in range(3):
        b.I("v_add_u32", vg, 8 * it, slot)
        b.I("v_cmp_gt_u32", "vcc", sNG, vg)
        b.I("v_add_u32", vg, sGL0, vg)
        b.I("v_lshrrev_b32", t0, sA, vg)
        b.I("v_mul_lo_u32", t0, t0, sP)
        b.I("v_and_b32", t1, sMask, vg)
        b.I("v_mul_lo_u32", t1, t1, sQ)
        b.I("v_add3_u32", vad, vdb, t0, t1)
        b.I("v_mov_b32", t0, hex(OOB))
        b.I("v_cndmask_b32", vad, t0, vad, "vcc")
        for q in range(4):
            b.I("v_perm_b32", U[q], Lr[it][2 * q + 1], Lr[it][2 * q], selLo)
            b.I("v_perm_b32", U2[q], Lr[it][2 * q + 1], Lr[it][2 * q], selHi)
        b.I("buffer_store_dwordx4", U, vad, WS, 0, mods="offen")
        b.I("buffer_store_dwordx4", U2, vad, WS, 0, mods="offen offset:16")
        for e in range(8):
            b.I("v_cndmask_b32", t1, 0, Lr[it][e], "vcc")
            b.I("v_lshlrev_b32", t0, 16, t1)
            b.I("v_and_b32", t1, "0xffff0000", t1)
            b.I("v_add_f32", csA, csA, t0)
            b.I("v_add_f32", csB, csB, t1)
    b.I("v_lshlrev_b32", t0, 8, slot)
    b.I("v_lshl_add_u32", t0, cp, 3, t0)
    b.I("ds_write_b64", t0, V(20, 2))
    b.wait(lg=0)
    b.barrier()
    b.I("v_cmp_gt_u32", "vcc", 64, V(0))
    b.I("s_and_saveexec_b64", S(62, 2), "vcc")
    b.I("s_cbranch_execz", "L0_nocs")
    SW = [V(36 + 2 * w, 2) for w in range(4)]
    b.I("v_lshlrev_b32", t0, 3, vt)
    for w in range(4): b.I("ds_read_b64", SW[w], t0, mods=f"offset:{4096 + 64 * w}")
    for c in range(2):
        b.I("v_add_f32", SW[0][c], SW[0][c], SW[1][c])
        b.I("v_add_f32", SW[2][c], SW[2][c], SW[3][c])
        b.I("v_add_f32", SW[0][c], SW[0][c], SW[2][c])
    b.I("v_cmp_eq_u32", "vcc", 0, vgg)
    b.I("v_cndmask_b32", SW[0][0], 0, SW[0][0], "vcc")
    b.I("v_cndmask_b32", SW[0][1], 0, SW[0][1], "vcc")
    b.I("s_lshr_b32", sT, S(2), 3)
    b.I("s_lshl_b32", sT, sT, 12)
    b.I("s_and_b32", sOff, S(2), 7)
    b.I("s_lshl_b32", sOff, sOff, 6)
    b.I("s_add_u32", sT, sT, sOff)
    b.I("s_add_u32", sT, sT, hex(off["STI0"]))
    b.I("v_lshlrev_b32", t0, 9, vgg)
    b.I("v_lshl_add_u32", t0, vt, 3, t0)
    b.I("buffer_store_dwordx2", SW[0], t0, WS, sT, mods="offen")
    b.I("s_cmp_eq_u32", sCs, 0)
    b.I("s_cbranch_scc1", "L0_nocs")
    CW = [V(44 + s_) for s_ in range(8)]
    b.I("v_lshlrev_b32", t0, 2, V(0))
    for s_ in range(8): b.I("ds_read_b32", CW[s_], t0, mods=f"offset:{256 * s_}")
    b.I("v_add_u32", vn, sN0, V(0))
    colmap(vn, vhi, vlh, vll, t0, t1)
    for s_ in range(1, 8): b.I("v_add_f32", CW[0], CW[0], CW[s_])
    b.I("v_mul_lo_u32", vad, vhi, sCH)
    b.I("v_lshl_add_u32", vad, vlh, 6, vad)
    b.I("v_lshl_add_u32", vad, vll, 2, vad)
    b.I("buffer_store_dword", CW[0], vad, WS, sCB, mods="offen")
    b.label("L0_nocs")
    b.clear_hist(); b.nop(4)
    b.I("s_mov_b64", "exec", -1)
    b.I("s_cmp_ge_u32", S(2), 16)
    b.I("s_cbranch_scc1", "L0_noflag")
    Z = V(28, 4)
    for e in range(4): b.I("v_mov_b32", Z[e], 0)
    b.I("v_lshlrev_b32", t0, 4, V(0))
    b.I("s_lshl_b32", sT, S(2), 12)
    b.I("s_add_u32", sT, sT, hex(off["FLAGS"]))
    b.I("buffer_store_dwordx4", Z, t0, WS, sT, mods="offen")
    b.label("L0_noflag")
    b.I("s_cmp_lt_u32", S(2), 40); b.I("s_cbranch_scc1", "L0_end")
    b.I("s_cmp_ge_u32", S(2), 44); b.I("s_cbranch_scc1", "L0_end")
    b.wait(vm=0)
    b.barrier()
    sKr, sG0 = S(66), S(67)
    vcc_, vqq, vwl, vm_ = V(10), V(11), V(12), V(13)
    b.I("v_cmp_le_u32", "vcc", 10, cp)
    b.I("v_cndmask_b32", vwl, 0, 2, "vcc")
    b.I("v_cndmask_b32", t0, 0, 10, "vcc")
    b.I("v_sub_u32", vcc_, cp, t0)
    b.I("v_lshrrev_b32", vqq, 1, vcc_)
    b.I("v_cmp_le_u32", "vcc", 3, vqq)
    b.I("v_cndmask_b32", t0, 0, 1, "vcc")
    b.I("v_add_u32", vwl, vwl, t0)
    b.I("v_mul_u32_u24", t0, 3, t0)
    b.I("v_sub_u32", t0, vqq, t0)
    b.I("v_lshlrev_b32", t0, 2, t0)
    b.I("v_and_b32", t1, 1, vcc_)
    b.I("v_lshl_add_u32", t0, t1, 1, t0)
    b.I("v_add_u32", vm_, 20, t0)
    b.I("v_cmp_gt_u32", S(64, 2), 20, cp)
    b.I("v_mul_u32_u24", vdb, 40960, vwl)
    b.I("v_lshl_add_u32", vdb, vm_, 4, vdb)
    b.I("v_add_u32", vdb, hex(off["WQP"]), vdb)
    b.I("v_mov_b32", csA, 0); b.I("v_mov_b32", csB, 0)
    for it in range(3):
        b.I("v_add_u32", vg, 8 * it, slot)
        b.I("v_cmp_gt_u32", "vcc", 20, vg)
        b.I("s_and_b64", "vcc", "vcc", S(64, 2))
        b.I("v_add_u32", vg, sG0, vg)
        b.I("v_lshrrev_b32", t0, 1, vg)
        b.I("v_lshlrev_b32", t0, 10, t0)
        b.I("v_and_b32", t1, 1, vg)
        b.I("v_lshlrev_b32", t1, 9, t1)
        b.I("v_add3_u32", vad, vdb, t0, t1)
        b.I("v_mov_b32", t0, hex(OOB))
        b.I("v_cndmask_b32", vad, t0, vad, "vcc")
        for q in range(4):
            b.I("v_perm_b32", U[q], KL[it][2 * q + 1], KL[it][2 * q], selLo)
            b.I("v_perm_b32", U2[q], KL[it][2 * q + 1], KL[it][2 * q], selHi)
        for j in range(8):
            b.I("s_mov_b32", sOff, j * 163840)
            b.I("buffer_store_dwordx4", U, vad, WS, sOff, mods="offen")
            b.I("buffer_store_dwordx4", U2, vad, WS, sOff, mods="offen offset:16")
        for e in range(8):
            b.I("v_cndmask_b32", t1, 0, KL[it][e], "vcc")
            b.I("v_lshlrev_b32", t0, 16, t1)
            b.I("v_and_b32", t1, "0xffff0000", t1)
            b.I("v_add_f32", csA, csA, t0)
            b.I("v_add_f32", csB, csB, t1)
    b.I("v_lshlrev_b32", t0, 8, slot)
    b.I("v_lshl_add_u32", t0, cp, 3, t0)
    b.I("ds_write_b64", t0, V(20, 2))
    b.wait(lg=0)
    b.barrier()
    S8 = [V(36 + 2 * s_, 2) for s_ in range(8)]
    b.I("v_lshlrev_b32", t0, 3, cp)
    for s_ in range(8): b.I("ds_read_b64", S8[s_], t0, mods=f"offset:{256 * s_}")
    for s_ in range(1, 8):
        b.I("v_add_f32", S8[0][0], S8[0][0], S8[s_][0])
        b.I("v_add_f32", S8[0][1], S8[0][1], S8[s_][1])
    b.I("v_lshlrev_b32", vad, 7, vwl)
    b.I("v_lshl_add_u32", vad, vm_, 2, vad)
    b.I("v_cmp_gt_u32", "vcc", 20, V(0))
    b.I("v_mov_b32", t0, hex(OOB))
    b.I("v_cndmask_b32", vad, t0, vad, "vcc")
    b.I("s_lshl_b32", sT, sKr, 12)
    b.I("s_add_u32", sT, sT, hex(off["CSQ"]))
    for j in range(8):
        b.I("buffer_store_dwordx2", S8[0], vad, WS, sT, mods="offen")
        b.I("s_add_u32", sT, sT, 512)
    b.label("L0_end")
```

```python
from build import *
from k_l0 import gen_l0
import k_main as M
import k_f2 as F
CODE_BYTES = 40960
def build(prof=False):
    M.PROFILE = prof
    ks = []; launches = []
    bm = B(); F.gen_fused(bm)
    nb = 8 * sum(1 for l in bm.out if l.startswith("  ")) if False else CODE_BYTES
    b = B(); gen_l0(b, prefetch=(("main_kernel", "MAIN_END", nb) if F.EXP.get("cpf", 1) else None)); ks.append(("l0_kernel", b.text(), 128, 0, 102)); launches.append(("l0_kernel", 256, 256, 8192))
    b = bm; ks.append(("main_kernel", b.text(), 256, 256, 102)); launches.append(("main_kernel", 256, 256, M.LDS_BYTES))
    e, x = b.loop_states
    assert e == x, "attention loop state mismatch"
    return assemble_file(launches, ks), b
if __name__ == "__main__":
    SETS = dict(
        prof="start layer qkv_end grid_ok loop_in loop_out drain reduced att_end s1_drained s1_ok opr_end s2_ok ff1_end s3_ok ff2_end s4_ok end".split(),
        pa="layer q_pre q_c0 q_c1 q_c4 q_mm q_kv qkv_end grid_ok att_end s1_drained s1_win s1_ok o_pre o_s0 o_mm o_red opr_end end".split(),
        pc="s1_ok o_pre o_s0 o_mm o_red opr_end s2_ok f_pre f_c0 f_mm ff1_end s3_ok g_pre g_s0 g_mm g_red ff2_end end".split(),
        pb="opr_end s2_drained s2_win s2_ok f_pre f_c0 f_c1 f_c4 f_mm ff1_end s3_drained s3_win s3_ok g_pre g_s0 g_s5 g_mm g_red ff2_end end".split())
    EXPS = sys.argv[2:]
    for e in EXPS:
        k_, _, v_ = e.partition("=")
        F.EXP[k_] = int(v_) if v_ else True
    prof = SETS.get(sys.argv[1]) if len(sys.argv) > 1 else False
    s, b = build(prof)
    if prof: s = "; stamps: " + " ".join(prof) + "\n" + s
    open((f"fused_{sys.argv[1]}" if prof else "fused") + "".join("_" + e.replace("=", "") for e in EXPS) + ".s", "w").write(s)
    print("bytes", len(s), "nops", b.nops, "instrs", sum(b.stats.values()))
```

```python
from asmb import *
import layout as L
import k_main as M
from k_main import *

LDS_Q = 86016
LDS_PART = 86016
LDS_FLAG = TAB + 2560
LDS_MAX = 86016

def standin_fold(b, q, m, t0, t1, t2):
    b.I("v_sub_f32", t0, 0, m)
    b.I("v_and_b32", t1, "0xffff0000", t0)
    b.I("v_sub_f32", t0, t0, t1)
    b.I("v_and_b32", t2, "0xffff0000", t0)
    b.I("v_sub_f32", t0, t0, t2)
    b.I("v_lshrrev_b32", t1, 16, t1)
    b.I("v_or_b32", t1, t1, t2)
    b.I("v_lshrrev_b32", t0, 16, t0)
    b.I("v_cmp_gt_u32", "vcc", 32, vL)
    b.I("v_cndmask_b32", q[0], t1, q[0], "vcc")
    b.I("v_cndmask_b32", q[1], t0, q[1], "vcc")

def attn_pre(b, uid, trailing_barrier=True):
    km = V(64, 4); kt = V(68, 2); Sx = [V(72, 16), V(88, 16)]
    va = V(VB)
    b.I("v_add_u32", va, LDS_KVIMG, vL16)
    b.I("ds_read_b128", km, va)
    b.I("v_lshlrev_b32", vt0, 3, vL)
    b.I("v_add_u32", vt0, LDS_KVIMG + 1024, vt0)
    b.I("ds_read_b64", kt, vt0)
    b.I("v_cmp_gt_u32", "vcc", 32, vL)
    for th in range(2):
        for e in range(2): b.I("v_cndmask_b32", QT[th][e], 0, QT[th][e], "vcc")
    for th in range(2): b.I("v_mfma_f32_32x32x16_bf16", Sx[th], km, QM[th], 0)
    for th in range(2): b.I("v_mfma_f32_32x32x8_bf16", Sx[th], kt, QT[th], Sx[th])
    for th in range(2):
        m = V(VB + 1 + th)
        b.I("v_max3_f32", m, Sx[th][0], Sx[th][1], Sx[th][2])
        for i in range(3, 15, 2): b.I("v_max3_f32", m, m, Sx[th][i], Sx[th][i + 1])
        b.I("v_max_f32", m, m, Sx[th][15])
        b.I("v_mov_b32", vt0, m)
        b.I("v_permlane32_swap_b32", m, vt0)
        b.I("v_max_f32", m, m, vt0)
        standin_fold(b, QT[th], m, vt0, vt1, vt2)
    vb, vb2 = V(VB + 3), V(VB + 4)
    b.I("v_add_u32", vb, LDS_Q, vL16)
    b.I("v_lshlrev_b32", vb2, 3, vL)
    b.I("v_add_u32", vb2, LDS_Q + 1024, vb2)
    b.I("s_lshl_b32", sT0, sW, 12)
    b.I("v_add_u32", va, sT0, vb)
    b.I("v_add_u32", vt1, sT0, vb2)
    for th in range(2):
        b.I("ds_write_b128", va, QM[th], mods=f"offset:{2048 * th}")
        b.I("ds_write_b64", vt1, QT[th], mods=f"offset:{2048 * th}")
    b.wait(lg=0)
    b.barrier()
    for hd in range(4):
        if hd:
            b.I("s_add_u32", sT0, sW, hd)
            b.I("s_and_b32", sT0, sT0, 3)
            b.I("s_lshl_b32", sT0, sT0, 12)
            b.I("v_add_u32", va, sT0, vb)
            b.I("v_add_u32", vt1, sT0, vb2)
        for th in range(2):
            b.I("ds_read_b128", QA[2 * hd + th], va, mods=f"offset:{2048 * th}")
            b.I("ds_read_b64", QB[2 * hd + th], vt1, mods=f"offset:{2048 * th}")
    b.wait(lg=0)
    if trailing_barrier: b.barrier()

QA = [V(128 + 4 * a, 4) for a in range(8)]
QB = [V(160 + 2 * a, 2) for a in range(8)]
KV2 = [dict(km=V(64 + 16 * p, 4), kt=V(68 + 16 * p, 2), v=[V(72 + 16 * p, 4), V(76 + 16 * p, 4)]) for p in range(2)]
SX = [V(96, 16), V(112, 16)]
PP = [V(176, 8), V(184, 8)]
OA = [A(16 * a, 16) for a in range(8)]

def attn_main(b, uid, sc="sc1", hook=None, fused=False, on_run=None):
    vKt, vV = V(VB), V(VB + 1)
    sKV, sOff, sCnt, sRetry = sP[0], sP[1], sP[2], sP[3]
    b.I("s_add_u32", sKV, sLO, hex(off["KV0"]))
    b.I("s_mul_i32", sT0, sW, 16 * 3072)
    b.I("s_add_u32", sKV, sKV, sT0)
    b.I("v_lshlrev_b32", vKt, 3, vL)
    b.I("v_add_u32", vKt, 1024, vKt)
    b.I("v_and_b32", vt0, 31, vL)
    b.I("v_lshrrev_b32", vt2, 5, vL)
    b.I("v_mul_u32_u24", vt2, 384, vt2)
    b.I("v_lshl_add_u32", vV, vt0, 4, vt2)
    b.I("v_add_u32", vV, 1536, vV)
    b.I("v_mov_b32", vt1, hex(OOB))
    b.I("v_cmp_ge_u32", "vcc", 20, vt0)
    b.I("v_cndmask_b32", vV, vt1, vV, "vcc")
    def loadk(p):
        b.I("buffer_load_dwordx4", KV2[p]["km"], vL16, WS, sOff, mods="offen " + sc)
        b.I("buffer_load_dwordx2", KV2[p]["kt"], vKt, WS, sOff, mods="offen " + sc)
    def loadv(p):
        b.I("buffer_load_dwordx4", KV2[p]["v"][0], vV, WS, sOff, mods="offen " + sc)
        b.I("buffer_load_dwordx4", KV2[p]["v"][1], vV, WS, sOff, mods="offen offset:768 " + sc)
    def qk_main(a, p): b.I("v_mfma_f32_32x32x16_bf16", SX[a % 2], KV2[p]["km"], QA[a], 0)
    def qk_tail(a, p): b.I("v_mfma_f32_32x32x8_bf16", SX[a % 2], KV2[p]["kt"], QB[a], SX[a % 2])
    def pv(a, p, mf): b.I("v_mfma_f32_32x32x16_bf16", OA[a], KV2[p]["v"][mf], PP[a % 2][4 * mf:4 * mf + 4], OA[a])
    b.I("s_mov_b32", sRetry, 0)
    if not fused:
        for a in range(8):
            for i in range(16): b.I("v_accvgpr_write_b32", OA[a][i], 0)
    b.label(f"ATT_RUN_{uid}")
    b.clear_hist(); b.nop(2)
    if not fused: stamp(b, "run")
    if on_run: on_run()
    b.I("s_mov_b32", sOff, sKV)
    loadk(0); loadv(0)
    b.I("s_add_u32", sOff, sOff, 3072)
    loadk(1)
    for i in range(8): b.I("v_mov_b32", PP[1][i], 0)
    for e in range(8): b.I("v_mov_b32", V(KV2[1]["v"][0].i + e), 0)
    for i in range(12, 16): b.I("v_mov_b32", SX[1][i], 0)
    qk_main(0, 0)
    b.nop(10)
    qk_tail(0, 0)
    b.nop(12)
    stamp(b, "loop_in")
    b.I("s_mov_b32", sCnt, 8)
    b.align(6)
    b.label(f"ATT_LOOP_{uid}")
    b.clear_hist()
    b.vm = [(("kv", 9), KV2[0]["v"][0].regs()), (("kv", 9), KV2[0]["v"][1].regs()),
            (("kv", 8), KV2[1]["km"].regs()), (("kv", 8), KV2[1]["kt"].regs())]
    entry = [e[1] for e in b.vm]
    def step(a, p, extra):
        s_ = SX[a % 2]; P_ = PP[a % 2]; sprev = SX[(a + 1) % 2]; Pprev = PP[(a + 1) % 2]
        an, pn = (a + 1) % 8, (p if a < 7 else 1 - p)
        ap, pp_ = (a - 1) % 8, (p if a > 0 else 1 - p)
        ex = lambda i: b.I("v_exp_f32", s_[i], s_[i])
        cv = lambda i: b.I("v_cvt_pk_bf16_f32", P_[i], s_[2 * i], s_[2 * i + 1])
        b.I("v_cvt_pk_bf16_f32", Pprev[6], sprev[12], sprev[13])
        ex(0)
        b.I("v_cvt_pk_bf16_f32", Pprev[7], sprev[14], sprev[15])
        ex(1)
        qk_main(an, pn)
        ex(2); ex(3); ex(4); ex(5); cv(0); cv(1)
        pv(ap, pp_, 0)
        for x in extra.get(0, []): x()
        ex(6); ex(7); ex(8); ex(9)
        qk_tail(an, pn)
        cv(2); ex(10); ex(11); cv(3); ex(12); ex(13); cv(4)
        pv(ap, pp_, 1)
        ex(14); ex(15); cv(5)
        for x in extra.get(1, []): x()
    for p in range(2):
        for a in range(8):
            extra = {}
            if a == 1: extra = {0: [lambda p=p: loadv(1 - p)], 1: [lambda: b.I("s_add_u32", sOff, sOff, 3072)]}
            if a == 7: extra = {1: [lambda p=p: loadk(p)]}
            if hook: hook(p, a, extra)
            step(a, p, extra)
    b.I("s_sub_u32", sCnt, sCnt, 1)
    b.I("s_cmp_lg_u32", sCnt, 0)
    b.I("s_cbranch_scc1", f"ATT_LOOP_{uid}")
    b.loop_states = (entry, [e[1] for e in b.vm])
    stamp(b, "loop_out")
    b.I("v_cvt_pk_bf16_f32", PP[1][6], SX[1][12], SX[1][13])
    b.I("v_cvt_pk_bf16_f32", PP[1][7], SX[1][14], SX[1][15])
    pv(7, 1, 0); pv(7, 1, 1)
    b.wait(vm=0)
    stamp(b, "drain")
    vR = V(VB + 2)
    b.barrier()
    for hd in range(1, 4):
        b.I("s_add_u32", sT0, sW, hd)
        b.I("s_and_b32", sT0, sT0, 3)
        b.I("s_mul_i32", sT0, sT0, 18432)
        b.I("s_add_u32", sT0, sT0, LDS_PART + (hd - 1) * 6144)
        b.I("v_add_u32", vR, sT0, vL16)
        for th in range(2):
            for c in range(3): b.I("ds_write_b128", vR, OA[2 * hd + th][4 * c:4 * c + 4], mods=f"offset:{th * 3072 + c * 1024}")
    OO = [V(192, 12), V(204, 12)]
    TT = [V(64, 12), V(76, 12), V(88, 12)]
    for th in range(2):
        for i in range(12): b.I("v_accvgpr_read_b32", OO[th][i], OA[th][i])
    b.I("s_mul_i32", sT0, sW, 18432)
    b.I("s_add_u32", sT0, sT0, LDS_PART)
    b.I("v_add_u32", vR, sT0, vL16)
    b.wait(lg=0)
    b.barrier()
    for th in range(2):
        for sl in range(3):
            for c in range(3): b.I("ds_read_b128", TT[sl][4 * c:4 * c + 4], vR, mods=f"offset:{sl * 6144 + th * 3072 + c * 1024}")
        for sl in range(3):
            for i in range(12): b.I("v_add_f32", OO[th][i], OO[th][i], TT[sl][i])
    stamp(b, "reduced")
    lreg = [V(VB + 5), V(VB + 6)]
    for q in range(2):
        b.I("v_mov_b32", lreg[q], OO[q][8])
        b.I("v_mov_b32", vt0, OO[q][8])
        b.I("v_permlane32_swap_b32", vt0, lreg[q])
    b.I("v_mov_b32", vt2, hex(f2u(2.0 ** 60)))
    b.I("v_cmp_nlt_f32", S(48, 2), lreg[0], vt2)
    b.I("v_cmp_nlt_f32", S(50, 2), lreg[1], vt2)
    b.I("v_mov_b32", vt1, 0)
    for q in range(2):
        for i in range(12): b.I("v_fmac_f32", vt1, 0, OO[q][i])
    b.I("v_cmp_u_f32", "vcc", vt1, vt1)
    b.I("s_or_b64", S(48, 2), S(48, 2), S(50, 2))
    b.I("s_or_b64", S(48, 2), S(48, 2), "vcc")
    b.I("s_cmp_lg_u64", S(48, 2), 0)
    b.I("s_cselect_b32", sT0, 1, 0)
    b.I("s_cmp_eq_u32", sRetry, 1)
    b.I("s_cselect_b32", sT0, 0, sT0)
    b.I("v_mov_b32", vt0, sT0)
    b.I("s_lshl_b32", sT1, sW, 2)
    b.I("s_add_u32", sT1, sT1, LDS_FLAG)
    b.I("v_mov_b32", vt1, sT1)
    b.I("ds_write_b32", vt1, vt0)
    b.wait(lg=0)
    b.barrier()
    b.I("v_mov_b32", vt1, LDS_FLAG)
    FL = V(VB + 8, 4)
    b.I("ds_read_b128", FL, vt1)
    b.I("v_or_b32", FL[0], FL[0], FL[1]); b.I("v_or_b32", FL[2], FL[2], FL[3]); b.I("v_or_b32", FL[0], FL[0], FL[2])
    b.I("v_readfirstlane_b32", sT0, FL[0])
    b.I("s_cmp_eq_u32", sT0, 0)
    b.I("s_cbranch_scc1", f"ATT_OK_{uid}")
    b.I("s_mov_b32", sRetry, 1)
    MX = [V(192 + a) for a in range(8)]
    QZ = V(200, 2)
    for a in range(8): b.I("v_mov_b32", MX[a], hex(f2u(-3.0e38)))
    b.I("s_mov_b32", sOff, sKV)
    b.I("s_mov_b32", sCnt, 16)
    b.label(f"ATT_MAX_{uid}")
    b.clear_hist()
    loadk(0)
    b.I("s_add_u32", sOff, sOff, 3072)
    b.I("v_cmp_gt_u32", "vcc", 32, vL)
    for a in range(8):
        for e in range(2): b.I("v_cndmask_b32", QZ[e], 0, QB[a][e], "vcc")
        b.I("v_mfma_f32_32x32x16_bf16", SX[0], KV2[0]["km"], QA[a], 0)
        b.nop(10)
        b.I("v_mfma_f32_32x32x8_bf16", SX[0], KV2[0]["kt"], QZ, SX[0])
        for i in range(0, 16, 2): b.I("v_max3_f32", MX[a], MX[a], SX[0][i], SX[0][i + 1])
    b.I("s_sub_u32", sCnt, sCnt, 1)
    b.I("s_cmp_lg_u32", sCnt, 0)
    b.I("s_cbranch_scc1", f"ATT_MAX_{uid}")
    b.barrier()
    for a in range(8):
        b.I("v_mov_b32", vt0, MX[a])
        b.I("v_permlane32_swap_b32", MX[a], vt0)
        b.I("v_max_f32", MX[a], MX[a], vt0)
        b.I("s_add_u32", sT0, sW, a // 2)
        b.I("s_and_b32", sT0, sT0, 3)
        b.I("s_lshl_b32", sT0, sT0, 9)
        b.I("s_lshl_b32", sT1, sW, 11)
        b.I("s_add_u32", sT0, sT0, sT1)
        b.I("s_add_u32", sT0, sT0, LDS_MAX + (a & 1) * 256)
        b.I("v_lshlrev_b32", vt1, 2, vL)
        b.I("v_add_u32", vt1, sT0, vt1)
        b.I("ds_write_b32", vt1, MX[a])
    b.wait(lg=0)
    b.barrier()
    for a in range(8):
        b.I("s_add_u32", sT0, sW, a // 2)
        b.I("s_and_b32", sT0, sT0, 3)
        b.I("s_lshl_b32", sT0, sT0, 9)
        b.I("s_add_u32", sT0, sT0, LDS_MAX + (a & 1) * 256)
        b.I("v_lshlrev_b32", vt1, 2, vL)
        b.I("v_add_u32", vt1, sT0, vt1)
        T4 = V(204, 4)
        for ww in range(4): b.I("ds_read_b32", T4[ww], vt1, mods=f"offset:{2048 * ww}")
        b.I("v_max3_f32", T4[0], T4[0], T4[1], T4[2])
        b.I("v_max_f32", T4[0], T4[0], T4[3])
        standin_fold(b, QB[a], T4[0], vt0, vt2, vt3)
    for a in range(8):
        for i in range(16): b.I("v_accvgpr_write_b32", OA[a][i], 0)
    b.wait(lg=0)
    b.barrier()
    b.I("s_branch", f"ATT_RUN_{uid}")
    b.label(f"ATT_OK_{uid}")
    b.clear_hist(); b.nop(2)
    sO = sP[0]
    b.I("s_mul_i32", sO, sG, 81920)
    b.I("s_add_u32", sO, sO, sLO)
    b.I("s_mul_i32", sT0, sJ, 10240)
    b.I("s_add_u32", sO, sO, sT0)
    b.I("s_add_u32", sO, sO, hex(off["O0"]))
    vo = V(VB + 7); vo2 = V(VB + 8)
    b.I("s_mul_i32", sT0, sW, 5)
    b.I("v_lshrrev_b32", vt0, 5, vL)
    b.I("v_add_u32", vt0, sT0, vt0)
    b.I("v_lshrrev_b32", vt1, 1, vt0)
    b.I("v_lshlrev_b32", vo, 10, vt1)
    b.I("v_and_b32", vt1, 1, vt0)
    b.I("v_lshl_add_u32", vo, vt1, 3, vo)
    b.I("v_and_b32", vt1, 31, vL)
    b.I("v_lshl_add_u32", vo, vt1, 4, vo)
    b.I("v_cmp_gt_u32", "vcc", 32, vL)
    b.I("v_mov_b32", vt1, hex(OOB))
    b.I("v_cndmask_b32", vo2, vt1, vo, "vcc")
    for q in range(2):
        b.I("v_rcp_f32", lreg[q], lreg[q])
        for i in range(12): b.I("v_mul_f32", OO[q][i], lreg[q], OO[q][i])
        for i in range(6): b.I("v_cvt_pk_bf16_f32", PP[q][i], OO[q][2 * i], OO[q][2 * i + 1])
        for c in range(3):
            tag = b.I("buffer_store_dwordx2", PP[q][2 * c:2 * c + 2], (vo if c < 2 else vo2), WS, sO, mods=f"offen offset:{c * 1024 + q * 512} sc1")
    return tag


def attn_main2(b, uid, wo_dma, on_run, sc="sc1", last_extra=(), freed=None, store_sc="sc1", sBX_=None, own_freed=(), after_store=None):
    last_extra = list(last_extra)
    fused = True
    ORDER = [2, 3, 4, 5, 6, 7, 0, 1]
    vKt, vV = V(VB), V(VB + 1)
    sKV, sOff, sCnt, sRetry = sP[0], sP[1], sP[2], sP[3]
    b.I("s_add_u32", sKV, sLO, hex(off["KV0"]))
    b.I("s_mul_i32", sT0, sW, 16 * 3072)
    b.I("s_add_u32", sKV, sKV, sT0)
    b.I("v_lshlrev_b32", vKt, 3, vL)
    b.I("v_add_u32", vKt, 1024, vKt)
    b.I("v_and_b32", vt0, 31, vL)
    b.I("v_lshrrev_b32", vt2, 5, vL)
    b.I("v_mul_u32_u24", vt2, 384, vt2)
    b.I("v_lshl_add_u32", vV, vt0, 4, vt2)
    b.I("v_add_u32", vV, 1536, vV)
    b.I("v_mov_b32", vt1, hex(OOB))
    b.I("v_cmp_ge_u32", "vcc", 20, vt0)
    b.I("v_cndmask_b32", vV, vt1, vV, "vcc")
    def loadk(p):
        b.I("buffer_load_dwordx4", KV2[p]["km"], vL16, WS, sOff, mods="offen " + sc)
        b.I("buffer_load_dwordx2", KV2[p]["kt"], vKt, WS, sOff, mods="offen " + sc)
    def loadv(p):
        b.I("buffer_load_dwordx4", KV2[p]["v"][0], vV, WS, sOff, mods="offen " + sc)
        b.I("buffer_load_dwordx4", KV2[p]["v"][1], vV, WS, sOff, mods="offen offset:768 " + sc)
    def qk_main(i, p): b.I("v_mfma_f32_32x32x16_bf16", SX[i % 2], KV2[p]["km"], QA[ORDER[i]], 0)
    def qk_tail(i, p): b.I("v_mfma_f32_32x32x8_bf16", SX[i % 2], KV2[p]["kt"], QB[ORDER[i]], SX[i % 2])
    def pv(i, p, mf): b.I("v_mfma_f32_32x32x16_bf16", OA[ORDER[i]], KV2[p]["v"][mf], PP[i % 2][4 * mf:4 * mf + 4], OA[ORDER[i]])
    b.I("s_mov_b32", sRetry, 0)
    if not fused:
        for a in range(8):
            for i in range(16): b.I("v_accvgpr_write_b32", OA[a][i], 0)
    b.label(f"ATT_RUN_{uid}")
    b.clear_hist(); b.nop(2)
    if not fused: stamp(b, "run")
    if on_run: on_run()
    b.I("s_mov_b32", sOff, sKV)
    loadk(0); loadv(0)
    b.I("s_add_u32", sOff, sOff, 3072)
    loadk(1)
    for i in range(8): b.I("v_mov_b32", PP[1][i], 0)
    for e in range(8): b.I("v_mov_b32", V(KV2[1]["v"][0].i + e), 0)
    for i in range(12, 16): b.I("v_mov_b32", SX[1][i], 0)
    qk_main(0, 0)
    b.nop(10)
    qk_tail(0, 0)
    b.nop(12)
    stamp(b, "loop_in")
    b.I("s_mov_b32", sCnt, 7)
    vRw = [V(VB + 2 + hd) for hd in range(3)]; vR = V(VB + 9)
    for hd in range(1, 4):
        b.I("s_add_u32", sT0, sW, hd)
        b.I("s_and_b32", sT0, sT0, 3)
        b.I("s_mul_i32", sT0, sT0, 18432)
        b.I("s_add_u32", sT0, sT0, LDS_PART + (hd - 1) * 6144)
        b.I("v_add_u32", vRw[hd - 1], sT0, vL16)
    b.I("s_mul_i32", sT0, sW, 18432)
    b.I("s_add_u32", sT0, sT0, LDS_PART)
    b.I("v_add_u32", vR, sT0, vL16)
    vOo, vOo2, vFl = V(216), V(217), V(218)
    sO = S(45)
    b.I("s_mul_i32", sT0, sJ, 10240)
    b.I("s_add_u32", sO, sBX_, sT0)
    b.I("s_add_u32", sO, sO, hex(off["O0"]))
    b.I("s_mul_i32", sT0, sW, 5)
    b.I("v_lshrrev_b32", vt0, 5, vL)
    b.I("v_add_u32", vt0, sT0, vt0)
    b.I("v_lshrrev_b32", vt1, 1, vt0)
    b.I("v_lshlrev_b32", vOo, 10, vt1)
    b.I("v_and_b32", vt1, 1, vt0)
    b.I("v_lshl_add_u32", vOo, vt1, 3, vOo)
    b.I("v_and_b32", vt1, 31, vL)
    b.I("v_lshl_add_u32", vOo, vt1, 4, vOo)
    b.I("v_cmp_gt_u32", "vcc", 32, vL)
    b.I("v_mov_b32", vt1, hex(OOB))
    b.I("v_cndmask_b32", vOo2, vt1, vOo, "vcc")
    b.I("s_lshl_b32", sT1, sW, 2)
    b.I("s_add_u32", sT1, sT1, LDS_FLAG)
    b.I("v_mov_b32", vFl, sT1)
    b.align(6)
    b.label(f"ATT_LOOP_{uid}")
    b.clear_hist()
    b.vm = [(("kv", 9), KV2[0]["v"][0].regs()), (("kv", 9), KV2[0]["v"][1].regs()),
            (("kv", 8), KV2[1]["km"].regs()), (("kv", 8), KV2[1]["kt"].regs())]
    entry = [e[1] for e in b.vm]
    def step(a, p, extra):
        s_ = SX[a % 2]; P_ = PP[a % 2]; sprev = SX[(a + 1) % 2]; Pprev = PP[(a + 1) % 2]
        an, pn = (a + 1) % 8, (p if a < 7 else 1 - p)
        ap, pp_ = (a - 1) % 8, (p if a > 0 else 1 - p)
        ex = lambda i: b.I("v_exp_f32", s_[i], s_[i])
        cv = lambda i: b.I("v_cvt_pk_bf16_f32", P_[i], s_[2 * i], s_[2 * i + 1])
        b.I("v_cvt_pk_bf16_f32", Pprev[6], sprev[12], sprev[13])
        ex(0)
        b.I("v_cvt_pk_bf16_f32", Pprev[7], sprev[14], sprev[15])
        ex(1)
        qk_main(an, pn)
        ex(2); ex(3); ex(4); ex(5); cv(0); cv(1)
        pv(ap, pp_, 0)
        for x in extra.get(0, []): x()
        ex(6); ex(7); ex(8); ex(9)
        qk_tail(an, pn)
        cv(2); ex(10); ex(11); cv(3); ex(12); ex(13); cv(4)
        pv(ap, pp_, 1)
        ex(14); ex(15); cv(5)
        for x in extra.get(1, []): x()
    def part_writes(a):
        hd, th = a // 2, a % 2
        return [lambda c=c: b.I("ds_write_b128", vRw[hd - 1], OA[a][4 * c:4 * c + 4], mods=f"offset:{th * 3072 + c * 1024}", tag=("pw", a)) for c in range(3)]
    def body(last):
        for p in range(2):
            for a in range(8):
                extra = {}
                if a == 1 and not (last and p == 1): extra = {0: [lambda p=p: loadv(1 - p)], 1: [lambda: b.I("s_add_u32", sOff, sOff, 3072)]}
                if a == 7 and not last: extra = {1: [lambda p=p: loadk(p)]}
                if not last and p == 0 and a == 3: extra.setdefault(0, []).append(wo_dma)
                if last:
                    for _ in range(2 if p == 0 else (4 if a < 2 else 0)):
                        if last_extra: extra.setdefault(1, []).append(last_extra.pop(0))
                if last and p == 1 and a >= 2:
                    w = part_writes(ORDER[a - 2])
                    extra.setdefault(0, []).extend(w[:2]); extra.setdefault(1, []).append(w[2])
                if last and p == 1 and a >= 4 and freed:
                    extra.setdefault(0, []).insert(0, lambda a=a: b.wait_lg_tag(("pw", ORDER[a - 4])))
                    fr = freed(ORDER[a - 4])
                    extra[0] = extra[0][:1] + fr[:2] + extra[0][1:]
                    extra.setdefault(1, []).extend(fr[2:])
                step(a, p, extra)
    body(False)
    b.I("s_sub_u32", sCnt, sCnt, 1)
    b.I("s_cmp_lg_u32", sCnt, 0)
    b.I("s_cbranch_scc1", f"ATT_LOOP_{uid}")
    b.loop_states = (entry, [e[1] for e in b.vm])
    body(True)
    assert not last_extra
    stamp(b, "loop_out")
    b.I("v_cvt_pk_bf16_f32", PP[1][6], SX[1][12], SX[1][13])
    b.I("v_cvt_pk_bf16_f32", PP[1][7], SX[1][14], SX[1][15])
    pv(7, 1, 0); pv(7, 1, 1)
    OO = [V(192, 12), V(204, 12)]
    TT = [V(64, 12), V(76, 12), V(88, 12)]
    for i in range(12): b.I("v_accvgpr_read_b32", OO[0][i], OA[0][i])
    for i in range(12): b.I("v_accvgpr_read_b32", OO[1][i], OA[1][i])
    b.wait(lg=0)
    if freed and after_store is None:
        for op in freed(6): op()
    for op in own_freed: op()
    stamp(b, "drain")
    b.barrier()
    for th in range(2):
        for sl in range(3):
            for c in range(3): b.I("ds_read_b128", TT[sl][4 * c:4 * c + 4], vR, mods=f"offset:{sl * 6144 + th * 3072 + c * 1024}")
        for sl in range(3):
            for i in range(0, 12, 2): b.I("v_pk_add_f32", OO[th][i:i + 2], OO[th][i:i + 2], TT[sl][i:i + 2])
    stamp(b, "reduced")
    lreg = [V(VB + 6), V(VB + 8)]
    sO = S(45)
    vo = V(VB + 10); vo2 = V(VB + 11); Z2 = V(VB + 12, 2)
    for q in range(2):
        b.I("v_mov_b32", lreg[q], OO[q][8])
        b.I("v_mov_b32", vt0, OO[q][8])
        b.I("v_permlane32_swap_b32", vt0, lreg[q])
    b.I("v_mov_b32", vt2, hex(f2u(2.0 ** 60)))
    b.I("v_cmp_nlt_f32", S(48, 2), lreg[0], vt2)
    b.I("v_cmp_nlt_f32", S(50, 2), lreg[1], vt2)
    b.I("v_mov_b32", Z2[0], 0); b.I("v_mov_b32", Z2[1], 0)
    for q in range(2):
        for i_ in range(0, 12, 2): b.I("v_pk_fma_f32", Z2, OO[q][i_:i_ + 2], 0, Z2, mods="op_sel_hi:[1,0,1]")
    for q in range(2): b.I("v_rcp_f32", lreg[q], lreg[q])
    b.I("v_add_f32", Z2[0], Z2[0], Z2[1])
    b.I("v_cmp_u_f32", "vcc", Z2[0], Z2[0])
    tag = None
    for q in range(2):
        l2 = V(lreg[q].i, 2)
        for i_ in range(0, 12, 2): b.I("v_pk_mul_f32", OO[q][i_:i_ + 2], OO[q][i_:i_ + 2], l2, mods="op_sel_hi:[1,0]")
        for i_ in range(6): b.I("v_cvt_pk_bf16_f32", PP[q][i_], OO[q][2 * i_], OO[q][2 * i_ + 1])
        for c in range(3):
            tag = b.I("buffer_store_dwordx2", PP[q][2 * c:2 * c + 2], (vOo if c < 2 else vOo2), WS, sO, mods=f"offen offset:{c * 1024 + q * 512} {store_sc}")
    b.I("s_or_b64", S(48, 2), S(48, 2), S(50, 2))
    b.I("s_or_b64", S(48, 2), S(48, 2), "vcc")
    b.I("s_cmp_lg_u64", S(48, 2), 0)
    b.I("s_cselect_b32", sT0, 1, 0)
    b.I("s_cmp_eq_u32", sRetry, 1)
    b.I("s_cselect_b32", sT0, 0, sT0)
    b.I("v_mov_b32", vt0, sT0)
    b.I("ds_write_b32", vFl, vt0)
    for op in (after_store or []): op()
    stamp(b, "att_end")
    b.wait_vm_tag(tag)
    b.wait(lg=0)
    stamp(b, "s1_drained")
    b.barrier()
    b.I("v_mov_b32", vt1, LDS_FLAG)
    FL = V(VB + 12, 4)
    b.I("ds_read_b128", FL, vt1)
    b.I("v_or_b32", FL[0], FL[0], FL[1]); b.I("v_or_b32", FL[2], FL[2], FL[3]); b.I("v_or_b32", FL[0], FL[0], FL[2])
    b.I("v_readfirstlane_b32", sT0, FL[0])
    b.I("s_cmp_eq_u32", sT0, 0)
    b.I("s_cbranch_scc1", f"ATT_OK_{uid}")
    b.I("s_mov_b32", sRetry, 1)
    b.wait(vm=0)
    MX = [V(192 + a) for a in range(8)]
    QZ = V(200, 2)
    for a in range(8): b.I("v_mov_b32", MX[a], hex(f2u(-3.0e38)))
    b.I("s_mov_b32", sOff, sKV)
    b.I("s_mov_b32", sCnt, 16)
    b.label(f"ATT_MAX_{uid}")
    b.clear_hist()
    loadk(0)
    b.I("s_add_u32", sOff, sOff, 3072)
    b.I("v_cmp_gt_u32", "vcc", 32, vL)
    for a in range(8):
        for e in range(2): b.I("v_cndmask_b32", QZ[e], 0, QB[a][e], "vcc")
        b.I("v_mfma_f32_32x32x16_bf16", SX[0], KV2[0]["km"], QA[a], 0)
        b.nop(10)
        b.I("v_mfma_f32_32x32x8_bf16", SX[0], KV2[0]["kt"], QZ, SX[0])
        for i in range(0, 16, 2): b.I("v_max3_f32", MX[a], MX[a], SX[0][i], SX[0][i + 1])
    b.I("s_sub_u32", sCnt, sCnt, 1)
    b.I("s_cmp_lg_u32", sCnt, 0)
    b.I("s_cbranch_scc1", f"ATT_MAX_{uid}")
    b.barrier()
    for a in range(8):
        b.I("v_mov_b32", vt0, MX[a])
        b.I("v_permlane32_swap_b32", MX[a], vt0)
        b.I("v_max_f32", MX[a], MX[a], vt0)
        b.I("s_add_u32", sT0, sW, a // 2)
        b.I("s_and_b32", sT0, sT0, 3)
        b.I("s_lshl_b32", sT0, sT0, 9)
        b.I("s_lshl_b32", sT1, sW, 11)
        b.I("s_add_u32", sT0, sT0, sT1)
        b.I("s_add_u32", sT0, sT0, LDS_MAX + (a & 1) * 256)
        b.I("v_lshlrev_b32", vt1, 2, vL)
        b.I("v_add_u32", vt1, sT0, vt1)
        b.I("ds_write_b32", vt1, MX[a])
    b.wait(lg=0)
    b.barrier()
    for a in range(8):
        b.I("s_add_u32", sT0, sW, a // 2)
        b.I("s_and_b32", sT0, sT0, 3)
        b.I("s_lshl_b32", sT0, sT0, 9)
        b.I("s_add_u32", sT0, sT0, LDS_MAX + (a & 1) * 256)
        b.I("v_lshlrev_b32", vt1, 2, vL)
        b.I("v_add_u32", vt1, sT0, vt1)
        T4 = V(204, 4)
        for ww in range(4): b.I("ds_read_b32", T4[ww], vt1, mods=f"offset:{2048 * ww}")
        b.I("v_max3_f32", T4[0], T4[0], T4[1], T4[2])
        b.I("v_max_f32", T4[0], T4[0], T4[3])
        standin_fold(b, QB[a], T4[0], vt0, vt2, vt3)
    for a in range(8):
        for i in range(16): b.I("v_accvgpr_write_b32", OA[a][i], 0)
    b.wait(lg=0)
    b.barrier()
    b.I("s_branch", f"ATT_RUN_{uid}")
    b.label(f"ATT_OK_{uid}")
    b.clear_hist(); b.nop(2)
```

```python
from asmb import *
import layout as L
import k_main as M
from k_main import *
import k_att2 as A2
from k_att2 import QA, QB, KV2, SX, PP, OA, standin_fold, LDS_Q, LDS_PART, LDS_FLAG, LDS_MAX

SPIN_MAX = 400000
EXP = {}
sGS, sFG, sFA, sGT = S(52), S(53), S(54), S(55)
sWQ, sW1, sW2 = S(40), S(41), S(42)
sBX = S(43)
sWp = S(47)
F_GRID = off["FLAGS"] + 32768
PARK = 0x27F00
RESID = [V(240 + 2 * fb, 2) for fb in range(5)]
def slot(f): return A(4 * ((f + 32) % 64), 4)

class Fill:
    def __init__(self): self.q = []; self.credit = 0
    def add(self, c, f): self.q.append((c, f))
    def v(self, b, *a, **k): self.add(4, lambda: b.I(*a, **k))
    def run(self, budget):
        self.credit += budget
        while self.q and self.q[0][0] <= self.credit:
            c, f = self.q.pop(0); self.credit -= c; f()
    def flush(self):
        for c, f in self.q: f()
        self.q = []; self.credit = 0

sWA = S(58, 2)
def wops(b, sbase, frs):
    ops = []
    cur = None
    glob = EXP.get("glob", 1) and not M.PROFILE_USES_58
    for f in frs:
        def one(f=f, cur=cur):
            if glob:
                if cur is None:
                    b.I("s_add_u32", sWp, sbase, (f // 4) * 4096)
                    b.I("s_add_u32", sWA[0], S(4), sWp)
                    b.I("s_addc_u32", sWA[1], S(5), 0)
                elif f // 4 != cur:
                    b.I("s_add_u32", sWA[0], sWA[0], (f // 4 - cur) * 4096)
                    b.I("s_addc_u32", sWA[1], sWA[1], 0)
                b.I("global_load_dwordx4", slot(f), vL16, sWA, mods=f"offset:{(f % 4) * 1024}")
                return
            if cur is None: b.I("s_add_u32", sWp, sbase, (f // 4) * 4096)
            elif f // 4 != cur: b.I("s_add_u32", sWp, sWp, (f // 4 - cur) * 4096)
            b.I("buffer_load_dwordx4", slot(f), vL16, WS, sWp, mods=f"offen offset:{(f % 4) * 1024}")
        ops.append(one); cur = f // 4
    return ops

def l2_warm(b, region, slice_bytes):
    if not EXP.get("warm", 0): return []
    n = slice_bytes // 4 // 4 // 8192
    rem = slice_bytes // 4 // 4 - n * 8192
    n += 1 if rem else 0
    ops = []
    def first():
        b.I("s_mul_i32", sT0, sJ, slice_bytes)
        b.I("s_and_b32", sT1, sG, 3)
        b.I("s_lshl_b32", sT1, sT1, 2)
        b.I("s_add_u32", sT1, sT1, sW)
        b.I("s_mul_i32", sT1, sT1, slice_bytes // 16)
        b.I("s_add_u32", sT0, sT0, sT1)
        b.I("s_add_u32", S(45), sT0, hex(off[region]))
        b.I("v_lshlrev_b32", V(251), 7, vL)
    for q in range(n):
        def one(q=q):
            if q == 0: first()
            else: b.I("s_add_u32", S(45), S(45), 8192)
            b.I("buffer_load_dword", V(250), V(251), WS, S(45), mods="offen")
        ops.append(one)
    return ops

def dma_ops(b, ssrc, slds, n, sc):
    tags = []
    def one(q):
        if q == 0: b.I("s_mov_b32", "m0", slds)
        tags.append(b.I("buffer_load_dwordx4", vL16, WS, ssrc, mods=f"offen offset:{q * 1024} {sc} lds"))
    return [lambda q=q: one(q) for q in range(n)], tags

class XTile:
    NPW = [1, 3, 4, 4, 4, 4]
    U0 = [0, 4, 16, 32, 48, 64]
    def __init__(self, b, sX, lds_base, s0, s1):
        self.b = b; self.s0, self.s1 = s0, s1; self.tags = {}; self.sX = sX; self.lds = lds_base
    @classmethod
    def chunk_of_unit(cls, u): return max(c for c in range(6) if cls.U0[c] <= u)
    def ops(self, c):
        b = self.b; n = self.NPW[c]
        ops, tags = dma_ops(b, self.s0, self.s1, n, "sc1")
        self.tags[c] = tags
        first = ops[0]
        def head():
            if c <= 2:
                b.I("s_mul_i32", self.s0, sW, n * 1024)
                b.I("s_add_u32", self.s1, self.s0, self.lds + self.U0[c] * 1024)
                b.I("s_add_u32", self.s0, self.s0, self.sX)
                if c: b.I("s_add_u32", self.s0, self.s0, self.U0[c] * 1024)
            else:
                b.I("s_add_u32", self.s0, self.s0, 16384)
                b.I("s_add_u32", self.s1, self.s1, 16384)
            first()
        ops[0] = head
        return ops
    def wait(self, c):
        self.b.wait_vm_tag(self.tags[c][-1])
        self.b.barrier()

sLoc = S(46)
F_MASK = 49152
def arrive(b, uid):
    n0 = len(b.vm)
    b.I("s_cmp_lg_u32", sW, 0)
    b.I("s_cbranch_scc1", f"ARR_{uid}")
    snap = b.snapshot()
    b.I("v_mov_b32", vt0, 0); b.I("v_mov_b32", vt1, 1)
    b.I("s_mov_b64", "exec", 1)
    b.I("s_cmp_eq_u32", sLoc, 1)
    b.I("s_cbranch_scc1", f"ARRL_{uid}")
    b.I("buffer_wbl2", mods="sc1")
    b.wait(vm=0)
    b.I("buffer_atomic_add", vt1, vt0, WS, sFG, mods="offen sc1")
    b.I("s_branch", f"ARRX_{uid}")
    b.label(f"ARRL_{uid}")
    b.I("buffer_atomic_add", vt1, vt0, WS, sFG, mods="offen")
    b.label(f"ARRX_{uid}")
    b.I("s_mov_b64", "exec", -1)
    b.label(f"ARR_{uid}")
    b.restore(snap)
    b.clear_hist(); b.nop(1)

def window_poll(b, uid, window, grid=False, late=3):
    window = list(window)
    if EXP.get("nowin"): window = []
    late = min(late, len(window))
    for op in window[:len(window) - late]: op()
    vP, vA = V(254), V(253)
    soff = sP[9] if grid else sFG
    target = sGT if grid else sGS
    def issue():
        b.I("buffer_load_dword", vP, vA, WS, soff, mods="offen sc1")
        b.vm.pop()
    def test(lbl):
        b.I("v_cmp_le_u32", "vcc", target, vP)
        b.I("s_cmp_eq_u64", "vcc", "exec")
        b.I("s_cbranch_scc1", lbl)
    if grid:
        b.I("s_mov_b32", soff, hex(F_GRID))
        b.I("v_and_b32", vA, 7, vL)
        b.I("v_lshlrev_b32", vA, 8, vA)
    else: b.I("v_mov_b32", vA, 0)
    b.I("s_cmp_lg_u32", sW, 0)
    b.I("s_cbranch_scc1", f"PL0_{uid}")
    issue()
    b.label(f"PL0_{uid}")
    b.clear_hist()
    nt0 = b.ntag; nv0 = b.nvm
    for op in window[len(window) - late:]: op()
    late = b.nvm - nv0
    snap = b.snapshot()
    b.I("s_cmp_lg_u32", sW, 0)
    b.I("s_cbranch_scc1", f"POLLE_{uid}")
    b.wait(vm=late)
    b.I("s_mov_b32", sT2, 0)
    test(f"POLLD_{uid}")
    if EXP.get("pipe", 0):
        PR = [V(250), V(251), V(252), V(254)]
        def issue_r(r):
            b.I("buffer_load_dword", r, vA, WS, soff, mods="offen sc1")
            b.vm.pop()
        for n_, r in enumerate(PR):
            if n_: b.I("s_sleep", EXP.get("psleep", 1))
            issue_r(r)
        b.label(f"POLL_{uid}")
        for r in PR:
            b.wait(vm=3)
            b.I("v_cmp_le_u32", "vcc", target, r)
            b.I("s_cmp_eq_u64", "vcc", "exec")
            b.I("s_cbranch_scc1", f"POLLD_{uid}")
            issue_r(r)
        b.I("s_add_u32", sT2, sT2, 1)
        b.I("s_cmp_lt_u32", sT2, SPIN_MAX // 4)
        b.I("s_cbranch_scc1", f"POLL_{uid}")
    else:
        b.label(f"POLL_{uid}")
        issue()
        b.wait(vm=0)
        b.I("s_add_u32", sT2, sT2, 1)
        test(f"POLLD_{uid}")
        b.I("s_cmp_lt_u32", sT2, SPIN_MAX)
        b.I("s_cbranch_scc1", f"POLL_{uid}")
    b.label(f"POLLD_{uid}")
    if not grid:
        b.I("s_cmp_eq_u32", sLoc, 1)
        b.I("s_cbranch_scc1", f"POLLE_{uid}")
        b.I("buffer_inv", mods="sc1")
        b.wait(vm=0)
    b.label(f"POLLE_{uid}")
    b.restore(snap)
    b.clear_hist()
    b.barrier()

def arrive_wave(b, uid):
    snap = b.snapshot()
    b.I("v_mov_b32", vt0, 0); b.I("v_mov_b32", vt1, 1)
    b.I("s_mov_b64", "exec", 1)
    b.I("s_cmp_eq_u32", sLoc, 1)
    b.I("s_cbranch_scc1", f"ARRL_{uid}")
    b.I("buffer_wbl2", mods="sc1")
    b.wait(vm=0)
    b.I("buffer_atomic_add", vt1, vt0, WS, sFG, mods="offen sc1")
    b.I("s_branch", f"ARRX_{uid}")
    b.label(f"ARRL_{uid}")
    b.I("buffer_atomic_add", vt1, vt0, WS, sFG, mods="offen")
    b.label(f"ARRX_{uid}")
    b.I("s_mov_b64", "exec", -1)
    b.restore(snap)
    b.vm.append((("arr", uid), set()))
    b.clear_hist(); b.nop(1)

def group_sync(b, store_tag, uid, window):
    if EXP.get("wavearr", 0) and store_tag is not None:
        b.wait_vm_tag(store_tag)
        stamp(b, uid + "_drained")
        arrive_wave(b, uid)
        b.I("s_add_u32", sGS, sGS, 32)
        window_poll(b, uid, window)
        return
    window = list(window)
    if store_tag is not None:
        if EXP.get("early", 0):
            for op in window: op()
            window = []
        b.wait_vm_tag(store_tag)
        stamp(b, uid + "_drained")
        b.barrier()
    if EXP.get("wavearr", 0):
        arrive_wave(b, uid)
        b.I("s_add_u32", sGS, sGS, 32)
    else:
        arrive(b, uid)
        b.I("s_add_u32", sGS, sGS, 8)
    window_poll(b, uid, window)

def grid_arrive(b, store_tag, uid):
    b.wait_vm_tag(store_tag)
    b.barrier()
    b.I("s_add_u32", sGT, sGT, 32)
    b.I("s_cmp_lg_u32", sW, 0)
    b.I("s_cbranch_scc1", f"GA_{uid}")
    b.I("v_mov_b32", vt0, 0); b.I("v_mov_b32", vt1, 1)
    b.I("s_and_b32", sT0, sG, 7)
    b.I("s_lshl_b32", sT0, sT0, 8)
    b.I("s_add_u32", sT0, sT0, hex(F_GRID))
    b.I("s_mov_b64", "exec", 1)
    b.I("buffer_atomic_add", vt1, vt0, WS, sT0, mods="offen sc1")
    b.vm.pop()
    b.I("s_mov_b64", "exec", -1)
    b.label(f"GA_{uid}")
    b.clear_hist(); b.nop(1)

def xcd_publish(b):
    b.I("s_cmp_lg_u32", sW, 0)
    b.I("s_cbranch_scc1", "XP_END")
    b.I("s_getreg_b32", sT0, "hwreg(HW_REG_XCC_ID, 0, 4)")
    b.I("s_lshl_b32", sT0, 1, sT0)
    b.I("v_mov_b32", vt0, 0); b.I("v_mov_b32", vt1, sT0)
    b.I("s_add_u32", sT1, sFG, F_MASK)
    b.I("s_mov_b64", "exec", 1)
    b.I("buffer_atomic_or", vt1, vt0, WS, sT1, mods="offen sc1")
    b.vm.pop()
    b.I("s_mov_b64", "exec", -1)
    b.label("XP_END")
    b.clear_hist(); b.nop(1)
def xcd_mask_load(b):
    b.I("v_mov_b32", vt0, 0)
    b.I("s_add_u32", sT1, sFG, F_MASK)
    b.I("buffer_load_dword", V(252), vt0, WS, sT1, mods="offen sc1")
def xcd_mask_use(b):
    b.I("v_readfirstlane_b32", sT0, V(252))
    b.I("s_bcnt1_i32_b32", sT0, sT0)
    b.I("s_cmp_eq_u32", sT0, 1)
    b.I("s_cselect_b32", sLoc, 1, 0)

LDS_STX = 83968
class Stats:
    def __init__(self, b, region, regs):
        self.b = b; self.R = regs
        sS = self.sS = sP[1]
        b.I("s_lshl_b32", sS, sG, 12)
        b.I("s_add_u32", sS, sS, sLO)
        b.I("s_lshl_b32", sT0, sW, 10)
        b.I("s_add_u32", sS, sS, sT0)
        b.I("s_add_u32", sS, sS, hex(off[region]))
        self.va = V(regs.i + 8); self.vw = V(regs.i + 9)
        b.I("v_lshlrev_b32", self.va, 3, vL)
        b.I("s_lshl_b32", sT0, sW, 9)
        b.I("v_add_u32", self.vw, sT0, self.va)
        b.I("v_add_u32", self.vw, LDS_STX, self.vw)
    def load(self):
        for q in range(2): self.b.I("buffer_load_dwordx2", self.R[2 * q:2 * q + 2], self.va, WS, self.sS, mods=f"offen offset:{q * 512} sc1")
    def publish(self):
        b = self.b
        pk(b, "v_pk_add_f32", self.R[0:2], self.R[0:2], self.R[2:4])
        self.tag = b.I("ds_write_b64", self.vw, self.R[0:2])
        b.I("v_add_u32", self.va, LDS_STX, self.va)
    def before_barrier(self): self.b.wait_lg_tag(self.tag)
    def fill(self, f, mean, rstd):
        b = self.b
        for q in range(4): f.add(12, lambda q=q: b.I("ds_read_b64", self.R[2 * q:2 * q + 2], self.va, mods=f"offset:{q * 512}"))
        f.add(60, lambda: None)
        f.v(b, "v_pk_add_f32", self.R[0:2], self.R[0:2], self.R[2:4])
        f.v(b, "v_pk_add_f32", self.R[4:6], self.R[4:6], self.R[6:8])
        f.v(b, "v_pk_add_f32", self.R[0:2], self.R[0:2], self.R[4:6])
        f.v(b, "v_mul_f32", mean, hex(f2u(1.0 / 640)), self.R[0])
        f.v(b, "v_mul_f32", rstd, hex(f2u(1.0 / 640)), self.R[1])
        f.v(b, "v_fma_f32", rstd, f"-{mean}", mean, rstd)
        f.v(b, "v_max_f32", rstd, 0, rstd)
        f.v(b, "v_add_f32", rstd, hex(f2u(1e-5)), rstd)
        f.add(8, lambda: b.I("v_rsq_f32", rstd, rstd))

def pk(b, op, d, *src, mods=""): b.I(op, d, *src, mods=mods)

def qkv_start(b):
    sX, sD0, sD1 = sP[0], sP[2], sP[3]
    b.I("s_add_u32", sX, sBX, hex(off["XB0"]))
    xt = XTile(b, sX, LDS_X, sD0, sD1)
    for c in range(3):
        for op in xt.ops(c): op()
    return xt
def qkv(b, xt):
    uid = "q"
    sX, sSt, sD0, sD1, sSc = sP[0], sP[1], sP[2], sP[3], sP[4]
    st = Stats(b, "STI0", V(VB, 8))
    st.load()
    ACC = [V(64, 16), V(80, 16)]
    XF = [[V(96 + 8 * p + 4 * th, 4) for th in range(2)] for p in range(4)]
    vXa, vXb = V(VB + 16), V(VB + 17)
    mean, rstd = V(VB + 18), V(VB + 19)
    mT = [V(VB + 20, 2), V(VB + 22, 2)]; rT = [V(VB + 24, 2), V(VB + 26, 2)]
    rq, rm = [V(VB + 28, 2), V(VB + 30, 2)], [V(VB + 32, 2), V(VB + 34, 2)]
    vkey, vh, vaT, vaU, vaT1, vaU1 = (V(VB + 36 + i) for i in range(6))
    CS = V(128, 16)
    b.I("v_add_u32", vXa, LDS_X, vX32)
    b.I("v_add_u32", vXb, LDS_X + 65536, vX32)
    b.I("v_lshrrev_b32", vt0, 5, vL)
    b.I("v_lshlrev_b32", vt0, 4, vt0)
    b.I("s_lshl_b32", sT0, sW, 7)
    b.I("v_add_u32", vt0, sT0, vt0)
    b.I("v_add_u32", vt0, T_CSQ, vt0)
    for c in range(4): b.I("ds_read_b128", CS[4 * c:4 * c + 4], vt0, mods=f"offset:{32 * c}")
    b.I("v_and_b32", vkey, 31, vL)
    b.I("v_lshrrev_b32", vh, 5, vL)
    b.I("s_and_b32", sT0, sW, 1)
    b.I("s_mul_i32", sT0, sT0, 3)
    b.I("v_mov_b32", vaT, sT0)
    b.I("v_add_u32", vaU, 1, vh)
    b.I("v_add_u32", vaU, sT0, vaU)
    b.I("s_cmp_ge_u32", sW, 2)
    b.I("s_cbranch_scc1", f"QKV_AV_{uid}")
    for va in (vaT, vaU):
        b.I("v_lshrrev_b32", vt0, 1, va)
        b.I("v_lshlrev_b32", vt0, 9, vt0)
        b.I("v_and_b32", vt1, 1, va)
        b.I("v_lshl_add_u32", vt0, vt1, 3, vt0)
        b.I("v_lshl_add_u32", vt0, vkey, 4, vt0)
        b.I("v_lshlrev_b32", vt1, 3, vkey)
        b.I("v_add_u32", vt1, 1024, vt1)
        b.I("v_cmp_eq_u32", "vcc", 4, va)
        b.I("v_cndmask_b32", vt0, vt0, vt1, "vcc")
        b.I("v_add_u32", vt0, LDS_KVIMG, vt0)
        b.I("v_cmp_lt_u32", "vcc", 4, va)
        b.I("v_mov_b32", vt1, PARK)
        b.I("v_cndmask_b32", va, vt0, vt1, "vcc")
    b.I("s_branch", f"QKV_AJ_{uid}")
    b.label(f"QKV_AV_{uid}")
    b.I("v_lshrrev_b32", vt0, 4, vkey)
    b.I("v_mul_u32_u24", vt0, 768, vt0)
    b.I("v_bfe_u32", vt1, vkey, 2, 1)
    b.I("v_mul_u32_u24", vt1, 384, vt1)
    b.I("v_add_u32", vt0, vt0, vt1)
    b.I("v_and_b32", vt1, 3, vkey)
    b.I("v_lshl_add_u32", vt0, vt1, 1, vt0)
    b.I("v_bfe_u32", vt1, vkey, 3, 1)
    b.I("v_lshl_add_u32", vt0, vt1, 3, vt0)
    b.I("v_add_u32", vt3, LDS_KVIMG + 1536, vt0)
    for va in (vaT, vaU):
        b.I("v_lshl_add_u32", vt0, va, 6, vt3)
        b.I("v_cmp_lt_u32", "vcc", 4, va)
        b.I("v_mov_b32", vt1, PARK)
        b.I("v_cndmask_b32", va, vt0, vt1, "vcc")
    ONE = V(144, 4)
    b.I("v_and_b32", vt0, 3, vL)
    b.I("v_mul_u32_u24", vt0, 384, vt0)
    b.I("v_bfe_u32", vt1, vL, 2, 1)
    b.I("v_mul_u32_u24", vt1, 3072, vt1)
    b.I("v_add_u32", vt0, vt0, vt1)
    b.I("v_add_u32", vt0, LDS_KVIMG + 1536 + 320, vt0)
    for e in range(4): b.I("v_mov_b32", ONE[e], "0x3f803f80")
    b.I("ds_write_b128", vt0, ONE)
    b.I("v_lshlrev_b32", vt0, 3, vkey)
    b.I("v_mul_u32_u24", vt1, 3072, vh)
    b.I("v_add_u32", vt0, vt0, vt1)
    b.I("v_add_u32", vt0, LDS_KVIMG + 1280, vt0)
    b.I("v_mov_b32", V(148), "0x3f803f80"); b.I("v_mov_b32", V(149), "0x00003f80")
    b.I("ds_write_b64", vt0, V(148, 2))
    b.label(f"QKV_AJ_{uid}")
    b.clear_hist(); b.nop(1)
    b.I("v_cmp_gt_u32", "vcc", 32, vL)
    b.I("v_mov_b32", vt1, PARK)
    b.I("v_cndmask_b32", vaT, vaT, vt1, "vcc")
    for va, va1 in ((vaT, vaT1), (vaU, vaU1)):
        b.I("v_add_u32", vt0, 3072, va)
        b.I("v_cmp_eq_u32", "vcc", va, vt1)
        b.I("v_cndmask_b32", va1, vt0, va, "vcc")
    NPRE = EXP.get("npre", 20)
    rest = list(range(NPRE, 40))
    n0 = max(0, 24 - NPRE)
    q0, rest = rest[:n0], rest[n0:]
    q1, rest = rest[:4], rest[4:]
    q2, rest = rest[:6], rest[6:]
    W_ = lambda fr: wops(b, sWQ, fr) if fr else []
    mem = {0: xt.ops(3) + W_(q0), 1: [st.publish] + W_(q1) + xt.ops(4),
           2: xt.ops(5) + W_(q2), 3: W_(rest), 4: []}
    z = Fill()
    for i in range(32, 128): z.v(b, "v_accvgpr_write_b32", A(i), 0)
    f = Fill()
    st.fill(f, mean, rstd)
    f.v(b, "v_mov_b32", mT[0][0], mean); f.v(b, "v_mov_b32", mT[1][0], mean)
    f.v(b, "v_mov_b32", rT[0][0], rstd); f.v(b, "v_mov_b32", rT[1][0], rstd)
    f.v(b, "v_permlane32_swap_b32", mT[0][0], mT[1][0]); f.v(b, "v_permlane32_swap_b32", rT[0][0], rT[1][0])
    f.add(4, lambda: b.I("s_mov_b32", sSc, hex(f2u(math.log2(math.e) / math.sqrt(20.0)))))
    f.add(4, lambda: b.I("v_cmp_gt_u32", S(48, 2), 32, vL))
    for th in range(2):
        f.v(b, "v_mul_f32", rq[th][0], sSc, rT[th][0])
        f.v(b, "v_cndmask_b32", rm[th][0], rT[th][0], rq[th][0], S(48, 2))
    def xread(s_, th):
        o = s_ * 2048 + th * 512
        base, o = (vXa, o) if o < 65536 else (vXb, o - 65536)
        b.I("ds_read_b128", XF[s_ % 4][th], base, mods=f"offset:{o}")
    stamp(b, "q_pre")
    landed = set()
    def ensure(step):
        c_ = XTile.chunk_of_unit(2 * step + 1)
        if c_ not in landed:
            if c_ == 3: st.before_barrier()
            xt.wait(c_); landed.add(c_)
            stamp(b, f"q_c{c_}")
    ensure(0)
    for th in range(2): xread(0, th)
    for th in range(2): xread(1, th)
    for c in range(5):
        m = list(mem[c])
        k = 0
        for s_ in range(8 * c, 8 * c + 8):
            if s_ + 2 < 40: ensure(s_ + 2)
            b.need(XF[s_ % 4][0], XF[s_ % 4][1], slot(s_))
            for th in range(2):
                b.I("v_mfma_f32_32x32x16_bf16", ACC[th], slot(s_), XF[s_ % 4][th], (0 if s_ == 0 else ACC[th]))
                if s_ + 2 < 40: xread(s_ + 2, th)
                if m and (k % 4 != 0 or len(m) > 15 - k): m.pop(0)()
                else: z.run(8)
                if c >= 3: f.run(8)
                k += 1
        for op in m: op()
    f.flush(); z.flush()
    stamp(b, "q_mm")
    PK = [V(152, 2), V(154, 2)]
    for th in range(2):
        for i in range(8, 16, 2):
            pk(b, "v_pk_fma_f32", ACC[th][i:i + 2], mT[th], CS[i:i + 2], ACC[th][i:i + 2], mods="op_sel_hi:[0,1,1] neg_lo:[1,0,0] neg_hi:[1,0,0]")
        for i in range(8, 16, 2):
            pk(b, "v_pk_mul_f32", ACC[th][i:i + 2], ACC[th][i:i + 2], (rm[th] if i < 12 else rT[th]), mods="op_sel_hi:[1,0]")
        for q in range(2): b.I("v_cvt_pk_bf16_f32", QT[th][q], ACC[th][8 + 2 * q], ACC[th][9 + 2 * q])
        for q in range(2): b.I("v_cvt_pk_bf16_f32", PK[th][q], ACC[th][12 + 2 * q], ACC[th][13 + 2 * q])
    b.I("s_cmp_ge_u32", sW, 2)
    b.I("s_cbranch_scc1", f"QKV_V_{uid}")
    for th in range(2):
        b.I("ds_write_b64", (vaT, vaT1)[th], QT[th])
        b.I("ds_write_b64", (vaU, vaU1)[th], PK[th])
    b.I("s_branch", f"QKV_J_{uid}")
    b.label(f"QKV_V_{uid}")
    for th in range(2):
        for va, rr in (((vaT, vaT1)[th], QT[th]), ((vaU, vaU1)[th], PK[th])):
            for q in range(2):
                b.I("ds_write_b16", va, rr[q], mods=f"offset:{32 * q}")
                b.I("ds_write_b16_d16_hi", va, rr[q], mods=f"offset:{32 * q + 16}")
    b.label(f"QKV_J_{uid}")
    b.clear_hist()
    IM = V(144, 4)
    b.I("s_mul_i32", sT0, sJ, 768)
    b.I("v_add_u32", vt0, sT0, vL16)
    b.I("v_add_u32", vt2, LDS_KVIMG, vt0)
    b.I("s_cmp_eq_u32", sW, 0)
    b.I("s_cselect_b32", sT1, 48, 0)
    b.I("v_cmp_gt_u32", "vcc", sT1, vL)
    b.I("v_mov_b32", vt1, hex(OOB))
    b.I("v_cndmask_b32", vt0, vt1, vt0, "vcc")
    b.I("s_mul_i32", sT0, sG, 6144)
    b.I("s_add_u32", sT0, sT0, sLO)
    b.I("s_add_u32", sT0, sT0, hex(off["KV0"]))
    b.wait(lg=0)
    b.barrier()
    b.I("ds_read_b128", IM, vt2)
    tag = b.I("buffer_store_dwordx4", IM, vt0, WS, sT0, mods="offen sc1")
    stamp(b, "q_kv")
    for th in range(2):
        for i in range(0, 8, 2):
            pk(b, "v_pk_fma_f32", ACC[th][i:i + 2], mT[th], CS[i:i + 2], ACC[th][i:i + 2], mods="op_sel_hi:[0,1,1] neg_lo:[1,0,0] neg_hi:[1,0,0]")
        for i in range(0, 8, 2):
            pk(b, "v_pk_mul_f32", ACC[th][i:i + 2], ACC[th][i:i + 2], rq[th], mods="op_sel_hi:[1,0]")
        for q in range(4): b.I("v_cvt_pk_bf16_f32", QM[th][q], ACC[th][2 * q], ACC[th][2 * q + 1])
    return tag

def attention(b):
    uid = "a"
    A2.attn_pre(b, "p", trailing_barrier=False)
    for i in range(32): b.I("v_accvgpr_write_b32", A(i), 0)
    GW = EXP.get("gw", 8)
    window_poll(b, "gw", wops(b, sW1, range(0, GW)), grid=True)
    xcd_mask_load(b)
    stamp(b, "grid_ok")
    sWo, sWl = sP[5], sP[6]
    def on_run():
        b.I("s_mul_i32", sWo, sJ, 102400)
        b.I("s_mul_i32", sT0, sW, 3072)
        b.I("s_add_u32", sWo, sWo, sT0)
        b.I("s_add_u32", sWo, sWo, hex(off["WOP"]))
        b.I("s_add_u32", sWl, sT0, LDS_WO)
    def wo():
        ops, _ = dma_ops(b, sWo, sWl, 3, "")
        for op in ops: op()
        b.I("s_add_u32", sWo, sWo, 12288)
        b.I("s_add_u32", sWl, sWl, 12288)
    tag = A2.attn_main2(b, uid, wo, on_run, last_extra=wops(b, sW1, range(GW, 32)), freed=lambda a: wops(b, sW1, range(4 * a + 32, 4 * a + 36)), store_sc="", sBX_=sBX, own_freed=(wops(b, sW1, range(32, 40)) if EXP.get("own", 0) else []), after_store=((wops(b, sW1, range(56, 60)) + wops(b, sW1, range(32, 40))) if EXP.get("early", 0) else None))
    xcd_mask_use(b)

def wo_rest(b):
    b.I("s_mul_i32", sT0, sJ, 102400)
    b.I("s_lshl_b32", sT1, sW, 12)
    b.I("s_add_u32", sT0, sT0, sT1)
    b.I("s_add_u32", sT0, sT0, hex(off["WOP"] + 84 * 1024))
    b.I("s_add_u32", sT1, sT1, LDS_WO + 84 * 1024)
    ops, tags = dma_ops(b, sT0, sT1, 4, "")
    for op in ops: op()
    return tags[-1]

def resid_epi(b, ACC, RES, BI, sdst, sstat, out_natural=None):
    U = V(VB + 4, 2)
    ssum, ssq = V(VB, 2), V(VB + 2, 2)
    tA, tB = vt0, vt1
    for fb in range(5):
        for q in range(2):
            b.I("v_lshlrev_b32", U[0], 16, RES[fb][q])
            b.I("v_and_b32", U[1], "0xffff0000", RES[fb][q])
            pk(b, "v_pk_add_f32", ACC[fb][2 * q:2 * q + 2], ACC[fb][2 * q:2 * q + 2], U)
            if BI is not None: pk(b, "v_pk_add_f32", ACC[fb][2 * q:2 * q + 2], ACC[fb][2 * q:2 * q + 2], BI[4 * fb + 2 * q:4 * fb + 2 * q + 2])
        for q in range(2): b.I("v_cvt_pk_bf16_f32", RES[fb][q], ACC[fb][2 * q], ACC[fb][2 * q + 1])
        if out_natural is not None:
            b.I("buffer_store_dwordx2", RES[fb], out_natural, OUT, sdst, mods=f"offen offset:{32 * fb}")
            continue
        if fb in (2, 4): b.I("s_add_u32", sdst, sdst, 4096)
        b.I("buffer_store_dwordx2", RES[fb], vEpi, WS, sdst, mods=f"offen offset:{(fb % 2) * 2048}")
        for q in range(2):
            a2 = ACC[fb][2 * q:2 * q + 2]
            if fb == 0 and q == 0:
                pk(b, "v_pk_mul_f32", ssq, a2, a2); b.I("v_mov_b32", ssum[0], a2[0]); b.I("v_mov_b32", ssum[1], a2[1])
            else:
                pk(b, "v_pk_add_f32", ssum, ssum, a2); pk(b, "v_pk_fma_f32", ssq, a2, a2, ssq)
    if out_natural is not None: return None
    b.I("v_add_f32", ssum[0], ssum[0], ssum[1])
    b.I("v_add_f32", ssum[1], ssq[0], ssq[1])
    for r in (ssum[0], ssum[1]):
        b.I("v_mov_b32", tA, r)
        b.I("v_permlane16_swap_b32", r, tA)
        b.I("v_add_f32", r, r, tA)
        b.I("v_mov_b32", tA, r)
        b.I("v_permlane32_swap_b32", r, tA)
        b.I("v_add_f32", r, r, tA)
    return b.I("buffer_store_dwordx2", ssum, V(VB + 6), WS, sstat, mods="offen")

def stat_addr(b):
    b.I("v_lshlrev_b32", vt0, 3, vL)
    b.I("v_cmp_gt_u32", "vcc", 16, vL)
    b.I("v_mov_b32", vt1, hex(OOB))
    b.I("v_cndmask_b32", V(VB + 6), vt1, vt0, "vcc")

def resid_ops(b, sbase, RES):
    ops = []
    for fb in range(5):
        def one(fb=fb):
            if fb in (2, 4): b.I("s_add_u32", sbase, sbase, 4096)
            b.I("buffer_load_dwordx2", RES[fb], vEpi, WS, sbase, mods=f"offen offset:{(fb % 2) * 2048} sc1")
        ops.append(one)
    return ops

def oproj(b):
    sO, sRes, sTB, sDst, sSt = sP[0], sP[1], sP[2], sP[3], sP[4]
    XF = [[V(64 + 8 * s_ + 4 * a, 4) for a in range(2)] for s_ in range(10)]
    ACC = [[V(144 + 20 * a + 4 * fb, 4) for fb in range(5)] for a in range(2)]
    WF = [[V(184 + 20 * p + 4 * fb, 4) for fb in range(5)] for p in range(2)]
    RES = RESID
    vXa = [V(VB + 30), V(VB + 31)]; vWa = V(VB + 32); vR = V(VB + 33); vR2 = V(VB + 34)
    b.I("s_and_b32", sT0, sW, 1)
    b.I("s_lshr_b32", sT1, sW, 1)
    b.I("s_lshl_b32", sT0, sT0, 1)
    b.I("s_add_u32", sTB, sT0, sT1)
    b.I("s_xor_b32", sT2, sTB, 1)
    b.I("s_lshl_b32", sT3, sTB, 8)
    b.I("v_add_u32", vXa[0], sT3, vX16)
    b.I("s_lshl_b32", sT2, sT2, 8)
    b.I("v_add_u32", vXa[1], sT2, vX16)
    b.I("s_mul_i32", sT1, sT1, 40960)
    b.I("s_add_u32", sO, sBX, sT1)
    b.I("s_add_u32", sO, sO, hex(off["O0"]))
    def xload(s_):
        for a in range(2): b.I("buffer_load_dwordx4", XF[s_][a], vXa[a], WS, sO, mods="offen sc1")
        if s_ < 9: b.I("s_add_u32", sO, sO, 4096)
    def xops(s_):
        return [lambda: b.I("buffer_load_dwordx4", XF[s_][0], vXa[0], WS, sO, mods="offen sc1"),
                lambda: (b.I("buffer_load_dwordx4", XF[s_][1], vXa[1], WS, sO, mods="offen sc1"), b.I("s_add_u32", sO, sO, 4096))]
    OL = EXP.get("olead", 5)
    for s_ in range(OL): xload(s_)
    b.I("s_mul_i32", sT0, sJ, 10240)
    b.I("s_add_u32", sT0, sT0, sT3)
    b.I("s_add_u32", sRes, sBX, sT0)
    b.I("s_add_u32", sDst, sRes, hex(off["X10"]))
    b.I("v_lshrrev_b32", vt0, 4, vL)
    b.I("v_mul_u32_u24", vt0, 1280, vt0)
    b.I("v_and_b32", vt1, 15, vL)
    b.I("v_lshl_add_u32", vWa, vt1, 4, vt0)
    b.I("s_lshr_b32", sT1, sW, 1)
    b.I("s_mul_i32", sT1, sT1, 51200)
    b.I("v_add_u32", vWa, sT1, vWa)
    b.I("v_add_u32", vWa, LDS_WO, vWa)
    b.I("s_mul_i32", sT0, sW, 5120)
    b.I("v_add_u32", vR, sT0, vL16)
    b.I("v_add_u32", vR, LDS_RED_O, vR)
    b.I("s_xor_b32", sT0, sW, 2)
    b.I("s_mul_i32", sT0, sT0, 5120)
    b.I("v_add_u32", vR2, sT0, vL16)
    b.I("v_add_u32", vR2, LDS_RED_O, vR2)
    b.I("s_lshl_b32", sSt, sG, 12)
    b.I("s_add_u32", sSt, sSt, sLO)
    b.I("s_lshl_b32", sT0, sJ, 9)
    b.I("s_add_u32", sSt, sSt, sT0)
    b.I("s_lshl_b32", sT0, sTB, 7)
    b.I("s_add_u32", sSt, sSt, sT0)
    b.I("s_add_u32", sSt, sSt, hex(off["ST10"]))
    stat_addr(b)
    def wread(s_, fb): b.I("ds_read_b128", WF[s_ % 2][fb], vWa, mods=f"offset:{s_ * 5120 + fb * 256}")
    for fb in range(5): wread(0, fb)
    stamp(b, "o_pre")
    for s_ in range(10):
        m = (xops(s_ + OL) if s_ + OL < 10 else [])
        if s_ == 6: m = m + l2_warm(b, "W2P", 245760)
        order = [(fb, a) for fb in range(5) for a in range(2)] if s_ < 9 else [(fb, 1) for fb in range(5)] + [(fb, 0) for fb in range(5)]
        b.need(*WF[s_ % 2], *XF[s_])
        for k, (fb, a) in enumerate(order):
            b.I("v_mfma_f32_16x16x32_bf16", ACC[a][fb], WF[s_ % 2][fb], XF[s_][a], (0 if s_ == 0 else ACC[a][fb]))
            if s_ < 9 and k < 5: wread(s_ + 1, k)
            if m and k in (5, 7): m.pop(0)()
            if s_ == 9 and k >= 7: b.I("ds_write_b128", vR, ACC[1][k - 7], mods=f"offset:{(k - 7) * 1024}")
        for op in m: op()
        if s_ == 0: stamp(b, "o_s0")
    for fb in (3, 4): b.I("ds_write_b128", vR, ACC[1][fb], mods=f"offset:{fb * 1024}")
    stamp(b, "o_mm")
    b.wait(lg=0)
    b.barrier()
    for fb in range(5): b.I("ds_read_b128", WF[0][fb], vR2, mods=f"offset:{fb * 1024}")
    for fb in range(5):
        for q in range(2): pk(b, "v_pk_add_f32", ACC[0][fb][2 * q:2 * q + 2], ACC[0][fb][2 * q:2 * q + 2], WF[0][fb][2 * q:2 * q + 2])
    stamp(b, "o_red")
    return resid_epi(b, ACC[0], RES, None, sDst, sSt)

def ffn1(b):
    sX, sSt, sH, sD0, sD1 = sP[0], sP[1], sP[2], sP[5], sP[6]
    b.I("s_add_u32", sX, sBX, hex(off["X10"]))
    xt = XTile(b, sX, LDS_X, sD0, sD1)
    for c in range(3):
        for op in xt.ops(c): op()
    st = Stats(b, "ST10", V(VB, 8))
    st.load()
    ACC = [[V(64 + 16 * fb + 4 * tb, 4) for tb in range(4)] for fb in range(3)]
    XF = [[V(112 + 16 * p + 4 * tb, 4) for tb in range(4)] for p in range(2)]
    vXa, vXb = V(VB + 16), V(VB + 17)
    mean, rstd = V(VB + 18), V(VB + 19)
    MR = [V(176 + 2 * i, 2) for i in range(4)]; RS = [V(184 + 2 * i, 2) for i in range(4)]
    CS = V(144, 12); BI = V(156, 12)
    b.I("v_add_u32", vXa, LDS_X, vX16)
    b.I("v_add_u32", vXb, LDS_X + 65536, vX16)
    b.I("v_lshrrev_b32", vt0, 4, vL)
    b.I("v_lshlrev_b32", vt0, 4, vt0)
    b.I("s_mul_i32", sT0, sW, 192)
    b.I("v_add_u32", vt0, sT0, vt0)
    b.I("v_add_u32", vt1, T_CS1, vt0)
    b.I("v_add_u32", vt2, T_B1, vt0)
    for fb in range(3):
        b.I("ds_read_b128", CS[4 * fb:4 * fb + 4], vt1, mods=f"offset:{64 * fb}")
        b.I("ds_read_b128", BI[4 * fb:4 * fb + 4], vt2, mods=f"offset:{64 * fb}")
    b.I("s_mul_i32", sH, sG, 196608)
    b.I("s_add_u32", sH, sH, sLO)
    b.I("s_mul_i32", sT0, sJ, 24576)
    b.I("s_add_u32", sH, sH, sT0)
    b.I("s_mul_i32", sT0, sW, 6144)
    b.I("s_add_u32", sH, sH, sT0)
    b.I("s_add_u32", sH, sH, hex(off["H0"]))
    c0 = -2.0 * math.sqrt(2.0 / math.pi) * math.log2(math.e)
    sC = S(50, 2)
    vC0 = V(192, 2)
    b.I("s_mov_b32", sC[0], hex(f2u(c0 * 0.044715)))
    b.I("v_mov_b32", vC0[0], hex(f2u(c0)))
    f = Fill()
    st.fill(f, mean, rstd)
    f.v(b, "v_mul_f32", mean, mean, rstd)
    for src, d4 in ((mean, MR), (rstd, RS)):
        d = [x[0] for x in d4]
        f.v(b, "v_mov_b32", d[0], src); f.v(b, "v_mov_b32", d[2], src)
        f.v(b, "v_permlane32_swap_b32", d[0], d[2])
        f.v(b, "v_mov_b32", d[1], d[0]); f.v(b, "v_mov_b32", d[3], d[2])
        f.v(b, "v_permlane16_swap_b32", d[0], d[1]); f.v(b, "v_permlane16_swap_b32", d[2], d[3])
    def xread(s_, tb):
        o = s_ * 4096 + tb * 256
        base, o = (vXa, o) if o < 65536 else (vXb, o - 65536)
        b.I("ds_read_b128", XF[s_ % 2][tb], base, mods=f"offset:{o}")
    stamp(b, "f_pre")
    mem = []
    NW2 = EXP.get('nw2', 52)
    w2q = wops(b, sW2, range(0, NW2)); w2n = 0; NM_ = EXP.get('nm', 52)
    landed = set()
    def ensure(step):
        c_ = XTile.chunk_of_unit(4 * step + 3)
        if c_ not in landed:
            if c_ == 3: st.before_barrier()
            xt.wait(c_); landed.add(c_)
            stamp(b, f"f_c{c_}")
    ensure(0)
    for tb in range(4): xread(0, tb)
    for c in range(5):
        if c + 3 < 6: mem += xt.ops(c + 3)
        if c == 4: mem += l2_warm(b, "WQP", 163840)
        for s_ in range(4 * c, 4 * c + 4):
            if s_ == 5: st.publish()
            if s_ + 1 < 20: ensure(s_ + 1)
            k = 0
            b.need(*XF[s_ % 2], slot(3 * s_), slot(3 * s_ + 1), slot(3 * s_ + 2))
            for fb in range(3):
                for tb in range(4):
                    b.I("v_mfma_f32_16x16x32_bf16", ACC[fb][tb], slot(3 * s_ + fb), XF[s_ % 2][tb], (0 if s_ == 0 else ACC[fb][tb]))
                    if k < 4 and s_ + 1 < 20: xread(s_ + 1, k)
                    elif k in ((5, 8, 11) if EXP.get("slots3", 1) else (6, 10)):
                        if mem: mem.pop(0)()
                        elif w2n < min(NM_, 3 * s_ + (k + 1) // 4): w2q[w2n](); w2n += 1
                    elif c >= 2 and f.q: f.run(5)
                    k += 1
    for op in mem: op()
    f.flush()
    stamp(b, "f_mm")
    T = [V(168 + 2 * i, 2) for i in range(4)]
    tag = None
    for fb in range(3):
        for tp in range(2):
            el = [(ACC[fb][2 * tp + u][2 * q:2 * q + 2], T[2 * u + q], 2 * tp + u, q) for u in range(2) for q in range(2)]
            for a, t, tb, q in el: pk(b, "v_pk_fma_f32", t, MR[tb], CS[4 * fb + 2 * q:4 * fb + 2 * q + 2], BI[4 * fb + 2 * q:4 * fb + 2 * q + 2], mods="op_sel_hi:[0,1,1] neg_lo:[1,0,0] neg_hi:[1,0,0]")
            for a, t, tb, q in el: pk(b, "v_pk_fma_f32", a, RS[tb], a, t, mods="op_sel_hi:[0,1,1]")
            for a, t, tb, q in el: pk(b, "v_pk_mul_f32", t, a, a)
            for a, t, tb, q in el: pk(b, "v_pk_fma_f32", t, t, sC, vC0, mods="op_sel_hi:[1,0,0]")
            for a, t, tb, q in el: pk(b, "v_pk_mul_f32", t, t, a)
            for _ in range(2):
                if w2n < NW2: w2q[w2n](); w2n += 1
            for a, t, tb, q in el:
                for e in range(2): b.I("v_exp_f32", t[e], t[e])
            if w2n < NW2: w2q[w2n](); w2n += 1
            for a, t, tb, q in el: pk(b, "v_pk_add_f32", t, t, 1.0, mods="op_sel_hi:[1,0]")
            for a, t, tb, q in el:
                for e in range(2): b.I("v_rcp_f32", t[e], t[e])
            for a, t, tb, q in el: pk(b, "v_pk_mul_f32", a, a, t)
            for _ in range(2):
                if w2n < NW2: w2q[w2n](); w2n += 1
            for u in range(2):
                a4 = ACC[fb][2 * tp + u]
                for q in range(2): b.I("v_cvt_pk_bf16_f32", a4[q], a4[2 * q], a4[2 * q + 1])
                tag = b.I("buffer_store_dwordx2", a4[0:2], vEpi, WS, sH, mods=f"offen offset:{(2 * tp + u) * 256}")
        if fb < 2: b.I("s_add_u32", sH, sH, 2048)
    while w2n < NW2: w2q[w2n](); w2n += 1
    return tag

def ffn2(b):
    sH, sRes, sDst, sSt, sH9 = sP[0], sP[1], sP[2], sP[3], sP[4]
    NB = 6
    XF = [[V(64 + 16 * p + 4 * a, 4) for a in range(4)] for p in range(NB)]
    ACC = [[V(160 + 20 * a + 4 * fb, 4) for fb in range(5)] for a in range(4)]
    RES = RESID
    BI = V(64, 20)
    vXa = [V(VB + 26 + a) for a in range(4)]
    vRw = [V(VB + 30 + a) for a in range(3)]; vRr = V(VB + 33); vB2 = V(VB + 34)
    sTB = sP[5]
    for a in range(4):
        b.I("s_add_u32", sT0, sW, a)
        b.I("s_and_b32", sT1, sT0, 1)
        b.I("s_lshl_b32", sT1, sT1, 1)
        b.I("s_bfe_u32", sT0, sT0, "0x10001")
        b.I("s_or_b32", sT0, sT0, sT1)
        if a == 0: b.I("s_mov_b32", sTB, sT0)
        b.I("s_lshl_b32", sT0, sT0, 8)
        b.I("v_add_u32", vXa[a], sT0, vX16)
    b.I("s_mul_i32", sH, sG, 196608)
    b.I("s_add_u32", sH, sH, sLO)
    b.I("s_mul_i32", sT0, sW, 49152)
    b.I("s_add_u32", sH, sH, sT0)
    b.I("s_add_u32", sH, sH, hex(off["H0"]))
    def xops(s_):
        ops = [lambda a=a: b.I("buffer_load_dwordx4", XF[s_ % NB][a], vXa[a], WS, sH, mods="offen sc1") for a in range(3)]
        ops.append(lambda: (b.I("buffer_load_dwordx4", XF[s_ % NB][3], vXa[3], WS, sH, mods="offen sc1"), b.I("s_add_u32", sH, sH, 4096)))
        return ops
    GL = EXP.get("glead", 2)
    for s_ in range(GL):
        for op in xops(s_): op()
    b.I("s_mul_i32", sT0, sJ, 10240)
    b.I("s_add_u32", sRes, sBX, sT0)
    b.I("s_lshl_b32", sT0, sTB, 8)
    b.I("s_add_u32", sRes, sRes, sT0)
    b.I("s_add_u32", sDst, sRes, hex(off["XB0"] + LS))
    b.I("v_lshrrev_b32", vt0, 4, vL)
    b.I("v_lshlrev_b32", vt0, 4, vt0)
    b.I("v_add_u32", vB2, T_B2, vt0)
    for a in range(1, 4):
        b.I("s_add_u32", sT0, sW, a)
        b.I("s_and_b32", sT0, sT0, 3)
        b.I("s_mul_i32", sT0, sT0, 15360)
        b.I("s_add_u32", sT0, sT0, LDS_RED_F + (a - 1) * 5120)
        b.I("v_add_u32", vRw[a - 1], sT0, vL16)
    b.I("s_mul_i32", sT0, sW, 15360)
    b.I("s_add_u32", sT0, sT0, LDS_RED_F)
    b.I("v_add_u32", vRr, sT0, vL16)
    b.I("s_lshl_b32", sSt, sG, 12)
    b.I("s_lshl_b32", sT0, sJ, 9)
    b.I("s_add_u32", sSt, sSt, sT0)
    b.I("s_lshl_b32", sT0, sTB, 7)
    b.I("s_add_u32", sSt, sSt, sT0)
    b.I("s_add_u32", sSt, sSt, hex(off["STI0"] + LS))
    stat_addr(b)
    stamp(b, "g_pre")
    mem = []
    for s_ in range(GL, 9): mem += xops(s_)
    for a in (1, 2, 3, 0):
        for s_ in range(9, 12):
            mem.append(lambda a=a, s_=s_: (b.I("s_add_u32", sH9, sH, (s_ - 9) * 4096), b.I("buffer_load_dwordx4", XF[s_ % NB][a], vXa[a], WS, sH9, mods="offen sc1")))
    issued = 4 * GL
    for s_ in range(9):
        k = 0
        b.need(*XF[s_ % NB], *[slot(5 * s_ + fb) for fb in range(5)])
        for fb in range(5):
            for a in range(4):
                b.I("v_mfma_f32_16x16x32_bf16", ACC[a][fb], slot(5 * s_ + fb), XF[s_ % NB][a], (0 if s_ == 0 else ACC[a][fb]))
                if mem and k % 4 == 2 and (issued // 4 if issued < 36 else 9 + (issued - 36) % 3) - NB < s_:
                    mem.pop(0)(); issued += 1
                k += 1
        if s_ in (0, 5): stamp(b, f"g_s{s_}")
    pend = []
    for a in (1, 2, 3, 0):
        k = 0
        for s_ in range(9, 12):
            for fb in range(5):
                b.I("v_mfma_f32_16x16x32_bf16", ACC[a][fb], slot(5 * s_ + fb), XF[s_ % NB][a], ACC[a][fb])
                if mem and k % 3 == 1: mem.pop(0)()
                elif pend and k >= 3 and k % 2 == 1: pend.pop(0)()
                k += 1
        for op in pend: op()
        pend = [lambda fb=fb, a=a: b.I("ds_write_b128", vRw[a - 1], ACC[a][fb], mods=f"offset:{fb * 1024}") for fb in range(5)] if a else []
    assert not mem
    stamp(b, "g_mm")
    NQ = EXP.get("npre", 20) - 8
    wq = wops(b, sWQ, range(0, NQ))
    for fb in range(5): b.I("ds_read_b128", BI[4 * fb:4 * fb + 4], vB2, mods=f"offset:{64 * fb}")
    for _ in range(NQ // 2): wq.pop(0)()
    b.wait(lg=0)
    b.barrier()
    for a in range(1, 4):
        for fb in range(5): b.I("ds_read_b128", ACC[a][fb], vRr, mods=f"offset:{(a - 1) * 5120 + fb * 1024}")
    for _ in range(NQ - NQ // 2): wq.pop(0)()
    for a in range(1, 4):
        for fb in range(5):
            for q in range(2): pk(b, "v_pk_add_f32", ACC[0][fb][2 * q:2 * q + 2], ACC[0][fb][2 * q:2 * q + 2], ACC[a][fb][2 * q:2 * q + 2])
    stamp(b, "g_red")
    b.I("s_cmp_eq_u32", sL, 1)
    b.I("s_cbranch_scc1", "FFN2_FINAL")
    snap = b.snapshot(); hist = list(b.hist)
    tag = resid_epi(b, ACC[0], RES, BI, sDst, sSt)
    assert not wq
    def final():
        b.label("FFN2_FINAL")
        b.restore(snap); b.hist = hist
        b.I("s_lshl_b32", sT0, sG, 6)
        b.I("s_lshl_b32", sT1, sTB, 4)
        b.I("s_add_u32", sT0, sT0, sT1)
        b.I("s_mul_i32", sDst, sT0, 1280)
        b.I("s_mul_i32", sT0, sJ, 160)
        b.I("s_add_u32", sDst, sDst, sT0)
        vo = V(VB + 8)
        b.I("v_and_b32", vt0, 15, vL)
        b.I("v_mul_u32_u24", vo, 1280, vt0)
        b.I("v_lshrrev_b32", vt0, 4, vL)
        b.I("v_lshl_add_u32", vo, vt0, 3, vo)
        resid_epi(b, ACC[0], RES, BI, sDst, None, out_natural=vo)
    return tag, final

def gen_fused(b):
    setup(b, "MAIN_END")
    b.I("s_mov_b32", sL, 0); b.I("s_mov_b32", sLO, 0)
    b.I("s_mov_b32", sGS, 0); b.I("s_mov_b32", sGT, 0)
    b.I("s_lshl_b32", sFG, sG, 8)
    b.I("s_add_u32", sFG, sFG, hex(off["FLAGS"]))
    b.I("s_mov_b32", sLoc, 0)
    xcd_publish(b)
    stamp(b, "start")
    b.I("s_lshl_b32", sT0, sJ, 2)
    b.I("s_add_u32", sT0, sT0, sW)
    b.I("s_mul_i32", S(57), sT0, 40960)
    b.I("s_add_u32", S(57), S(57), hex(off["WQP"]))
    b.I("s_mul_i32", sBX, sG, 81920)
    qkv_start(b)
    b.I("s_and_b32", sT0, sW, 1)
    b.I("s_lshl_b32", sT0, sT0, 1)
    b.I("s_lshr_b32", sT1, sW, 1)
    b.I("s_or_b32", sT0, sT0, sT1)
    b.I("s_lshl_b32", sT0, sT0, 8)
    b.I("s_mul_i32", sT1, sJ, 10240)
    b.I("s_add_u32", sT0, sT0, sT1)
    b.I("s_add_u32", sT0, sT0, sBX)
    b.I("s_add_u32", sP[8], sT0, hex(off["XB0"]))
    def after_table_loads():
        for op in wops(b, S(57), range(0, EXP.get("npre", 20))): op()
        for op in resid_ops(b, sP[8], RESID): op()
    tables(b, after_loads=after_table_loads)
    b.I("s_lshl_b32", sT0, sJ, 2)
    b.I("s_add_u32", sT0, sT0, sW)
    b.I("s_mul_i32", sWQ, sT0, 40960)
    b.I("s_add_u32", sWQ, sWQ, hex(off["WQP"]))
    b.I("s_mul_i32", sW1, sT0, 61440)
    b.I("s_add_u32", sW2, sW1, hex(off["W2P"]))
    b.I("s_add_u32", sW1, sW1, hex(off["W1P"]))
    b.I("s_mul_i32", sBX, sG, 81920)
    if EXP.get("hotw"):
        b.I("s_mul_i32", sWQ, sW, 61440)
        b.I("s_add_u32", sWQ, sWQ, hex(off["WQP"]))
        b.I("s_mov_b32", sW1, sWQ); b.I("s_mov_b32", sW2, sWQ)
    b.I("s_branch", "LAYER_REST")
    b.label("LAYER")
    b.clear_hist()
    xt = qkv_start(b)
    b.label("LAYER_REST")
    b.clear_hist()
    stamp(b, "layer")
    tag = qkv(b, xt)
    stamp(b, "qkv_end")
    grid_arrive(b, tag, "g")
    attention(b)
    wo_tag = []
    S1W = 0 if (EXP.get("own", 0) or EXP.get("early", 0)) else 8
    group_sync(b, None, "s1", [lambda: wo_tag.append(wo_rest(b))] + wops(b, sW1, range(32, 32 + S1W)))
    b.wait_vm_tag(wo_tag[0]); b.barrier()
    stamp(b, "s1_ok")
    tag = oproj(b)
    stamp(b, "opr_end")
    group_sync(b, tag, "s2", [])
    stamp(b, "s2_ok")
    tag = ffn1(b)
    stamp(b, "ff1_end")
    group_sync(b, tag, "s3", wops(b, sW2, range(EXP.get("nw2", 52), 60)))
    stamp(b, "s3_ok")
    tag, final = ffn2(b)
    stamp(b, "ff2_end")
    group_sync(b, tag, "s4", wops(b, sWQ, range(EXP.get("npre", 20) - 8, EXP.get("npre", 20))))
    stamp(b, "s4_ok")
    b.I("s_mov_b32", sL, 1)
    b.I("s_mov_b32", sLO, hex(LS))
    b.I("s_add_u32", sBX, sBX, hex(LS))
    if M.PROFILE: M.stamp_flush(b, 0)
    b.I("s_branch", "LAYER")
    final()
    if M.PROFILE:
        b.wait(vm=0); stamp(b, "ff2_end"); stamp(b, "end"); M.stamp_flush(b, 20)
    b.label("MAIN_END")
```

```python
from asmb import *
import layout as L
off = L.off
WS_BYTES = 268435456
OOB = 0x40000000

def srd(b, dst, lo, hi, size):
    b.I("s_mov_b32", dst[0], lo)
    b.I("s_and_b32", dst[1], hi, "0xffff")
    b.I("s_mov_b32", dst[2], hex(size))
    b.I("s_mov_b32", dst[3], "0x20000")

def unpack_sum(b, src, accA, accB, t0, t1):
    b.I("v_lshlrev_b32", t0, 16, src)
    b.I("v_and_b32", t1, "0xffff0000", src)
    b.I("v_add_f32", accA, accA, t0)
    b.I("v_add_f32", accB, accB, t1)

def code_prefetch(b, label, endlabel, nbytes):
    per = (nbytes + 31) // 32
    per = (per + 255) // 256 * 256
    b.I("s_getpc_b64", S(70, 2))
    b.label("L0_PC")
    b.raw(f"  s_add_u32 s70, s70, ({label} - L0_PC) & 0xffffffff")
    b.raw(f"  s_addc_u32 s71, s71, 0")
    b.I("s_lshr_b32", S(72), S(2), 3)
    b.I("s_mul_i32", S(72), S(72), per)
    b.I("v_lshlrev_b32", V(58), 2, V(0))
    b.I("v_add_u32", V(58), S(72), V(58))
    n = per // 1024 + (1 if per % 1024 else 0)
    for q in range(n):
        if q: b.I("v_add_u32", V(58), 1024, V(58))
        b.raw(f"  v_min_u32 v57, {endlabel} - {label} - 4, v58")
        b.I("global_load_dword", V(59), V(57), S(70, 2))
        b.vm.pop()

def gen_l0(b, prefetch=None):
    P_X, P_WQ, P_WK, P_WV, P_WO, P_W1, P_W2, P_WS = S(36, 2), S(38, 2), S(40, 2), S(42, 2), S(44, 2), S(46, 2), S(48, 2), S(50, 2)
    WS = S(8, 4); SRC = S(12, 4)
    sRS, sG0, sNG, sN0, sOff = S(16), S(17), S(18), S(19), S(20)
    sA, sP, sQ, sGL0, sBase, sM, sDv, sHS, sLS, sSwap, sCs, sCB, sCH, sKr, sT, sMask = (S(i) for i in range(21, 37 - 0)) if False else [S(i) for i in (21, 22, 23, 24, 25, 26, 27, 28, 29, 30, 31, 32, 33, 34, 35, 52)]
    b.I("s_cmp_ge_u32", S(2), 256)
    b.I("s_cbranch_scc1", "L0_end")
    b.I("s_load_dwordx2", P_X, S(0, 2), 0)
    b.I("s_load_dwordx2", P_WQ, S(0, 2), 8)
    b.I("s_load_dwordx2", P_WK, S(0, 2), 16)
    b.I("s_load_dwordx2", P_WV, S(0, 2), 24)
    b.I("s_load_dwordx2", P_WO, S(0, 2), 32)
    b.I("s_load_dwordx2", P_W1, S(0, 2), 48)
    b.I("s_load_dwordx2", P_W2, S(0, 2), 64)
    b.I("s_load_dwordx2", P_WS, S(0, 2), 96)
    if prefetch: code_prefetch(b, *prefetch)
    lane = V(1); cp = V(2); slot = V(3)
    b.I("v_and_b32", cp, 31, V(0))
    b.I("v_lshrrev_b32", slot, 5, V(0))
    b.wait(lg=0)
    srd(b, WS, P_WS[0], P_WS[1], WS_BYTES)
    XS = S(56, 4)
    srd(b, XS, P_X[0], P_X[1], 2048 * 1280)
    wv_id = S(53)
    vt, vgg, vxo, vxd = V(4), V(5), V(6), V(7)
    b.I("v_lshrrev_b32", V(8), 6, V(0))
    b.I("v_and_b32", vt, 7, V(0))
    b.I("v_readfirstlane_b32", wv_id, V(8))
    b.I("v_bfe_u32", vgg, V(0), 3, 3)
    b.I("s_mul_i32", sT, S(2), 8 * 1280)
    b.I("v_mul_u32_u24", vxo, 1280, vt)
    b.I("v_lshl_add_u32", vxo, vgg, 4, vxo)
    b.I("s_lshl_b32", sOff, wv_id, 7)
    b.I("s_add_u32", sOff, sOff, sT)
    XL = [V(64 + 4 * q, 4) for q in range(3)]
    v_oob = V(9)
    b.I("s_cmp_lt_u32", wv_id, 2)
    b.I("s_cselect_b32", S(54), 0, hex(OOB))
    for q in range(3):
        if q == 2:
            b.I("v_add_u32", v_oob, S(54), vxo)
            b.I("buffer_load_dwordx4", XL[q], v_oob, XS, sOff, mods=f"offen offset:{q*512}")
        else:
            b.I("buffer_load_dwordx4", XL[q], vxo, XS, sOff, mods=f"offen offset:{q*512}")
    def setp(name, base, rs, size, strips_shift, ng, a, P, Q, B0, Dv, HS, LS, swap, cs, CB, CK, CH, w2=False):
        b.label(name)
        b.I("s_sub_u32", sT, S(2), base)
        b.I("s_lshr_b32", sN0, sT, strips_shift)
        b.I("s_lshl_b32", sN0, sN0, 6)
        b.I("s_and_b32", sKr, sT, (1 << strips_shift) - 1)
        b.I("s_mul_i32", sG0, sKr, ng)
        b.I("s_mov_b32", sNG, ng)
        b.I("s_mov_b32", sRS, rs[0])
        srd(b, SRC, rs[1][0], rs[1][1], size)
        b.I("s_mov_b32", sA, a); b.I("s_mov_b32", sP, P); b.I("s_mov_b32", sQ, Q)
        b.I("s_mov_b32", sMask, (1 << a) - 1)
        if w2:
            b.I("s_and_b32", sGL0, sKr, 1)
            b.I("s_mul_i32", sGL0, sGL0, 24)
            b.I("s_lshr_b32", sBase, sKr, 1)
            b.I("s_mul_i32", sBase, sBase, 61440)
            b.I("s_add_u32", sBase, sBase, hex(B0))
        else:
            b.I("s_mov_b32", sGL0, sG0)
            b.I("s_mov_b32", sBase, hex(B0))
        b.I("s_mov_b32", sDv, Dv); b.I("s_mov_b32", sM, -(-65536 // Dv))
        b.I("s_mov_b32", sHS, HS); b.I("s_mov_b32", sLS, LS)
        b.I("s_mov_b32", sSwap, swap); b.I("s_mov_b32", sCs, cs)
        b.I("s_mul_i32", sCB, sKr, CK)
        b.I("s_add_u32", sCB, sCB, hex(CB))
        b.I("s_mov_b32", sCH, CH)
        b.I("s_branch", "L0_common")
    b.I("s_cmp_lt_u32", S(2), 40);  b.I("s_cbranch_scc1", "L0_wq")
    b.I("s_cmp_lt_u32", S(2), 80);  b.I("s_cbranch_scc1", "L0_wo")
    b.I("s_cmp_lt_u32", S(2), 176); b.I("s_cbranch_scc1", "L0_w1")
    b.I("s_branch", "L0_w2")
    setp("L0_wq", 0, (1280, P_WQ), 640 * 1280, 2, 20, 1, 1024, 512, off["WQP"], 20, 40960, 256, 1, 1, off["CSQ"], 4096, 128)
    setp("L0_wo", 40, (1280, P_WO), 640 * 1280, 2, 20, 0, 1280, 0, off["WOP"], 80, 102400, 256, 0, 0, 0, 0, 0)
    setp("L0_w1", 80, (3072, P_W1), 640 * 3072, 2, 20, 2, 3072, 256, off["W1P"], 48, 61440, 1024, 0, 1, off["CS1"], 6144, 192)
    setp("L0_w2", 176, (1280, P_W2), 1536 * 1280, 3, 24, 2, 5120, 256, off["W2P"], 80, 245760, 1024, 0, 0, 0, 0, 0, w2=True)
    b.label("L0_common")
    vsrc = V(10)
    b.I("v_add_u32", vsrc, sG0, slot)
    b.I("s_lshl_b32", sT, sRS, 3)
    b.I("v_mul_lo_u32", vsrc, vsrc, sT)
    b.I("s_lshl_b32", sT, sN0, 1)
    b.I("v_lshl_add_u32", vsrc, cp, 2, vsrc)
    b.I("v_add_u32", vsrc, sT, vsrc)
    Lr = [[V(80 + 8 * it + e) for e in range(8)] for it in range(3)]
    b.I("s_mov_b32", sOff, 0)
    for it in range(3):
        for e in range(8):
            b.I("buffer_load_dword", Lr[it][e], vsrc, SRC, sOff, mods="offen")
            if e < 7: b.I("s_add_u32", sOff, sOff, sRS)
        if it < 2:
            b.I("s_mul_i32", sT, sRS, 57)
            b.I("s_add_u32", sOff, sOff, sT)

    KL = [[V(104 + 8 * it + e) for e in range(8)] for it in range(3)]
    vka = V(60, 2); vkv = V(62)
    snap_kv = b.snapshot()
    b.I("s_cmp_lt_u32", S(2), 40); b.I("s_cbranch_scc1", "L0_nokvld")
    b.I("s_cmp_ge_u32", S(2), 72); b.I("s_cbranch_scc1", "L0_nokvld")
    b.I("s_sub_u32", S(66), S(2), 40)
    b.I("s_lshr_b32", S(68), S(66), 2)
    b.I("s_and_b32", S(66), S(66), 3)
    b.I("s_mul_i32", S(67), S(66), 20)
    b.I("v_cmp_gt_u32", "vcc", 10, cp)
    b.I("v_mov_b32", V(25), P_WV[0]); b.I("v_mov_b32", V(26), P_WK[0])
    b.I("v_cndmask_b32", vka[0], V(25), V(26), "vcc")
    b.I("v_mov_b32", V(25), P_WV[1]); b.I("v_mov_b32", V(26), P_WK[1])
    b.I("v_cndmask_b32", vka[1], V(25), V(26), "vcc")
    b.I("v_subrev_u32", V(25), 10, cp)
    b.I("v_cndmask_b32", V(25), V(25), cp, "vcc")
    b.I("v_cmp_gt_u32", "vcc", 20, cp)
    b.I("v_cndmask_b32", V(25), 0, V(25), "vcc")
    b.I("v_add_u32", V(26), S(67), slot)
    b.I("v_mul_u32_u24", V(26), 320, V(26))
    b.I("v_lshl_add_u32", V(26), V(25), 2, V(26))
    b.I("v_add_co_u32", vka[0], "vcc", vka[0], V(26))
    b.I("v_addc_co_u32", vka[1], "vcc", 0, vka[1], "vcc")
    for it in range(3):
        if it == 2:
            b.I("v_cmp_gt_u32", "vcc", 4, slot)
            b.I("v_mov_b32", V(25), 2560)
            b.I("v_cndmask_b32", V(25), 0, V(25), "vcc")
            b.I("v_add_co_u32", vka[0], "vcc", vka[0], V(25))
            b.I("v_addc_co_u32", vka[1], "vcc", 0, vka[1], "vcc")
        elif it == 1:
            b.I("v_add_co_u32", vka[0], "vcc", 2560, vka[0])
            b.I("v_addc_co_u32", vka[1], "vcc", 0, vka[1], "vcc")
        for e in range(8): b.I("global_load_dword", KL[it][e], vka, "off", mods=f"offset:{40 * e}")
    b.label("L0_nokvld")
    b.restore(snap_kv)
    b.clear_hist()

    def colmap(vn, vhi, vlo_hi, vlo_lo, t0, t1):
        b.I("v_mul_u32_u24", vhi, sM, vn)
        b.I("v_lshrrev_b32", vhi, 16, vhi)
        b.I("v_mul_u32_u24", t0, sDv, vhi)
        b.I("v_sub_u32", t0, vn, t0)
        b.I("v_lshrrev_b32", vlo_hi, 4, t0)
        b.I("v_and_b32", vlo_lo, 15, t0)
        b.I("v_and_b32", t0, 4, vlo_lo)
        b.I("v_and_b32", t1, 8, vlo_lo)
        b.I("v_lshlrev_b32", t0, 1, t0)
        b.I("v_lshrrev_b32", t1, 1, t1)
        b.I("v_or_b32", t0, t0, t1)
        b.I("v_and_b32", t1, 3, vlo_lo)
        b.I("v_or_b32", t0, t0, t1)
        b.I("s_cmp_eq_u32", sSwap, 1)
        b.I("s_cselect_b64", "vcc", -1, 0)
        b.I("v_cndmask_b32", vlo_lo, vlo_lo, t0, "vcc")
    vn, vhi, vlh, vll, t0, t1, vdb = V(11), V(12), V(13), V(14), V(15), V(16), V(17)
    b.I("v_lshlrev_b32", vn, 1, cp)
    b.I("v_add_u32", vn, sN0, vn)
    colmap(vn, vhi, vlh, vll, t0, t1)
    b.I("v_mul_lo_u32", vdb, vhi, sHS)
    b.I("v_mul_lo_u32", t0, vlh, sLS)
    b.I("v_add_u32", vdb, vdb, t0)
    b.I("v_lshl_add_u32", vdb, vll, 4, vdb)
    b.I("v_add_u32", vdb, sBase, vdb)
    sGrp = S(55)
    b.I("s_lshr_b32", sGrp, S(2), 3)
    b.I("s_mul_i32", sGrp, sGrp, 81920)
    b.I("s_and_b32", sT, S(2), 7)
    b.I("s_lshl_b32", sT, sT, 7)
    b.I("s_add_u32", sGrp, sGrp, sT)
    b.I("s_add_u32", sGrp, sGrp, hex(off["XB0"]))
    b.I("s_lshl_b32", sT, wv_id, 13)
    b.I("s_add_u32", sGrp, sGrp, sT)
    b.I("v_lshlrev_b32", vxd, 10, vgg)
    b.I("v_lshl_add_u32", vxd, vt, 4, vxd)
    b.I("v_add_u32", v_oob, S(54), vxd)
    ssum, ssq = V(18), V(19)
    b.I("v_mov_b32", ssum, 0); b.I("v_mov_b32", ssq, 0)
    for q in range(3):
        b.I("buffer_store_dwordx4", XL[q], (v_oob if q == 2 else vxd), WS, sGrp, mods="offen")
        if q < 2: b.I("s_add_u32", sGrp, sGrp, 32768)
        for e in range(4):
            b.I("v_lshlrev_b32", t0, 16, XL[q][e])
            b.I("v_and_b32", t1, "0xffff0000", XL[q][e])
            b.I("v_add_f32", ssum, ssum, t0)
            b.I("v_fmac_f32", ssq, t0, t0)
            b.I("v_add_f32", ssum, ssum, t1)
            b.I("v_fmac_f32", ssq, t1, t1)
    for r in (ssum, ssq):
        b.I("v_add_f32_dpp", r, r, r, mods="row_ror:8 row_mask:0xf bank_mask:0xf")
        b.I("v_mov_b32", t0, r)
        b.I("v_permlane16_swap_b32", r, t0)
        b.I("v_add_f32", r, r, t0)
        b.I("v_mov_b32", t0, r)
        b.I("v_permlane32_swap_b32", r, t0)
        b.I("v_add_f32", r, r, t0)
    b.I("v_lshlrev_b32", t0, 3, vt)
    b.I("s_lshl_b32", sT, wv_id, 6)
    b.I("v_add_u32", t0, sT, t0)
    b.I("ds_write_b64", t0, V(18, 2), mods="offset:4096")
    csA, csB = V(20), V(21)
    b.I("v_mov_b32", csA, 0); b.I("v_mov_b32", csB, 0)
    vg, vad, vval = V(22), V(23), V(24)
    U = V(28, 4); U2 = V(32, 4)
    selLo, selHi = S(60), S(61)
    b.I("s_mov_b32", selLo, "0x05040100"); b.I("s_mov_b32", selHi, "0x07060302")
    for it in range(3):
        b.I("v_add_u32", vg, 8 * it, slot)
        b.I("v_cmp_gt_u32", "vcc", sNG, vg)
        b.I("v_add_u32", vg, sGL0, vg)
        b.I("v_lshrrev_b32", t0, sA, vg)
        b.I("v_mul_lo_u32", t0, t0, sP)
        b.I("v_and_b32", t1, sMask, vg)
        b.I("v_mul_lo_u32", t1, t1, sQ)
        b.I("v_add3_u32", vad, vdb, t0, t1)
        b.I("v_mov_b32", t0, hex(OOB))
        b.I("v_cndmask_b32", vad, t0, vad, "vcc")
        for q in range(4):
            b.I("v_perm_b32", U[q], Lr[it][2 * q + 1], Lr[it][2 * q], selLo)
            b.I("v_perm_b32", U2[q], Lr[it][2 * q + 1], Lr[it][2 * q], selHi)
        b.I("buffer_store_dwordx4", U, vad, WS, 0, mods="offen")
        b.I("buffer_store_dwordx4", U2, vad, WS, 0, mods="offen offset:16")
        for e in range(8):
            b.I("v_cndmask_b32", t1, 0, Lr[it][e], "vcc")
            b.I("v_lshlrev_b32", t0, 16, t1)
            b.I("v_and_b32", t1, "0xffff0000", t1)
            b.I("v_add_f32", csA, csA, t0)
            b.I("v_add_f32", csB, csB, t1)
    b.I("v_lshlrev_b32", t0, 8, slot)
    b.I("v_lshl_add_u32", t0, cp, 3, t0)
    b.I("ds_write_b64", t0, V(20, 2))
    b.wait(lg=0)
    b.barrier()
    b.I("v_cmp_gt_u32", "vcc", 64, V(0))
    b.I("s_and_saveexec_b64", S(62, 2), "vcc")
    b.I("s_cbranch_execz", "L0_nocs")
    SW = [V(36 + 2 * w, 2) for w in range(4)]
    b.I("v_lshlrev_b32", t0, 3, vt)
    for w in range(4): b.I("ds_read_b64", SW[w], t0, mods=f"offset:{4096 + 64 * w}")
    for c in range(2):
        b.I("v_add_f32", SW[0][c], SW[0][c], SW[1][c])
        b.I("v_add_f32", SW[2][c], SW[2][c], SW[3][c])
        b.I("v_add_f32", SW[0][c], SW[0][c], SW[2][c])
    b.I("v_cmp_eq_u32", "vcc", 0, vgg)
    b.I("v_cndmask_b32", SW[0][0], 0, SW[0][0], "vcc")
    b.I("v_cndmask_b32", SW[0][1], 0, SW[0][1], "vcc")
    b.I("s_lshr_b32", sT, S(2), 3)
    b.I("s_lshl_b32", sT, sT, 12)
    b.I("s_and_b32", sOff, S(2), 7)
    b.I("s_lshl_b32", sOff, sOff, 6)
    b.I("s_add_u32", sT, sT, sOff)
    b.I("s_add_u32", sT, sT, hex(off["STI0"]))
    b.I("v_lshlrev_b32", t0, 9, vgg)
    b.I("v_lshl_add_u32", t0, vt, 3, t0)
    b.I("buffer_store_dwordx2", SW[0], t0, WS, sT, mods="offen")
    b.I("s_cmp_eq_u32", sCs, 0)
    b.I("s_cbranch_scc1", "L0_nocs")
    CW = [V(44 + s_) for s_ in range(8)]
    b.I("v_lshlrev_b32", t0, 2, V(0))
    for s_ in range(8): b.I("ds_read_b32", CW[s_], t0, mods=f"offset:{256 * s_}")
    b.I("v_add_u32", vn, sN0, V(0))
    colmap(vn, vhi, vlh, vll, t0, t1)
    for s_ in range(1, 8): b.I("v_add_f32", CW[0], CW[0], CW[s_])
    b.I("v_mul_lo_u32", vad, vhi, sCH)
    b.I("v_lshl_add_u32", vad, vlh, 6, vad)
    b.I("v_lshl_add_u32", vad, vll, 2, vad)
    b.I("buffer_store_dword", CW[0], vad, WS, sCB, mods="offen")
    b.label("L0_nocs")
    b.clear_hist(); b.nop(4)
    b.I("s_mov_b64", "exec", -1)
    b.I("s_cmp_ge_u32", S(2), 16)
    b.I("s_cbranch_scc1", "L0_noflag")
    Z = V(28, 4)
    for e in range(4): b.I("v_mov_b32", Z[e], 0)
    b.I("v_lshlrev_b32", t0, 4, V(0))
    b.I("s_lshl_b32", sT, S(2), 12)
    b.I("s_add_u32", sT, sT, hex(off["FLAGS"]))
    b.I("buffer_store_dwordx4", Z, t0, WS, sT, mods="offen")
    b.label("L0_noflag")
    b.I("s_cmp_lt_u32", S(2), 40); b.I("s_cbranch_scc1", "L0_end")
    b.I("s_cmp_ge_u32", S(2), 72); b.I("s_cbranch_scc1", "L0_end")
    b.wait(vm=0)
    b.barrier()
    sKr, sG0 = S(66), S(67)
    vcc_, vqq, vwl, vm_ = V(10), V(11), V(12), V(13)
    b.I("v_cmp_le_u32", "vcc", 10, cp)
    b.I("v_cndmask_b32", vwl, 0, 2, "vcc")
    b.I("v_cndmask_b32", t0, 0, 10, "vcc")
    b.I("v_sub_u32", vcc_, cp, t0)
    b.I("v_lshrrev_b32", vqq, 1, vcc_)
    b.I("v_cmp_le_u32", "vcc", 3, vqq)
    b.I("v_cndmask_b32", t0, 0, 1, "vcc")
    b.I("v_add_u32", vwl, vwl, t0)
    b.I("v_mul_u32_u24", t0, 3, t0)
    b.I("v_sub_u32", t0, vqq, t0)
    b.I("v_lshlrev_b32", t0, 2, t0)
    b.I("v_and_b32", t1, 1, vcc_)
    b.I("v_lshl_add_u32", t0, t1, 1, t0)
    b.I("v_add_u32", vm_, 20, t0)
    b.I("v_cmp_gt_u32", S(64, 2), 20, cp)
    b.I("v_mul_u32_u24", vdb, 40960, vwl)
    b.I("v_lshl_add_u32", vdb, vm_, 4, vdb)
    b.I("v_add_u32", vdb, hex(off["WQP"]), vdb)
    b.I("v_mov_b32", csA, 0); b.I("v_mov_b32", csB, 0)
    for it in range(3):
        b.I("v_add_u32", vg, 8 * it, slot)
        b.I("v_cmp_gt_u32", "vcc", 20, vg)
        b.I("s_and_b64", "vcc", "vcc", S(64, 2))
        b.I("v_add_u32", vg, sG0, vg)
        b.I("v_lshrrev_b32", t0, 1, vg)
        b.I("v_lshlrev_b32", t0, 10, t0)
        b.I("v_and_b32", t1, 1, vg)
        b.I("v_lshlrev_b32", t1, 9, t1)
        b.I("v_add3_u32", vad, vdb, t0, t1)
        b.I("v_mov_b32", t0, hex(OOB))
        b.I("v_cndmask_b32", vad, t0, vad, "vcc")
        for q in range(4):
            b.I("v_perm_b32", U[q], KL[it][2 * q + 1], KL[it][2 * q], selLo)
            b.I("v_perm_b32", U2[q], KL[it][2 * q + 1], KL[it][2 * q], selHi)
        b.I("s_mul_i32", sOff, S(68), 163840)
        b.I("buffer_store_dwordx4", U, vad, WS, sOff, mods="offen")
        b.I("buffer_store_dwordx4", U2, vad, WS, sOff, mods="offen offset:16")
        for e in range(8):
            b.I("v_cndmask_b32", t1, 0, KL[it][e], "vcc")
            b.I("v_lshlrev_b32", t0, 16, t1)
            b.I("v_and_b32", t1, "0xffff0000", t1)
            b.I("v_add_f32", csA, csA, t0)
            b.I("v_add_f32", csB, csB, t1)
    b.I("v_lshlrev_b32", t0, 8, slot)
    b.I("v_lshl_add_u32", t0, cp, 3, t0)
    b.I("ds_write_b64", t0, V(20, 2))
    b.wait(lg=0)
    b.barrier()
    S8 = [V(36 + 2 * s_, 2) for s_ in range(8)]
    b.I("v_lshlrev_b32", t0, 3, cp)
    for s_ in range(8): b.I("ds_read_b64", S8[s_], t0, mods=f"offset:{256 * s_}")
    for s_ in range(1, 8):
        b.I("v_add_f32", S8[0][0], S8[0][0], S8[s_][0])
        b.I("v_add_f32", S8[0][1], S8[0][1], S8[s_][1])
    b.I("v_lshlrev_b32", vad, 7, vwl)
    b.I("v_lshl_add_u32", vad, vm_, 2, vad)
    b.I("v_cmp_gt_u32", "vcc", 20, V(0))
    b.I("v_mov_b32", t0, hex(OOB))
    b.I("v_cndmask_b32", vad, t0, vad, "vcc")
    b.I("s_lshl_b32", sT, sKr, 12)
    b.I("s_add_u32", sT, sT, hex(off["CSQ"]))
    b.I("s_lshl_b32", sOff, S(68), 9)
    b.I("s_add_u32", sT, sT, sOff)
    b.I("buffer_store_dwordx2", S8[0], vad, WS, sT, mods="offen")
    b.label("L0_end")
```

```python
import re

class R:
    __slots__ = ("k", "i", "n")
    def __init__(self, k, i, n=1): self.k, self.i, self.n = k, i, n
    def __str__(self):
        return f"{self.k}{self.i}" if self.n == 1 else f"{self.k}[{self.i}:{self.i+self.n-1}]"
    __repr__ = __str__
    def __getitem__(self, x):
        if isinstance(x, slice):
            a = x.start or 0; b = self.n if x.stop is None else x.stop
            assert 0 <= a < b <= self.n, (self, x)
            return R(self.k, self.i + a, b - a)
        assert 0 <= x < self.n, (self, x)
        return R(self.k, self.i + x, 1)
    def regs(self): return {(self.k, self.i + j) for j in range(self.n)}
def V(i, n=1): return R("v", i, n)
def A(i, n=1): return R("a", i, n)
def S(i, n=1): return R("s", i, n)

_REG_RE = re.compile(r"^(-|abs\()?([vas])(?:(\d+)|\[(\d+):(\d+)\])\)?$")
def opregs(x):
    if isinstance(x, R): return x.regs()
    x = str(x).strip()
    m = _REG_RE.match(x)
    if m:
        if m.group(3) is not None: return {(m.group(2), int(m.group(3)))}
        return {(m.group(2), j) for j in range(int(m.group(4)), int(m.group(5)) + 1)}
    if x == "vcc": return {("s", "vcc")}
    if x == "exec": return {("s", "exec")}
    if x == "m0": return {("s", "m0")}
    if x == "scc": return {("s", "scc")}
    return set()

TRANS = ("v_exp_f32", "v_log_f32", "v_rcp_f32", "v_rsq_f32", "v_sqrt_f32", "v_sin_f32", "v_cos_f32")
MFMA_PASSES = {"v_mfma_f32_32x32x16_bf16": 8, "v_mfma_f32_32x32x8_bf16": 8, "v_mfma_f32_16x16x32_bf16": 4}
D_TO_VALU = {4: 8, 8: 12}
D_TO_AB = {4: 8, 8: 12}
D_TO_C_OVERLAP = {4: 6, 8: 10}
C_WAR = {4: 3, 8: 7}

class Inst:
    __slots__ = ("op", "text", "rd", "wr", "cls", "ws")
    def __init__(self, op, text, rd, wr, cls, ws=1):
        self.op, self.text, self.rd, self.wr, self.cls, self.ws = op, text, rd, wr, cls, ws

def classify(op):
    if op.startswith("v_mfma"): return "mfma"
    if op.startswith("buffer_") or op.startswith("global_"): return "vmem"
    if op.startswith("ds_"): return "ds"
    if op.startswith("s_load") or op.startswith("s_memtime") or op.startswith("s_memrealtime"): return "smem"
    if op.startswith("v_"): return "valu"
    return "salu"

class B:
    def __init__(self):
        self.out = []
        self.hist = []
        self.vm = []
        self.lg = []
        self.ntag = 0
        self.nops = 0
        self.nvm = 0
        self.stats = {}
        self.auto = True
    def raw(self, text): self.out.append(text)
    def comment(self, t): self.out.append(f"  ; {t}")
    def label(self, name):
        self.out.append(f"{name}:")
    def align(self, n): self.out.append(f".p2align {n}")
    def _emit_wait(self, vm=None, lg=None):
        parts = []
        if vm is not None:
            parts.append(f"vmcnt({min(vm,63)})")
            if vm <= 63: self.vm = self.vm[len(self.vm) - vm:] if vm < len(self.vm) else self.vm
            else: self.vm = self.vm[max(0, len(self.vm) - 63):]
        if lg is not None:
            parts.append(f"lgkmcnt({min(lg,15)})")
            keep = min(lg, 15)
            self.lg = self.lg[len(self.lg) - keep:] if keep < len(self.lg) else self.lg
            if keep == 0: self.lg = []
        t = "s_waitcnt " + " ".join(parts)
        self.out.append("  " + t)
        self._push(Inst("s_waitcnt", t, set(), set(), "salu"))
    def wait(self, vm=None, lg=None):
        self._emit_wait(vm, lg)
    def wait_vm_tag(self, tag):
        idx = [i for i, e in enumerate(self.vm) if e[0] == tag]
        if idx: self._emit_wait(vm=len(self.vm) - 1 - idx[-1])
    def wait_lg_tag(self, tag):
        idx = [i for i, e in enumerate(self.lg) if e[0] == tag]
        if idx:
            if any(e[2] for e in self.lg): self._emit_wait(lg=0)
            else: self._emit_wait(lg=len(self.lg) - 1 - idx[-1])
    def _need(self, regs):
        vmi = -1
        for i, e in enumerate(self.vm):
            if e[1] & regs: vmi = i
        lgi = -1
        for i, e in enumerate(self.lg):
            if e[1] & regs: lgi = i
        vm = lg = None
        if vmi >= 0: vm = len(self.vm) - 1 - vmi
        if lgi >= 0:
            lg = 0 if any(e[2] for e in self.lg) else len(self.lg) - 1 - lgi
        if vm is not None or lg is not None: self._emit_wait(vm, lg)
    def _push(self, ins):
        self.hist.append(ins)
        if len(self.hist) > 40: self.hist.pop(0)
    def _required(self, c):
        need = 0; dist = 0
        touched = c.rd | c.wr
        for p in reversed(self.hist):
            req = 0
            if p.cls == "mfma":
                ps = MFMA_PASSES[p.op]; D = p.wr
                if c.cls == "mfma":
                    cA, cB, cC = c.ab, c.ab, c.c
                    if D & cA: req = max(req, D_TO_AB[ps])
                    if D & cC:
                        same = (D == cC) and MFMA_PASSES[c.op] == ps
                        if not same: req = max(req, D_TO_C_OVERLAP[ps])
                    if (D & c.wr) and not (D & cC): req = max(req, D_TO_C_OVERLAP[ps])
                elif c.cls in ("valu", "vmem", "ds"):
                    if D & touched: req = max(req, D_TO_VALU[ps])
                if c.cls == "valu" and (p.c & c.wr): req = max(req, C_WAR[ps])
                if c.cls in ("ds", "vmem") and (p.c & c.wr): req = max(req, C_WAR[ps])
            elif p.cls == "valu":
                vw = {r for r in p.wr if r[0] in "va"}
                sw = {r for r in p.wr if r[0] == "s"}
                if p.op.startswith("v_dot2") and (vw & (c.rd | c.wr)):
                    chain = c.op == p.op and not (vw & getattr(c, "dot_ab", set()))
                    if not chain: req = max(req, 3)
                if c.cls == "mfma" and (vw & c.rd): req = max(req, 2)
                if c.cls == "mfma" and ("s", "exec") in sw: req = max(req, 4)
                if p.op in TRANS and c.cls in ("valu",) and c.op not in TRANS and (vw & c.rd): req = max(req, 1)
                if p.op in TRANS and c.cls in ("valu",) and c.op in TRANS and (vw & c.rd): req = max(req, 1)
                if p.op in TRANS and c.cls in ("ds", "vmem") and (vw & c.rd): req = max(req, 1)
                if c.cls == "vmem" and (sw & c.rd): req = max(req, 5)
                if c.cls == "valu" and (sw & c.rd):
                    req = max(req, 4 if c.op in ("v_readlane_b32", "v_writelane_b32") else 2)
                if c.op in ("v_readfirstlane_b32", "v_readlane_b32") and (vw & c.rd): req = max(req, 1)
                if c.cls == "valu" and ("dpp" in c.op or "_dpp" in c.text or "row_" in c.text or "quad_perm" in c.text) and (vw & c.rd): req = max(req, 2)
                if c.op.startswith("v_permlane") and (vw & (c.rd | c.wr)): req = max(req, 2)
                if ("s", "exec") in sw and c.cls == "valu" and ("row_" in c.text or "quad_perm" in c.text): req = max(req, 5)
                if ("s", "exec") in sw and (c.op.startswith("v_permlane") or c.op.startswith("v_read")): req = max(req, 4)
                if "sdwa" in p.text and c.cls == "valu" and (vw & c.rd): req = max(req, 1)
                if c.cls == "salu" and (sw & c.rd): req = max(req, 4)
            elif p.cls == "vmem":
                if getattr(p, "wide_store", None) and c.cls in ("valu", "ds", "vmem", "mfma") and (p.wide_store & c.wr): req = max(req, 2)
            elif p.cls == "salu":
                if ("s", "m0") in p.wr and c.cls == "vmem" and ("s", "m0") in c.rd: req = max(req, 1)
            need = max(need, req - dist)
            dist += p.ws
            if dist > 20: break
        return need
    def nop(self, n):
        while n > 0:
            k = min(n, 16)
            t = f"s_nop {k-1}"
            self.out.append("  " + t); self._push(Inst("s_nop", t, set(), set(), "salu", ws=k)); n -= k
            self.nops += 1
    def I(self, op, *ops, mods="", rd=None, wr=None, tag=None):
        cls = classify(op)
        text = op + (" " + ", ".join(str(o) for o in ops) if ops else "") + (" " + mods if mods else "")
        Rd, Wr = set(), set()
        dest = set()
        ins = InstX(op, text, cls)
        base = op.replace("_e32", "").replace("_e64", "").replace("_dpp", "").replace("_sdwa", "")
        ins.op = base if cls != "salu" else op
        o = [opregs(x) for x in ops]
        lds_dma = cls == "vmem" and " lds" in (" " + mods)
        if cls == "mfma":
            Wr = o[0]; ins.ab = o[1] | o[2]; ins.c = o[3]; Rd = o[1] | o[2] | o[3]
        elif cls == "vmem":
            Rd |= {("s", "exec")}
            if "load" in op:
                if lds_dma:
                    for x in o: Rd |= x
                    Rd |= {("s", "m0")}
                else:
                    dest = o[0]; Wr = set(o[0])
                    for x in o[1:]: Rd |= x
            elif "store" in op:
                for x in o: Rd |= x
                if "x4" in op or "x3" in op:
                    ins.wide_store = o[0] if op.startswith("buffer_") else o[1]
            elif "atomic" in op:
                ret = "sc0" in mods.split()
                if ret:
                    dest = o[0]; Wr = set(o[0])
                    for x in o[1:]: Rd |= x
                    if op.startswith("buffer_"): Rd |= o[0]
                else:
                    for x in o: Rd |= x
            else:
                for x in o: Rd |= x
        elif cls == "ds":
            if op.startswith("ds_read") or op.startswith("ds_bpermute") or op.startswith("ds_swizzle") or op.startswith("ds_permute"):
                dest = o[0]; Wr = set(o[0])
                for x in o[1:]: Rd |= x
            else:
                for x in o: Rd |= x
        elif cls == "smem":
            dest = o[0]; Wr = set(o[0])
            for x in o[1:]: Rd |= x
        elif cls == "valu":
            if base.startswith("v_cmp"):
                Wr = set(o[0])
                for x in o[1:]: Rd |= x
                if base.startswith("v_cmpx"): Wr |= {("s", "exec")}
            elif base in ("v_permlane32_swap_b32", "v_permlane16_swap_b32", "v_swap_b32"):
                Wr = o[0] | o[1]; Rd = o[0] | o[1]
            elif base in ("v_add_co_u32", "v_sub_co_u32", "v_addc_co_u32", "v_subb_co_u32"):
                Wr = o[0] | o[1]
                for x in o[2:]: Rd |= x
            else:
                Wr = set(o[0])
                for x in o[1:]: Rd |= x
                if base in ("v_fmac_f32", "v_pk_fmac_f16", "v_dot2c_f32_bf16", "v_writelane_b32") or "UNUSED_PRESERVE" in mods or ("row_" in mods or "quad_perm" in mods): Rd |= o[0]
                if base == "v_cndmask_b32" and len(ops) == 3: Rd |= {("s", "vcc")}
            Rd |= {("s", "exec")}
        else:
            nodst = ("s_cmp", "s_cbranch", "s_branch", "s_barrier", "s_nop", "s_sleep", "s_setprio", "s_endpgm", "s_bitcmp", "s_waitcnt", "s_setpc")
            if op.startswith(nodst):
                for x in o: Rd |= x
                if op.startswith("s_cbranch_vcc"): Rd |= {("s", "vcc")}
                if op.startswith("s_cbranch_exec"): Rd |= {("s", "exec")}
            else:
                Wr = set(o[0])
                for x in o[1:]: Rd |= x
                if "saveexec" in op: Wr |= {("s", "exec")}; Rd |= {("s", "exec")}
                if op.startswith("s_add") and op.endswith("k_i32"): Rd |= o[0]
        if rd: Rd |= rd
        if wr: Wr |= wr
        if base.startswith("v_dot2"): ins.dot_ab = o[1] | o[2]
        ins.rd, ins.wr = Rd, Wr
        if self.auto:
            self._need(Rd | Wr)
            n = self._required(ins)
            if n > 0: self.nop(n)
        self.out.append("  " + text)
        self._push(ins)
        self.stats[ins.op] = self.stats.get(ins.op, 0) + 1
        self.ntag += 1
        t = tag if tag is not None else ("_", self.ntag)
        if cls == "vmem":
            self.nvm += 1
            self.vm.append((t, dest))
            if len(self.vm) > 63 + 64: self.vm.pop(0)
        elif cls == "ds": self.lg.append((t, dest, False))
        elif cls == "smem": self.lg.append((t, set(o[0]), True))
        return t
    def need(self, *ranges):
        regs = set()
        for r in ranges: regs |= r.regs()
        self._need(regs)
    def barrier(self): self.I("s_barrier")
    def snapshot(self): return (list(self.vm), list(self.lg))
    def restore(self, snap): self.vm, self.lg = list(snap[0]), list(snap[1])
    def clear_hist(self): self.hist = []
    def text(self): return "\n".join(self.out) + "\n"

class InstX(Inst):
    __slots__ = ("ab", "c", "wide_store", "dot_ab")
    def __init__(self, op, text, cls):
        Inst.__init__(self, op, text, set(), set(), cls)
        self.ab = set(); self.c = set(); self.wide_store = None; self.dot_ab = set()

def interleave(main, fill, start=0):
    out = []
    n, m = len(main), len(fill)
    j = 0
    for i, x in enumerate(main):
        out.append(x)
        tgt = (m * (i + 1 - start)) // max(1, n - start) if i >= start else 0
        while j < min(tgt, m):
            out.append(fill[j]); j += 1
    out += fill[j:]
    return out
```

```python
from asmb import *
import layout as L
import k_main as M
from k_main import *

LDS_Q = 86016
LDS_PART = 86016
LDS_FLAG = TAB + 2560
LDS_MAX = 86016

def standin_fold(b, q, m, t0, t1, t2):
    b.I("v_sub_f32", t0, 0, m)
    b.I("v_and_b32", t1, "0xffff0000", t0)
    b.I("v_sub_f32", t0, t0, t1)
    b.I("v_and_b32", t2, "0xffff0000", t0)
    b.I("v_sub_f32", t0, t0, t2)
    b.I("v_lshrrev_b32", t1, 16, t1)
    b.I("v_or_b32", t1, t1, t2)
    b.I("v_lshrrev_b32", t0, 16, t0)
    b.I("v_cmp_gt_u32", "vcc", 32, vL)
    b.I("v_cndmask_b32", q[0], t1, q[0], "vcc")
    b.I("v_cndmask_b32", q[1], t0, q[1], "vcc")

def attn_pre(b, uid, trailing_barrier=True, part="AB"):
    va = V(VB); vb, vb2 = V(VB + 3), V(VB + 4)
    if "A" in part:
        km = V(64, 4); kt = V(68, 2); Sx = [V(72, 16), V(88, 16)]
        va = V(VB)
        b.I("v_add_u32", va, LDS_KVIMG, vL16)
        b.I("ds_read_b128", km, va)
        b.I("v_lshlrev_b32", vt0, 3, vL)
        b.I("v_add_u32", vt0, LDS_KVIMG + 1024, vt0)
        b.I("ds_read_b64", kt, vt0)
        b.I("v_cmp_gt_u32", "vcc", 32, vL)
        for th in range(2):
            for e in range(2): b.I("v_cndmask_b32", QT[th][e], 0, QT[th][e], "vcc")
        for th in range(2): b.I("v_mfma_f32_32x32x16_bf16", Sx[th], km, QM[th], 0)
        for th in range(2): b.I("v_mfma_f32_32x32x8_bf16", Sx[th], kt, QT[th], Sx[th])
        for th in range(2):
            m = V(VB + 1 + th)
            b.I("v_max3_f32", m, Sx[th][0], Sx[th][1], Sx[th][2])
            for i in range(3, 15, 2): b.I("v_max3_f32", m, m, Sx[th][i], Sx[th][i + 1])
            b.I("v_max_f32", m, m, Sx[th][15])
            b.I("v_mov_b32", vt0, m)
            b.I("v_permlane32_swap_b32", m, vt0)
            b.I("v_max_f32", m, m, vt0)
            standin_fold(b, QT[th], m, vt0, vt1, vt2)
        vb, vb2 = V(VB + 3), V(VB + 4)
        b.I("v_add_u32", vb, LDS_Q, vL16)
        b.I("v_lshlrev_b32", vb2, 3, vL)
        b.I("v_add_u32", vb2, LDS_Q + 1024, vb2)
        b.I("s_lshl_b32", sT0, sW, 12)
        b.I("v_add_u32", va, sT0, vb)
        b.I("v_add_u32", vt1, sT0, vb2)
        for th in range(2):
            b.I("ds_write_b128", va, QM[th], mods=f"offset:{2048 * th}")
            b.I("ds_write_b64", vt1, QT[th], mods=f"offset:{2048 * th}")
    if part == "AB":
        b.wait(lg=0)
        b.barrier()
    if "B" in part:
        for hd in range(4):
            if hd or part == "B":
                b.I("s_add_u32", sT0, sW, hd)
                b.I("s_and_b32", sT0, sT0, 3)
                b.I("s_lshl_b32", sT0, sT0, 12)
                b.I("v_add_u32", va, sT0, vb)
                b.I("v_add_u32", vt1, sT0, vb2)
            for th in range(2):
                b.I("ds_read_b128", QA[2 * hd + th], va, mods=f"offset:{2048 * th}")
                b.I("ds_read_b64", QB[2 * hd + th], vt1, mods=f"offset:{2048 * th}")
        b.wait(lg=0)
        if trailing_barrier: b.barrier()


QA = [V(128 + 4 * a, 4) for a in range(8)]
QB = [V(160 + 2 * a, 2) for a in range(8)]
KV2 = [dict(km=V(64 + 16 * p, 4), kt=V(68 + 16 * p, 2), v=[V(72 + 16 * p, 4), V(76 + 16 * p, 4)]) for p in range(2)]
SX = [V(96, 16), V(112, 16)]
PP = [V(176, 8), V(184, 8)]
OA = [A(16 * a, 16) for a in range(8)]

def attn_main(b, uid, sc="sc1", hook=None, fused=False, on_run=None):
    vKt, vV = V(VB), V(VB + 1)
    sKV, sOff, sCnt, sRetry = sP[0], sP[1], sP[2], sP[3]
    b.I("s_add_u32", sKV, sLO, hex(off["KV0"]))
    b.I("s_mul_i32", sT0, sW, 16 * 3072)
    b.I("s_add_u32", sKV, sKV, sT0)
    b.I("v_lshlrev_b32", vKt, 3, vL)
    b.I("v_add_u32", vKt, 1024, vKt)
    b.I("v_and_b32", vt0, 31, vL)
    b.I("v_lshrrev_b32", vt2, 5, vL)
    b.I("v_mul_u32_u24", vt2, 384, vt2)
    b.I("v_lshl_add_u32", vV, vt0, 4, vt2)
    b.I("v_add_u32", vV, 1536, vV)
    b.I("v_mov_b32", vt1, hex(OOB))
    b.I("v_cmp_ge_u32", "vcc", 20, vt0)
    b.I("v_cndmask_b32", vV, vt1, vV, "vcc")
    def loadk(p):
        b.I("buffer_load_dwordx4", KV2[p]["km"], vL16, WS, sOff, mods="offen " + sc)
        b.I("buffer_load_dwordx2", KV2[p]["kt"], vKt, WS, sOff, mods="offen " + sc)
    def loadv(p):
        b.I("buffer_load_dwordx4", KV2[p]["v"][0], vV, WS, sOff, mods="offen " + sc)
        b.I("buffer_load_dwordx4", KV2[p]["v"][1], vV, WS, sOff, mods="offen offset:768 " + sc)
    def qk_main(a, p): b.I("v_mfma_f32_32x32x16_bf16", SX[a % 2], KV2[p]["km"], QA[a], 0)
    def qk_tail(a, p): b.I("v_mfma_f32_32x32x8_bf16", SX[a % 2], KV2[p]["kt"], QB[a], SX[a % 2])
    def pv(a, p, mf): b.I("v_mfma_f32_32x32x16_bf16", OA[a], KV2[p]["v"][mf], PP[a % 2][4 * mf:4 * mf + 4], OA[a])
    b.I("s_mov_b32", sRetry, 0)
    if not fused:
        for a in range(8):
            for i in range(16): b.I("v_accvgpr_write_b32", OA[a][i], 0)
    b.label(f"ATT_RUN_{uid}")
    b.clear_hist(); b.nop(2)
    if not fused: stamp(b, "run")
    if on_run: on_run()
    b.I("s_mov_b32", sOff, sKV)
    loadk(0); loadv(0)
    b.I("s_add_u32", sOff, sOff, 3072)
    loadk(1)
    for i in range(8): b.I("v_mov_b32", PP[1][i], 0)
    for e in range(8): b.I("v_mov_b32", V(KV2[1]["v"][0].i + e), 0)
    for i in range(12, 16): b.I("v_mov_b32", SX[1][i], 0)
    qk_main(0, 0)
    b.nop(10)
    qk_tail(0, 0)
    b.nop(12)
    stamp(b, "loop_in")
    b.I("s_mov_b32", sCnt, 8)
    b.align(6)
    b.label(f"ATT_LOOP_{uid}")
    b.clear_hist()
    b.vm = [(("kv", 9), KV2[0]["v"][0].regs()), (("kv", 9), KV2[0]["v"][1].regs()),
            (("kv", 8), KV2[1]["km"].regs()), (("kv", 8), KV2[1]["kt"].regs())]
    entry = [e[1] for e in b.vm]
    def step(a, p, extra):
        s_ = SX[a % 2]; P_ = PP[a % 2]; sprev = SX[(a + 1) % 2]; Pprev = PP[(a + 1) % 2]
        an, pn = (a + 1) % 8, (p if a < 7 else 1 - p)
        ap, pp_ = (a - 1) % 8, (p if a > 0 else 1 - p)
        ex = lambda i: b.I("v_exp_f32", s_[i], s_[i])
        cv = lambda i: b.I("v_cvt_pk_bf16_f32", P_[i], s_[2 * i], s_[2 * i + 1])
        b.I("v_cvt_pk_bf16_f32", Pprev[6], sprev[12], sprev[13])
        ex(0)
        b.I("v_cvt_pk_bf16_f32", Pprev[7], sprev[14], sprev[15])
        ex(1)
        qk_main(an, pn)
        ex(2); ex(3); ex(4); ex(5); cv(0); cv(1)
        pv(ap, pp_, 0)
        for x in extra.get(0, []): x()
        ex(6); ex(7); ex(8); ex(9)
        qk_tail(an, pn)
        cv(2); ex(10); ex(11); cv(3); ex(12); ex(13); cv(4)
        pv(ap, pp_, 1)
        ex(14); ex(15); cv(5)
        for x in extra.get(1, []): x()
    for p in range(2):
        for a in range(8):
            extra = {}
            if a == 1: extra = {0: [lambda p=p: loadv(1 - p)], 1: [lambda: b.I("s_add_u32", sOff, sOff, 3072)]}
            if a == 7: extra = {1: [lambda p=p: loadk(p)]}
            if hook: hook(p, a, extra)
            step(a, p, extra)
    b.I("s_sub_u32", sCnt, sCnt, 1)
    b.I("s_cmp_lg_u32", sCnt, 0)
    b.I("s_cbranch_scc1", f"ATT_LOOP_{uid}")
    b.loop_states = (entry, [e[1] for e in b.vm])
    stamp(b, "loop_out")
    b.I("v_cvt_pk_bf16_f32", PP[1][6], SX[1][12], SX[1][13])
    b.I("v_cvt_pk_bf16_f32", PP[1][7], SX[1][14], SX[1][15])
    pv(7, 1, 0); pv(7, 1, 1)
    b.wait(vm=0)
    stamp(b, "drain")
    vR = V(VB + 2)
    b.barrier()
    for hd in range(1, 4):
        b.I("s_add_u32", sT0, sW, hd)
        b.I("s_and_b32", sT0, sT0, 3)
        b.I("s_mul_i32", sT0, sT0, 18432)
        b.I("s_add_u32", sT0, sT0, LDS_PART + (hd - 1) * 6144)
        b.I("v_add_u32", vR, sT0, vL16)
        for th in range(2):
            for c in range(3): b.I("ds_write_b128", vR, OA[2 * hd + th][4 * c:4 * c + 4], mods=f"offset:{th * 3072 + c * 1024}")
    OO = [V(192, 12), V(204, 12)]
    TT = [V(64, 12), V(76, 12), V(88, 12)]
    for th in range(2):
        for i in range(12): b.I("v_accvgpr_read_b32", OO[th][i], OA[th][i])
    b.I("s_mul_i32", sT0, sW, 18432)
    b.I("s_add_u32", sT0, sT0, LDS_PART)
    b.I("v_add_u32", vR, sT0, vL16)
    b.wait(lg=0)
    b.barrier()
    for th in range(2):
        for sl in range(3):
            for c in range(3): b.I("ds_read_b128", TT[sl][4 * c:4 * c + 4], vR, mods=f"offset:{sl * 6144 + th * 3072 + c * 1024}")
        for sl in range(3):
            for i in range(12): b.I("v_add_f32", OO[th][i], OO[th][i], TT[sl][i])
    stamp(b, "reduced")
    lreg = [V(VB + 5), V(VB + 6)]
    for q in range(2):
        b.I("v_mov_b32", lreg[q], OO[q][8])
        b.I("v_mov_b32", vt0, OO[q][8])
        b.I("v_permlane32_swap_b32", vt0, lreg[q])
    b.I("v_mov_b32", vt2, hex(f2u(2.0 ** 60)))
    b.I("v_cmp_nlt_f32", S(48, 2), lreg[0], vt2)
    b.I("v_cmp_nlt_f32", S(50, 2), lreg[1], vt2)
    b.I("v_mov_b32", vt1, 0)
    for q in range(2):
        for i in range(12): b.I("v_fmac_f32", vt1, 0, OO[q][i])
    b.I("v_cmp_u_f32", "vcc", vt1, vt1)
    b.I("s_or_b64", S(48, 2), S(48, 2), S(50, 2))
    b.I("s_or_b64", S(48, 2), S(48, 2), "vcc")
    b.I("s_cmp_lg_u64", S(48, 2), 0)
    b.I("s_cselect_b32", sT0, 1, 0)
    b.I("s_cmp_eq_u32", sRetry, 1)
    b.I("s_cselect_b32", sT0, 0, sT0)
    b.I("v_mov_b32", vt0, sT0)
    b.I("s_lshl_b32", sT1, sW, 2)
    b.I("s_add_u32", sT1, sT1, LDS_FLAG)
    b.I("v_mov_b32", vt1, sT1)
    b.I("ds_write_b32", vt1, vt0)
    b.wait(lg=0)
    b.barrier()
    b.I("v_mov_b32", vt1, LDS_FLAG)
    FL = V(VB + 8, 4)
    b.I("ds_read_b128", FL, vt1)
    b.I("v_or_b32", FL[0], FL[0], FL[1]); b.I("v_or_b32", FL[2], FL[2], FL[3]); b.I("v_or_b32", FL[0], FL[0], FL[2])
    b.I("v_readfirstlane_b32", sT0, FL[0])
    b.I("s_cmp_eq_u32", sT0, 0)
    b.I("s_cbranch_scc1", f"ATT_OK_{uid}")
    b.I("s_mov_b32", sRetry, 1)
    MX = [V(192 + a) for a in range(8)]
    QZ = V(200, 2)
    for a in range(8): b.I("v_mov_b32", MX[a], hex(f2u(-3.0e38)))
    b.I("s_mov_b32", sOff, sKV)
    b.I("s_mov_b32", sCnt, 16)
    b.label(f"ATT_MAX_{uid}")
    b.clear_hist()
    loadk(0)
    b.I("s_add_u32", sOff, sOff, 3072)
    b.I("v_cmp_gt_u32", "vcc", 32, vL)
    for a in range(8):
        for e in range(2): b.I("v_cndmask_b32", QZ[e], 0, QB[a][e], "vcc")
        b.I("v_mfma_f32_32x32x16_bf16", SX[0], KV2[0]["km"], QA[a], 0)
        b.nop(10)
        b.I("v_mfma_f32_32x32x8_bf16", SX[0], KV2[0]["kt"], QZ, SX[0])
        for i in range(0, 16, 2): b.I("v_max3_f32", MX[a], MX[a], SX[0][i], SX[0][i + 1])
    b.I("s_sub_u32", sCnt, sCnt, 1)
    b.I("s_cmp_lg_u32", sCnt, 0)
    b.I("s_cbranch_scc1", f"ATT_MAX_{uid}")
    b.barrier()
    for a in range(8):
        b.I("v_mov_b32", vt0, MX[a])
        b.I("v_permlane32_swap_b32", MX[a], vt0)
        b.I("v_max_f32", MX[a], MX[a], vt0)
        b.I("s_add_u32", sT0, sW, a // 2)
        b.I("s_and_b32", sT0, sT0, 3)
        b.I("s_lshl_b32", sT0, sT0, 9)
        b.I("s_lshl_b32", sT1, sW, 11)
        b.I("s_add_u32", sT0, sT0, sT1)
        b.I("s_add_u32", sT0, sT0, LDS_MAX + (a & 1) * 256)
        b.I("v_lshlrev_b32", vt1, 2, vL)
        b.I("v_add_u32", vt1, sT0, vt1)
        b.I("ds_write_b32", vt1, MX[a])
    b.wait(lg=0)
    b.barrier()
    for a in range(8):
        b.I("s_add_u32", sT0, sW, a // 2)
        b.I("s_and_b32", sT0, sT0, 3)
        b.I("s_lshl_b32", sT0, sT0, 9)
        b.I("s_add_u32", sT0, sT0, LDS_MAX + (a & 1) * 256)
        b.I("v_lshlrev_b32", vt1, 2, vL)
        b.I("v_add_u32", vt1, sT0, vt1)
        T4 = V(204, 4)
        for ww in range(4): b.I("ds_read_b32", T4[ww], vt1, mods=f"offset:{2048 * ww}")
        b.I("v_max3_f32", T4[0], T4[0], T4[1], T4[2])
        b.I("v_max_f32", T4[0], T4[0], T4[3])
        standin_fold(b, QB[a], T4[0], vt0, vt2, vt3)
    for a in range(8):
        for i in range(16): b.I("v_accvgpr_write_b32", OA[a][i], 0)
    b.wait(lg=0)
    b.barrier()
    b.I("s_branch", f"ATT_RUN_{uid}")
    b.label(f"ATT_OK_{uid}")
    b.clear_hist(); b.nop(2)
    sO = sP[0]
    b.I("s_mul_i32", sO, sG, 81920)
    b.I("s_add_u32", sO, sO, sLO)
    b.I("s_mul_i32", sT0, sJ, 10240)
    b.I("s_add_u32", sO, sO, sT0)
    b.I("s_add_u32", sO, sO, hex(off["O0"]))
    vo = V(VB + 7); vo2 = V(VB + 8)
    b.I("s_mul_i32", sT0, sW, 5)
    b.I("v_lshrrev_b32", vt0, 5, vL)
    b.I("v_add_u32", vt0, sT0, vt0)
    b.I("v_lshrrev_b32", vt1, 1, vt0)
    b.I("v_lshlrev_b32", vo, 10, vt1)
    b.I("v_and_b32", vt1, 1, vt0)
    b.I("v_lshl_add_u32", vo, vt1, 3, vo)
    b.I("v_and_b32", vt1, 31, vL)
    b.I("v_lshl_add_u32", vo, vt1, 4, vo)
    b.I("v_cmp_gt_u32", "vcc", 32, vL)
    b.I("v_mov_b32", vt1, hex(OOB))
    b.I("v_cndmask_b32", vo2, vt1, vo, "vcc")
    for q in range(2):
        b.I("v_rcp_f32", lreg[q], lreg[q])
        for i in range(12): b.I("v_mul_f32", OO[q][i], lreg[q], OO[q][i])
        for i in range(6): b.I("v_cvt_pk_bf16_f32", PP[q][i], OO[q][2 * i], OO[q][2 * i + 1])
        for c in range(3):
            tag = b.I("buffer_store_dwordx2", PP[q][2 * c:2 * c + 2], (vo if c < 2 else vo2), WS, sO, mods=f"offen offset:{c * 1024 + q * 512} sc1")
    return tag


def attn_main2(b, uid, wo_dma, on_run, sc="sc1", last_extra=(), freed=None, store_sc="sc1", sBX_=None, own_freed=(), after_store=None, skip6=False):
    last_extra = list(last_extra)
    fused = True
    ORDER = [2, 3, 4, 5, 6, 7, 0, 1]
    vKt, vV = V(VB), V(VB + 1)
    sKV, sOff, sCnt, sRetry = sP[0], sP[1], sP[2], sP[3]
    b.I("s_add_u32", sKV, sLO, hex(off["KV0"]))
    b.I("s_mul_i32", sT0, sW, 16 * 3072)
    b.I("s_add_u32", sKV, sKV, sT0)
    b.I("v_lshlrev_b32", vKt, 3, vL)
    b.I("v_add_u32", vKt, 1024, vKt)
    b.I("v_and_b32", vt0, 31, vL)
    b.I("v_lshrrev_b32", vt2, 5, vL)
    b.I("v_mul_u32_u24", vt2, 384, vt2)
    b.I("v_lshl_add_u32", vV, vt0, 4, vt2)
    b.I("v_add_u32", vV, 1536, vV)
    b.I("v_mov_b32", vt1, hex(OOB))
    b.I("v_cmp_ge_u32", "vcc", 20, vt0)
    b.I("v_cndmask_b32", vV, vt1, vV, "vcc")
    def loadk(p):
        b.I("buffer_load_dwordx4", KV2[p]["km"], vL16, WS, sOff, mods="offen " + sc)
        b.I("buffer_load_dwordx2", KV2[p]["kt"], vKt, WS, sOff, mods="offen " + sc)
    def loadv(p):
        b.I("buffer_load_dwordx4", KV2[p]["v"][0], vV, WS, sOff, mods="offen " + sc)
        b.I("buffer_load_dwordx4", KV2[p]["v"][1], vV, WS, sOff, mods="offen offset:768 " + sc)
    def qk_main(i, p): b.I("v_mfma_f32_32x32x16_bf16", SX[i % 2], KV2[p]["km"], QA[ORDER[i]], 0)
    def qk_tail(i, p): b.I("v_mfma_f32_32x32x8_bf16", SX[i % 2], KV2[p]["kt"], QB[ORDER[i]], SX[i % 2])
    def pv(i, p, mf): b.I("v_mfma_f32_32x32x16_bf16", OA[ORDER[i]], KV2[p]["v"][mf], PP[i % 2][4 * mf:4 * mf + 4], OA[ORDER[i]])
    b.I("s_mov_b32", sRetry, 0)
    if not fused:
        for a in range(8):
            for i in range(16): b.I("v_accvgpr_write_b32", OA[a][i], 0)
    b.label(f"ATT_RUN_{uid}")
    b.clear_hist(); b.nop(2)
    if not fused: stamp(b, "run")
    if on_run: on_run()
    b.I("s_mov_b32", sOff, sKV)
    loadk(0); loadv(0)
    b.I("s_add_u32", sOff, sOff, 3072)
    loadk(1)
    for i in range(8): b.I("v_mov_b32", PP[1][i], 0)
    for e in range(8): b.I("v_mov_b32", V(KV2[1]["v"][0].i + e), 0)
    for i in range(12, 16): b.I("v_mov_b32", SX[1][i], 0)
    qk_main(0, 0)
    b.nop(10)
    qk_tail(0, 0)
    b.nop(12)
    stamp(b, "loop_in")
    b.I("s_mov_b32", sCnt, 7)
    vRw = [V(VB + 2 + hd) for hd in range(3)]; vR = V(VB + 9)
    for hd in range(1, 4):
        b.I("s_add_u32", sT0, sW, hd)
        b.I("s_and_b32", sT0, sT0, 3)
        b.I("s_mul_i32", sT0, sT0, 18432)
        b.I("s_add_u32", sT0, sT0, LDS_PART + (hd - 1) * 6144)
        b.I("v_add_u32", vRw[hd - 1], sT0, vL16)
    b.I("s_mul_i32", sT0, sW, 18432)
    b.I("s_add_u32", sT0, sT0, LDS_PART)
    b.I("v_add_u32", vR, sT0, vL16)
    vOo, vOo2, vFl = V(216), V(217), V(218)
    sO = S(45)
    b.I("s_mul_i32", sT0, sJ, 10240)
    b.I("s_add_u32", sO, sBX_, sT0)
    b.I("s_add_u32", sO, sO, hex(off["O0"]))
    b.I("s_mul_i32", sT0, sW, 5)
    b.I("v_lshrrev_b32", vt0, 5, vL)
    b.I("v_add_u32", vt0, sT0, vt0)
    b.I("v_lshrrev_b32", vt1, 1, vt0)
    b.I("v_lshlrev_b32", vOo, 10, vt1)
    b.I("v_and_b32", vt1, 1, vt0)
    b.I("v_lshl_add_u32", vOo, vt1, 3, vOo)
    b.I("v_and_b32", vt1, 31, vL)
    b.I("v_lshl_add_u32", vOo, vt1, 4, vOo)
    b.I("v_cmp_gt_u32", "vcc", 32, vL)
    b.I("v_mov_b32", vt1, hex(OOB))
    b.I("v_cndmask_b32", vOo2, vt1, vOo, "vcc")
    b.I("s_lshl_b32", sT1, sW, 2)
    b.I("s_add_u32", sT1, sT1, LDS_FLAG)
    b.I("v_mov_b32", vFl, sT1)
    b.align(6)
    b.label(f"ATT_LOOP_{uid}")
    b.clear_hist()
    b.vm = [(("kv", 9), KV2[0]["v"][0].regs()), (("kv", 9), KV2[0]["v"][1].regs()),
            (("kv", 8), KV2[1]["km"].regs()), (("kv", 8), KV2[1]["kt"].regs())]
    entry = [e[1] for e in b.vm]
    def step(a, p, extra):
        s_ = SX[a % 2]; P_ = PP[a % 2]; sprev = SX[(a + 1) % 2]; Pprev = PP[(a + 1) % 2]
        an, pn = (a + 1) % 8, (p if a < 7 else 1 - p)
        ap, pp_ = (a - 1) % 8, (p if a > 0 else 1 - p)
        ex = lambda i: b.I("v_exp_f32", s_[i], s_[i])
        cv = lambda i: b.I("v_cvt_pk_bf16_f32", P_[i], s_[2 * i], s_[2 * i + 1])
        b.I("v_cvt_pk_bf16_f32", Pprev[6], sprev[12], sprev[13])
        ex(0)
        b.I("v_cvt_pk_bf16_f32", Pprev[7], sprev[14], sprev[15])
        ex(1)
        qk_main(an, pn)
        ex(2); ex(3); ex(4); ex(5); cv(0); cv(1)
        pv(ap, pp_, 0)
        for x in extra.get(0, []): x()
        ex(6); ex(7); ex(8); ex(9)
        qk_tail(an, pn)
        cv(2); ex(10); ex(11); cv(3); ex(12); ex(13); cv(4)
        pv(ap, pp_, 1)
        ex(14); ex(15); cv(5)
        for x in extra.get(1, []): x()
    def part_writes(a):
        hd, th = a // 2, a % 2
        return [lambda c=c: b.I("ds_write_b128", vRw[hd - 1], OA[a][4 * c:4 * c + 4], mods=f"offset:{th * 3072 + c * 1024}", tag=("pw", a)) for c in range(3)]
    def body(last):
        for p in range(2):
            for a in range(8):
                extra = {}
                if a == 1 and not (last and p == 1): extra = {0: [lambda p=p: loadv(1 - p)], 1: [lambda: b.I("s_add_u32", sOff, sOff, 3072)]}
                if a == 7 and not last: extra = {1: [lambda p=p: loadk(p)]}
                if not last and p == 0 and a == 3: extra.setdefault(0, []).append(wo_dma)
                if last:
                    for _ in range(2 if p == 0 else (4 if a < 2 else 0)):
                        if last_extra: extra.setdefault(1, []).append(last_extra.pop(0))
                if last and p == 1 and a >= 2:
                    w = part_writes(ORDER[a - 2])
                    extra.setdefault(0, []).extend(w[:2]); extra.setdefault(1, []).append(w[2])
                if last and p == 1 and a >= 4 and freed:
                    extra.setdefault(0, []).insert(0, lambda a=a: b.wait_lg_tag(("pw", ORDER[a - 4])))
                    fr = freed(ORDER[a - 4])
                    extra[0] = extra[0][:1] + fr[:2] + extra[0][1:]
                    extra.setdefault(1, []).extend(fr[2:])
                step(a, p, extra)
    body(False)
    b.I("s_sub_u32", sCnt, sCnt, 1)
    b.I("s_cmp_lg_u32", sCnt, 0)
    b.I("s_cbranch_scc1", f"ATT_LOOP_{uid}")
    b.loop_states = (entry, [e[1] for e in b.vm])
    body(True)
    assert not last_extra
    stamp(b, "loop_out")
    b.I("v_cvt_pk_bf16_f32", PP[1][6], SX[1][12], SX[1][13])
    b.I("v_cvt_pk_bf16_f32", PP[1][7], SX[1][14], SX[1][15])
    pv(7, 1, 0); pv(7, 1, 1)
    OO = [V(192, 12), V(204, 12)]
    TT = [V(64, 12), V(76, 12), V(88, 12)]
    for i in range(12): b.I("v_accvgpr_read_b32", OO[0][i], OA[0][i])
    for i in range(12): b.I("v_accvgpr_read_b32", OO[1][i], OA[1][i])
    b.wait(lg=0)
    if freed and after_store is None and not skip6:
        for op in freed(6): op()
    for op in own_freed: op()
    stamp(b, "drain")
    b.barrier()
    for th in range(2):
        for sl in range(3):
            for c in range(3): b.I("ds_read_b128", TT[sl][4 * c:4 * c + 4], vR, mods=f"offset:{sl * 6144 + th * 3072 + c * 1024}")
        for sl in range(3):
            for i in range(0, 12, 2): b.I("v_pk_add_f32", OO[th][i:i + 2], OO[th][i:i + 2], TT[sl][i:i + 2])
    stamp(b, "reduced")
    lreg = [V(VB + 6), V(VB + 8)]
    sO = S(45)
    vo = V(VB + 10); vo2 = V(VB + 11); Z2 = V(VB + 12, 2)
    for q in range(2):
        b.I("v_mov_b32", lreg[q], OO[q][8])
        b.I("v_mov_b32", vt0, OO[q][8])
        b.I("v_permlane32_swap_b32", vt0, lreg[q])
    b.I("v_mov_b32", vt2, hex(f2u(2.0 ** 60)))
    b.I("v_cmp_nlt_f32", S(48, 2), lreg[0], vt2)
    b.I("v_cmp_nlt_f32", S(50, 2), lreg[1], vt2)
    b.I("v_mov_b32", Z2[0], 0); b.I("v_mov_b32", Z2[1], 0)
    for q in range(2):
        for i_ in range(0, 12, 2): b.I("v_pk_fma_f32", Z2, OO[q][i_:i_ + 2], 0, Z2, mods="op_sel_hi:[1,0,1]")
    for q in range(2): b.I("v_rcp_f32", lreg[q], lreg[q])
    b.I("v_add_f32", Z2[0], Z2[0], Z2[1])
    b.I("v_cmp_u_f32", "vcc", Z2[0], Z2[0])
    tag = None
    for q in range(2):
        l2 = V(lreg[q].i, 2)
        for i_ in range(0, 12, 2): b.I("v_pk_mul_f32", OO[q][i_:i_ + 2], OO[q][i_:i_ + 2], l2, mods="op_sel_hi:[1,0]")
        for i_ in range(6): b.I("v_cvt_pk_bf16_f32", PP[q][i_], OO[q][2 * i_], OO[q][2 * i_ + 1])
        for c in range(3):
            tag = b.I("buffer_store_dwordx2", PP[q][2 * c:2 * c + 2], (vOo if c < 2 else vOo2), WS, sO, mods=f"offen offset:{c * 1024 + q * 512} {store_sc}")
    b.I("s_or_b64", S(48, 2), S(48, 2), S(50, 2))
    b.I("s_or_b64", S(48, 2), S(48, 2), "vcc")
    b.I("s_cmp_lg_u64", S(48, 2), 0)
    b.I("s_cselect_b32", sT0, 1, 0)
    b.I("s_cmp_eq_u32", sRetry, 1)
    b.I("s_cselect_b32", sT0, 0, sT0)
    b.I("v_mov_b32", vt0, sT0)
    b.I("ds_write_b32", vFl, vt0)
    for op in (after_store or []): op()
    stamp(b, "att_end")
    b.wait_vm_tag(tag)
    b.wait(lg=0)
    stamp(b, "s1_drained")
    b.barrier()
    b.I("v_mov_b32", vt1, LDS_FLAG)
    FL = V(VB + 12, 4)
    b.I("ds_read_b128", FL, vt1)
    b.I("v_or_b32", FL[0], FL[0], FL[1]); b.I("v_or_b32", FL[2], FL[2], FL[3]); b.I("v_or_b32", FL[0], FL[0], FL[2])
    b.I("v_readfirstlane_b32", sT0, FL[0])
    b.I("s_cmp_eq_u32", sT0, 0)
    b.I("s_cbranch_scc1", f"ATT_OK_{uid}")
    b.I("s_mov_b32", sRetry, 1)
    b.wait(vm=0)
    MX = [V(192 + a) for a in range(8)]
    QZ = V(200, 2)
    for a in range(8): b.I("v_mov_b32", MX[a], hex(f2u(-3.0e38)))
    b.I("s_mov_b32", sOff, sKV)
    b.I("s_mov_b32", sCnt, 16)
    b.label(f"ATT_MAX_{uid}")
    b.clear_hist()
    loadk(0)
    b.I("s_add_u32", sOff, sOff, 3072)
    b.I("v_cmp_gt_u32", "vcc", 32, vL)
    for a in range(8):
        for e in range(2): b.I("v_cndmask_b32", QZ[e], 0, QB[a][e], "vcc")
        b.I("v_mfma_f32_32x32x16_bf16", SX[0], KV2[0]["km"], QA[a], 0)
        b.nop(10)
        b.I("v_mfma_f32_32x32x8_bf16", SX[0], KV2[0]["kt"], QZ, SX[0])
        for i in range(0, 16, 2): b.I("v_max3_f32", MX[a], MX[a], SX[0][i], SX[0][i + 1])
    b.I("s_sub_u32", sCnt, sCnt, 1)
    b.I("s_cmp_lg_u32", sCnt, 0)
    b.I("s_cbranch_scc1", f"ATT_MAX_{uid}")
    b.barrier()
    for a in range(8):
        b.I("v_mov_b32", vt0, MX[a])
        b.I("v_permlane32_swap_b32", MX[a], vt0)
        b.I("v_max_f32", MX[a], MX[a], vt0)
        b.I("s_add_u32", sT0, sW, a // 2)
        b.I("s_and_b32", sT0, sT0, 3)
        b.I("s_lshl_b32", sT0, sT0, 9)
        b.I("s_lshl_b32", sT1, sW, 11)
        b.I("s_add_u32", sT0, sT0, sT1)
        b.I("s_add_u32", sT0, sT0, LDS_MAX + (a & 1) * 256)
        b.I("v_lshlrev_b32", vt1, 2, vL)
        b.I("v_add_u32", vt1, sT0, vt1)
        b.I("ds_write_b32", vt1, MX[a])
    b.wait(lg=0)
    b.barrier()
    for a in range(8):
        b.I("s_add_u32", sT0, sW, a // 2)
        b.I("s_and_b32", sT0, sT0, 3)
        b.I("s_lshl_b32", sT0, sT0, 9)
        b.I("s_add_u32", sT0, sT0, LDS_MAX + (a & 1) * 256)
        b.I("v_lshlrev_b32", vt1, 2, vL)
        b.I("v_add_u32", vt1, sT0, vt1)
        T4 = V(204, 4)
        for ww in range(4): b.I("ds_read_b32", T4[ww], vt1, mods=f"offset:{2048 * ww}")
        b.I("v_max3_f32", T4[0], T4[0], T4[1], T4[2])
        b.I("v_max_f32", T4[0], T4[0], T4[3])
        standin_fold(b, QB[a], T4[0], vt0, vt2, vt3)
    for a in range(8):
        for i in range(16): b.I("v_accvgpr_write_b32", OA[a][i], 0)
    b.wait(lg=0)
    b.barrier()
    b.I("s_branch", f"ATT_RUN_{uid}")
    b.label(f"ATT_OK_{uid}")
    b.clear_hist(); b.nop(2)
```

```python
from asmb import *
import layout as L
import k_main as M
from k_main import *
import k_att2 as A2
from k_att2 import QA, QB, KV2, SX, PP, OA, standin_fold, LDS_Q, LDS_PART, LDS_FLAG, LDS_MAX

SPIN_MAX = 400000
EXP = {}
sGS, sFG, sFA, sGT = S(52), S(53), S(54), S(55)
sWQ, sW1, sW2 = S(40), S(41), S(42)
sBX = S(43)
sWp = S(47)
F_GRID = off["FLAGS"] + 32768
PARK = 0x27F00
RESID = [V(240 + 2 * fb, 2) for fb in range(5)]
def slot(f): return A(4 * ((f + 32) % 64), 4)

class Fill:
    def __init__(self): self.q = []; self.credit = 0
    def add(self, c, f): self.q.append((c, f))
    def v(self, b, *a, **k): self.add(4, lambda: b.I(*a, **k))
    def run(self, budget):
        self.credit += budget
        while self.q and self.q[0][0] <= self.credit:
            c, f = self.q.pop(0); self.credit -= c; f()
    def flush(self):
        for c, f in self.q: f()
        self.q = []; self.credit = 0

sWA = S(58, 2)
def wops(b, sbase, frs):
    ops = []
    cur = None
    glob = EXP.get("glob", 1) and not M.PROFILE_USES_58
    for f in frs:
        def one(f=f, cur=cur):
            if glob:
                if cur is None:
                    b.I("s_add_u32", sWp, sbase, (f // 4) * 4096)
                    b.I("s_add_u32", sWA[0], S(4), sWp)
                    b.I("s_addc_u32", sWA[1], S(5), 0)
                elif f // 4 != cur:
                    b.I("s_add_u32", sWA[0], sWA[0], (f // 4 - cur) * 4096)
                    b.I("s_addc_u32", sWA[1], sWA[1], 0)
                b.I("global_load_dwordx4", slot(f), vL16, sWA, mods=f"offset:{(f % 4) * 1024}")
                return
            if cur is None: b.I("s_add_u32", sWp, sbase, (f // 4) * 4096)
            elif f // 4 != cur: b.I("s_add_u32", sWp, sWp, (f // 4 - cur) * 4096)
            b.I("buffer_load_dwordx4", slot(f), vL16, WS, sWp, mods=f"offen offset:{(f % 4) * 1024}")
        ops.append(one); cur = f // 4
    return ops

def l2_warm(b, region, slice_bytes):
    if not EXP.get("warm", 0): return []
    n = slice_bytes // 4 // 4 // 8192
    rem = slice_bytes // 4 // 4 - n * 8192
    n += 1 if rem else 0
    ops = []
    def first():
        b.I("s_mul_i32", sT0, sJ, slice_bytes)
        b.I("s_and_b32", sT1, sG, 3)
        b.I("s_lshl_b32", sT1, sT1, 2)
        b.I("s_add_u32", sT1, sT1, sW)
        b.I("s_mul_i32", sT1, sT1, slice_bytes // 16)
        b.I("s_add_u32", sT0, sT0, sT1)
        b.I("s_add_u32", S(45), sT0, hex(off[region]))
        b.I("v_lshlrev_b32", V(251), 7, vL)
    for q in range(n):
        def one(q=q):
            if q == 0: first()
            else: b.I("s_add_u32", S(45), S(45), 8192)
            b.I("buffer_load_dword", V(250), V(251), WS, S(45), mods="offen")
        ops.append(one)
    return ops

def dma_ops(b, ssrc, slds, n, sc):
    tags = []
    def one(q):
        if q == 0: b.I("s_mov_b32", "m0", slds)
        tags.append(b.I("buffer_load_dwordx4", vL16, WS, ssrc, mods=f"offen offset:{q * 1024} {sc} lds"))
    return [lambda q=q: one(q) for q in range(n)], tags

class XTile:
    NPW = [1, 3, 4, 4, 4, 4]
    U0 = [0, 4, 16, 32, 48, 64]
    def __init__(self, b, sX, lds_base, s0, s1):
        self.b = b; self.s0, self.s1 = s0, s1; self.tags = {}; self.sX = sX; self.lds = lds_base
    @classmethod
    def chunk_of_unit(cls, u): return max(c for c in range(6) if cls.U0[c] <= u)
    def ops(self, c):
        b = self.b; n = self.NPW[c]
        ops, tags = dma_ops(b, self.s0, self.s1, n, "sc1")
        self.tags[c] = tags
        first = ops[0]
        def head():
            if c <= 2:
                b.I("s_mul_i32", self.s0, sW, n * 1024)
                b.I("s_add_u32", self.s1, self.s0, self.lds + self.U0[c] * 1024)
                b.I("s_add_u32", self.s0, self.s0, self.sX)
                if c: b.I("s_add_u32", self.s0, self.s0, self.U0[c] * 1024)
            else:
                b.I("s_add_u32", self.s0, self.s0, 16384)
                b.I("s_add_u32", self.s1, self.s1, 16384)
            first()
        ops[0] = head
        return ops
    def wait(self, c):
        self.b.wait_vm_tag(self.tags[c][-1])
        self.b.barrier()

sLoc = S(46)
F_MASK = 49152
def arrive(b, uid):
    n0 = len(b.vm)
    b.I("s_cmp_lg_u32", sW, 0)
    b.I("s_cbranch_scc1", f"ARR_{uid}")
    snap = b.snapshot()
    b.I("v_mov_b32", vt0, 0); b.I("v_mov_b32", vt1, 1)
    b.I("s_mov_b64", "exec", 1)
    b.I("s_cmp_eq_u32", sLoc, 1)
    b.I("s_cbranch_scc1", f"ARRL_{uid}")
    b.I("buffer_wbl2", mods="sc1")
    b.wait(vm=0)
    b.I("buffer_atomic_add", vt1, vt0, WS, sFG, mods="offen sc1")
    b.I("s_branch", f"ARRX_{uid}")
    b.label(f"ARRL_{uid}")
    b.I("buffer_atomic_add", vt1, vt0, WS, sFG, mods="offen")
    b.label(f"ARRX_{uid}")
    b.I("s_mov_b64", "exec", -1)
    b.label(f"ARR_{uid}")
    b.restore(snap)
    b.clear_hist(); b.nop(1)

def window_poll(b, uid, window, grid=False, late=3):
    window = list(window)
    if EXP.get("nowin"): window = []
    late = min(late, len(window))
    for op in window[:len(window) - late]: op()
    vP, vA = V(254), V(253)
    soff = sP[9] if grid else sFG
    target = sGT if grid else sGS
    def issue():
        b.I("buffer_load_dword", vP, vA, WS, soff, mods="offen sc1")
        b.vm.pop()
    def test(lbl):
        b.I("v_cmp_le_u32", "vcc", target, vP)
        b.I("s_cmp_eq_u64", "vcc", "exec")
        b.I("s_cbranch_scc1", lbl)
    if grid:
        b.I("s_mov_b32", soff, hex(F_GRID))
        b.I("v_and_b32", vA, 7, vL)
        b.I("v_lshlrev_b32", vA, 8, vA)
    else: b.I("v_mov_b32", vA, 0)
    b.I("s_cmp_lg_u32", sW, 0)
    b.I("s_cbranch_scc1", f"PL0_{uid}")
    issue()
    b.label(f"PL0_{uid}")
    b.clear_hist()
    nt0 = b.ntag; nv0 = b.nvm
    for op in window[len(window) - late:]: op()
    late = b.nvm - nv0
    snap = b.snapshot()
    b.I("s_cmp_lg_u32", sW, 0)
    b.I("s_cbranch_scc1", f"POLLE_{uid}")
    b.wait(vm=late)
    b.I("s_mov_b32", sT2, 0)
    test(f"POLLD_{uid}")
    if EXP.get("pipe", 0):
        PR = [V(250), V(251), V(252), V(254)]
        def issue_r(r):
            b.I("buffer_load_dword", r, vA, WS, soff, mods="offen sc1")
            b.vm.pop()
        for n_, r in enumerate(PR):
            if n_: b.I("s_sleep", EXP.get("psleep", 1))
            issue_r(r)
        b.label(f"POLL_{uid}")
        for r in PR:
            b.wait(vm=3)
            b.I("v_cmp_le_u32", "vcc", target, r)
            b.I("s_cmp_eq_u64", "vcc", "exec")
            b.I("s_cbranch_scc1", f"POLLD_{uid}")
            issue_r(r)
        b.I("s_add_u32", sT2, sT2, 1)
        b.I("s_cmp_lt_u32", sT2, SPIN_MAX // 4)
        b.I("s_cbranch_scc1", f"POLL_{uid}")
    else:
        b.label(f"POLL_{uid}")
        issue()
        b.wait(vm=0)
        b.I("s_add_u32", sT2, sT2, 1)
        test(f"POLLD_{uid}")
        b.I("s_cmp_lt_u32", sT2, SPIN_MAX)
        b.I("s_cbranch_scc1", f"POLL_{uid}")
    b.label(f"POLLD_{uid}")
    if not grid:
        b.I("s_cmp_eq_u32", sLoc, 1)
        b.I("s_cbranch_scc1", f"POLLE_{uid}")
        b.I("buffer_inv", mods="sc1")
        b.wait(vm=0)
    b.label(f"POLLE_{uid}")
    b.restore(snap)
    b.clear_hist()
    b.barrier()

def arrive_wave(b, uid):
    snap = b.snapshot()
    b.I("v_mov_b32", vt0, 0); b.I("v_mov_b32", vt1, 1)
    b.I("s_mov_b64", "exec", 1)
    b.I("s_cmp_eq_u32", sLoc, 1)
    b.I("s_cbranch_scc1", f"ARRL_{uid}")
    b.I("buffer_wbl2", mods="sc1")
    b.wait(vm=0)
    b.I("buffer_atomic_add", vt1, vt0, WS, sFG, mods="offen sc1")
    b.I("s_branch", f"ARRX_{uid}")
    b.label(f"ARRL_{uid}")
    b.I("buffer_atomic_add", vt1, vt0, WS, sFG, mods="offen")
    b.label(f"ARRX_{uid}")
    b.I("s_mov_b64", "exec", -1)
    b.restore(snap)
    b.vm.append((("arr", uid), set()))
    b.clear_hist(); b.nop(1)

def group_sync(b, store_tag, uid, window):
    if EXP.get("wavearr", 0) and store_tag is not None:
        b.wait_vm_tag(store_tag)
        stamp(b, uid + "_drained")
        arrive_wave(b, uid)
        b.I("s_add_u32", sGS, sGS, 32)
        window_poll(b, uid, window)
        return
    window = list(window)
    if store_tag is not None:
        if EXP.get("early", 0):
            for op in window: op()
            window = []
        b.wait_vm_tag(store_tag)
        stamp(b, uid + "_drained")
        b.barrier()
    if EXP.get("wavearr", 0):
        arrive_wave(b, uid)
        b.I("s_add_u32", sGS, sGS, 32)
    else:
        arrive(b, uid)
        b.I("s_add_u32", sGS, sGS, 8)
    window_poll(b, uid, window)

def grid_arrive(b, store_tag, uid):
    b.wait_vm_tag(store_tag)
    b.barrier()
    b.I("s_add_u32", sGT, sGT, 32)
    b.I("s_cmp_lg_u32", sW, 0)
    b.I("s_cbranch_scc1", f"GA_{uid}")
    b.I("v_mov_b32", vt0, 0); b.I("v_mov_b32", vt1, 1)
    b.I("s_and_b32", sT0, sG, 7)
    b.I("s_lshl_b32", sT0, sT0, 8)
    b.I("s_add_u32", sT0, sT0, hex(F_GRID))
    b.I("s_mov_b64", "exec", 1)
    b.I("buffer_atomic_add", vt1, vt0, WS, sT0, mods="offen sc1")
    b.vm.pop()
    b.I("s_mov_b64", "exec", -1)
    b.label(f"GA_{uid}")
    b.clear_hist(); b.nop(1)

def xcd_publish(b):
    b.I("s_cmp_lg_u32", sW, 0)
    b.I("s_cbranch_scc1", "XP_END")
    b.I("s_getreg_b32", sT0, "hwreg(HW_REG_XCC_ID, 0, 4)")
    b.I("s_lshl_b32", sT0, 1, sT0)
    b.I("v_mov_b32", vt0, 0); b.I("v_mov_b32", vt1, sT0)
    b.I("s_add_u32", sT1, sFG, F_MASK)
    b.I("s_mov_b64", "exec", 1)
    b.I("buffer_atomic_or", vt1, vt0, WS, sT1, mods="offen sc1")
    b.vm.pop()
    b.I("s_mov_b64", "exec", -1)
    b.label("XP_END")
    b.clear_hist(); b.nop(1)
def xcd_mask_load(b):
    b.I("v_mov_b32", vt0, 0)
    b.I("s_add_u32", sT1, sFG, F_MASK)
    b.I("buffer_load_dword", V(252), vt0, WS, sT1, mods="offen sc1")
def xcd_mask_use(b):
    b.I("v_readfirstlane_b32", sT0, V(252))
    b.I("s_bcnt1_i32_b32", sT0, sT0)
    b.I("s_cmp_eq_u32", sT0, 1)
    b.I("s_cselect_b32", sLoc, 1, 0)

LDS_STX = 83968
class Stats:
    def __init__(self, b, region, regs):
        self.b = b; self.R = regs
        sS = self.sS = sP[1]
        b.I("s_lshl_b32", sS, sG, 12)
        b.I("s_add_u32", sS, sS, sLO)
        b.I("s_lshl_b32", sT0, sW, 10)
        b.I("s_add_u32", sS, sS, sT0)
        b.I("s_add_u32", sS, sS, hex(off[region]))
        self.va = V(regs.i + 8); self.vw = V(regs.i + 9)
        b.I("v_lshlrev_b32", self.va, 3, vL)
        b.I("s_lshl_b32", sT0, sW, 9)
        b.I("v_add_u32", self.vw, sT0, self.va)
        b.I("v_add_u32", self.vw, LDS_STX, self.vw)
    def load(self):
        for q in range(2): self.b.I("buffer_load_dwordx2", self.R[2 * q:2 * q + 2], self.va, WS, self.sS, mods=f"offen offset:{q * 512} sc1")
    def publish(self):
        b = self.b
        pk(b, "v_pk_add_f32", self.R[0:2], self.R[0:2], self.R[2:4])
        self.tag = b.I("ds_write_b64", self.vw, self.R[0:2])
        b.I("v_add_u32", self.va, LDS_STX, self.va)
    def before_barrier(self): self.b.wait_lg_tag(self.tag)
    def fill(self, f, mean, rstd):
        b = self.b
        for q in range(4): f.add(12, lambda q=q: b.I("ds_read_b64", self.R[2 * q:2 * q + 2], self.va, mods=f"offset:{q * 512}"))
        f.add(60, lambda: None)
        f.v(b, "v_pk_add_f32", self.R[0:2], self.R[0:2], self.R[2:4])
        f.v(b, "v_pk_add_f32", self.R[4:6], self.R[4:6], self.R[6:8])
        f.v(b, "v_pk_add_f32", self.R[0:2], self.R[0:2], self.R[4:6])
        f.v(b, "v_mul_f32", mean, hex(f2u(1.0 / 640)), self.R[0])
        f.v(b, "v_mul_f32", rstd, hex(f2u(1.0 / 640)), self.R[1])
        f.v(b, "v_fma_f32", rstd, f"-{mean}", mean, rstd)
        f.v(b, "v_max_f32", rstd, 0, rstd)
        f.v(b, "v_add_f32", rstd, hex(f2u(1e-5)), rstd)
        f.add(8, lambda: b.I("v_rsq_f32", rstd, rstd))

def pk(b, op, d, *src, mods=""): b.I(op, d, *src, mods=mods)

def qkv_start(b):
    sX, sD0, sD1 = sP[0], sP[2], sP[3]
    b.I("s_add_u32", sX, sBX, hex(off["XB0"]))
    xt = XTile(b, sX, LDS_X, sD0, sD1)
    for c in range(3):
        for op in xt.ops(c): op()
    return xt
def qkv(b, xt):
    uid = "q"
    sX, sSt, sD0, sD1, sSc = sP[0], sP[1], sP[2], sP[3], sP[4]
    st = Stats(b, "STI0", V(VB, 8))
    st.load()
    ACC = [V(64, 16), V(80, 16)]
    XF = [[V(96 + 8 * p + 4 * th, 4) for th in range(2)] for p in range(4)]
    vXa, vXb = V(VB + 16), V(VB + 17)
    mean, rstd = V(VB + 18), V(VB + 19)
    mT = [V(VB + 20, 2), V(VB + 22, 2)]; rT = [V(VB + 24, 2), V(VB + 26, 2)]
    rq, rm = [V(VB + 28, 2), V(VB + 30, 2)], [V(VB + 32, 2), V(VB + 34, 2)]
    vkey, vh, vaT, vaU, vaT1, vaU1 = (V(VB + 36 + i) for i in range(6))
    CS = V(128, 16)
    b.I("v_add_u32", vXa, LDS_X, vX32)
    b.I("v_add_u32", vXb, LDS_X + 65536, vX32)
    b.I("v_lshrrev_b32", vt0, 5, vL)
    b.I("v_lshlrev_b32", vt0, 4, vt0)
    b.I("s_lshl_b32", sT0, sW, 7)
    b.I("v_add_u32", vt0, sT0, vt0)
    b.I("v_add_u32", vt0, T_CSQ, vt0)
    for c in range(4): b.I("ds_read_b128", CS[4 * c:4 * c + 4], vt0, mods=f"offset:{32 * c}")
    b.I("v_and_b32", vkey, 31, vL)
    b.I("v_lshrrev_b32", vh, 5, vL)
    b.I("s_and_b32", sT0, sW, 1)
    b.I("s_mul_i32", sT0, sT0, 3)
    b.I("v_mov_b32", vaT, sT0)
    b.I("v_add_u32", vaU, 1, vh)
    b.I("v_add_u32", vaU, sT0, vaU)
    b.I("s_cmp_ge_u32", sW, 2)
    b.I("s_cbranch_scc1", f"QKV_AV_{uid}")
    for va in (vaT, vaU):
        b.I("v_lshrrev_b32", vt0, 1, va)
        b.I("v_lshlrev_b32", vt0, 9, vt0)
        b.I("v_and_b32", vt1, 1, va)
        b.I("v_lshl_add_u32", vt0, vt1, 3, vt0)
        b.I("v_lshl_add_u32", vt0, vkey, 4, vt0)
        b.I("v_lshlrev_b32", vt1, 3, vkey)
        b.I("v_add_u32", vt1, 1024, vt1)
        b.I("v_cmp_eq_u32", "vcc", 4, va)
        b.I("v_cndmask_b32", vt0, vt0, vt1, "vcc")
        b.I("v_add_u32", vt0, LDS_KVIMG, vt0)
        b.I("v_cmp_lt_u32", "vcc", 4, va)
        b.I("v_mov_b32", vt1, PARK)
        b.I("v_cndmask_b32", va, vt0, vt1, "vcc")
    b.I("s_branch", f"QKV_AJ_{uid}")
    b.label(f"QKV_AV_{uid}")
    b.I("v_lshrrev_b32", vt0, 4, vkey)
    b.I("v_mul_u32_u24", vt0, 768, vt0)
    b.I("v_bfe_u32", vt1, vkey, 2, 1)
    b.I("v_mul_u32_u24", vt1, 384, vt1)
    b.I("v_add_u32", vt0, vt0, vt1)
    b.I("v_and_b32", vt1, 3, vkey)
    b.I("v_lshl_add_u32", vt0, vt1, 1, vt0)
    b.I("v_bfe_u32", vt1, vkey, 3, 1)
    b.I("v_lshl_add_u32", vt0, vt1, 3, vt0)
    b.I("v_add_u32", vt3, LDS_KVIMG + 1536, vt0)
    for va in (vaT, vaU):
        b.I("v_lshl_add_u32", vt0, va, 6, vt3)
        b.I("v_cmp_lt_u32", "vcc", 4, va)
        b.I("v_mov_b32", vt1, PARK)
        b.I("v_cndmask_b32", va, vt0, vt1, "vcc")
    ONE = V(144, 4)
    b.I("v_and_b32", vt0, 3, vL)
    b.I("v_mul_u32_u24", vt0, 384, vt0)
    b.I("v_bfe_u32", vt1, vL, 2, 1)
    b.I("v_mul_u32_u24", vt1, 3072, vt1)
    b.I("v_add_u32", vt0, vt0, vt1)
    b.I("v_add_u32", vt0, LDS_KVIMG + 1536 + 320, vt0)
    for e in range(4): b.I("v_mov_b32", ONE[e], "0x3f803f80")
    b.I("ds_write_b128", vt0, ONE)
    b.I("v_lshlrev_b32", vt0, 3, vkey)
    b.I("v_mul_u32_u24", vt1, 3072, vh)
    b.I("v_add_u32", vt0, vt0, vt1)
    b.I("v_add_u32", vt0, LDS_KVIMG + 1280, vt0)
    b.I("v_mov_b32", V(148), "0x3f803f80"); b.I("v_mov_b32", V(149), "0x00003f80")
    b.I("ds_write_b64", vt0, V(148, 2))
    b.label(f"QKV_AJ_{uid}")
    b.clear_hist(); b.nop(1)
    b.I("v_cmp_gt_u32", "vcc", 32, vL)
    b.I("v_mov_b32", vt1, PARK)
    b.I("v_cndmask_b32", vaT, vaT, vt1, "vcc")
    for va, va1 in ((vaT, vaT1), (vaU, vaU1)):
        b.I("v_add_u32", vt0, 3072, va)
        b.I("v_cmp_eq_u32", "vcc", va, vt1)
        b.I("v_cndmask_b32", va1, vt0, va, "vcc")
    NPRE = EXP.get("npre", 20)
    rest = list(range(NPRE, 40))
    n0 = max(0, 24 - NPRE)
    q0, rest = rest[:n0], rest[n0:]
    q1, rest = rest[:4], rest[4:]
    q2, rest = rest[:6], rest[6:]
    W_ = lambda fr: wops(b, sWQ, fr) if fr else []
    mem = {0: xt.ops(3) + W_(q0), 1: [st.publish] + W_(q1) + xt.ops(4),
           2: xt.ops(5) + W_(q2), 3: W_(rest), 4: []}
    z = Fill()
    for i in range(32, 128): z.v(b, "v_accvgpr_write_b32", A(i), 0)
    f = Fill()
    st.fill(f, mean, rstd)
    f.v(b, "v_mov_b32", mT[0][0], mean); f.v(b, "v_mov_b32", mT[1][0], mean)
    f.v(b, "v_mov_b32", rT[0][0], rstd); f.v(b, "v_mov_b32", rT[1][0], rstd)
    f.v(b, "v_permlane32_swap_b32", mT[0][0], mT[1][0]); f.v(b, "v_permlane32_swap_b32", rT[0][0], rT[1][0])
    f.add(4, lambda: b.I("s_mov_b32", sSc, hex(f2u(math.log2(math.e) / math.sqrt(20.0)))))
    f.add(4, lambda: b.I("v_cmp_gt_u32", S(48, 2), 32, vL))
    for th in range(2):
        f.v(b, "v_mul_f32", rq[th][0], sSc, rT[th][0])
        f.v(b, "v_cndmask_b32", rm[th][0], rT[th][0], rq[th][0], S(48, 2))
    def xread(s_, th):
        o = s_ * 2048 + th * 512
        base, o = (vXa, o) if o < 65536 else (vXb, o - 65536)
        b.I("ds_read_b128", XF[s_ % 4][th], base, mods=f"offset:{o}")
    stamp(b, "q_pre")
    landed = set()
    def ensure(step):
        c_ = XTile.chunk_of_unit(2 * step + 1)
        if c_ not in landed:
            if c_ == 3: st.before_barrier()
            xt.wait(c_); landed.add(c_)
            stamp(b, f"q_c{c_}")
    ensure(0)
    for th in range(2): xread(0, th)
    for th in range(2): xread(1, th)
    for c in range(5):
        m = list(mem[c])
        k = 0
        for s_ in range(8 * c, 8 * c + 8):
            if s_ + 2 < 40: ensure(s_ + 2)
            b.need(XF[s_ % 4][0], XF[s_ % 4][1], slot(s_))
            for th in range(2):
                b.I("v_mfma_f32_32x32x16_bf16", ACC[th], slot(s_), XF[s_ % 4][th], (0 if s_ == 0 else ACC[th]))
                if s_ + 2 < 40: xread(s_ + 2, th)
                if m and (k % 4 != 0 or len(m) > 15 - k): m.pop(0)()
                else: z.run(8)
                if c >= 3: f.run(8)
                k += 1
        for op in m: op()
    f.flush(); z.flush()
    stamp(b, "q_mm")
    PK = [V(152, 2), V(154, 2)]
    for th in range(2):
        for i in range(8, 16, 2):
            pk(b, "v_pk_fma_f32", ACC[th][i:i + 2], mT[th], CS[i:i + 2], ACC[th][i:i + 2], mods="op_sel_hi:[0,1,1] neg_lo:[1,0,0] neg_hi:[1,0,0]")
        for i in range(8, 16, 2):
            pk(b, "v_pk_mul_f32", ACC[th][i:i + 2], ACC[th][i:i + 2], (rm[th] if i < 12 else rT[th]), mods="op_sel_hi:[1,0]")
        for q in range(2): b.I("v_cvt_pk_bf16_f32", QT[th][q], ACC[th][8 + 2 * q], ACC[th][9 + 2 * q])
        for q in range(2): b.I("v_cvt_pk_bf16_f32", PK[th][q], ACC[th][12 + 2 * q], ACC[th][13 + 2 * q])
    b.I("s_cmp_ge_u32", sW, 2)
    b.I("s_cbranch_scc1", f"QKV_V_{uid}")
    for th in range(2):
        b.I("ds_write_b64", (vaT, vaT1)[th], QT[th])
        b.I("ds_write_b64", (vaU, vaU1)[th], PK[th])
    b.I("s_branch", f"QKV_J_{uid}")
    b.label(f"QKV_V_{uid}")
    for th in range(2):
        for va, rr in (((vaT, vaT1)[th], QT[th]), ((vaU, vaU1)[th], PK[th])):
            for q in range(2):
                b.I("ds_write_b16", va, rr[q], mods=f"offset:{32 * q}")
                b.I("ds_write_b16_d16_hi", va, rr[q], mods=f"offset:{32 * q + 16}")
    b.label(f"QKV_J_{uid}")
    b.clear_hist()
    IM = V(144, 4)
    b.I("s_mul_i32", sT0, sJ, 768)
    b.I("v_add_u32", vt0, sT0, vL16)
    b.I("v_add_u32", vt2, LDS_KVIMG, vt0)
    b.I("s_cmp_eq_u32", sW, 0)
    b.I("s_cselect_b32", sT1, 48, 0)
    b.I("v_cmp_gt_u32", "vcc", sT1, vL)
    b.I("v_mov_b32", vt1, hex(OOB))
    b.I("v_cndmask_b32", vt0, vt1, vt0, "vcc")
    b.I("s_mul_i32", sT0, sG, 6144)
    b.I("s_add_u32", sT0, sT0, sLO)
    b.I("s_add_u32", sT0, sT0, hex(off["KV0"]))
    b.wait(lg=0)
    b.barrier()
    b.I("ds_read_b128", IM, vt2)
    tag = b.I("buffer_store_dwordx4", IM, vt0, WS, sT0, mods="offen sc1")
    stamp(b, "q_kv")
    for th in range(2):
        for i in range(0, 8, 2):
            pk(b, "v_pk_fma_f32", ACC[th][i:i + 2], mT[th], CS[i:i + 2], ACC[th][i:i + 2], mods="op_sel_hi:[0,1,1] neg_lo:[1,0,0] neg_hi:[1,0,0]")
        for i in range(0, 8, 2):
            pk(b, "v_pk_mul_f32", ACC[th][i:i + 2], ACC[th][i:i + 2], rq[th], mods="op_sel_hi:[1,0]")
        for q in range(4): b.I("v_cvt_pk_bf16_f32", QM[th][q], ACC[th][2 * q], ACC[th][2 * q + 1])
    return tag

def attention(b):
    uid = "a"
    A2.attn_pre(b, "p", trailing_barrier=False, part=("B" if EXP.get("preA", 0) else "AB"))
    for i in range(32): b.I("v_accvgpr_write_b32", A(i), 0)
    GW = EXP.get("gw", 8)
    window_poll(b, "gw", wops(b, sW1, range(0, GW)), grid=True)
    xcd_mask_load(b)
    stamp(b, "grid_ok")
    sWo, sWl = sP[5], sP[6]
    def on_run():
        b.I("s_mul_i32", sWo, sJ, 102400)
        b.I("s_mul_i32", sT0, sW, 3072)
        b.I("s_add_u32", sWo, sWo, sT0)
        b.I("s_add_u32", sWo, sWo, hex(off["WOP"]))
        b.I("s_add_u32", sWl, sT0, LDS_WO)
    def wo():
        ops, _ = dma_ops(b, sWo, sWl, 3, "")
        for op in ops: op()
        b.I("s_add_u32", sWo, sWo, 12288)
        b.I("s_add_u32", sWl, sWl, 12288)
    tag = A2.attn_main2(b, uid, wo, on_run, last_extra=wops(b, sW1, range(GW, 32)), freed=lambda a: wops(b, sW1, range(4 * a + 32, 4 * a + 36)), store_sc="", sBX_=sBX, own_freed=(wops(b, sW1, range(32, 40)) if EXP.get("own", 0) else []), skip6=bool(EXP.get("ow1", 0)), after_store=((wops(b, sW1, range(56, 60)) + wops(b, sW1, range(32, 40))) if EXP.get("early", 0) else None))
    xcd_mask_use(b)

def wo_rest(b):
    b.I("s_mul_i32", sT0, sJ, 102400)
    b.I("s_lshl_b32", sT1, sW, 12)
    b.I("s_add_u32", sT0, sT0, sT1)
    b.I("s_add_u32", sT0, sT0, hex(off["WOP"] + 84 * 1024))
    b.I("s_add_u32", sT1, sT1, LDS_WO + 84 * 1024)
    ops, tags = dma_ops(b, sT0, sT1, 4, "")
    for op in ops: op()
    return tags[-1]

def acc_init(b, ACC, RES, vbias=None):
    U = V(VB + 4, 2)
    if vbias is not None:
        for fb in range(5): b.I("ds_read_b128", ACC[fb], vbias, mods=f"offset:{64 * fb}")
    for fb in range(5):
        for q in range(2):
            a2 = ACC[fb][2 * q:2 * q + 2]
            if vbias is None:
                b.I("v_lshlrev_b32", a2[0], 16, RES[fb][q])
                b.I("v_and_b32", a2[1], "0xffff0000", RES[fb][q])
            else:
                b.I("v_lshlrev_b32", U[0], 16, RES[fb][q])
                b.I("v_and_b32", U[1], "0xffff0000", RES[fb][q])
                pk(b, "v_pk_add_f32", a2, a2, U)

def resid_epi(b, ACC, RES, sdst, sstat, out_natural=None):
    ssum, ssq = V(VB, 2), V(VB + 2, 2)
    tA, tB = vt0, vt1
    for fb in range(5):
        for q in range(2): b.I("v_cvt_pk_bf16_f32", RES[fb][q], ACC[fb][2 * q], ACC[fb][2 * q + 1])
        if out_natural is not None:
            b.I("buffer_store_dwordx2", RES[fb], out_natural, OUT, sdst, mods=f"offen offset:{32 * fb}")
            continue
        if fb in (2, 4): b.I("s_add_u32", sdst, sdst, 4096)
        b.I("buffer_store_dwordx2", RES[fb], vEpi, WS, sdst, mods=f"offen offset:{(fb % 2) * 2048}")
    if out_natural is not None: return None
    for fb in range(5):
        for q in range(2):
            a2 = ACC[fb][2 * q:2 * q + 2]
            if fb == 0 and q == 0:
                pk(b, "v_pk_mul_f32", ssq, a2, a2)
            elif fb == 0 and q == 1:
                pk(b, "v_pk_add_f32", ssum, ACC[0][0:2], a2); pk(b, "v_pk_fma_f32", ssq, a2, a2, ssq)
            else:
                pk(b, "v_pk_add_f32", ssum, ssum, a2); pk(b, "v_pk_fma_f32", ssq, a2, a2, ssq)
    b.I("v_add_f32", ssum[0], ssum[0], ssum[1])
    b.I("v_add_f32", ssum[1], ssq[0], ssq[1])
    for swap in ("v_permlane16_swap_b32", "v_permlane32_swap_b32"):
        b.I("v_mov_b32", tA, ssum[0]); b.I("v_mov_b32", tB, ssum[1])
        b.I(swap, ssum[0], tA); b.I(swap, ssum[1], tB)
        b.I("v_add_f32", ssum[0], ssum[0], tA); b.I("v_add_f32", ssum[1], ssum[1], tB)
    return b.I("buffer_store_dwordx2", ssum, V(VB + 6), WS, sstat, mods="offen")

OPR_ACC0 = [V(144 + 4 * fb, 4) for fb in range(5)]
FF2_ACC0 = [V(160 + 4 * fb, 4) for fb in range(5)]
def oproj_init(b): acc_init(b, OPR_ACC0, RESID)
def ffn2_init(b):
    vb = V(VB + 34)
    b.I("v_lshrrev_b32", vt0, 4, vL)
    b.I("v_lshlrev_b32", vt0, 4, vt0)
    b.I("v_add_u32", vb, T_B2, vt0)
    acc_init(b, FF2_ACC0, RESID, vbias=vb)

def stat_addr(b):
    b.I("v_lshlrev_b32", vt0, 3, vL)
    b.I("v_cmp_gt_u32", "vcc", 16, vL)
    b.I("v_mov_b32", vt1, hex(OOB))
    b.I("v_cndmask_b32", V(VB + 6), vt1, vt0, "vcc")

def resid_ops(b, sbase, RES):
    ops = []
    for fb in range(5):
        def one(fb=fb):
            if fb in (2, 4): b.I("s_add_u32", sbase, sbase, 4096)
            b.I("buffer_load_dwordx2", RES[fb], vEpi, WS, sbase, mods=f"offen offset:{(fb % 2) * 2048} sc1")
        ops.append(one)
    return ops

def oproj(b):
    sO, sRes, sTB, sDst, sSt = sP[0], sP[1], sP[2], sP[3], sP[4]
    XF = [[V(64 + 8 * s_ + 4 * a, 4) for a in range(2)] for s_ in range(10)]
    ACC = [[V(144 + 20 * a + 4 * fb, 4) for fb in range(5)] for a in range(2)]
    WF = [[V(184 + 20 * p + 4 * fb, 4) for fb in range(5)] for p in range(2)]
    RES = RESID
    vXa = [V(VB + 30), V(VB + 31)]; vWa = V(VB + 32); vR = V(VB + 33); vR2 = V(VB + 34)
    b.I("s_and_b32", sT0, sW, 1)
    b.I("s_lshr_b32", sT1, sW, 1)
    b.I("s_lshl_b32", sT0, sT0, 1)
    b.I("s_add_u32", sTB, sT0, sT1)
    b.I("s_xor_b32", sT2, sTB, 1)
    b.I("s_lshl_b32", sT3, sTB, 8)
    b.I("v_add_u32", vXa[0], sT3, vX16)
    b.I("s_lshl_b32", sT2, sT2, 8)
    b.I("v_add_u32", vXa[1], sT2, vX16)
    b.I("s_mul_i32", sT1, sT1, 40960)
    b.I("s_add_u32", sO, sBX, sT1)
    b.I("s_add_u32", sO, sO, hex(off["O0"]))
    def xload(s_):
        for a in range(2): b.I("buffer_load_dwordx4", XF[s_][a], vXa[a], WS, sO, mods="offen sc1")
        if s_ < 9: b.I("s_add_u32", sO, sO, 4096)
    def xops(s_):
        return [lambda: b.I("buffer_load_dwordx4", XF[s_][0], vXa[0], WS, sO, mods="offen sc1"),
                lambda: (b.I("buffer_load_dwordx4", XF[s_][1], vXa[1], WS, sO, mods="offen sc1"), b.I("s_add_u32", sO, sO, 4096))]
    OL = EXP.get("olead", 5)
    for s_ in range(OL): xload(s_)
    b.I("s_mul_i32", sT0, sJ, 10240)
    b.I("s_add_u32", sT0, sT0, sT3)
    b.I("s_add_u32", sRes, sBX, sT0)
    b.I("s_add_u32", sDst, sRes, hex(off["X10"]))
    b.I("v_lshrrev_b32", vt0, 4, vL)
    b.I("v_mul_u32_u24", vt0, 1280, vt0)
    b.I("v_and_b32", vt1, 15, vL)
    b.I("v_lshl_add_u32", vWa, vt1, 4, vt0)
    b.I("s_lshr_b32", sT1, sW, 1)
    b.I("s_mul_i32", sT1, sT1, 51200)
    b.I("v_add_u32", vWa, sT1, vWa)
    b.I("v_add_u32", vWa, LDS_WO, vWa)
    b.I("s_mul_i32", sT0, sW, 5120)
    b.I("v_add_u32", vR, sT0, vL16)
    b.I("v_add_u32", vR, LDS_RED_O, vR)
    b.I("s_xor_b32", sT0, sW, 2)
    b.I("s_mul_i32", sT0, sT0, 5120)
    b.I("v_add_u32", vR2, sT0, vL16)
    b.I("v_add_u32", vR2, LDS_RED_O, vR2)
    b.I("s_lshl_b32", sSt, sG, 12)
    b.I("s_add_u32", sSt, sSt, sLO)
    b.I("s_lshl_b32", sT0, sJ, 9)
    b.I("s_add_u32", sSt, sSt, sT0)
    b.I("s_lshl_b32", sT0, sTB, 7)
    b.I("s_add_u32", sSt, sSt, sT0)
    b.I("s_add_u32", sSt, sSt, hex(off["ST10"]))
    stat_addr(b)
    def wread(s_, fb): b.I("ds_read_b128", WF[s_ % 2][fb], vWa, mods=f"offset:{s_ * 5120 + fb * 256}")
    for fb in range(5): wread(0, fb)
    stamp(b, "o_pre")
    late_w = (wops(b, sW1, range(32, 40)) + wops(b, sW1, range(56, 60))) if EXP.get("ow1", 0) else []
    for s_ in range(10):
        m = (xops(s_ + OL) if s_ + OL < 10 else [])
        if s_ >= 10 - OL:
            n_ = -(-len(late_w) // (10 - s_))
            m = m + late_w[:n_]; late_w = late_w[n_:]
        if s_ == 6: m = m + l2_warm(b, "W2P", 245760)
        order = [(fb, a) for fb in range(5) for a in range(2)] if s_ < 9 else [(fb, 1) for fb in range(5)] + [(fb, 0) for fb in range(5)]
        b.need(*WF[s_ % 2], *XF[s_])
        for k, (fb, a) in enumerate(order):
            b.I("v_mfma_f32_16x16x32_bf16", ACC[a][fb], WF[s_ % 2][fb], XF[s_][a], (0 if s_ == 0 and a == 1 else ACC[a][fb]))
            if s_ < 9 and k < 5: wread(s_ + 1, k)
            if m and k in (5, 7, 9): m.pop(0)()
            if s_ == 9 and k >= 7: b.I("ds_write_b128", vR, ACC[1][k - 7], mods=f"offset:{(k - 7) * 1024}")
        for op in m: op()
        if s_ == 0: stamp(b, "o_s0")
    for fb in (3, 4): b.I("ds_write_b128", vR, ACC[1][fb], mods=f"offset:{fb * 1024}")
    stamp(b, "o_mm")
    b.wait(lg=0)
    b.barrier()
    for fb in range(5): b.I("ds_read_b128", WF[0][fb], vR2, mods=f"offset:{fb * 1024}")
    for fb in range(5):
        for q in range(2): pk(b, "v_pk_add_f32", ACC[0][fb][2 * q:2 * q + 2], ACC[0][fb][2 * q:2 * q + 2], WF[0][fb][2 * q:2 * q + 2])
    stamp(b, "o_red")
    return resid_epi(b, ACC[0], RES, sDst, sSt)

def ffn1(b):
    sX, sSt, sH, sD0, sD1 = sP[0], sP[1], sP[2], sP[5], sP[6]
    b.I("s_add_u32", sX, sBX, hex(off["X10"]))
    xt = XTile(b, sX, LDS_X, sD0, sD1)
    for c in range(3):
        for op in xt.ops(c): op()
    st = Stats(b, "ST10", V(VB, 8))
    st.load()
    ACC = [[V(64 + 16 * fb + 4 * tb, 4) for tb in range(4)] for fb in range(3)]
    XF = [[V(112 + 16 * p + 4 * tb, 4) for tb in range(4)] for p in range(2)]
    vXa, vXb = V(VB + 16), V(VB + 17)
    mean, rstd = V(VB + 18), V(VB + 19)
    MR = [V(176 + 2 * i, 2) for i in range(4)]; RS = [V(184 + 2 * i, 2) for i in range(4)]
    CS = V(144, 12); BI = V(156, 12)
    b.I("v_add_u32", vXa, LDS_X, vX16)
    b.I("v_add_u32", vXb, LDS_X + 65536, vX16)
    b.I("v_lshrrev_b32", vt0, 4, vL)
    b.I("v_lshlrev_b32", vt0, 4, vt0)
    b.I("s_mul_i32", sT0, sW, 192)
    b.I("v_add_u32", vt0, sT0, vt0)
    b.I("v_add_u32", vt1, T_CS1, vt0)
    b.I("v_add_u32", vt2, T_B1, vt0)
    for fb in range(3):
        b.I("ds_read_b128", CS[4 * fb:4 * fb + 4], vt1, mods=f"offset:{64 * fb}")
        b.I("ds_read_b128", BI[4 * fb:4 * fb + 4], vt2, mods=f"offset:{64 * fb}")
    b.I("s_mul_i32", sH, sG, 196608)
    b.I("s_add_u32", sH, sH, sLO)
    b.I("s_mul_i32", sT0, sJ, 24576)
    b.I("s_add_u32", sH, sH, sT0)
    b.I("s_mul_i32", sT0, sW, 6144)
    b.I("s_add_u32", sH, sH, sT0)
    b.I("s_add_u32", sH, sH, hex(off["H0"]))
    c0 = -2.0 * math.sqrt(2.0 / math.pi) * math.log2(math.e)
    sC = S(50, 2)
    vC0 = V(192, 2)
    b.I("s_mov_b32", sC[0], hex(f2u(c0 * 0.044715)))
    b.I("v_mov_b32", vC0[0], hex(f2u(c0)))
    f = Fill()
    st.fill(f, mean, rstd)
    f.v(b, "v_mul_f32", mean, mean, rstd)
    for src, d4 in ((mean, MR), (rstd, RS)):
        d = [x[0] for x in d4]
        f.v(b, "v_mov_b32", d[0], src); f.v(b, "v_mov_b32", d[2], src)
        f.v(b, "v_permlane32_swap_b32", d[0], d[2])
        f.v(b, "v_mov_b32", d[1], d[0]); f.v(b, "v_mov_b32", d[3], d[2])
        f.v(b, "v_permlane16_swap_b32", d[0], d[1]); f.v(b, "v_permlane16_swap_b32", d[2], d[3])
    def xread(s_, tb):
        o = s_ * 4096 + tb * 256
        base, o = (vXa, o) if o < 65536 else (vXb, o - 65536)
        b.I("ds_read_b128", XF[s_ % 2][tb], base, mods=f"offset:{o}")
    stamp(b, "f_pre")
    mem = []
    NW2 = EXP.get('nw2', 52)
    w2q = wops(b, sW2, range(0, NW2)); w2n = 0; NM_ = EXP.get('nm', 52)
    landed = set()
    def ensure(step):
        c_ = XTile.chunk_of_unit(4 * step + 3)
        if c_ not in landed:
            if c_ == 3: st.before_barrier()
            xt.wait(c_); landed.add(c_)
            stamp(b, f"f_c{c_}")
    ensure(0)
    for tb in range(4): xread(0, tb)
    for c in range(5):
        if c + 3 < 6: mem += xt.ops(c + 3)
        if c == 4: mem += l2_warm(b, "WQP", 163840)
        for s_ in range(4 * c, 4 * c + 4):
            if s_ == 5: st.publish()
            if s_ + 1 < 20: ensure(s_ + 1)
            k = 0
            b.need(*XF[s_ % 2], slot(3 * s_), slot(3 * s_ + 1), slot(3 * s_ + 2))
            for fb in range(3):
                for tb in range(4):
                    b.I("v_mfma_f32_16x16x32_bf16", ACC[fb][tb], slot(3 * s_ + fb), XF[s_ % 2][tb], (0 if s_ == 0 else ACC[fb][tb]))
                    if k < 4 and s_ + 1 < 20: xread(s_ + 1, k)
                    elif k in ((5, 8, 11) if EXP.get("slots3", 1) else (6, 10)):
                        if mem: mem.pop(0)()
                        elif w2n < min(NM_, 3 * s_ + (k + 1) // 4): w2q[w2n](); w2n += 1
                    elif c >= 2 and f.q: f.run(5)
                    k += 1
    for op in mem: op()
    f.flush()
    stamp(b, "f_mm")
    T = [V(168 + 2 * i, 2) for i in range(4)]
    tag = None
    for fb in range(3):
        for tp in range(2):
            el = [(ACC[fb][2 * tp + u][2 * q:2 * q + 2], T[2 * u + q], 2 * tp + u, q) for u in range(2) for q in range(2)]
            for a, t, tb, q in el: pk(b, "v_pk_fma_f32", t, MR[tb], CS[4 * fb + 2 * q:4 * fb + 2 * q + 2], BI[4 * fb + 2 * q:4 * fb + 2 * q + 2], mods="op_sel_hi:[0,1,1] neg_lo:[1,0,0] neg_hi:[1,0,0]")
            for a, t, tb, q in el: pk(b, "v_pk_fma_f32", a, RS[tb], a, t, mods="op_sel_hi:[0,1,1]")
            for a, t, tb, q in el: pk(b, "v_pk_mul_f32", t, a, a)
            for a, t, tb, q in el: pk(b, "v_pk_fma_f32", t, t, sC, vC0, mods="op_sel_hi:[1,0,0]")
            for a, t, tb, q in el: pk(b, "v_pk_mul_f32", t, t, a)
            for _ in range(2):
                if w2n < NW2: w2q[w2n](); w2n += 1
            for a, t, tb, q in el:
                for e in range(2): b.I("v_exp_f32", t[e], t[e])
            if w2n < NW2: w2q[w2n](); w2n += 1
            for a, t, tb, q in el: pk(b, "v_pk_add_f32", t, t, 1.0, mods="op_sel_hi:[1,0]")
            for a, t, tb, q in el:
                for e in range(2): b.I("v_rcp_f32", t[e], t[e])
            for a, t, tb, q in el: pk(b, "v_pk_mul_f32", a, a, t)
            for _ in range(2):
                if w2n < NW2: w2q[w2n](); w2n += 1
            for u in range(2):
                a4 = ACC[fb][2 * tp + u]
                for q in range(2): b.I("v_cvt_pk_bf16_f32", a4[q], a4[2 * q], a4[2 * q + 1])
                tag = b.I("buffer_store_dwordx2", a4[0:2], vEpi, WS, sH, mods=f"offen offset:{(2 * tp + u) * 256}")
        if fb < 2: b.I("s_add_u32", sH, sH, 2048)
    while w2n < NW2: w2q[w2n](); w2n += 1
    return tag

def ffn2(b):
    sH, sRes, sDst, sSt, sH9 = sP[0], sP[1], sP[2], sP[3], sP[4]
    NB = 6
    XF = [[V(64 + 16 * p + 4 * a, 4) for a in range(4)] for p in range(NB)]
    ACC = [[V(160 + 20 * a + 4 * fb, 4) for fb in range(5)] for a in range(4)]
    RES = RESID
    BI = V(64, 20)
    vXa = [V(VB + 26 + a) for a in range(4)]
    vRw = [V(VB + 30 + a) for a in range(3)]; vRr = V(VB + 33); vB2 = V(VB + 34)
    sTB = sP[5]
    for a in range(4):
        b.I("s_add_u32", sT0, sW, a)
        b.I("s_and_b32", sT1, sT0, 1)
        b.I("s_lshl_b32", sT1, sT1, 1)
        b.I("s_bfe_u32", sT0, sT0, "0x10001")
        b.I("s_or_b32", sT0, sT0, sT1)
        if a == 0: b.I("s_mov_b32", sTB, sT0)
        b.I("s_lshl_b32", sT0, sT0, 8)
        b.I("v_add_u32", vXa[a], sT0, vX16)
    b.I("s_mul_i32", sH, sG, 196608)
    b.I("s_add_u32", sH, sH, sLO)
    b.I("s_mul_i32", sT0, sW, 49152)
    b.I("s_add_u32", sH, sH, sT0)
    b.I("s_add_u32", sH, sH, hex(off["H0"]))
    def xops(s_):
        ops = [lambda a=a: b.I("buffer_load_dwordx4", XF[s_ % NB][a], vXa[a], WS, sH, mods="offen sc1") for a in range(3)]
        ops.append(lambda: (b.I("buffer_load_dwordx4", XF[s_ % NB][3], vXa[3], WS, sH, mods="offen sc1"), b.I("s_add_u32", sH, sH, 4096)))
        return ops
    GL = EXP.get("glead", 2)
    for s_ in range(GL):
        for op in xops(s_): op()
    b.I("s_mul_i32", sT0, sJ, 10240)
    b.I("s_add_u32", sRes, sBX, sT0)
    b.I("s_lshl_b32", sT0, sTB, 8)
    b.I("s_add_u32", sRes, sRes, sT0)
    b.I("s_add_u32", sDst, sRes, hex(off["XB0"] + LS))
    for a in range(1, 4):
        b.I("s_add_u32", sT0, sW, a)
        b.I("s_and_b32", sT0, sT0, 3)
        b.I("s_mul_i32", sT0, sT0, 15360)
        b.I("s_add_u32", sT0, sT0, LDS_RED_F + (a - 1) * 5120)
        b.I("v_add_u32", vRw[a - 1], sT0, vL16)
    b.I("s_mul_i32", sT0, sW, 15360)
    b.I("s_add_u32", sT0, sT0, LDS_RED_F)
    b.I("v_add_u32", vRr, sT0, vL16)
    b.I("s_lshl_b32", sSt, sG, 12)
    b.I("s_lshl_b32", sT0, sJ, 9)
    b.I("s_add_u32", sSt, sSt, sT0)
    b.I("s_lshl_b32", sT0, sTB, 7)
    b.I("s_add_u32", sSt, sSt, sT0)
    b.I("s_add_u32", sSt, sSt, hex(off["STI0"] + LS))
    stat_addr(b)
    stamp(b, "g_pre")
    mem = []
    for s_ in range(GL, 9): mem += xops(s_)
    for a in (1, 2, 3, 0):
        for s_ in range(9, 12):
            mem.append(lambda a=a, s_=s_: (b.I("s_add_u32", sH9, sH, (s_ - 9) * 4096), b.I("buffer_load_dwordx4", XF[s_ % NB][a], vXa[a], WS, sH9, mods="offen sc1")))
    issued = 4 * GL
    for s_ in range(9):
        k = 0
        b.need(*XF[s_ % NB], *[slot(5 * s_ + fb) for fb in range(5)])
        for fb in range(5):
            for a in range(4):
                b.I("v_mfma_f32_16x16x32_bf16", ACC[a][fb], slot(5 * s_ + fb), XF[s_ % NB][a], (0 if s_ == 0 and a else ACC[a][fb]))
                if mem and k % EXP.get("gden", 4) == EXP.get("gden", 4) - 2 and (issued // 4 if issued < 36 else 9 + (issued - 36) % 3) - NB < s_:
                    mem.pop(0)(); issued += 1
                k += 1
        if s_ in (0, 5): stamp(b, f"g_s{s_}")
    pend = []
    NQ = EXP.get("npre", 20) - 8
    wq = wops(b, sWQ, range(0, NQ))
    early_q = EXP.get("eq", 1)
    for a in (1, 2, 3, 0):
        k = 0
        for s_ in range(9, 12):
            for fb in range(5):
                b.I("v_mfma_f32_16x16x32_bf16", ACC[a][fb], slot(5 * s_ + fb), XF[s_ % NB][a], ACC[a][fb])
                if mem and k % EXP.get("gtail", 3) == 1: mem.pop(0)()
                elif pend and k >= 3 and k % 2 == 1: pend.pop(0)()
                elif early_q and not mem and wq and a in (3, 0) and k % 2 == 0: wq.pop(0)()
                k += 1
        for op in pend: op()
        pend = [lambda fb=fb, a=a: b.I("ds_write_b128", vRw[a - 1], ACC[a][fb], mods=f"offset:{fb * 1024}") for fb in range(5)] if a else []
    assert not mem
    stamp(b, "g_mm")
    NQ = len(wq)
    for _ in range(NQ // 2): wq.pop(0)()
    b.wait(lg=0)
    b.barrier()
    for a in range(1, 4):
        for fb in range(5): b.I("ds_read_b128", ACC[a][fb], vRr, mods=f"offset:{(a - 1) * 5120 + fb * 1024}")
    for _ in range(NQ - NQ // 2): wq.pop(0)()
    for a in range(1, 4):
        for fb in range(5):
            for q in range(2): pk(b, "v_pk_add_f32", ACC[0][fb][2 * q:2 * q + 2], ACC[0][fb][2 * q:2 * q + 2], ACC[a][fb][2 * q:2 * q + 2])
    stamp(b, "g_red")
    b.I("s_cmp_eq_u32", sL, 1)
    b.I("s_cbranch_scc1", "FFN2_FINAL")
    snap = b.snapshot(); hist = list(b.hist)
    tag = resid_epi(b, ACC[0], RES, sDst, sSt)
    assert not wq
    def final():
        b.label("FFN2_FINAL")
        b.restore(snap); b.hist = hist
        b.I("s_lshl_b32", sT0, sG, 6)
        b.I("s_lshl_b32", sT1, sTB, 4)
        b.I("s_add_u32", sT0, sT0, sT1)
        b.I("s_mul_i32", sDst, sT0, 1280)
        b.I("s_mul_i32", sT0, sJ, 160)
        b.I("s_add_u32", sDst, sDst, sT0)
        vo = V(VB + 8)
        b.I("v_and_b32", vt0, 15, vL)
        b.I("v_mul_u32_u24", vo, 1280, vt0)
        b.I("v_lshrrev_b32", vt0, 4, vL)
        b.I("v_lshl_add_u32", vo, vt0, 3, vo)
        resid_epi(b, ACC[0], RES, sDst, None, out_natural=vo)
    return tag, final

def gen_fused(b):
    setup(b, "MAIN_END")
    b.I("s_mov_b32", sL, 0); b.I("s_mov_b32", sLO, 0)
    b.I("s_mov_b32", sGS, 0); b.I("s_mov_b32", sGT, 0)
    b.I("s_lshl_b32", sFG, sG, 8)
    b.I("s_add_u32", sFG, sFG, hex(off["FLAGS"]))
    b.I("s_mov_b32", sLoc, 0)
    xcd_publish(b)
    stamp(b, "start")
    b.I("s_lshl_b32", sT0, sJ, 2)
    b.I("s_add_u32", sT0, sT0, sW)
    b.I("s_mul_i32", S(57), sT0, 40960)
    b.I("s_add_u32", S(57), S(57), hex(off["WQP"]))
    b.I("s_mul_i32", sBX, sG, 81920)
    qkv_start(b)
    b.I("s_and_b32", sT0, sW, 1)
    b.I("s_lshl_b32", sT0, sT0, 1)
    b.I("s_lshr_b32", sT1, sW, 1)
    b.I("s_or_b32", sT0, sT0, sT1)
    b.I("s_lshl_b32", sT0, sT0, 8)
    b.I("s_mul_i32", sT1, sJ, 10240)
    b.I("s_add_u32", sT0, sT0, sT1)
    b.I("s_add_u32", sT0, sT0, sBX)
    b.I("s_add_u32", sP[8], sT0, hex(off["XB0"]))
    def after_table_loads():
        for op in wops(b, S(57), range(0, EXP.get("npre", 20))): op()
        for op in resid_ops(b, sP[8], RESID): op()
    tables(b, after_loads=after_table_loads)
    b.I("s_lshl_b32", sT0, sJ, 2)
    b.I("s_add_u32", sT0, sT0, sW)
    b.I("s_mul_i32", sWQ, sT0, 40960)
    b.I("s_add_u32", sWQ, sWQ, hex(off["WQP"]))
    b.I("s_mul_i32", sW1, sT0, 61440)
    b.I("s_add_u32", sW2, sW1, hex(off["W2P"]))
    b.I("s_add_u32", sW1, sW1, hex(off["W1P"]))
    b.I("s_mul_i32", sBX, sG, 81920)
    if EXP.get("hotw"):
        b.I("s_mul_i32", sWQ, sW, 61440)
        b.I("s_add_u32", sWQ, sWQ, hex(off["WQP"]))
        b.I("s_mov_b32", sW1, sWQ); b.I("s_mov_b32", sW2, sWQ)
    b.I("s_branch", "LAYER_REST")
    b.label("LAYER")
    b.clear_hist()
    xt = qkv_start(b)
    b.label("LAYER_REST")
    b.clear_hist()
    stamp(b, "layer")
    tag = qkv(b, xt)
    stamp(b, "qkv_end")
    if EXP.get("preA", 0):
        A2.attn_pre(b, "p", trailing_barrier=False, part="A")
        b.wait(lg=0)
    grid_arrive(b, tag, "g")
    attention(b)
    wo_tag = []
    S1W = 0 if (EXP.get("own", 0) or EXP.get("early", 0) or EXP.get("ow1", 0)) else 8
    group_sync(b, None, "s1", [lambda: wo_tag.append(wo_rest(b))] + wops(b, sW1, range(32, 32 + S1W)) + [lambda: oproj_init(b)])
    b.wait_vm_tag(wo_tag[0]); b.barrier()
    stamp(b, "s1_ok")
    tag = oproj(b)
    stamp(b, "opr_end")
    group_sync(b, tag, "s2", [])
    stamp(b, "s2_ok")
    tag = ffn1(b)
    stamp(b, "ff1_end")
    group_sync(b, tag, "s3", wops(b, sW2, range(EXP.get("nw2", 52), 60)) + [lambda: ffn2_init(b)])
    stamp(b, "s3_ok")
    tag, final = ffn2(b)
    stamp(b, "ff2_end")
    group_sync(b, tag, "s4", wops(b, sWQ, range(EXP.get("npre", 20) - 8, EXP.get("npre", 20))))
    stamp(b, "s4_ok")
    b.I("s_mov_b32", sL, 1)
    b.I("s_mov_b32", sLO, hex(LS))
    b.I("s_add_u32", sBX, sBX, hex(LS))
    if M.PROFILE: M.stamp_flush(b, 0)
    b.I("s_branch", "LAYER")
    final()
    if M.PROFILE:
        b.wait(vm=0); stamp(b, "ff2_end"); stamp(b, "end"); M.stamp_flush(b, 20)
    b.label("MAIN_END")
```

```python
from asmb import *
import layout as L
off = L.off
WS_BYTES = 268435456
OOB = 0x40000000

def srd(b, dst, lo, hi, size):
    b.I("s_mov_b32", dst[0], lo)
    b.I("s_and_b32", dst[1], hi, "0xffff")
    b.I("s_mov_b32", dst[2], hex(size))
    b.I("s_mov_b32", dst[3], "0x20000")

def unpack_sum(b, src, accA, accB, t0, t1):
    b.I("v_lshlrev_b32", t0, 16, src)
    b.I("v_and_b32", t1, "0xffff0000", src)
    b.I("v_add_f32", accA, accA, t0)
    b.I("v_add_f32", accB, accB, t1)

def code_prefetch(b, label, endlabel, nbytes, threads=256):
    per = (nbytes + 31) // 32
    per = (per + 255) // 256 * 256
    b.I("s_getpc_b64", S(70, 2))
    b.label("L0_PC")
    b.raw(f"  s_add_u32 s70, s70, ({label} - L0_PC) & 0xffffffff")
    b.raw(f"  s_addc_u32 s71, s71, 0")
    b.I("s_lshr_b32", S(72), S(2), 3)
    b.I("s_mul_i32", S(72), S(72), per)
    b.I("v_lshlrev_b32", V(58), 2, V(0))
    b.I("v_add_u32", V(58), S(72), V(58))
    step = threads * 4
    n = (per + step - 1) // step
    for q in range(n):
        if q: b.I("v_add_u32", V(58), step, V(58))
        b.raw(f"  v_min_u32 v57, {endlabel} - {label} - 4, v58")
        b.I("global_load_dword", V(59), V(57), S(70, 2))
        b.vm.pop()

def gen_l0(b, prefetch=None):
    P_X, P_WQ, P_WK, P_WV, P_WO, P_W1, P_W2, P_WS = S(36, 2), S(38, 2), S(40, 2), S(42, 2), S(44, 2), S(46, 2), S(48, 2), S(50, 2)
    WS = S(8, 4); SRC = S(12, 4)
    sRS, sG0, sNG, sN0, sOff = S(16), S(17), S(18), S(19), S(20)
    sA, sP, sQ, sGL0, sBase, sM, sDv, sHS, sLS, sSwap, sCs, sCB, sCH, sKr, sT, sMask = (S(i) for i in range(21, 37 - 0)) if False else [S(i) for i in (21, 22, 23, 24, 25, 26, 27, 28, 29, 30, 31, 32, 33, 34, 35, 52)]
    b.I("s_cmp_ge_u32", S(2), 256)
    b.I("s_cbranch_scc1", "L0_end")
    b.I("s_load_dwordx2", P_X, S(0, 2), 0)
    b.I("s_load_dwordx2", P_WQ, S(0, 2), 8)
    b.I("s_load_dwordx2", P_WK, S(0, 2), 16)
    b.I("s_load_dwordx2", P_WV, S(0, 2), 24)
    b.I("s_load_dwordx2", P_WO, S(0, 2), 32)
    b.I("s_load_dwordx2", P_W1, S(0, 2), 48)
    b.I("s_load_dwordx2", P_W2, S(0, 2), 64)
    b.I("s_load_dwordx2", P_WS, S(0, 2), 96)
    if prefetch: code_prefetch(b, *prefetch)
    lane = V(1); cp = V(2); slot = V(3)
    b.I("v_and_b32", cp, 31, V(0))
    b.I("v_lshrrev_b32", slot, 5, V(0))
    b.wait(lg=0)
    srd(b, WS, P_WS[0], P_WS[1], WS_BYTES)
    XS = S(56, 4)
    srd(b, XS, P_X[0], P_X[1], 2048 * 1280)
    wv_id = S(53)
    vt, vgg, vxo, vxd = V(4), V(5), V(6), V(7)
    b.I("v_lshrrev_b32", V(8), 6, V(0))
    b.I("v_and_b32", vt, 7, V(0))
    b.I("v_readfirstlane_b32", wv_id, V(8))
    b.I("v_bfe_u32", vgg, V(0), 3, 3)
    b.I("s_mul_i32", sT, S(2), 8 * 1280)
    b.I("v_mul_u32_u24", vxo, 1280, vt)
    b.I("v_lshl_add_u32", vxo, vgg, 4, vxo)
    b.I("s_lshl_b32", sOff, wv_id, 7)
    b.I("s_add_u32", sOff, sOff, sT)
    XL = [V(64 + 4 * q, 4) for q in range(3)]
    v_oob = V(9)
    b.I("s_cmp_lt_u32", wv_id, 2)
    b.I("s_cselect_b32", S(54), 0, hex(OOB))
    for q in range(3):
        if q == 2:
            b.I("v_add_u32", v_oob, S(54), vxo)
            b.I("buffer_load_dwordx4", XL[q], v_oob, XS, sOff, mods=f"offen offset:{q*512}")
        else:
            b.I("buffer_load_dwordx4", XL[q], vxo, XS, sOff, mods=f"offen offset:{q*512}")
    def setp(name, base, rs, size, strips_shift, ng, a, P, Q, B0, Dv, HS, LS, swap, cs, CB, CK, CH, w2=False):
        b.label(name)
        b.I("s_sub_u32", sT, S(2), base)
        b.I("s_lshr_b32", sN0, sT, strips_shift)
        b.I("s_lshl_b32", sN0, sN0, 6)
        b.I("s_and_b32", sKr, sT, (1 << strips_shift) - 1)
        b.I("s_mul_i32", sG0, sKr, ng)
        b.I("s_mov_b32", sNG, ng)
        b.I("s_mov_b32", sRS, rs[0])
        srd(b, SRC, rs[1][0], rs[1][1], size)
        b.I("s_mov_b32", sA, a); b.I("s_mov_b32", sP, P); b.I("s_mov_b32", sQ, Q)
        b.I("s_mov_b32", sMask, (1 << a) - 1)
        if w2:
            b.I("s_and_b32", sGL0, sKr, 1)
            b.I("s_mul_i32", sGL0, sGL0, 24)
            b.I("s_lshr_b32", sBase, sKr, 1)
            b.I("s_mul_i32", sBase, sBase, 61440)
            b.I("s_add_u32", sBase, sBase, hex(B0))
        else:
            b.I("s_mov_b32", sGL0, sG0)
            b.I("s_mov_b32", sBase, hex(B0))
        b.I("s_mov_b32", sDv, Dv); b.I("s_mov_b32", sM, -(-65536 // Dv))
        b.I("s_mov_b32", sHS, HS); b.I("s_mov_b32", sLS, LS)
        b.I("s_mov_b32", sSwap, swap); b.I("s_mov_b32", sCs, cs)
        b.I("s_mul_i32", sCB, sKr, CK)
        b.I("s_add_u32", sCB, sCB, hex(CB))
        b.I("s_mov_b32", sCH, CH)
        b.I("s_branch", "L0_common")
    b.I("s_cmp_lt_u32", S(2), 40);  b.I("s_cbranch_scc1", "L0_wq")
    b.I("s_cmp_lt_u32", S(2), 80);  b.I("s_cbranch_scc1", "L0_wo")
    b.I("s_cmp_lt_u32", S(2), 176); b.I("s_cbranch_scc1", "L0_w1")
    b.I("s_branch", "L0_w2")
    setp("L0_wq", 0, (1280, P_WQ), 640 * 1280, 2, 20, 1, 1024, 512, off["WQP"], 20, 40960, 256, 1, 1, off["CSQ"], 4096, 128)
    setp("L0_wo", 40, (1280, P_WO), 640 * 1280, 2, 20, 0, 1280, 0, off["WOP"], 80, 102400, 256, 0, 0, 0, 0, 0)
    setp("L0_w1", 80, (3072, P_W1), 640 * 3072, 2, 20, 2, 3072, 256, off["W1P"], 48, 61440, 1024, 0, 1, off["CS1"], 6144, 192)
    setp("L0_w2", 176, (1280, P_W2), 1536 * 1280, 3, 24, 2, 5120, 256, off["W2P"], 80, 245760, 1024, 0, 0, 0, 0, 0, w2=True)
    b.label("L0_common")
    vsrc = V(10)
    b.I("v_add_u32", vsrc, sG0, slot)
    b.I("s_lshl_b32", sT, sRS, 3)
    b.I("v_mul_lo_u32", vsrc, vsrc, sT)
    b.I("s_lshl_b32", sT, sN0, 1)
    b.I("v_lshl_add_u32", vsrc, cp, 2, vsrc)
    b.I("v_add_u32", vsrc, sT, vsrc)
    Lr = [[V(80 + 8 * it + e) for e in range(8)] for it in range(3)]
    b.I("s_mov_b32", sOff, 0)
    for it in range(3):
        for e in range(8):
            b.I("buffer_load_dword", Lr[it][e], vsrc, SRC, sOff, mods="offen")
            if e < 7: b.I("s_add_u32", sOff, sOff, sRS)
        if it < 2:
            b.I("s_mul_i32", sT, sRS, 57)
            b.I("s_add_u32", sOff, sOff, sT)

    KL = [[V(104 + 8 * it + e) for e in range(8)] for it in range(3)]
    vka = V(60, 2); vkv = V(62)
    snap_kv = b.snapshot()
    b.I("s_cmp_lt_u32", S(2), 40); b.I("s_cbranch_scc1", "L0_nokvld")
    b.I("s_cmp_ge_u32", S(2), 72); b.I("s_cbranch_scc1", "L0_nokvld")
    b.I("s_sub_u32", S(66), S(2), 40)
    b.I("s_lshr_b32", S(68), S(66), 2)
    b.I("s_and_b32", S(66), S(66), 3)
    b.I("s_mul_i32", S(67), S(66), 20)
    b.I("v_cmp_gt_u32", "vcc", 10, cp)
    b.I("v_mov_b32", V(25), P_WV[0]); b.I("v_mov_b32", V(26), P_WK[0])
    b.I("v_cndmask_b32", vka[0], V(25), V(26), "vcc")
    b.I("v_mov_b32", V(25), P_WV[1]); b.I("v_mov_b32", V(26), P_WK[1])
    b.I("v_cndmask_b32", vka[1], V(25), V(26), "vcc")
    b.I("v_subrev_u32", V(25), 10, cp)
    b.I("v_cndmask_b32", V(25), V(25), cp, "vcc")
    b.I("v_cmp_gt_u32", "vcc", 20, cp)
    b.I("v_cndmask_b32", V(25), 0, V(25), "vcc")
    b.I("v_add_u32", V(26), S(67), slot)
    b.I("v_mul_u32_u24", V(26), 320, V(26))
    b.I("v_lshl_add_u32", V(26), V(25), 2, V(26))
    b.I("v_add_co_u32", vka[0], "vcc", vka[0], V(26))
    b.I("v_addc_co_u32", vka[1], "vcc", 0, vka[1], "vcc")
    for it in range(3):
        if it == 2:
            b.I("v_cmp_gt_u32", "vcc", 4, slot)
            b.I("v_mov_b32", V(25), 2560)
            b.I("v_cndmask_b32", V(25), 0, V(25), "vcc")
            b.I("v_add_co_u32", vka[0], "vcc", vka[0], V(25))
            b.I("v_addc_co_u32", vka[1], "vcc", 0, vka[1], "vcc")
        elif it == 1:
            b.I("v_add_co_u32", vka[0], "vcc", 2560, vka[0])
            b.I("v_addc_co_u32", vka[1], "vcc", 0, vka[1], "vcc")
        for e in range(8): b.I("global_load_dword", KL[it][e], vka, "off", mods=f"offset:{40 * e}")
    b.label("L0_nokvld")
    b.restore(snap_kv)
    b.clear_hist()

    def colmap(vn, vhi, vlo_hi, vlo_lo, t0, t1):
        b.I("v_mul_u32_u24", vhi, sM, vn)
        b.I("v_lshrrev_b32", vhi, 16, vhi)
        b.I("v_mul_u32_u24", t0, sDv, vhi)
        b.I("v_sub_u32", t0, vn, t0)
        b.I("v_lshrrev_b32", vlo_hi, 4, t0)
        b.I("v_and_b32", vlo_lo, 15, t0)
        b.I("v_and_b32", t0, 4, vlo_lo)
        b.I("v_and_b32", t1, 8, vlo_lo)
        b.I("v_lshlrev_b32", t0, 1, t0)
        b.I("v_lshrrev_b32", t1, 1, t1)
        b.I("v_or_b32", t0, t0, t1)
        b.I("v_and_b32", t1, 3, vlo_lo)
        b.I("v_or_b32", t0, t0, t1)
        b.I("s_cmp_eq_u32", sSwap, 1)
        b.I("s_cselect_b64", "vcc", -1, 0)
        b.I("v_cndmask_b32", vlo_lo, vlo_lo, t0, "vcc")
    vn, vhi, vlh, vll, t0, t1, vdb = V(11), V(12), V(13), V(14), V(15), V(16), V(17)
    b.I("v_lshlrev_b32", vn, 1, cp)
    b.I("v_add_u32", vn, sN0, vn)
    colmap(vn, vhi, vlh, vll, t0, t1)
    b.I("v_mul_lo_u32", vdb, vhi, sHS)
    b.I("v_mul_lo_u32", t0, vlh, sLS)
    b.I("v_add_u32", vdb, vdb, t0)
    b.I("v_lshl_add_u32", vdb, vll, 4, vdb)
    b.I("v_add_u32", vdb, sBase, vdb)
    sGrp = S(55)
    b.I("s_lshr_b32", sGrp, S(2), 3)
    b.I("s_mul_i32", sGrp, sGrp, 81920)
    b.I("s_and_b32", sT, S(2), 7)
    b.I("s_lshl_b32", sT, sT, 7)
    b.I("s_add_u32", sGrp, sGrp, sT)
    b.I("s_add_u32", sGrp, sGrp, hex(off["XB0"]))
    b.I("s_lshl_b32", sT, wv_id, 13)
    b.I("s_add_u32", sGrp, sGrp, sT)
    b.I("v_lshlrev_b32", vxd, 10, vgg)
    b.I("v_lshl_add_u32", vxd, vt, 4, vxd)
    b.I("v_add_u32", v_oob, S(54), vxd)
    ssum, ssq = V(18), V(19)
    b.I("v_mov_b32", ssum, 0); b.I("v_mov_b32", ssq, 0)
    vOnes = V(27)
    b.I("v_mov_b32", vOnes, "0x3f803f80")
    for q in range(3):
        b.I("buffer_store_dwordx4", XL[q], (v_oob if q == 2 else vxd), WS, sGrp, mods="offen")
        if q < 2: b.I("s_add_u32", sGrp, sGrp, 32768)
        for e in range(4):
            b.I("v_dot2_f32_bf16", ssum, XL[q][e], vOnes, ssum)
            b.I("v_dot2_f32_bf16", ssq, XL[q][e], XL[q][e], ssq)
    for r in (ssum, ssq):
        b.I("v_add_f32_dpp", r, r, r, mods="row_ror:8 row_mask:0xf bank_mask:0xf")
        b.I("v_mov_b32", t0, r)
        b.I("v_permlane16_swap_b32", r, t0)
        b.I("v_add_f32", r, r, t0)
        b.I("v_mov_b32", t0, r)
        b.I("v_permlane32_swap_b32", r, t0)
        b.I("v_add_f32", r, r, t0)
    b.I("v_lshlrev_b32", t0, 3, vt)
    b.I("s_lshl_b32", sT, wv_id, 6)
    b.I("v_add_u32", t0, sT, t0)
    b.I("ds_write_b64", t0, V(18, 2), mods="offset:4096")
    csA, csB = V(20), V(21)
    b.I("v_mov_b32", csA, 0); b.I("v_mov_b32", csB, 0)
    vg, vad, vval = V(22), V(23), V(24)
    U = V(28, 4); U2 = V(32, 4)
    selLo, selHi = S(60), S(61)
    b.I("s_mov_b32", selLo, "0x05040100"); b.I("s_mov_b32", selHi, "0x07060302")
    for it in range(3):
        b.I("v_add_u32", vg, 8 * it, slot)
        b.I("v_cmp_gt_u32", "vcc", sNG, vg)
        b.I("v_add_u32", vg, sGL0, vg)
        b.I("v_lshrrev_b32", t0, sA, vg)
        b.I("v_mul_lo_u32", t0, t0, sP)
        b.I("v_and_b32", t1, sMask, vg)
        b.I("v_mul_lo_u32", t1, t1, sQ)
        b.I("v_add3_u32", vad, vdb, t0, t1)
        b.I("v_mov_b32", t0, hex(OOB))
        b.I("v_cndmask_b32", vad, t0, vad, "vcc")
        for q in range(4):
            b.I("v_perm_b32", U[q], Lr[it][2 * q + 1], Lr[it][2 * q], selLo)
            b.I("v_perm_b32", U2[q], Lr[it][2 * q + 1], Lr[it][2 * q], selHi)
        b.I("buffer_store_dwordx4", U, vad, WS, 0, mods="offen")
        b.I("buffer_store_dwordx4", U2, vad, WS, 0, mods="offen offset:16")
        b.I("v_mov_b32", t0, "0x00003f80"); b.I("v_mov_b32", t1, "0x3f800000")
        b.I("v_cndmask_b32", t0, 0, t0, "vcc"); b.I("v_cndmask_b32", t1, 0, t1, "vcc")
        for e in range(8):
            b.I("v_dot2_f32_bf16", csA, Lr[it][e], t0, csA)
            b.I("v_dot2_f32_bf16", csB, Lr[it][e], t1, csB)
    b.I("v_lshlrev_b32", t0, 8, slot)
    b.I("v_lshl_add_u32", t0, cp, 3, t0)
    b.I("ds_write_b64", t0, V(20, 2))
    snap_kv2 = b.snapshot()
    b.I("s_cmp_lt_u32", S(2), 40); b.I("s_cbranch_scc1", "L0_nokv1")
    b.I("s_cmp_ge_u32", S(2), 72); b.I("s_cbranch_scc1", "L0_nokv1")
    b.wait(vm=0)
    sKq, sG0k = S(66), S(67)
    vcc_, vqq, vwl, vm_ = V(52), V(53), V(54), V(55)
    kdb = V(56)
    b.I("v_cmp_le_u32", "vcc", 10, cp)
    b.I("v_cndmask_b32", vwl, 0, 2, "vcc")
    b.I("v_cndmask_b32", t0, 0, 10, "vcc")
    b.I("v_sub_u32", vcc_, cp, t0)
    b.I("v_lshrrev_b32", vqq, 1, vcc_)
    b.I("v_cmp_le_u32", "vcc", 3, vqq)
    b.I("v_cndmask_b32", t0, 0, 1, "vcc")
    b.I("v_add_u32", vwl, vwl, t0)
    b.I("v_mul_u32_u24", t0, 3, t0)
    b.I("v_sub_u32", t0, vqq, t0)
    b.I("v_lshlrev_b32", t0, 2, t0)
    b.I("v_and_b32", t1, 1, vcc_)
    b.I("v_lshl_add_u32", t0, t1, 1, t0)
    b.I("v_add_u32", vm_, 20, t0)
    b.I("v_cmp_gt_u32", S(64, 2), 20, cp)
    b.I("v_mul_u32_u24", kdb, 40960, vwl)
    b.I("v_lshl_add_u32", kdb, vm_, 4, kdb)
    b.I("v_add_u32", kdb, hex(off["WQP"]), kdb)
    b.I("v_mov_b32", csA, 0); b.I("v_mov_b32", csB, 0)
    for it in range(3):
        b.I("v_add_u32", vg, 8 * it, slot)
        b.I("v_cmp_gt_u32", "vcc", 20, vg)
        b.I("s_and_b64", "vcc", "vcc", S(64, 2))
        b.I("v_add_u32", vg, sG0k, vg)
        b.I("v_lshrrev_b32", t0, 1, vg)
        b.I("v_lshlrev_b32", t0, 10, t0)
        b.I("v_and_b32", t1, 1, vg)
        b.I("v_lshlrev_b32", t1, 9, t1)
        b.I("v_add3_u32", vad, kdb, t0, t1)
        b.I("v_mov_b32", t0, hex(OOB))
        b.I("v_cndmask_b32", vad, t0, vad, "vcc")
        for q in range(4):
            b.I("v_perm_b32", U[q], KL[it][2 * q + 1], KL[it][2 * q], selLo)
            b.I("v_perm_b32", U2[q], KL[it][2 * q + 1], KL[it][2 * q], selHi)
        b.I("s_mul_i32", sOff, S(68), 163840)
        b.I("buffer_store_dwordx4", U, vad, WS, sOff, mods="offen")
        b.I("buffer_store_dwordx4", U2, vad, WS, sOff, mods="offen offset:16")
        b.I("v_mov_b32", t0, "0x00003f80"); b.I("v_mov_b32", t1, "0x3f800000")
        b.I("v_cndmask_b32", t0, 0, t0, "vcc"); b.I("v_cndmask_b32", t1, 0, t1, "vcc")
        for e in range(8):
            b.I("v_dot2_f32_bf16", csA, KL[it][e], t0, csA)
            b.I("v_dot2_f32_bf16", csB, KL[it][e], t1, csB)
    b.I("v_lshlrev_b32", t0, 8, slot)
    b.I("v_lshl_add_u32", t0, cp, 3, t0)
    b.I("ds_write_b64", t0, V(20, 2), mods="offset:4608")
    b.label("L0_nokv1")
    b.restore(snap_kv2)
    b.clear_hist(); b.nop(2)
    b.wait(lg=0)
    b.barrier()
    b.I("v_cmp_gt_u32", "vcc", 64, V(0))
    b.I("s_and_saveexec_b64", S(62, 2), "vcc")
    b.I("s_cbranch_execz", "L0_nocs")
    SW = [V(36 + 2 * w, 2) for w in range(4)]
    b.I("v_lshlrev_b32", t0, 3, vt)
    for w in range(4): b.I("ds_read_b64", SW[w], t0, mods=f"offset:{4096 + 64 * w}")
    for c in range(2):
        b.I("v_add_f32", SW[0][c], SW[0][c], SW[1][c])
        b.I("v_add_f32", SW[2][c], SW[2][c], SW[3][c])
        b.I("v_add_f32", SW[0][c], SW[0][c], SW[2][c])
    b.I("v_cmp_eq_u32", "vcc", 0, vgg)
    b.I("v_cndmask_b32", SW[0][0], 0, SW[0][0], "vcc")
    b.I("v_cndmask_b32", SW[0][1], 0, SW[0][1], "vcc")
    b.I("s_lshr_b32", sT, S(2), 3)
    b.I("s_lshl_b32", sT, sT, 12)
    b.I("s_and_b32", sOff, S(2), 7)
    b.I("s_lshl_b32", sOff, sOff, 6)
    b.I("s_add_u32", sT, sT, sOff)
    b.I("s_add_u32", sT, sT, hex(off["STI0"]))
    b.I("v_lshlrev_b32", t0, 9, vgg)
    b.I("v_lshl_add_u32", t0, vt, 3, t0)
    b.I("buffer_store_dwordx2", SW[0], t0, WS, sT, mods="offen")
    b.I("s_cmp_eq_u32", sCs, 0)
    b.I("s_cbranch_scc1", "L0_nocs")
    CW = [V(44 + s_) for s_ in range(8)]
    b.I("v_lshlrev_b32", t0, 2, V(0))
    for s_ in range(8): b.I("ds_read_b32", CW[s_], t0, mods=f"offset:{256 * s_}")
    b.I("v_add_u32", vn, sN0, V(0))
    colmap(vn, vhi, vlh, vll, t0, t1)
    for s_ in range(1, 8): b.I("v_add_f32", CW[0], CW[0], CW[s_])
    b.I("v_mul_lo_u32", vad, vhi, sCH)
    b.I("v_lshl_add_u32", vad, vlh, 6, vad)
    b.I("v_lshl_add_u32", vad, vll, 2, vad)
    b.I("buffer_store_dword", CW[0], vad, WS, sCB, mods="offen")
    b.label("L0_nocs")
    b.clear_hist(); b.nop(4)
    b.I("s_mov_b64", "exec", -1)
    b.I("s_cmp_ge_u32", S(2), 16)
    b.I("s_cbranch_scc1", "L0_noflag")
    Z = V(28, 4)
    for e in range(4): b.I("v_mov_b32", Z[e], 0)
    b.I("v_lshlrev_b32", t0, 4, V(0))
    b.I("s_lshl_b32", sT, S(2), 12)
    b.I("s_add_u32", sT, sT, hex(off["FLAGS"]))
    b.I("buffer_store_dwordx4", Z, t0, WS, sT, mods="offen")
    b.label("L0_noflag")
    b.I("s_cmp_lt_u32", S(2), 40); b.I("s_cbranch_scc1", "L0_end")
    b.I("s_cmp_ge_u32", S(2), 72); b.I("s_cbranch_scc1", "L0_end")
    S8 = [V(36 + 2 * s_, 2) for s_ in range(8)]
    b.I("v_lshlrev_b32", t0, 3, cp)
    for s_ in range(8): b.I("ds_read_b64", S8[s_], t0, mods=f"offset:{4608 + 256 * s_}")
    for s_ in range(1, 8):
        b.I("v_add_f32", S8[0][0], S8[0][0], S8[s_][0])
        b.I("v_add_f32", S8[0][1], S8[0][1], S8[s_][1])
    b.I("v_lshlrev_b32", vad, 7, V(54))
    b.I("v_lshl_add_u32", vad, V(55), 2, vad)
    b.I("v_cmp_gt_u32", "vcc", 20, V(0))
    b.I("v_mov_b32", t0, hex(OOB))
    b.I("v_cndmask_b32", vad, t0, vad, "vcc")
    b.I("s_lshl_b32", sT, S(66), 12)
    b.I("s_add_u32", sT, sT, hex(off["CSQ"]))
    b.I("s_lshl_b32", sOff, S(68), 9)
    b.I("s_add_u32", sT, sT, sOff)
    b.I("buffer_store_dwordx2", S8[0], vad, WS, sT, mods="offen")
    b.label("L0_end")
```

```python
from asmb import *
import layout as L
import k_main as M
from k_main import *
import k_att2 as A2
from k_att2 import QA, QB, KV2, SX, PP, OA, standin_fold, LDS_Q, LDS_PART, LDS_FLAG, LDS_MAX

SPIN_MAX = 400000
EXP = {}
sGS, sFG, sFA, sGT = S(52), S(53), S(54), S(55)
sWQ, sW1, sW2 = S(40), S(41), S(42)
sBX = S(43)
sWp = S(47)
F_GRID = off["FLAGS"] + 32768
PARK = 0x27F00
RESID = [V(240 + 2 * fb, 2) for fb in range(5)]
def slot(f): return A(4 * ((f + 32) % 64), 4)

class Fill:
    def __init__(self): self.q = []; self.credit = 0
    def add(self, c, f): self.q.append((c, f))
    def v(self, b, *a, **k): self.add(4, lambda: b.I(*a, **k))
    def run(self, budget):
        self.credit += budget
        while self.q and self.q[0][0] <= self.credit:
            c, f = self.q.pop(0); self.credit -= c; f()
    def flush(self):
        for c, f in self.q: f()
        self.q = []; self.credit = 0

sWA = S(58, 2)
def wops(b, sbase, frs):
    ops = []
    cur = None
    glob = EXP.get("glob", 1) and not M.PROFILE_USES_58
    for f in frs:
        def one(f=f, cur=cur):
            if glob:
                if cur is None:
                    b.I("s_add_u32", sWp, sbase, (f // 4) * 4096)
                    b.I("s_add_u32", sWA[0], S(4), sWp)
                    b.I("s_addc_u32", sWA[1], S(5), 0)
                elif f // 4 != cur:
                    b.I("s_add_u32", sWA[0], sWA[0], (f // 4 - cur) * 4096)
                    b.I("s_addc_u32", sWA[1], sWA[1], 0)
                b.I("global_load_dwordx4", slot(f), vL16, sWA, mods=f"offset:{(f % 4) * 1024}")
                return
            if cur is None: b.I("s_add_u32", sWp, sbase, (f // 4) * 4096)
            elif f // 4 != cur: b.I("s_add_u32", sWp, sWp, (f // 4 - cur) * 4096)
            b.I("buffer_load_dwordx4", slot(f), vL16, WS, sWp, mods=f"offen offset:{(f % 4) * 1024}")
        ops.append(one); cur = f // 4
    return ops

def l2_warm(b, region, slice_bytes):
    if not EXP.get("warm", 0): return []
    n = slice_bytes // 4 // 4 // 8192
    rem = slice_bytes // 4 // 4 - n * 8192
    n += 1 if rem else 0
    ops = []
    def first():
        b.I("s_mul_i32", sT0, sJ, slice_bytes)
        b.I("s_and_b32", sT1, sG, 3)
        b.I("s_lshl_b32", sT1, sT1, 2)
        b.I("s_add_u32", sT1, sT1, sW)
        b.I("s_mul_i32", sT1, sT1, slice_bytes // 16)
        b.I("s_add_u32", sT0, sT0, sT1)
        b.I("s_add_u32", S(45), sT0, hex(off[region]))
        b.I("v_lshlrev_b32", V(251), 7, vL)
    for q in range(n):
        def one(q=q):
            if q == 0: first()
            else: b.I("s_add_u32", S(45), S(45), 8192)
            b.I("buffer_load_dword", V(250), V(251), WS, S(45), mods="offen")
        ops.append(one)
    return ops

def dma_ops(b, ssrc, slds, n, sc):
    tags = []
    def one(q):
        if q == 0: b.I("s_mov_b32", "m0", slds)
        tags.append(b.I("buffer_load_dwordx4", vL16, WS, ssrc, mods=f"offen offset:{q * 1024} {sc} lds"))
    return [lambda q=q: one(q) for q in range(n)], tags

class XTile:
    NPW = [1, 3, 4, 4, 4, 4]
    U0 = [0, 4, 16, 32, 48, 64]
    def __init__(self, b, sX, lds_base, s0, s1):
        self.b = b; self.s0, self.s1 = s0, s1; self.tags = {}; self.sX = sX; self.lds = lds_base
    @classmethod
    def chunk_of_unit(cls, u): return max(c for c in range(6) if cls.U0[c] <= u)
    def ops(self, c):
        b = self.b; n = self.NPW[c]
        ops, tags = dma_ops(b, self.s0, self.s1, n, "sc1")
        self.tags[c] = tags
        first = ops[0]
        def head():
            if c <= 2:
                b.I("s_mul_i32", self.s0, sW, n * 1024)
                b.I("s_add_u32", self.s1, self.s0, self.lds + self.U0[c] * 1024)
                b.I("s_add_u32", self.s0, self.s0, self.sX)
                if c: b.I("s_add_u32", self.s0, self.s0, self.U0[c] * 1024)
            else:
                b.I("s_add_u32", self.s0, self.s0, 16384)
                b.I("s_add_u32", self.s1, self.s1, 16384)
            first()
        ops[0] = head
        return ops
    def wait(self, c):
        self.b.wait_vm_tag(self.tags[c][-1])
        self.b.barrier()

sLoc = S(46)
F_MASK = 49152
def arrive(b, uid):
    n0 = len(b.vm)
    b.I("s_cmp_lg_u32", sW, 0)
    b.I("s_cbranch_scc1", f"ARR_{uid}")
    snap = b.snapshot()
    b.I("v_mov_b32", vt0, 0); b.I("v_mov_b32", vt1, 1)
    b.I("s_mov_b64", "exec", 1)
    b.I("s_cmp_eq_u32", sLoc, 1)
    b.I("s_cbranch_scc1", f"ARRL_{uid}")
    b.I("buffer_atomic_add", vt1, vt0, WS, sFG, mods="offen sc1")
    b.I("s_branch", f"ARRX_{uid}")
    b.label(f"ARRL_{uid}")
    b.I("buffer_atomic_add", vt1, vt0, WS, sFG, mods="offen")
    b.label(f"ARRX_{uid}")
    b.I("s_mov_b64", "exec", -1)
    b.label(f"ARR_{uid}")
    b.restore(snap)
    b.clear_hist(); b.nop(1)

def window_poll(b, uid, window, grid=False, late=3):
    window = list(window)
    if EXP.get("nowin"): window = []
    late = min(late, len(window))
    for op in window[:len(window) - late]: op()
    vP, vA = V(254), V(253)
    soff = sP[9] if grid else sFG
    target = sGT if grid else sGS
    def issue():
        b.I("buffer_load_dword", vP, vA, WS, soff, mods="offen sc1")
        b.vm.pop()
    def test(lbl):
        b.I("v_cmp_le_u32", "vcc", target, vP)
        b.I("s_cmp_eq_u64", "vcc", "exec")
        b.I("s_cbranch_scc1", lbl)
    if grid:
        b.I("s_mov_b32", soff, hex(F_GRID))
        b.I("v_and_b32", vA, 7, vL)
        b.I("v_lshlrev_b32", vA, 8, vA)
    else: b.I("v_mov_b32", vA, 0)
    b.I("s_cmp_lg_u32", sW, 0)
    b.I("s_cbranch_scc1", f"PL0_{uid}")
    issue()
    b.label(f"PL0_{uid}")
    b.clear_hist()
    nt0 = b.ntag; nv0 = b.nvm
    for op in window[len(window) - late:]: op()
    late = b.nvm - nv0
    snap = b.snapshot()
    b.I("s_cmp_lg_u32", sW, 0)
    b.I("s_cbranch_scc1", f"POLLE_{uid}")
    b.wait(vm=late)
    b.I("s_mov_b32", sT2, 0)
    test(f"POLLD_{uid}")
    if EXP.get("pipe", 0):
        PR = [V(250), V(251), V(252), V(254)]
        def issue_r(r):
            b.I("buffer_load_dword", r, vA, WS, soff, mods="offen sc1")
            b.vm.pop()
        for n_, r in enumerate(PR):
            if n_: b.I("s_sleep", EXP.get("psleep", 1))
            issue_r(r)
        b.label(f"POLL_{uid}")
        for r in PR:
            b.wait(vm=3)
            b.I("v_cmp_le_u32", "vcc", target, r)
            b.I("s_cmp_eq_u64", "vcc", "exec")
            b.I("s_cbranch_scc1", f"POLLD_{uid}")
            issue_r(r)
        b.I("s_add_u32", sT2, sT2, 1)
        b.I("s_cmp_lt_u32", sT2, SPIN_MAX // 4)
        b.I("s_cbranch_scc1", f"POLL_{uid}")
    else:
        b.label(f"POLL_{uid}")
        issue()
        b.wait(vm=0)
        b.I("s_add_u32", sT2, sT2, 1)
        test(f"POLLD_{uid}")
        b.I("s_cmp_lt_u32", sT2, SPIN_MAX)
        b.I("s_cbranch_scc1", f"POLL_{uid}")
    b.label(f"POLLD_{uid}")
    b.label(f"POLLE_{uid}")
    b.restore(snap)
    b.clear_hist()
    b.barrier()

def arrive_wave(b, uid):
    snap = b.snapshot()
    b.I("v_mov_b32", vt0, 0); b.I("v_mov_b32", vt1, 1)
    b.I("s_mov_b64", "exec", 1)
    b.I("s_cmp_eq_u32", sLoc, 1)
    b.I("s_cbranch_scc1", f"ARRL_{uid}")
    b.I("buffer_wbl2", mods="sc1")
    b.wait(vm=0)
    b.I("buffer_atomic_add", vt1, vt0, WS, sFG, mods="offen sc1")
    b.I("s_branch", f"ARRX_{uid}")
    b.label(f"ARRL_{uid}")
    b.I("buffer_atomic_add", vt1, vt0, WS, sFG, mods="offen")
    b.label(f"ARRX_{uid}")
    b.I("s_mov_b64", "exec", -1)
    b.restore(snap)
    b.vm.append((("arr", uid), set()))
    b.clear_hist(); b.nop(1)

def group_sync(b, store_tag, uid, window):
    if EXP.get("wavearr", 0) and store_tag is not None:
        b.wait_vm_tag(store_tag)
        stamp(b, uid + "_drained")
        arrive_wave(b, uid)
        b.I("s_add_u32", sGS, sGS, 32)
        window_poll(b, uid, window)
        return
    window = list(window)
    if store_tag is not None:
        if EXP.get("early", 0) or (uid == "s4" and EXP.get("early4", 1)):
            for op in window: op()
            window = []
        b.wait_vm_tag(store_tag)
        stamp(b, uid + "_drained")
        b.barrier()
    if EXP.get("wavearr", 0):
        arrive_wave(b, uid)
        b.I("s_add_u32", sGS, sGS, 32)
    else:
        arrive(b, uid)
        b.I("s_add_u32", sGS, sGS, 8)
    window_poll(b, uid, window)

def grid_arrive(b, store_tag, uid):
    b.wait_vm_tag(store_tag)
    b.barrier()
    b.I("s_add_u32", sGT, sGT, 32)
    b.I("s_cmp_lg_u32", sW, 0)
    b.I("s_cbranch_scc1", f"GA_{uid}")
    b.I("v_mov_b32", vt0, 0); b.I("v_mov_b32", vt1, 1)
    b.I("s_and_b32", sT0, sG, 7)
    b.I("s_lshl_b32", sT0, sT0, 8)
    b.I("s_add_u32", sT0, sT0, hex(F_GRID))
    b.I("s_mov_b64", "exec", 1)
    b.I("buffer_atomic_add", vt1, vt0, WS, sT0, mods="offen sc1")
    b.vm.pop()
    b.I("s_mov_b64", "exec", -1)
    b.label(f"GA_{uid}")
    b.clear_hist(); b.nop(1)

def xcd_publish(b):
    b.I("s_cmp_lg_u32", sW, 0)
    b.I("s_cbranch_scc1", "XP_END")
    b.I("s_getreg_b32", sT0, "hwreg(HW_REG_XCC_ID, 0, 4)")
    b.I("s_lshl_b32", sT0, 1, sT0)
    b.I("v_mov_b32", vt0, 0); b.I("v_mov_b32", vt1, sT0)
    b.I("s_add_u32", sT1, sFG, F_MASK)
    b.I("s_mov_b64", "exec", 1)
    b.I("buffer_atomic_or", vt1, vt0, WS, sT1, mods="offen sc1")
    b.vm.pop()
    b.I("s_mov_b64", "exec", -1)
    b.label("XP_END")
    b.clear_hist(); b.nop(1)
def xcd_mask_load(b):
    b.I("v_mov_b32", vt0, 0)
    b.I("s_add_u32", sT1, sFG, F_MASK)
    b.I("buffer_load_dword", V(252), vt0, WS, sT1, mods="offen sc1")
def xcd_mask_use(b):
    b.I("v_readfirstlane_b32", sT0, V(252))
    b.I("s_bcnt1_i32_b32", sT0, sT0)
    b.I("s_cmp_eq_u32", sT0, 1)
    b.I("s_cselect_b32", sLoc, 1, 0)

LDS_STX = 83968
class Stats:
    def __init__(self, b, region, regs):
        self.b = b; self.R = regs
        sS = self.sS = sP[1]
        b.I("s_lshl_b32", sS, sG, 12)
        b.I("s_add_u32", sS, sS, sLO)
        b.I("s_lshl_b32", sT0, sW, 10)
        b.I("s_add_u32", sS, sS, sT0)
        b.I("s_add_u32", sS, sS, hex(off[region]))
        self.va = V(regs.i + 8); self.vw = V(regs.i + 9)
        b.I("v_lshlrev_b32", self.va, 3, vL)
        b.I("s_lshl_b32", sT0, sW, 9)
        b.I("v_add_u32", self.vw, sT0, self.va)
        b.I("v_add_u32", self.vw, LDS_STX, self.vw)
    def load(self):
        for q in range(2): self.b.I("buffer_load_dwordx2", self.R[2 * q:2 * q + 2], self.va, WS, self.sS, mods=f"offen offset:{q * 512} sc1")
    def publish(self):
        b = self.b
        pk(b, "v_pk_add_f32", self.R[0:2], self.R[0:2], self.R[2:4])
        self.tag = b.I("ds_write_b64", self.vw, self.R[0:2])
        b.I("v_add_u32", self.va, LDS_STX, self.va)
    def before_barrier(self): self.b.wait_lg_tag(self.tag)
    def fill(self, f, mean, rstd):
        b = self.b
        for q in range(4): f.add(12, lambda q=q: b.I("ds_read_b64", self.R[2 * q:2 * q + 2], self.va, mods=f"offset:{q * 512}"))
        f.add(60, lambda: None)
        f.v(b, "v_pk_add_f32", self.R[0:2], self.R[0:2], self.R[2:4])
        f.v(b, "v_pk_add_f32", self.R[4:6], self.R[4:6], self.R[6:8])
        f.v(b, "v_pk_add_f32", self.R[0:2], self.R[0:2], self.R[4:6])
        f.v(b, "v_mul_f32", mean, hex(f2u(1.0 / 640)), self.R[0])
        f.v(b, "v_mul_f32", rstd, hex(f2u(1.0 / 640)), self.R[1])
        f.v(b, "v_fma_f32", rstd, f"-{mean}", mean, rstd)
        f.v(b, "v_max_f32", rstd, 0, rstd)
        f.v(b, "v_add_f32", rstd, hex(f2u(1e-5)), rstd)
        f.add(8, lambda: b.I("v_rsq_f32", rstd, rstd))

def pk(b, op, d, *src, mods=""): b.I(op, d, *src, mods=mods)

def qkv_start(b):
    sX, sD0, sD1 = sP[0], sP[2], sP[3]
    b.I("s_add_u32", sX, sBX, hex(off["XB0"]))
    xt = XTile(b, sX, LDS_X, sD0, sD1)
    for c in range(3):
        for op in xt.ops(c): op()
    return xt
def qkv(b, xt):
    uid = "q"
    sX, sSt, sD0, sD1, sSc = sP[0], sP[1], sP[2], sP[3], sP[4]
    st = Stats(b, "STI0", V(VB, 8))
    st.load()
    ACC = [V(64, 16), V(80, 16)]
    XF = [[V(96 + 8 * p + 4 * th, 4) for th in range(2)] for p in range(4)]
    vXa, vXb = V(VB + 16), V(VB + 17)
    mean, rstd = V(VB + 18), V(VB + 19)
    mT = [V(VB + 20, 2), V(VB + 22, 2)]; rT = [V(VB + 24, 2), V(VB + 26, 2)]
    rq, rm = [V(VB + 28, 2), V(VB + 30, 2)], [V(VB + 32, 2), V(VB + 34, 2)]
    vkey, vh, vaT, vaU, vaT1, vaU1 = (V(VB + 36 + i) for i in range(6))
    CS = V(128, 16)
    b.I("v_add_u32", vXa, LDS_X, vX32)
    b.I("v_add_u32", vXb, LDS_X + 65536, vX32)
    b.I("v_lshrrev_b32", vt0, 5, vL)
    b.I("v_lshlrev_b32", vt0, 4, vt0)
    b.I("s_lshl_b32", sT0, sW, 7)
    b.I("v_add_u32", vt0, sT0, vt0)
    b.I("v_add_u32", vt0, T_CSQ, vt0)
    for c in range(4): b.I("ds_read_b128", CS[4 * c:4 * c + 4], vt0, mods=f"offset:{32 * c}")
    b.I("v_and_b32", vkey, 31, vL)
    b.I("v_lshrrev_b32", vh, 5, vL)
    b.I("s_and_b32", sT0, sW, 1)
    b.I("s_mul_i32", sT0, sT0, 3)
    b.I("v_mov_b32", vaT, sT0)
    b.I("v_add_u32", vaU, 1, vh)
    b.I("v_add_u32", vaU, sT0, vaU)
    b.I("s_cmp_ge_u32", sW, 2)
    b.I("s_cbranch_scc1", f"QKV_AV_{uid}")
    for va in (vaT, vaU):
        b.I("v_lshrrev_b32", vt0, 1, va)
        b.I("v_lshlrev_b32", vt0, 9, vt0)
        b.I("v_and_b32", vt1, 1, va)
        b.I("v_lshl_add_u32", vt0, vt1, 3, vt0)
        b.I("v_lshl_add_u32", vt0, vkey, 4, vt0)
        b.I("v_lshlrev_b32", vt1, 3, vkey)
        b.I("v_add_u32", vt1, 1024, vt1)
        b.I("v_cmp_eq_u32", "vcc", 4, va)
        b.I("v_cndmask_b32", vt0, vt0, vt1, "vcc")
        b.I("v_add_u32", vt0, LDS_KVIMG, vt0)
        b.I("v_cmp_lt_u32", "vcc", 4, va)
        b.I("v_mov_b32", vt1, PARK)
        b.I("v_cndmask_b32", va, vt0, vt1, "vcc")
    b.I("s_branch", f"QKV_AJ_{uid}")
    b.label(f"QKV_AV_{uid}")
    b.I("v_lshrrev_b32", vt0, 4, vkey)
    b.I("v_mul_u32_u24", vt0, 768, vt0)
    b.I("v_bfe_u32", vt1, vkey, 2, 1)
    b.I("v_mul_u32_u24", vt1, 384, vt1)
    b.I("v_add_u32", vt0, vt0, vt1)
    b.I("v_and_b32", vt1, 3, vkey)
    b.I("v_lshl_add_u32", vt0, vt1, 1, vt0)
    b.I("v_bfe_u32", vt1, vkey, 3, 1)
    b.I("v_lshl_add_u32", vt0, vt1, 3, vt0)
    b.I("v_add_u32", vt3, LDS_KVIMG + 1536, vt0)
    for va in (vaT, vaU):
        b.I("v_lshl_add_u32", vt0, va, 6, vt3)
        b.I("v_cmp_lt_u32", "vcc", 4, va)
        b.I("v_mov_b32", vt1, PARK)
        b.I("v_cndmask_b32", va, vt0, vt1, "vcc")
    ONE = V(144, 4)
    b.I("v_and_b32", vt0, 3, vL)
    b.I("v_mul_u32_u24", vt0, 384, vt0)
    b.I("v_bfe_u32", vt1, vL, 2, 1)
    b.I("v_mul_u32_u24", vt1, 3072, vt1)
    b.I("v_add_u32", vt0, vt0, vt1)
    b.I("v_add_u32", vt0, LDS_KVIMG + 1536 + 320, vt0)
    for e in range(4): b.I("v_mov_b32", ONE[e], "0x3f803f80")
    b.I("ds_write_b128", vt0, ONE)
    b.I("v_lshlrev_b32", vt0, 3, vkey)
    b.I("v_mul_u32_u24", vt1, 3072, vh)
    b.I("v_add_u32", vt0, vt0, vt1)
    b.I("v_add_u32", vt0, LDS_KVIMG + 1280, vt0)
    b.I("v_mov_b32", V(148), "0x3f803f80"); b.I("v_mov_b32", V(149), "0x00003f80")
    b.I("ds_write_b64", vt0, V(148, 2))
    b.label(f"QKV_AJ_{uid}")
    b.clear_hist(); b.nop(1)
    b.I("v_cmp_gt_u32", "vcc", 32, vL)
    b.I("v_mov_b32", vt1, PARK)
    b.I("v_cndmask_b32", vaT, vaT, vt1, "vcc")
    for va, va1 in ((vaT, vaT1), (vaU, vaU1)):
        b.I("v_add_u32", vt0, 3072, va)
        b.I("v_cmp_eq_u32", "vcc", va, vt1)
        b.I("v_cndmask_b32", va1, vt0, va, "vcc")
    NPRE = EXP.get("npre", 20)
    rest = list(range(NPRE, 40))
    n0 = max(0, 24 - NPRE)
    q0, rest = rest[:n0], rest[n0:]
    q1, rest = rest[:4], rest[4:]
    q2, rest = rest[:6], rest[6:]
    W_ = lambda fr: wops(b, sWQ, fr) if fr else []
    mem = {0: xt.ops(3) + W_(q0), 1: [st.publish] + W_(q1) + xt.ops(4),
           2: xt.ops(5) + W_(q2), 3: W_(rest), 4: []}
    z = Fill()
    for i in range(32, 128): z.v(b, "v_accvgpr_write_b32", A(i), 0)
    f = Fill()
    st.fill(f, mean, rstd)
    f.v(b, "v_mov_b32", mT[0][0], mean); f.v(b, "v_mov_b32", mT[1][0], mean)
    f.v(b, "v_mov_b32", rT[0][0], rstd); f.v(b, "v_mov_b32", rT[1][0], rstd)
    f.v(b, "v_permlane32_swap_b32", mT[0][0], mT[1][0]); f.v(b, "v_permlane32_swap_b32", rT[0][0], rT[1][0])
    f.add(4, lambda: b.I("s_mov_b32", sSc, hex(f2u(math.log2(math.e) / math.sqrt(20.0)))))
    f.add(4, lambda: b.I("v_cmp_gt_u32", S(48, 2), 32, vL))
    for th in range(2):
        f.v(b, "v_mul_f32", rq[th][0], sSc, rT[th][0])
        f.v(b, "v_cndmask_b32", rm[th][0], rT[th][0], rq[th][0], S(48, 2))
    def xread(s_, th):
        o = s_ * 2048 + th * 512
        base, o = (vXa, o) if o < 65536 else (vXb, o - 65536)
        b.I("ds_read_b128", XF[s_ % 4][th], base, mods=f"offset:{o}")
    stamp(b, "q_pre")
    landed = set()
    def ensure(step):
        c_ = XTile.chunk_of_unit(2 * step + 1)
        if c_ not in landed:
            if c_ == 3: st.before_barrier()
            xt.wait(c_); landed.add(c_)
            stamp(b, f"q_c{c_}")
    ensure(0)
    for th in range(2): xread(0, th)
    for th in range(2): xread(1, th)
    for c in range(5):
        m = list(mem[c])
        k = 0
        for s_ in range(8 * c, 8 * c + 8):
            if s_ + 2 < 40: ensure(s_ + 2)
            b.need(XF[s_ % 4][0], XF[s_ % 4][1], slot(s_))
            for th in range(2):
                b.I("v_mfma_f32_32x32x16_bf16", ACC[th], slot(s_), XF[s_ % 4][th], (0 if s_ == 0 else ACC[th]))
                if s_ + 2 < 40: xread(s_ + 2, th)
                if m and (k % 4 != 0 or len(m) > 15 - k): m.pop(0)()
                else: z.run(8)
                if c >= 3: f.run(8)
                k += 1
        for op in m: op()
    f.flush(); z.flush()
    stamp(b, "q_mm")
    PK = [V(152, 2), V(154, 2)]
    for th in range(2):
        for i in range(8, 16, 2):
            pk(b, "v_pk_fma_f32", ACC[th][i:i + 2], mT[th], CS[i:i + 2], ACC[th][i:i + 2], mods="op_sel_hi:[0,1,1] neg_lo:[1,0,0] neg_hi:[1,0,0]")
        for i in range(8, 16, 2):
            pk(b, "v_pk_mul_f32", ACC[th][i:i + 2], ACC[th][i:i + 2], (rm[th] if i < 12 else rT[th]), mods="op_sel_hi:[1,0]")
        for q in range(2): b.I("v_cvt_pk_bf16_f32", QT[th][q], ACC[th][8 + 2 * q], ACC[th][9 + 2 * q])
        for q in range(2): b.I("v_cvt_pk_bf16_f32", PK[th][q], ACC[th][12 + 2 * q], ACC[th][13 + 2 * q])
    b.I("s_cmp_ge_u32", sW, 2)
    b.I("s_cbranch_scc1", f"QKV_V_{uid}")
    for th in range(2):
        b.I("ds_write_b64", (vaT, vaT1)[th], QT[th])
        b.I("ds_write_b64", (vaU, vaU1)[th], PK[th])
    b.I("s_branch", f"QKV_J_{uid}")
    b.label(f"QKV_V_{uid}")
    for th in range(2):
        for va, rr in (((vaT, vaT1)[th], QT[th]), ((vaU, vaU1)[th], PK[th])):
            for q in range(2):
                b.I("ds_write_b16", va, rr[q], mods=f"offset:{32 * q}")
                b.I("ds_write_b16_d16_hi", va, rr[q], mods=f"offset:{32 * q + 16}")
    b.label(f"QKV_J_{uid}")
    b.clear_hist()
    IM = V(144, 4)
    b.I("s_mul_i32", sT0, sJ, 768)
    b.I("v_add_u32", vt0, sT0, vL16)
    b.I("v_add_u32", vt2, LDS_KVIMG, vt0)
    b.I("s_cmp_eq_u32", sW, 0)
    b.I("s_cselect_b32", sT1, 48, 0)
    b.I("v_cmp_gt_u32", "vcc", sT1, vL)
    b.I("v_mov_b32", vt1, hex(OOB))
    b.I("v_cndmask_b32", vt0, vt1, vt0, "vcc")
    b.I("s_mul_i32", sT0, sG, 6144)
    b.I("s_add_u32", sT0, sT0, sLO)
    b.I("s_add_u32", sT0, sT0, hex(off["KV0"]))
    b.wait(lg=0)
    b.barrier()
    b.I("ds_read_b128", IM, vt2)
    tag = b.I("buffer_store_dwordx4", IM, vt0, WS, sT0, mods="offen sc1")
    stamp(b, "q_kv")
    for th in range(2):
        for i in range(0, 8, 2):
            pk(b, "v_pk_fma_f32", ACC[th][i:i + 2], mT[th], CS[i:i + 2], ACC[th][i:i + 2], mods="op_sel_hi:[0,1,1] neg_lo:[1,0,0] neg_hi:[1,0,0]")
        for i in range(0, 8, 2):
            pk(b, "v_pk_mul_f32", ACC[th][i:i + 2], ACC[th][i:i + 2], rq[th], mods="op_sel_hi:[1,0]")
        for q in range(4): b.I("v_cvt_pk_bf16_f32", QM[th][q], ACC[th][2 * q], ACC[th][2 * q + 1])
    return tag

def attention(b):
    uid = "a"
    A2.attn_pre(b, "p", trailing_barrier=False, part=("B" if EXP.get("preA", 0) else "AB"))
    for i in range(32): b.I("v_accvgpr_write_b32", A(i), 0)
    GW = EXP.get("gw", 8)
    window_poll(b, "gw", wops(b, sW1, range(0, GW)), grid=True)
    xcd_mask_load(b)
    stamp(b, "grid_ok")
    sWo, sWl = sP[5], sP[6]
    def on_run():
        b.I("s_mul_i32", sWo, sJ, 102400)
        b.I("s_mul_i32", sT0, sW, 3072)
        b.I("s_add_u32", sWo, sWo, sT0)
        b.I("s_add_u32", sWo, sWo, hex(off["WOP"]))
        b.I("s_add_u32", sWl, sT0, LDS_WO)
    def wo():
        ops, _ = dma_ops(b, sWo, sWl, 3, "")
        for op in ops: op()
        b.I("s_add_u32", sWo, sWo, 12288)
        b.I("s_add_u32", sWl, sWl, 12288)
    tag = A2.attn_main2(b, uid, wo, on_run, last_extra=wops(b, sW1, range(GW, 32)), freed=lambda a: wops(b, sW1, range(4 * a + 32, 4 * a + 36)), store_sc="sc1", sBX_=sBX, own_freed=(wops(b, sW1, range(32, 40)) if EXP.get("own", 0) else []), skip6=bool(EXP.get("ow1", 0)), after_store=((wops(b, sW1, range(56, 60)) + wops(b, sW1, range(32, 40))) if EXP.get("early", 0) else None))
    xcd_mask_use(b)

def wo_rest(b):
    b.I("s_mul_i32", sT0, sJ, 102400)
    b.I("s_lshl_b32", sT1, sW, 12)
    b.I("s_add_u32", sT0, sT0, sT1)
    b.I("s_add_u32", sT0, sT0, hex(off["WOP"] + 84 * 1024))
    b.I("s_add_u32", sT1, sT1, LDS_WO + 84 * 1024)
    ops, tags = dma_ops(b, sT0, sT1, 4, "")
    for op in ops: op()
    return tags[-1]

def acc_init(b, ACC, RES, vbias=None):
    U = V(VB + 4, 2)
    if vbias is not None:
        for fb in range(5): b.I("ds_read_b128", ACC[fb], vbias, mods=f"offset:{64 * fb}")
    for fb in range(5):
        for q in range(2):
            a2 = ACC[fb][2 * q:2 * q + 2]
            if vbias is None:
                b.I("v_lshlrev_b32", a2[0], 16, RES[fb][q])
                b.I("v_and_b32", a2[1], "0xffff0000", RES[fb][q])
            else:
                b.I("v_lshlrev_b32", U[0], 16, RES[fb][q])
                b.I("v_and_b32", U[1], "0xffff0000", RES[fb][q])
                pk(b, "v_pk_add_f32", a2, a2, U)

def resid_epi(b, ACC, RES, sdst, sstat, out_natural=None):
    ssum, ssq = V(VB, 2), V(VB + 2, 2)
    tA, tB = vt0, vt1
    for fb in range(5):
        for q in range(2): b.I("v_cvt_pk_bf16_f32", RES[fb][q], ACC[fb][2 * q], ACC[fb][2 * q + 1])
        if out_natural is not None:
            b.I("buffer_store_dwordx2", RES[fb], out_natural, OUT, sdst, mods=f"offen offset:{32 * fb} sc1")
            continue
        if fb in (2, 4): b.I("s_add_u32", sdst, sdst, 4096)
        b.I("buffer_store_dwordx2", RES[fb], vEpi, WS, sdst, mods=f"offen offset:{(fb % 2) * 2048} sc1")
    if out_natural is not None: return None
    for fb in range(5):
        for q in range(2):
            a2 = ACC[fb][2 * q:2 * q + 2]
            if fb == 0 and q == 0:
                pk(b, "v_pk_mul_f32", ssq, a2, a2)
            elif fb == 0 and q == 1:
                pk(b, "v_pk_add_f32", ssum, ACC[0][0:2], a2); pk(b, "v_pk_fma_f32", ssq, a2, a2, ssq)
            else:
                pk(b, "v_pk_add_f32", ssum, ssum, a2); pk(b, "v_pk_fma_f32", ssq, a2, a2, ssq)
    b.I("v_add_f32", ssum[0], ssum[0], ssum[1])
    b.I("v_add_f32", ssum[1], ssq[0], ssq[1])
    for swap in ("v_permlane16_swap_b32", "v_permlane32_swap_b32"):
        b.I("v_mov_b32", tA, ssum[0]); b.I("v_mov_b32", tB, ssum[1])
        b.I(swap, ssum[0], tA); b.I(swap, ssum[1], tB)
        b.I("v_add_f32", ssum[0], ssum[0], tA); b.I("v_add_f32", ssum[1], ssum[1], tB)
    return b.I("buffer_store_dwordx2", ssum, V(VB + 6), WS, sstat, mods="offen sc1")

OPR_ACC0 = [V(144 + 4 * fb, 4) for fb in range(5)]
FF2_ACC0 = [V(160 + 4 * fb, 4) for fb in range(5)]
def oproj_init(b): acc_init(b, OPR_ACC0, RESID)
def ffn2_init(b):
    vb = V(VB + 34)
    b.I("v_lshrrev_b32", vt0, 4, vL)
    b.I("v_lshlrev_b32", vt0, 4, vt0)
    b.I("v_add_u32", vb, T_B2, vt0)
    acc_init(b, FF2_ACC0, RESID, vbias=vb)

def stat_addr(b):
    b.I("v_lshlrev_b32", vt0, 3, vL)
    b.I("v_cmp_gt_u32", "vcc", 16, vL)
    b.I("v_mov_b32", vt1, hex(OOB))
    b.I("v_cndmask_b32", V(VB + 6), vt1, vt0, "vcc")

def resid_ops(b, sbase, RES):
    ops = []
    for fb in range(5):
        def one(fb=fb):
            if fb in (2, 4): b.I("s_add_u32", sbase, sbase, 4096)
            b.I("buffer_load_dwordx2", RES[fb], vEpi, WS, sbase, mods=f"offen offset:{(fb % 2) * 2048} sc1")
        ops.append(one)
    return ops

def oproj(b):
    sO, sRes, sTB, sDst, sSt = sP[0], sP[1], sP[2], sP[3], sP[4]
    XF = [[V(64 + 8 * s_ + 4 * a, 4) for a in range(2)] for s_ in range(10)]
    ACC = [[V(144 + 20 * a + 4 * fb, 4) for fb in range(5)] for a in range(2)]
    WF = [[V(184 + 20 * p + 4 * fb, 4) for fb in range(5)] for p in range(2)]
    RES = RESID
    vXa = [V(VB + 30), V(VB + 31)]; vWa = V(VB + 32); vR = V(VB + 33); vR2 = V(VB + 34)
    b.I("s_and_b32", sT0, sW, 1)
    b.I("s_lshr_b32", sT1, sW, 1)
    b.I("s_lshl_b32", sT0, sT0, 1)
    b.I("s_add_u32", sTB, sT0, sT1)
    b.I("s_xor_b32", sT2, sTB, 1)
    b.I("s_lshl_b32", sT3, sTB, 8)
    b.I("v_add_u32", vXa[0], sT3, vX16)
    b.I("s_lshl_b32", sT2, sT2, 8)
    b.I("v_add_u32", vXa[1], sT2, vX16)
    b.I("s_mul_i32", sT1, sT1, 40960)
    b.I("s_add_u32", sO, sBX, sT1)
    b.I("s_add_u32", sO, sO, hex(off["O0"]))
    def xload(s_):
        for a in range(2): b.I("buffer_load_dwordx4", XF[s_][a], vXa[a], WS, sO, mods="offen sc1")
        if s_ < 9: b.I("s_add_u32", sO, sO, 4096)
    def xops(s_):
        return [lambda: b.I("buffer_load_dwordx4", XF[s_][0], vXa[0], WS, sO, mods="offen sc1"),
                lambda: (b.I("buffer_load_dwordx4", XF[s_][1], vXa[1], WS, sO, mods="offen sc1"), b.I("s_add_u32", sO, sO, 4096))]
    OL = EXP.get("olead", 5)
    for s_ in range(OL): xload(s_)
    b.I("s_mul_i32", sT0, sJ, 10240)
    b.I("s_add_u32", sT0, sT0, sT3)
    b.I("s_add_u32", sRes, sBX, sT0)
    b.I("s_add_u32", sDst, sRes, hex(off["X10"]))
    b.I("v_lshrrev_b32", vt0, 4, vL)
    b.I("v_mul_u32_u24", vt0, 1280, vt0)
    b.I("v_and_b32", vt1, 15, vL)
    b.I("v_lshl_add_u32", vWa, vt1, 4, vt0)
    b.I("s_lshr_b32", sT1, sW, 1)
    b.I("s_mul_i32", sT1, sT1, 51200)
    b.I("v_add_u32", vWa, sT1, vWa)
    b.I("v_add_u32", vWa, LDS_WO, vWa)
    b.I("s_mul_i32", sT0, sW, 5120)
    b.I("v_add_u32", vR, sT0, vL16)
    b.I("v_add_u32", vR, LDS_RED_O, vR)
    b.I("s_xor_b32", sT0, sW, 2)
    b.I("s_mul_i32", sT0, sT0, 5120)
    b.I("v_add_u32", vR2, sT0, vL16)
    b.I("v_add_u32", vR2, LDS_RED_O, vR2)
    b.I("s_lshl_b32", sSt, sG, 12)
    b.I("s_add_u32", sSt, sSt, sLO)
    b.I("s_lshl_b32", sT0, sJ, 9)
    b.I("s_add_u32", sSt, sSt, sT0)
    b.I("s_lshl_b32", sT0, sTB, 7)
    b.I("s_add_u32", sSt, sSt, sT0)
    b.I("s_add_u32", sSt, sSt, hex(off["ST10"]))
    stat_addr(b)
    def wread(s_, fb): b.I("ds_read_b128", WF[s_ % 2][fb], vWa, mods=f"offset:{s_ * 5120 + fb * 256}")
    for fb in range(5): wread(0, fb)
    stamp(b, "o_pre")
    late_w = (wops(b, sW1, range(32, 40)) + wops(b, sW1, range(56, 60))) if EXP.get("ow1", 0) else []
    for s_ in range(10):
        m = (xops(s_ + OL) if s_ + OL < 10 else [])
        if s_ >= 10 - OL:
            n_ = -(-len(late_w) // (10 - s_))
            m = m + late_w[:n_]; late_w = late_w[n_:]
        if s_ == 6: m = m + l2_warm(b, "W2P", 245760)
        order = [(fb, a) for fb in range(5) for a in range(2)] if s_ < 9 else [(fb, 1) for fb in range(5)] + [(fb, 0) for fb in range(5)]
        b.need(*WF[s_ % 2], *XF[s_])
        for k, (fb, a) in enumerate(order):
            b.I("v_mfma_f32_16x16x32_bf16", ACC[a][fb], WF[s_ % 2][fb], XF[s_][a], (0 if s_ == 0 and a == 1 else ACC[a][fb]))
            if s_ < 9 and k < 5: wread(s_ + 1, k)
            if m and k in (5, 7, 9): m.pop(0)()
            if s_ == 9 and k >= 7: b.I("ds_write_b128", vR, ACC[1][k - 7], mods=f"offset:{(k - 7) * 1024}")
        for op in m: op()
        if s_ == 0: stamp(b, "o_s0")
    for fb in (3, 4): b.I("ds_write_b128", vR, ACC[1][fb], mods=f"offset:{fb * 1024}")
    stamp(b, "o_mm")
    b.wait(lg=0)
    b.barrier()
    for fb in range(5): b.I("ds_read_b128", WF[0][fb], vR2, mods=f"offset:{fb * 1024}")
    for fb in range(5):
        for q in range(2): pk(b, "v_pk_add_f32", ACC[0][fb][2 * q:2 * q + 2], ACC[0][fb][2 * q:2 * q + 2], WF[0][fb][2 * q:2 * q + 2])
    stamp(b, "o_red")
    return resid_epi(b, ACC[0], RES, sDst, sSt)

def ffn1(b):
    sX, sSt, sH, sD0, sD1 = sP[0], sP[1], sP[2], sP[5], sP[6]
    b.I("s_add_u32", sX, sBX, hex(off["X10"]))
    xt = XTile(b, sX, LDS_X, sD0, sD1)
    for c in range(3):
        for op in xt.ops(c): op()
    st = Stats(b, "ST10", V(VB, 8))
    st.load()
    ACC = [[V(64 + 16 * fb + 4 * tb, 4) for tb in range(4)] for fb in range(3)]
    XF = [[V(112 + 16 * p + 4 * tb, 4) for tb in range(4)] for p in range(2)]
    vXa, vXb = V(VB + 16), V(VB + 17)
    mean, rstd = V(VB + 18), V(VB + 19)
    MR = [V(176 + 2 * i, 2) for i in range(4)]; RS = [V(184 + 2 * i, 2) for i in range(4)]
    CS = V(144, 12); BI = V(156, 12)
    b.I("v_add_u32", vXa, LDS_X, vX16)
    b.I("v_add_u32", vXb, LDS_X + 65536, vX16)
    b.I("v_lshrrev_b32", vt0, 4, vL)
    b.I("v_lshlrev_b32", vt0, 4, vt0)
    b.I("s_mul_i32", sT0, sW, 192)
    b.I("v_add_u32", vt0, sT0, vt0)
    b.I("v_add_u32", vt1, T_CS1, vt0)
    b.I("v_add_u32", vt2, T_B1, vt0)
    for fb in range(3):
        b.I("ds_read_b128", CS[4 * fb:4 * fb + 4], vt1, mods=f"offset:{64 * fb}")
        b.I("ds_read_b128", BI[4 * fb:4 * fb + 4], vt2, mods=f"offset:{64 * fb}")
    b.I("s_mul_i32", sH, sG, 196608)
    b.I("s_add_u32", sH, sH, sLO)
    b.I("s_mul_i32", sT0, sJ, 24576)
    b.I("s_add_u32", sH, sH, sT0)
    b.I("s_mul_i32", sT0, sW, 6144)
    b.I("s_add_u32", sH, sH, sT0)
    b.I("s_add_u32", sH, sH, hex(off["H0"]))
    c0 = -2.0 * math.sqrt(2.0 / math.pi) * math.log2(math.e)
    sC = S(50, 2)
    vC0 = V(192, 2)
    b.I("s_mov_b32", sC[0], hex(f2u(c0 * 0.044715)))
    b.I("v_mov_b32", vC0[0], hex(f2u(c0)))
    f = Fill()
    st.fill(f, mean, rstd)
    f.v(b, "v_mul_f32", mean, mean, rstd)
    for src, d4 in ((mean, MR), (rstd, RS)):
        d = [x[0] for x in d4]
        f.v(b, "v_mov_b32", d[0], src); f.v(b, "v_mov_b32", d[2], src)
        f.v(b, "v_permlane32_swap_b32", d[0], d[2])
        f.v(b, "v_mov_b32", d[1], d[0]); f.v(b, "v_mov_b32", d[3], d[2])
        f.v(b, "v_permlane16_swap_b32", d[0], d[1]); f.v(b, "v_permlane16_swap_b32", d[2], d[3])
    def xread(s_, tb):
        o = s_ * 4096 + tb * 256
        base, o = (vXa, o) if o < 65536 else (vXb, o - 65536)
        b.I("ds_read_b128", XF[s_ % 2][tb], base, mods=f"offset:{o}")
    stamp(b, "f_pre")
    mem = []
    NW2 = EXP.get('nw2', 52)
    w2q = wops(b, sW2, range(0, NW2)); w2n = 0; NM_ = EXP.get('nm', 52)
    landed = set()
    def ensure(step):
        c_ = XTile.chunk_of_unit(4 * step + 3)
        if c_ not in landed:
            if c_ == 3: st.before_barrier()
            xt.wait(c_); landed.add(c_)
            stamp(b, f"f_c{c_}")
    ensure(0)
    for tb in range(4): xread(0, tb)
    for c in range(5):
        if c + 3 < 6: mem += xt.ops(c + 3)
        if c == 4: mem += l2_warm(b, "WQP", 163840)
        for s_ in range(4 * c, 4 * c + 4):
            if s_ == 5: st.publish()
            if s_ + 1 < 20: ensure(s_ + 1)
            k = 0
            b.need(*XF[s_ % 2], slot(3 * s_), slot(3 * s_ + 1), slot(3 * s_ + 2))
            for fb in range(3):
                for tb in range(4):
                    b.I("v_mfma_f32_16x16x32_bf16", ACC[fb][tb], slot(3 * s_ + fb), XF[s_ % 2][tb], (0 if s_ == 0 else ACC[fb][tb]))
                    if k < 4 and s_ + 1 < 20: xread(s_ + 1, k)
                    elif k in ((5, 8, 11) if EXP.get("slots3", 1) else (6, 10)):
                        if mem: mem.pop(0)()
                        elif w2n < min(NM_, 3 * s_ + (k + 1) // 4): w2q[w2n](); w2n += 1
                    elif c >= 2 and f.q: f.run(5)
                    k += 1
    for op in mem: op()
    f.flush()
    stamp(b, "f_mm")
    T = [V(168 + 2 * i, 2) for i in range(4)]
    tag = None
    for fb in range(3):
        for tp in range(2):
            el = [(ACC[fb][2 * tp + u][2 * q:2 * q + 2], T[2 * u + q], 2 * tp + u, q) for u in range(2) for q in range(2)]
            for a, t, tb, q in el: pk(b, "v_pk_fma_f32", t, MR[tb], CS[4 * fb + 2 * q:4 * fb + 2 * q + 2], BI[4 * fb + 2 * q:4 * fb + 2 * q + 2], mods="op_sel_hi:[0,1,1] neg_lo:[1,0,0] neg_hi:[1,0,0]")
            for a, t, tb, q in el: pk(b, "v_pk_fma_f32", a, RS[tb], a, t, mods="op_sel_hi:[0,1,1]")
            for a, t, tb, q in el: pk(b, "v_pk_mul_f32", t, a, a)
            for a, t, tb, q in el: pk(b, "v_pk_fma_f32", t, t, sC, vC0, mods="op_sel_hi:[1,0,0]")
            for a, t, tb, q in el: pk(b, "v_pk_mul_f32", t, t, a)
            for _ in range(2):
                if w2n < NW2: w2q[w2n](); w2n += 1
            for a, t, tb, q in el:
                for e in range(2): b.I("v_exp_f32", t[e], t[e])
            if w2n < NW2: w2q[w2n](); w2n += 1
            for a, t, tb, q in el: pk(b, "v_pk_add_f32", t, t, 1.0, mods="op_sel_hi:[1,0]")
            for a, t, tb, q in el:
                for e in range(2): b.I("v_rcp_f32", t[e], t[e])
            for a, t, tb, q in el: pk(b, "v_pk_mul_f32", a, a, t)
            for _ in range(2):
                if w2n < NW2: w2q[w2n](); w2n += 1
            for u in range(2):
                a4 = ACC[fb][2 * tp + u]
                for q in range(2): b.I("v_cvt_pk_bf16_f32", a4[q], a4[2 * q], a4[2 * q + 1])
                tag = b.I("buffer_store_dwordx2", a4[0:2], vEpi, WS, sH, mods=f"offen offset:{(2 * tp + u) * 256} sc1")
        if fb < 2: b.I("s_add_u32", sH, sH, 2048)
    while w2n < NW2: w2q[w2n](); w2n += 1
    return tag

def ffn2(b):
    sH, sRes, sDst, sSt, sH9 = sP[0], sP[1], sP[2], sP[3], sP[4]
    NB = 6
    XF = [[V(64 + 16 * p + 4 * a, 4) for a in range(4)] for p in range(NB)]
    ACC = [[V(160 + 20 * a + 4 * fb, 4) for fb in range(5)] for a in range(4)]
    RES = RESID
    BI = V(64, 20)
    vXa = [V(VB + 26 + a) for a in range(4)]
    vRw = [V(VB + 30 + a) for a in range(3)]; vRr = V(VB + 33); vB2 = V(VB + 34)
    sTB = sP[5]
    for a in range(4):
        b.I("s_add_u32", sT0, sW, a)
        b.I("s_and_b32", sT1, sT0, 1)
        b.I("s_lshl_b32", sT1, sT1, 1)
        b.I("s_bfe_u32", sT0, sT0, "0x10001")
        b.I("s_or_b32", sT0, sT0, sT1)
        if a == 0: b.I("s_mov_b32", sTB, sT0)
        b.I("s_lshl_b32", sT0, sT0, 8)
        b.I("v_add_u32", vXa[a], sT0, vX16)
    b.I("s_mul_i32", sH, sG, 196608)
    b.I("s_add_u32", sH, sH, sLO)
    b.I("s_mul_i32", sT0, sW, 49152)
    b.I("s_add_u32", sH, sH, sT0)
    b.I("s_add_u32", sH, sH, hex(off["H0"]))
    def xops(s_):
        ops = [lambda a=a: b.I("buffer_load_dwordx4", XF[s_ % NB][a], vXa[a], WS, sH, mods="offen sc1") for a in range(3)]
        ops.append(lambda: (b.I("buffer_load_dwordx4", XF[s_ % NB][3], vXa[3], WS, sH, mods="offen sc1"), b.I("s_add_u32", sH, sH, 4096)))
        return ops
    GL = EXP.get("glead", 2)
    for s_ in range(GL):
        for op in xops(s_): op()
    b.I("s_mul_i32", sT0, sJ, 10240)
    b.I("s_add_u32", sRes, sBX, sT0)
    b.I("s_lshl_b32", sT0, sTB, 8)
    b.I("s_add_u32", sRes, sRes, sT0)
    b.I("s_add_u32", sDst, sRes, hex(off["XB0"] + LS))
    for a in range(1, 4):
        b.I("s_add_u32", sT0, sW, a)
        b.I("s_and_b32", sT0, sT0, 3)
        b.I("s_mul_i32", sT0, sT0, 15360)
        b.I("s_add_u32", sT0, sT0, LDS_RED_F + (a - 1) * 5120)
        b.I("v_add_u32", vRw[a - 1], sT0, vL16)
    b.I("s_mul_i32", sT0, sW, 15360)
    b.I("s_add_u32", sT0, sT0, LDS_RED_F)
    b.I("v_add_u32", vRr, sT0, vL16)
    b.I("s_lshl_b32", sSt, sG, 12)
    b.I("s_lshl_b32", sT0, sJ, 9)
    b.I("s_add_u32", sSt, sSt, sT0)
    b.I("s_lshl_b32", sT0, sTB, 7)
    b.I("s_add_u32", sSt, sSt, sT0)
    b.I("s_add_u32", sSt, sSt, hex(off["STI0"] + LS))
    stat_addr(b)
    stamp(b, "g_pre")
    mem = []
    for s_ in range(GL, 9): mem += xops(s_)
    for a in (1, 2, 3, 0):
        for s_ in range(9, 12):
            mem.append(lambda a=a, s_=s_: (b.I("s_add_u32", sH9, sH, (s_ - 9) * 4096), b.I("buffer_load_dwordx4", XF[s_ % NB][a], vXa[a], WS, sH9, mods="offen sc1")))
    issued = 4 * GL
    for s_ in range(9):
        k = 0
        b.need(*XF[s_ % NB], *[slot(5 * s_ + fb) for fb in range(5)])
        for fb in range(5):
            for a in range(4):
                b.I("v_mfma_f32_16x16x32_bf16", ACC[a][fb], slot(5 * s_ + fb), XF[s_ % NB][a], (0 if s_ == 0 and a else ACC[a][fb]))
                if mem and k % EXP.get("gden", 4) == EXP.get("gden", 4) - 2 and (issued // 4 if issued < 36 else 9 + (issued - 36) % 3) - NB < s_:
                    mem.pop(0)(); issued += 1
                k += 1
        if s_ in (0, 5): stamp(b, f"g_s{s_}")
    pend = []
    NQ = EXP.get("npre", 20) - 8
    wq = wops(b, sWQ, range(0, NQ))
    early_q = EXP.get("eq", 1)
    for a in (1, 2, 3, 0):
        k = 0
        for s_ in range(9, 12):
            for fb in range(5):
                b.I("v_mfma_f32_16x16x32_bf16", ACC[a][fb], slot(5 * s_ + fb), XF[s_ % NB][a], ACC[a][fb])
                if mem and k % EXP.get("gtail", 3) == 1: mem.pop(0)()
                elif pend and k >= 3 and k % 2 == 1: pend.pop(0)()
                elif early_q and not mem and wq and a in (3, 0) and k % 2 == 0: wq.pop(0)()
                k += 1
        for op in pend: op()
        pend = [lambda fb=fb, a=a: b.I("ds_write_b128", vRw[a - 1], ACC[a][fb], mods=f"offset:{fb * 1024}") for fb in range(5)] if a else []
    assert not mem
    stamp(b, "g_mm")
    NQ = len(wq)
    for _ in range(NQ // 2): wq.pop(0)()
    b.wait(lg=0)
    b.barrier()
    for a in range(1, 4):
        for fb in range(5): b.I("ds_read_b128", ACC[a][fb], vRr, mods=f"offset:{(a - 1) * 5120 + fb * 1024}")
    for _ in range(NQ - NQ // 2): wq.pop(0)()
    for a in range(1, 4):
        for fb in range(5):
            for q in range(2): pk(b, "v_pk_add_f32", ACC[0][fb][2 * q:2 * q + 2], ACC[0][fb][2 * q:2 * q + 2], ACC[a][fb][2 * q:2 * q + 2])
    stamp(b, "g_red")
    b.I("s_cmp_eq_u32", sL, 1)
    b.I("s_cbranch_scc1", "FFN2_FINAL")
    snap = b.snapshot(); hist = list(b.hist)
    tag = resid_epi(b, ACC[0], RES, sDst, sSt)
    assert not wq
    def final():
        b.label("FFN2_FINAL")
        b.restore(snap); b.hist = hist
        b.I("s_lshl_b32", sT0, sG, 6)
        b.I("s_lshl_b32", sT1, sTB, 4)
        b.I("s_add_u32", sT0, sT0, sT1)
        b.I("s_mul_i32", sDst, sT0, 1280)
        b.I("s_mul_i32", sT0, sJ, 160)
        b.I("s_add_u32", sDst, sDst, sT0)
        if not EXP.get("wideout", 1):
            vo = V(VB + 8)
            b.I("v_and_b32", vt0, 15, vL)
            b.I("v_mul_u32_u24", vo, 1280, vt0)
            b.I("v_lshrrev_b32", vt0, 4, vL)
            b.I("v_lshl_add_u32", vo, vt0, 3, vo)
            resid_epi(b, ACC[0], RES, sDst, None, out_natural=vo)
            return
        LO = 65536
        vw, vr, vo = V(VB + 8), V(VB + 9), V(VB + 10)
        b.I("s_mul_i32", sT0, sW, 16 * 176)
        b.I("v_and_b32", vt0, 15, vL)
        b.I("v_mul_u32_u24", vw, 176, vt0)
        b.I("v_lshrrev_b32", vt1, 4, vL)
        b.I("v_lshl_add_u32", vw, vt1, 3, vw)
        b.I("v_add_u32", vw, sT0, vw)
        b.I("v_add_u32", vw, LO, vw)
        for fb in range(5):
            for q in range(2): b.I("v_cvt_pk_bf16_f32", RES[fb][q], ACC[0][fb][2 * q], ACC[0][fb][2 * q + 1])
            b.I("ds_write_b64", vw, RES[fb], mods=f"offset:{32 * fb}")
        b.I("v_mul_u32_u24", vt0, 6554, vL)
        b.I("v_lshrrev_b32", vt0, 16, vt0)
        b.I("v_mul_u32_u24", vt1, 10, vt0)
        b.I("v_sub_u32", vt1, vL, vt1)
        b.I("v_mul_u32_u24", vr, 176, vt0)
        b.I("v_lshl_add_u32", vr, vt1, 4, vr)
        b.I("v_add_u32", vr, sT0, vr)
        b.I("v_add_u32", vr, LO, vr)
        b.I("v_mul_u32_u24", vo, 1280, vt0)
        b.I("v_lshl_add_u32", vo, vt1, 4, vo)
        OB = [V(64 + 4 * i_, 4) for i_ in range(3)]
        b.wait(lg=0)
        for i_ in range(3): b.I("ds_read_b128", OB[i_], vr, mods=f"offset:{6 * 176 * i_}")
        for i_ in range(3):
            lim = 60 if i_ < 2 else 40
            b.I("v_cmp_gt_u32", "vcc", lim, vL)
            b.I("v_mov_b32", vt2, hex(OOB))
            b.I("v_cndmask_b32", vt3, vt2, vo, "vcc")
            b.I("buffer_store_dwordx4", OB[i_], vt3, OUT, sDst, mods="offen sc1")
            if i_ < 2: b.I("s_add_u32", sDst, sDst, 6 * 1280)
    return tag, final

def gen_fused(b):
    setup(b, "MAIN_END")
    b.I("s_mov_b32", sL, 0); b.I("s_mov_b32", sLO, 0)
    b.I("s_mov_b32", sGS, 0); b.I("s_mov_b32", sGT, 0)
    b.I("s_lshl_b32", sFG, sG, 8)
    b.I("s_add_u32", sFG, sFG, hex(off["FLAGS"]))
    b.I("s_mov_b32", sLoc, 0)
    xcd_publish(b)
    stamp(b, "start")
    b.I("s_lshl_b32", sT0, sJ, 2)
    b.I("s_add_u32", sT0, sT0, sW)
    b.I("s_mul_i32", S(57), sT0, 40960)
    b.I("s_add_u32", S(57), S(57), hex(off["WQP"]))
    b.I("s_mul_i32", sBX, sG, 81920)
    qkv_start(b)
    b.I("s_and_b32", sT0, sW, 1)
    b.I("s_lshl_b32", sT0, sT0, 1)
    b.I("s_lshr_b32", sT1, sW, 1)
    b.I("s_or_b32", sT0, sT0, sT1)
    b.I("s_lshl_b32", sT0, sT0, 8)
    b.I("s_mul_i32", sT1, sJ, 10240)
    b.I("s_add_u32", sT0, sT0, sT1)
    b.I("s_add_u32", sT0, sT0, sBX)
    b.I("s_add_u32", sP[8], sT0, hex(off["XB0"]))
    def after_table_loads():
        for op in wops(b, S(57), range(0, EXP.get("npre", 20))): op()
        for op in resid_ops(b, sP[8], RESID): op()
    tables(b, after_loads=after_table_loads)
    b.I("s_lshl_b32", sT0, sJ, 2)
    b.I("s_add_u32", sT0, sT0, sW)
    b.I("s_mul_i32", sWQ, sT0, 40960)
    b.I("s_add_u32", sWQ, sWQ, hex(off["WQP"]))
    b.I("s_mul_i32", sW1, sT0, 61440)
    b.I("s_add_u32", sW2, sW1, hex(off["W2P"]))
    b.I("s_add_u32", sW1, sW1, hex(off["W1P"]))
    b.I("s_mul_i32", sBX, sG, 81920)
    if EXP.get("hotw"):
        b.I("s_mul_i32", sWQ, sW, 61440)
        b.I("s_add_u32", sWQ, sWQ, hex(off["WQP"]))
        b.I("s_mov_b32", sW1, sWQ); b.I("s_mov_b32", sW2, sWQ)
    b.I("s_branch", "LAYER_REST")
    b.label("LAYER")
    b.clear_hist()
    xt = qkv_start(b)
    b.label("LAYER_REST")
    b.clear_hist()
    stamp(b, "layer")
    tag = qkv(b, xt)
    stamp(b, "qkv_end")
    if EXP.get("preA", 0):
        A2.attn_pre(b, "p", trailing_barrier=False, part="A")
        b.wait(lg=0)
    grid_arrive(b, tag, "g")
    attention(b)
    wo_tag = []
    S1W = 0 if (EXP.get("own", 0) or EXP.get("early", 0) or EXP.get("ow1", 0)) else 8
    group_sync(b, None, "s1", [lambda: wo_tag.append(wo_rest(b))] + wops(b, sW1, range(32, 32 + S1W)) + [lambda: oproj_init(b)])
    b.wait_vm_tag(wo_tag[0]); b.barrier()
    stamp(b, "s1_ok")
    tag = oproj(b)
    stamp(b, "opr_end")
    group_sync(b, tag, "s2", [])
    stamp(b, "s2_ok")
    tag = ffn1(b)
    stamp(b, "ff1_end")
    group_sync(b, tag, "s3", wops(b, sW2, range(EXP.get("nw2", 52), 60)) + [lambda: ffn2_init(b)])
    stamp(b, "s3_ok")
    tag, final = ffn2(b)
    stamp(b, "ff2_end")
    group_sync(b, tag, "s4", wops(b, sWQ, range(EXP.get("npre", 20) - 8, EXP.get("npre", 20))))
    stamp(b, "s4_ok")
    b.I("s_mov_b32", sL, 1)
    b.I("s_mov_b32", sLO, hex(LS))
    b.I("s_add_u32", sBX, sBX, hex(LS))
    if M.PROFILE: M.stamp_flush(b, 0)
    b.I("s_branch", "LAYER")
    final()
    if M.PROFILE:
        b.wait(vm=0); stamp(b, "ff2_end"); stamp(b, "end"); M.stamp_flush(b, 20)
    b.label("MAIN_END")
```

```python
from asmb import *
import layout as L
off = L.off
WS_BYTES = 268435456
OOB = 0x40000000

def srd(b, dst, lo, hi, size):
    b.I("s_mov_b32", dst[0], lo)
    b.I("s_and_b32", dst[1], hi, "0xffff")
    b.I("s_mov_b32", dst[2], hex(size))
    b.I("s_mov_b32", dst[3], "0x20000")

def unpack_sum(b, src, accA, accB, t0, t1):
    b.I("v_lshlrev_b32", t0, 16, src)
    b.I("v_and_b32", t1, "0xffff0000", src)
    b.I("v_add_f32", accA, accA, t0)
    b.I("v_add_f32", accB, accB, t1)

def code_prefetch(b, label, endlabel, nbytes, threads=256):
    per = (nbytes + 31) // 32
    per = (per + 255) // 256 * 256
    b.I("s_getpc_b64", S(70, 2))
    b.label("L0_PC")
    b.raw(f"  s_add_u32 s70, s70, ({label} - L0_PC) & 0xffffffff")
    b.raw(f"  s_addc_u32 s71, s71, 0")
    b.I("s_lshr_b32", S(72), S(2), 3)
    b.I("s_mul_i32", S(72), S(72), per)
    b.I("v_lshlrev_b32", V(58), 2, V(0))
    b.I("v_add_u32", V(58), S(72), V(58))
    step = threads * 4
    n = (per + step - 1) // step
    for q in range(n):
        if q: b.I("v_add_u32", V(58), step, V(58))
        b.raw(f"  v_min_u32 v57, {endlabel} - {label} - 4, v58")
        b.I("global_load_dword", V(59), V(57), S(70, 2))
        b.vm.pop()

FULL_LINE = True
ST_SC = ""
def gen_l0(b, prefetch=None):
    P_X, P_WQ, P_WK, P_WV, P_WO, P_W1, P_W2, P_WS = S(36, 2), S(38, 2), S(40, 2), S(42, 2), S(44, 2), S(46, 2), S(48, 2), S(50, 2)
    WS = S(8, 4); SRC = S(12, 4)
    sRS, sG0, sNG, sN0, sOff = S(16), S(17), S(18), S(19), S(20)
    sA, sP, sQ, sGL0, sBase, sM, sDv, sHS, sLS, sSwap, sCs, sCB, sCH, sKr, sT, sMask = (S(i) for i in range(21, 37 - 0)) if False else [S(i) for i in (21, 22, 23, 24, 25, 26, 27, 28, 29, 30, 31, 32, 33, 34, 35, 52)]
    b.I("s_cmp_ge_u32", S(2), 256)
    b.I("s_cbranch_scc1", "L0_end")
    b.I("s_load_dwordx2", P_X, S(0, 2), 0)
    b.I("s_load_dwordx2", P_WQ, S(0, 2), 8)
    b.I("s_load_dwordx2", P_WK, S(0, 2), 16)
    b.I("s_load_dwordx2", P_WV, S(0, 2), 24)
    b.I("s_load_dwordx2", P_WO, S(0, 2), 32)
    b.I("s_load_dwordx2", P_W1, S(0, 2), 48)
    b.I("s_load_dwordx2", P_W2, S(0, 2), 64)
    b.I("s_load_dwordx2", P_WS, S(0, 2), 96)
    if prefetch: code_prefetch(b, *prefetch)
    lane = V(1); cp = V(2); slot = V(3)
    b.I("v_and_b32", cp, 31, V(0))
    b.I("v_lshrrev_b32", slot, 5, V(0))
    b.wait(lg=0)
    srd(b, WS, P_WS[0], P_WS[1], WS_BYTES)
    XS = S(56, 4)
    srd(b, XS, P_X[0], P_X[1], 2048 * 1280)
    wv_id = S(53)
    vt, vgg, vxo, vxd = V(4), V(5), V(6), V(7)
    b.I("v_lshrrev_b32", V(8), 6, V(0))
    b.I("v_and_b32", vt, 7, V(0))
    b.I("v_readfirstlane_b32", wv_id, V(8))
    b.I("v_bfe_u32", vgg, V(0), 3, 3)
    b.I("s_mul_i32", sT, S(2), 8 * 1280)
    b.I("v_mul_u32_u24", vxo, 1280, vt)
    b.I("v_lshl_add_u32", vxo, vgg, 4, vxo)
    b.I("s_lshl_b32", sOff, wv_id, 7)
    b.I("s_add_u32", sOff, sOff, sT)
    XL = [V(64 + 4 * q, 4) for q in range(3)]
    v_oob = V(9)
    b.I("s_cmp_lt_u32", wv_id, 2)
    b.I("s_cselect_b32", S(54), 0, hex(OOB))
    for q in range(3):
        if q == 2:
            b.I("v_add_u32", v_oob, S(54), vxo)
            b.I("buffer_load_dwordx4", XL[q], v_oob, XS, sOff, mods=f"offen offset:{q*512}")
        else:
            b.I("buffer_load_dwordx4", XL[q], vxo, XS, sOff, mods=f"offen offset:{q*512}")
    def setp(name, base, rs, size, strips_shift, ng, a, P, Q, B0, Dv, HS, LS, swap, cs, CB, CK, CH, w2=False):
        b.label(name)
        b.I("s_sub_u32", sT, S(2), base)
        b.I("s_lshr_b32", sN0, sT, strips_shift)
        b.I("s_lshl_b32", sN0, sN0, 6)
        b.I("s_and_b32", sKr, sT, (1 << strips_shift) - 1)
        b.I("s_mul_i32", sG0, sKr, ng)
        b.I("s_mov_b32", sNG, ng)
        b.I("s_mov_b32", sRS, rs[0])
        srd(b, SRC, rs[1][0], rs[1][1], size)
        b.I("s_mov_b32", sA, a); b.I("s_mov_b32", sP, P); b.I("s_mov_b32", sQ, Q)
        b.I("s_mov_b32", sMask, (1 << a) - 1)
        if w2:
            b.I("s_and_b32", sGL0, sKr, 1)
            b.I("s_mul_i32", sGL0, sGL0, 24)
            b.I("s_lshr_b32", sBase, sKr, 1)
            b.I("s_mul_i32", sBase, sBase, 61440)
            b.I("s_add_u32", sBase, sBase, hex(B0))
        else:
            b.I("s_mov_b32", sGL0, sG0)
            b.I("s_mov_b32", sBase, hex(B0))
        b.I("s_mov_b32", sDv, Dv); b.I("s_mov_b32", sM, -(-65536 // Dv))
        b.I("s_mov_b32", sHS, HS); b.I("s_mov_b32", sLS, LS)
        b.I("s_mov_b32", sSwap, swap); b.I("s_mov_b32", sCs, cs)
        b.I("s_mul_i32", sCB, sKr, CK)
        b.I("s_add_u32", sCB, sCB, hex(CB))
        b.I("s_mov_b32", sCH, CH)
        b.I("s_branch", "L0_common")
    b.I("s_cmp_lt_u32", S(2), 40);  b.I("s_cbranch_scc1", "L0_wq")
    b.I("s_cmp_lt_u32", S(2), 80);  b.I("s_cbranch_scc1", "L0_wo")
    b.I("s_cmp_lt_u32", S(2), 176); b.I("s_cbranch_scc1", "L0_w1")
    b.I("s_branch", "L0_w2")
    setp("L0_wq", 0, (1280, P_WQ), 640 * 1280, 2, 20, 1, 1024, 512, off["WQP"], 20, 40960, 256, 1, 1, off["CSQ"], 4096, 128)
    setp("L0_wo", 40, (1280, P_WO), 640 * 1280, 2, 20, 0, 1280, 0, off["WOP"], 80, 102400, 256, 0, 0, 0, 0, 0)
    setp("L0_w1", 80, (3072, P_W1), 640 * 3072, 2, 20, 2, 3072, 256, off["W1P"], 48, 61440, 1024, 0, 1, off["CS1"], 6144, 192)
    setp("L0_w2", 176, (1280, P_W2), 1536 * 1280, 3, 24, 2, 5120, 256, off["W2P"], 80, 245760, 1024, 0, 0, 0, 0, 0, w2=True)
    b.label("L0_common")
    vsrc = V(10)
    b.I("v_add_u32", vsrc, sG0, slot)
    b.I("s_lshl_b32", sT, sRS, 3)
    b.I("v_mul_lo_u32", vsrc, vsrc, sT)
    b.I("s_lshl_b32", sT, sN0, 1)
    b.I("v_lshl_add_u32", vsrc, cp, 2, vsrc)
    b.I("v_add_u32", vsrc, sT, vsrc)
    Lr = [[V(80 + 8 * it + e) for e in range(8)] for it in range(3)]
    b.I("s_mov_b32", sOff, 0)
    for it in range(3):
        for e in range(8):
            b.I("buffer_load_dword", Lr[it][e], vsrc, SRC, sOff, mods="offen")
            if e < 7: b.I("s_add_u32", sOff, sOff, sRS)
        if it < 2:
            b.I("s_mul_i32", sT, sRS, 57)
            b.I("s_add_u32", sOff, sOff, sT)

    KL = [[V(104 + 8 * it + e) for e in range(8)] for it in range(3)]
    vka = V(60, 2); vkv = V(62)
    snap_kv = b.snapshot()
    b.I("s_cmp_lt_u32", S(2), 40); b.I("s_cbranch_scc1", "L0_nokvld")
    b.I("s_cmp_ge_u32", S(2), 72); b.I("s_cbranch_scc1", "L0_nokvld")
    b.I("s_sub_u32", S(66), S(2), 40)
    b.I("s_lshr_b32", S(68), S(66), 2)
    b.I("s_and_b32", S(66), S(66), 3)
    b.I("s_mul_i32", S(67), S(66), 20)
    b.I("v_cmp_gt_u32", "vcc", 10, cp)
    b.I("v_mov_b32", V(25), P_WV[0]); b.I("v_mov_b32", V(26), P_WK[0])
    b.I("v_cndmask_b32", vka[0], V(25), V(26), "vcc")
    b.I("v_mov_b32", V(25), P_WV[1]); b.I("v_mov_b32", V(26), P_WK[1])
    b.I("v_cndmask_b32", vka[1], V(25), V(26), "vcc")
    b.I("v_subrev_u32", V(25), 10, cp)
    b.I("v_cndmask_b32", V(25), V(25), cp, "vcc")
    b.I("v_cmp_gt_u32", "vcc", 20, cp)
    b.I("v_cndmask_b32", V(25), 0, V(25), "vcc")
    b.I("v_add_u32", V(26), S(67), slot)
    b.I("v_mul_u32_u24", V(26), 320, V(26))
    b.I("v_lshl_add_u32", V(26), V(25), 2, V(26))
    b.I("v_add_co_u32", vka[0], "vcc", vka[0], V(26))
    b.I("v_addc_co_u32", vka[1], "vcc", 0, vka[1], "vcc")
    for it in range(3):
        if it == 2:
            b.I("v_cmp_gt_u32", "vcc", 4, slot)
            b.I("v_mov_b32", V(25), 2560)
            b.I("v_cndmask_b32", V(25), 0, V(25), "vcc")
            b.I("v_add_co_u32", vka[0], "vcc", vka[0], V(25))
            b.I("v_addc_co_u32", vka[1], "vcc", 0, vka[1], "vcc")
        elif it == 1:
            b.I("v_add_co_u32", vka[0], "vcc", 2560, vka[0])
            b.I("v_addc_co_u32", vka[1], "vcc", 0, vka[1], "vcc")
        for e in range(8): b.I("global_load_dword", KL[it][e], vka, "off", mods=f"offset:{40 * e}")
    b.label("L0_nokvld")
    b.restore(snap_kv)
    b.clear_hist()

    def colmap(vn, vhi, vlo_hi, vlo_lo, t0, t1):
        b.I("v_mul_u32_u24", vhi, sM, vn)
        b.I("v_lshrrev_b32", vhi, 16, vhi)
        b.I("v_mul_u32_u24", t0, sDv, vhi)
        b.I("v_sub_u32", t0, vn, t0)
        b.I("v_lshrrev_b32", vlo_hi, 4, t0)
        b.I("v_and_b32", vlo_lo, 15, t0)
        b.I("v_and_b32", t0, 4, vlo_lo)
        b.I("v_and_b32", t1, 8, vlo_lo)
        b.I("v_lshlrev_b32", t0, 1, t0)
        b.I("v_lshrrev_b32", t1, 1, t1)
        b.I("v_or_b32", t0, t0, t1)
        b.I("v_and_b32", t1, 3, vlo_lo)
        b.I("v_or_b32", t0, t0, t1)
        b.I("s_cmp_eq_u32", sSwap, 1)
        b.I("s_cselect_b64", "vcc", -1, 0)
        b.I("v_cndmask_b32", vlo_lo, vlo_lo, t0, "vcc")
    vn, vhi, vlh, vll, t0, t1, vdb = V(11), V(12), V(13), V(14), V(15), V(16), V(17)
    b.I("v_lshlrev_b32", vn, 1, cp)
    b.I("v_add_u32", vn, sN0, vn)
    colmap(vn, vhi, vlh, vll, t0, t1)
    b.I("v_mul_lo_u32", vdb, vhi, sHS)
    b.I("v_mul_lo_u32", t0, vlh, sLS)
    b.I("v_add_u32", vdb, vdb, t0)
    b.I("v_lshl_add_u32", vdb, vll, 4, vdb)
    b.I("v_add_u32", vdb, sBase, vdb)
    sGrp = S(55)
    b.I("s_lshr_b32", sGrp, S(2), 3)
    b.I("s_mul_i32", sGrp, sGrp, 81920)
    b.I("s_and_b32", sT, S(2), 7)
    b.I("s_lshl_b32", sT, sT, 7)
    b.I("s_add_u32", sGrp, sGrp, sT)
    b.I("s_add_u32", sGrp, sGrp, hex(off["XB0"]))
    b.I("s_lshl_b32", sT, wv_id, 13)
    b.I("s_add_u32", sGrp, sGrp, sT)
    b.I("v_lshlrev_b32", vxd, 10, vgg)
    b.I("v_lshl_add_u32", vxd, vt, 4, vxd)
    b.I("v_add_u32", v_oob, S(54), vxd)
    ssum, ssq = V(18), V(19)
    b.I("v_mov_b32", ssum, 0); b.I("v_mov_b32", ssq, 0)
    vOnes = V(27)
    b.I("v_mov_b32", vOnes, "0x3f803f80")
    for q in range(3):
        b.I("buffer_store_dwordx4", XL[q], (v_oob if q == 2 else vxd), WS, sGrp, mods="offen " + ST_SC)
        if q < 2: b.I("s_add_u32", sGrp, sGrp, 32768)
        for e in range(4):
            b.I("v_dot2_f32_bf16", ssum, XL[q][e], vOnes, ssum)
            b.I("v_dot2_f32_bf16", ssq, XL[q][e], XL[q][e], ssq)
    for r in (ssum, ssq):
        b.I("v_add_f32_dpp", r, r, r, mods="row_ror:8 row_mask:0xf bank_mask:0xf")
        b.I("v_mov_b32", t0, r)
        b.I("v_permlane16_swap_b32", r, t0)
        b.I("v_add_f32", r, r, t0)
        b.I("v_mov_b32", t0, r)
        b.I("v_permlane32_swap_b32", r, t0)
        b.I("v_add_f32", r, r, t0)
    b.I("v_lshlrev_b32", t0, 3, vt)
    b.I("s_lshl_b32", sT, wv_id, 6)
    b.I("v_add_u32", t0, sT, t0)
    b.I("ds_write_b64", t0, V(18, 2), mods="offset:4096")
    csA, csB = V(20), V(21)
    b.I("v_mov_b32", csA, 0); b.I("v_mov_b32", csB, 0)
    vg, vad, vval = V(22), V(23), V(24)
    U = V(28, 4); U2 = V(32, 4)
    selLo, selHi = S(60), S(61)
    b.I("s_mov_b32", selLo, "0x05040100"); b.I("s_mov_b32", selHi, "0x07060302")
    for it in range(3):
        b.I("v_add_u32", vg, 8 * it, slot)
        b.I("v_cmp_gt_u32", "vcc", sNG, vg)
        b.I("v_add_u32", vg, sGL0, vg)
        b.I("v_lshrrev_b32", t0, sA, vg)
        b.I("v_mul_lo_u32", t0, t0, sP)
        b.I("v_and_b32", t1, sMask, vg)
        b.I("v_mul_lo_u32", t1, t1, sQ)
        b.I("v_add3_u32", vad, vdb, t0, t1)
        b.I("v_mov_b32", t0, hex(OOB))
        b.I("v_cndmask_b32", vad, t0, vad, "vcc")
        for q in range(4):
            b.I("v_perm_b32", U[q], Lr[it][2 * q + 1], Lr[it][2 * q], selLo)
            b.I("v_perm_b32", U2[q], Lr[it][2 * q + 1], Lr[it][2 * q], selHi)
        if FULL_LINE:
            vad2 = V(26)
            b.I("v_add_u32", vad2, 16, vad)
            for q in range(4): b.I("v_permlane32_swap_b32", U[q], U2[q])
            b.I("v_permlane32_swap_b32", vad, vad2)
            b.I("buffer_store_dwordx4", U, vad, WS, 0, mods="offen " + ST_SC)
            b.I("buffer_store_dwordx4", U2, vad2, WS, 0, mods="offen " + ST_SC)
        else:
            b.I("buffer_store_dwordx4", U, vad, WS, 0, mods="offen " + ST_SC)
            b.I("buffer_store_dwordx4", U2, vad, WS, 0, mods="offen offset:16 " + ST_SC)
        b.I("v_mov_b32", t0, "0x00003f80"); b.I("v_mov_b32", t1, "0x3f800000")
        b.I("v_cndmask_b32", t0, 0, t0, "vcc"); b.I("v_cndmask_b32", t1, 0, t1, "vcc")
        for e in range(8):
            b.I("v_dot2_f32_bf16", csA, Lr[it][e], t0, csA)
            b.I("v_dot2_f32_bf16", csB, Lr[it][e], t1, csB)
    b.I("v_lshlrev_b32", t0, 8, slot)
    b.I("v_lshl_add_u32", t0, cp, 3, t0)
    b.I("ds_write_b64", t0, V(20, 2))
    snap_kv2 = b.snapshot()
    b.I("s_cmp_lt_u32", S(2), 40); b.I("s_cbranch_scc1", "L0_nokv1")
    b.I("s_cmp_ge_u32", S(2), 72); b.I("s_cbranch_scc1", "L0_nokv1")
    b.wait(vm=0)
    sKq, sG0k = S(66), S(67)
    vcc_, vqq, vwl, vm_ = V(52), V(53), V(54), V(55)
    kdb = V(56)
    b.I("v_cmp_le_u32", "vcc", 10, cp)
    b.I("v_cndmask_b32", vwl, 0, 2, "vcc")
    b.I("v_cndmask_b32", t0, 0, 10, "vcc")
    b.I("v_sub_u32", vcc_, cp, t0)
    b.I("v_lshrrev_b32", vqq, 1, vcc_)
    b.I("v_cmp_le_u32", "vcc", 3, vqq)
    b.I("v_cndmask_b32", t0, 0, 1, "vcc")
    b.I("v_add_u32", vwl, vwl, t0)
    b.I("v_mul_u32_u24", t0, 3, t0)
    b.I("v_sub_u32", t0, vqq, t0)
    b.I("v_lshlrev_b32", t0, 2, t0)
    b.I("v_and_b32", t1, 1, vcc_)
    b.I("v_lshl_add_u32", t0, t1, 1, t0)
    b.I("v_add_u32", vm_, 20, t0)
    b.I("v_cmp_gt_u32", S(64, 2), 20, cp)
    b.I("v_mul_u32_u24", kdb, 40960, vwl)
    b.I("v_lshl_add_u32", kdb, vm_, 4, kdb)
    b.I("v_add_u32", kdb, hex(off["WQP"]), kdb)
    b.I("v_mov_b32", csA, 0); b.I("v_mov_b32", csB, 0)
    for it in range(3):
        b.I("v_add_u32", vg, 8 * it, slot)
        b.I("v_cmp_gt_u32", "vcc", 20, vg)
        b.I("s_and_b64", "vcc", "vcc", S(64, 2))
        b.I("v_add_u32", vg, sG0k, vg)
        b.I("v_lshrrev_b32", t0, 1, vg)
        b.I("v_lshlrev_b32", t0, 10, t0)
        b.I("v_and_b32", t1, 1, vg)
        b.I("v_lshlrev_b32", t1, 9, t1)
        b.I("v_add3_u32", vad, kdb, t0, t1)
        b.I("v_mov_b32", t0, hex(OOB))
        b.I("v_cndmask_b32", vad, t0, vad, "vcc")
        for q in range(4):
            b.I("v_perm_b32", U[q], KL[it][2 * q + 1], KL[it][2 * q], selLo)
            b.I("v_perm_b32", U2[q], KL[it][2 * q + 1], KL[it][2 * q], selHi)
        b.I("s_mul_i32", sOff, S(68), 163840)
        b.I("buffer_store_dwordx4", U, vad, WS, sOff, mods="offen")
        b.I("buffer_store_dwordx4", U2, vad, WS, sOff, mods="offen offset:16")
        b.I("v_mov_b32", t0, "0x00003f80"); b.I("v_mov_b32", t1, "0x3f800000")
        b.I("v_cndmask_b32", t0, 0, t0, "vcc"); b.I("v_cndmask_b32", t1, 0, t1, "vcc")
        for e in range(8):
            b.I("v_dot2_f32_bf16", csA, KL[it][e], t0, csA)
            b.I("v_dot2_f32_bf16", csB, KL[it][e], t1, csB)
    b.I("v_lshlrev_b32", t0, 8, slot)
    b.I("v_lshl_add_u32", t0, cp, 3, t0)
    b.I("ds_write_b64", t0, V(20, 2), mods="offset:4608")
    b.label("L0_nokv1")
    b.restore(snap_kv2)
    b.clear_hist(); b.nop(2)
    b.wait(lg=0)
    b.barrier()
    b.I("v_cmp_gt_u32", "vcc", 64, V(0))
    b.I("s_and_saveexec_b64", S(62, 2), "vcc")
    b.I("s_cbranch_execz", "L0_nocs")
    SW = [V(36 + 2 * w, 2) for w in range(4)]
    b.I("v_lshlrev_b32", t0, 3, vt)
    for w in range(4): b.I("ds_read_b64", SW[w], t0, mods=f"offset:{4096 + 64 * w}")
    for c in range(2):
        b.I("v_add_f32", SW[0][c], SW[0][c], SW[1][c])
        b.I("v_add_f32", SW[2][c], SW[2][c], SW[3][c])
        b.I("v_add_f32", SW[0][c], SW[0][c], SW[2][c])
    b.I("v_cmp_eq_u32", "vcc", 0, vgg)
    b.I("v_cndmask_b32", SW[0][0], 0, SW[0][0], "vcc")
    b.I("v_cndmask_b32", SW[0][1], 0, SW[0][1], "vcc")
    b.I("s_lshr_b32", sT, S(2), 3)
    b.I("s_lshl_b32", sT, sT, 12)
    b.I("s_and_b32", sOff, S(2), 7)
    b.I("s_lshl_b32", sOff, sOff, 6)
    b.I("s_add_u32", sT, sT, sOff)
    b.I("s_add_u32", sT, sT, hex(off["STI0"]))
    b.I("v_lshlrev_b32", t0, 9, vgg)
    b.I("v_lshl_add_u32", t0, vt, 3, t0)
    b.I("buffer_store_dwordx2", SW[0], t0, WS, sT, mods="offen")
    b.I("s_cmp_eq_u32", sCs, 0)
    b.I("s_cbranch_scc1", "L0_nocs")
    CW = [V(44 + s_) for s_ in range(8)]
    b.I("v_lshlrev_b32", t0, 2, V(0))
    for s_ in range(8): b.I("ds_read_b32", CW[s_], t0, mods=f"offset:{256 * s_}")
    b.I("v_add_u32", vn, sN0, V(0))
    colmap(vn, vhi, vlh, vll, t0, t1)
    for s_ in range(1, 8): b.I("v_add_f32", CW[0], CW[0], CW[s_])
    b.I("v_mul_lo_u32", vad, vhi, sCH)
    b.I("v_lshl_add_u32", vad, vlh, 6, vad)
    b.I("v_lshl_add_u32", vad, vll, 2, vad)
    b.I("buffer_store_dword", CW[0], vad, WS, sCB, mods="offen")
    b.label("L0_nocs")
    b.clear_hist(); b.nop(4)
    b.I("s_mov_b64", "exec", -1)
    b.I("s_cmp_ge_u32", S(2), 16)
    b.I("s_cbranch_scc1", "L0_noflag")
    Z = V(28, 4)
    for e in range(4): b.I("v_mov_b32", Z[e], 0)
    b.I("v_lshlrev_b32", t0, 4, V(0))
    b.I("s_lshl_b32", sT, S(2), 12)
    b.I("s_add_u32", sT, sT, hex(off["FLAGS"]))
    b.I("buffer_store_dwordx4", Z, t0, WS, sT, mods="offen")
    b.label("L0_noflag")
    b.I("s_cmp_lt_u32", S(2), 40); b.I("s_cbranch_scc1", "L0_end")
    b.I("s_cmp_ge_u32", S(2), 72); b.I("s_cbranch_scc1", "L0_end")
    S8 = [V(36 + 2 * s_, 2) for s_ in range(8)]
    b.I("v_lshlrev_b32", t0, 3, cp)
    for s_ in range(8): b.I("ds_read_b64", S8[s_], t0, mods=f"offset:{4608 + 256 * s_}")
    for s_ in range(1, 8):
        b.I("v_add_f32", S8[0][0], S8[0][0], S8[s_][0])
        b.I("v_add_f32", S8[0][1], S8[0][1], S8[s_][1])
    b.I("v_lshlrev_b32", vad, 7, V(54))
    b.I("v_lshl_add_u32", vad, V(55), 2, vad)
    b.I("v_cmp_gt_u32", "vcc", 20, V(0))
    b.I("v_mov_b32", t0, hex(OOB))
    b.I("v_cndmask_b32", vad, t0, vad, "vcc")
    b.I("s_lshl_b32", sT, S(66), 12)
    b.I("s_add_u32", sT, sT, hex(off["CSQ"]))
    b.I("s_lshl_b32", sOff, S(68), 9)
    b.I("s_add_u32", sT, sT, sOff)
    b.I("buffer_store_dwordx2", S8[0], vad, WS, sT, mods="offen")
    b.label("L0_end")
```

```python
from asmb import *
import layout as L
import k_main as M
from k_main import *

LDS_Q = 86016
LDS_PART = 86016
LDS_FLAG = TAB + 2560
LDS_MAX = 86016

def standin_fold(b, q, m, t0, t1, t2):
    b.I("v_sub_f32", t0, 0, m)
    b.I("v_and_b32", t1, "0xffff0000", t0)
    b.I("v_sub_f32", t0, t0, t1)
    b.I("v_and_b32", t2, "0xffff0000", t0)
    b.I("v_sub_f32", t0, t0, t2)
    b.I("v_lshrrev_b32", t1, 16, t1)
    b.I("v_or_b32", t1, t1, t2)
    b.I("v_lshrrev_b32", t0, 16, t0)
    b.I("v_cmp_gt_u32", "vcc", 32, vL)
    b.I("v_cndmask_b32", q[0], t1, q[0], "vcc")
    b.I("v_cndmask_b32", q[1], t0, q[1], "vcc")

def attn_pre(b, uid, trailing_barrier=True, part="AB"):
    va = V(VB); vb, vb2 = V(VB + 3), V(VB + 4)
    if "A" in part:
        km = V(64, 4); kt = V(68, 2); Sx = [V(72, 16), V(88, 16)]
        va = V(VB)
        b.I("v_add_u32", va, LDS_KVIMG, vL16)
        b.I("ds_read_b128", km, va)
        b.I("v_lshlrev_b32", vt0, 3, vL)
        b.I("v_add_u32", vt0, LDS_KVIMG + 1024, vt0)
        b.I("ds_read_b64", kt, vt0)
        b.I("v_cmp_gt_u32", "vcc", 32, vL)
        for th in range(2):
            for e in range(2): b.I("v_cndmask_b32", QT[th][e], 0, QT[th][e], "vcc")
        for th in range(2): b.I("v_mfma_f32_32x32x16_bf16", Sx[th], km, QM[th], 0)
        for th in range(2): b.I("v_mfma_f32_32x32x8_bf16", Sx[th], kt, QT[th], Sx[th])
        for th in range(2):
            m = V(VB + 1 + th)
            b.I("v_max3_f32", m, Sx[th][0], Sx[th][1], Sx[th][2])
            for i in range(3, 15, 2): b.I("v_max3_f32", m, m, Sx[th][i], Sx[th][i + 1])
            b.I("v_max_f32", m, m, Sx[th][15])
            b.I("v_mov_b32", vt0, m)
            b.I("v_permlane32_swap_b32", m, vt0)
            b.I("v_max_f32", m, m, vt0)
            standin_fold(b, QT[th], m, vt0, vt1, vt2)
        vb, vb2 = V(VB + 3), V(VB + 4)
        b.I("v_add_u32", vb, LDS_Q, vL16)
        b.I("v_lshlrev_b32", vb2, 3, vL)
        b.I("v_add_u32", vb2, LDS_Q + 1024, vb2)
        b.I("s_lshl_b32", sT0, sW, 12)
        b.I("v_add_u32", va, sT0, vb)
        b.I("v_add_u32", vt1, sT0, vb2)
        for th in range(2):
            b.I("ds_write_b128", va, QM[th], mods=f"offset:{2048 * th}")
            b.I("ds_write_b64", vt1, QT[th], mods=f"offset:{2048 * th}")
    if part == "AB":
        b.wait(lg=0)
        b.barrier()
    if "B" in part:
        for hd in range(4):
            if hd or part == "B":
                b.I("s_add_u32", sT0, sW, hd)
                b.I("s_and_b32", sT0, sT0, 3)
                b.I("s_lshl_b32", sT0, sT0, 12)
                b.I("v_add_u32", va, sT0, vb)
                b.I("v_add_u32", vt1, sT0, vb2)
            for th in range(2):
                b.I("ds_read_b128", QA[2 * hd + th], va, mods=f"offset:{2048 * th}")
                b.I("ds_read_b64", QB[2 * hd + th], vt1, mods=f"offset:{2048 * th}")
        b.wait(lg=0)
        if trailing_barrier: b.barrier()


QA = [V(128 + 4 * a, 4) for a in range(8)]
QB = [V(160 + 2 * a, 2) for a in range(8)]
KV2 = [dict(km=V(64 + 16 * p, 4), kt=V(68 + 16 * p, 2), v=[V(72 + 16 * p, 4), V(76 + 16 * p, 4)]) for p in range(2)]
SX = [V(96, 16), V(112, 16)]
PP = [V(176, 8), V(184, 8)]
OA = [A(16 * a, 16) for a in range(8)]

def attn_main(b, uid, sc="sc1", hook=None, fused=False, on_run=None):
    vKt, vV = V(VB), V(VB + 1)
    sKV, sOff, sCnt, sRetry = sP[0], sP[1], sP[2], sP[3]
    b.I("s_add_u32", sKV, sLO, hex(off["KV0"]))
    b.I("s_mul_i32", sT0, sW, 16 * 3072)
    b.I("s_add_u32", sKV, sKV, sT0)
    b.I("v_lshlrev_b32", vKt, 3, vL)
    b.I("v_add_u32", vKt, 1024, vKt)
    b.I("v_and_b32", vt0, 31, vL)
    b.I("v_lshrrev_b32", vt2, 5, vL)
    b.I("v_mul_u32_u24", vt2, 384, vt2)
    b.I("v_lshl_add_u32", vV, vt0, 4, vt2)
    b.I("v_add_u32", vV, 1536, vV)
    b.I("v_mov_b32", vt1, hex(OOB))
    b.I("v_cmp_ge_u32", "vcc", 20, vt0)
    b.I("v_cndmask_b32", vV, vt1, vV, "vcc")
    def loadk(p):
        b.I("buffer_load_dwordx4", KV2[p]["km"], vL16, WS, sOff, mods="offen " + sc)
        b.I("buffer_load_dwordx2", KV2[p]["kt"], vKt, WS, sOff, mods="offen " + sc)
    def loadv(p):
        b.I("buffer_load_dwordx4", KV2[p]["v"][0], vV, WS, sOff, mods="offen " + sc)
        b.I("buffer_load_dwordx4", KV2[p]["v"][1], vV, WS, sOff, mods="offen offset:768 " + sc)
    def qk_main(a, p): b.I("v_mfma_f32_32x32x16_bf16", SX[a % 2], KV2[p]["km"], QA[a], 0)
    def qk_tail(a, p): b.I("v_mfma_f32_32x32x8_bf16", SX[a % 2], KV2[p]["kt"], QB[a], SX[a % 2])
    def pv(a, p, mf): b.I("v_mfma_f32_32x32x16_bf16", OA[a], KV2[p]["v"][mf], PP[a % 2][4 * mf:4 * mf + 4], OA[a])
    b.I("s_mov_b32", sRetry, 0)
    if not fused:
        for a in range(8):
            for i in range(16): b.I("v_accvgpr_write_b32", OA[a][i], 0)
    b.label(f"ATT_RUN_{uid}")
    b.clear_hist(); b.nop(2)
    if not fused: stamp(b, "run")
    if on_run: on_run()
    b.I("s_mov_b32", sOff, sKV)
    loadk(0); loadv(0)
    b.I("s_add_u32", sOff, sOff, 3072)
    loadk(1)
    for i in range(8): b.I("v_mov_b32", PP[1][i], 0)
    for e in range(8): b.I("v_mov_b32", V(KV2[1]["v"][0].i + e), 0)
    for i in range(12, 16): b.I("v_mov_b32", SX[1][i], 0)
    qk_main(0, 0)
    b.nop(10)
    qk_tail(0, 0)
    b.nop(12)
    stamp(b, "loop_in")
    b.I("s_mov_b32", sCnt, 8)
    b.align(6)
    b.label(f"ATT_LOOP_{uid}")
    b.clear_hist()
    b.vm = [(("kv", 9), KV2[0]["v"][0].regs()), (("kv", 9), KV2[0]["v"][1].regs()),
            (("kv", 8), KV2[1]["km"].regs()), (("kv", 8), KV2[1]["kt"].regs())]
    entry = [e[1] for e in b.vm]
    def step(a, p, extra):
        s_ = SX[a % 2]; P_ = PP[a % 2]; sprev = SX[(a + 1) % 2]; Pprev = PP[(a + 1) % 2]
        an, pn = (a + 1) % 8, (p if a < 7 else 1 - p)
        ap, pp_ = (a - 1) % 8, (p if a > 0 else 1 - p)
        ex = lambda i: b.I("v_exp_f32", s_[i], s_[i])
        cv = lambda i: b.I("v_cvt_pk_bf16_f32", P_[i], s_[2 * i], s_[2 * i + 1])
        b.I("v_cvt_pk_bf16_f32", Pprev[6], sprev[12], sprev[13])
        ex(0)
        b.I("v_cvt_pk_bf16_f32", Pprev[7], sprev[14], sprev[15])
        ex(1)
        qk_main(an, pn)
        ex(2); ex(3); ex(4); ex(5); cv(0); cv(1)
        pv(ap, pp_, 0)
        for x in extra.get(0, []): x()
        ex(6); ex(7); ex(8); ex(9)
        qk_tail(an, pn)
        cv(2); ex(10); ex(11); cv(3); ex(12); ex(13); cv(4)
        pv(ap, pp_, 1)
        ex(14); ex(15); cv(5)
        for x in extra.get(1, []): x()
    for p in range(2):
        for a in range(8):
            extra = {}
            if a == 1: extra = {0: [lambda p=p: loadv(1 - p)], 1: [lambda: b.I("s_add_u32", sOff, sOff, 3072)]}
            if a == 7: extra = {1: [lambda p=p: loadk(p)]}
            if hook: hook(p, a, extra)
            step(a, p, extra)
    b.I("s_sub_u32", sCnt, sCnt, 1)
    b.I("s_cmp_lg_u32", sCnt, 0)
    b.I("s_cbranch_scc1", f"ATT_LOOP_{uid}")
    b.loop_states = (entry, [e[1] for e in b.vm])
    stamp(b, "loop_out")
    b.I("v_cvt_pk_bf16_f32", PP[1][6], SX[1][12], SX[1][13])
    b.I("v_cvt_pk_bf16_f32", PP[1][7], SX[1][14], SX[1][15])
    pv(7, 1, 0); pv(7, 1, 1)
    b.wait(vm=0)
    stamp(b, "drain")
    vR = V(VB + 2)
    b.barrier()
    for hd in range(1, 4):
        b.I("s_add_u32", sT0, sW, hd)
        b.I("s_and_b32", sT0, sT0, 3)
        b.I("s_mul_i32", sT0, sT0, 18432)
        b.I("s_add_u32", sT0, sT0, LDS_PART + (hd - 1) * 6144)
        b.I("v_add_u32", vR, sT0, vL16)
        for th in range(2):
            for c in range(3): b.I("ds_write_b128", vR, OA[2 * hd + th][4 * c:4 * c + 4], mods=f"offset:{th * 3072 + c * 1024}")
    OO = [V(192, 12), V(204, 12)]
    TT = [V(64, 12), V(76, 12), V(88, 12)]
    for th in range(2):
        for i in range(12): b.I("v_accvgpr_read_b32", OO[th][i], OA[th][i])
    b.I("s_mul_i32", sT0, sW, 18432)
    b.I("s_add_u32", sT0, sT0, LDS_PART)
    b.I("v_add_u32", vR, sT0, vL16)
    b.wait(lg=0)
    b.barrier()
    for th in range(2):
        for sl in range(3):
            for c in range(3): b.I("ds_read_b128", TT[sl][4 * c:4 * c + 4], vR, mods=f"offset:{sl * 6144 + th * 3072 + c * 1024}")
        for sl in range(3):
            for i in range(12): b.I("v_add_f32", OO[th][i], OO[th][i], TT[sl][i])
    stamp(b, "reduced")
    lreg = [V(VB + 5), V(VB + 6)]
    for q in range(2):
        b.I("v_mov_b32", lreg[q], OO[q][8])
        b.I("v_mov_b32", vt0, OO[q][8])
        b.I("v_permlane32_swap_b32", vt0, lreg[q])
    b.I("v_mov_b32", vt2, hex(f2u(2.0 ** 60)))
    b.I("v_cmp_nlt_f32", S(48, 2), lreg[0], vt2)
    b.I("v_cmp_nlt_f32", S(50, 2), lreg[1], vt2)
    b.I("v_mov_b32", vt1, 0)
    for q in range(2):
        for i in range(12): b.I("v_fmac_f32", vt1, 0, OO[q][i])
    b.I("v_cmp_u_f32", "vcc", vt1, vt1)
    b.I("s_or_b64", S(48, 2), S(48, 2), S(50, 2))
    b.I("s_or_b64", S(48, 2), S(48, 2), "vcc")
    b.I("s_cmp_lg_u64", S(48, 2), 0)
    b.I("s_cselect_b32", sT0, 1, 0)
    b.I("s_cmp_eq_u32", sRetry, 1)
    b.I("s_cselect_b32", sT0, 0, sT0)
    b.I("v_mov_b32", vt0, sT0)
    b.I("s_lshl_b32", sT1, sW, 2)
    b.I("s_add_u32", sT1, sT1, LDS_FLAG)
    b.I("v_mov_b32", vt1, sT1)
    b.I("ds_write_b32", vt1, vt0)
    b.wait(lg=0)
    b.barrier()
    b.I("v_mov_b32", vt1, LDS_FLAG)
    FL = V(VB + 8, 4)
    b.I("ds_read_b128", FL, vt1)
    b.I("v_or_b32", FL[0], FL[0], FL[1]); b.I("v_or_b32", FL[2], FL[2], FL[3]); b.I("v_or_b32", FL[0], FL[0], FL[2])
    b.I("v_readfirstlane_b32", sT0, FL[0])
    b.I("s_cmp_eq_u32", sT0, 0)
    b.I("s_cbranch_scc1", f"ATT_OK_{uid}")
    b.I("s_mov_b32", sRetry, 1)
    MX = [V(192 + a) for a in range(8)]
    QZ = V(200, 2)
    for a in range(8): b.I("v_mov_b32", MX[a], hex(f2u(-3.0e38)))
    b.I("s_mov_b32", sOff, sKV)
    b.I("s_mov_b32", sCnt, 16)
    b.label(f"ATT_MAX_{uid}")
    b.clear_hist()
    loadk(0)
    b.I("s_add_u32", sOff, sOff, 3072)
    b.I("v_cmp_gt_u32", "vcc", 32, vL)
    for a in range(8):
        for e in range(2): b.I("v_cndmask_b32", QZ[e], 0, QB[a][e], "vcc")
        b.I("v_mfma_f32_32x32x16_bf16", SX[0], KV2[0]["km"], QA[a], 0)
        b.nop(10)
        b.I("v_mfma_f32_32x32x8_bf16", SX[0], KV2[0]["kt"], QZ, SX[0])
        for i in range(0, 16, 2): b.I("v_max3_f32", MX[a], MX[a], SX[0][i], SX[0][i + 1])
    b.I("s_sub_u32", sCnt, sCnt, 1)
    b.I("s_cmp_lg_u32", sCnt, 0)
    b.I("s_cbranch_scc1", f"ATT_MAX_{uid}")
    b.barrier()
    for a in range(8):
        b.I("v_mov_b32", vt0, MX[a])
        b.I("v_permlane32_swap_b32", MX[a], vt0)
        b.I("v_max_f32", MX[a], MX[a], vt0)
        b.I("s_add_u32", sT0, sW, a // 2)
        b.I("s_and_b32", sT0, sT0, 3)
        b.I("s_lshl_b32", sT0, sT0, 9)
        b.I("s_lshl_b32", sT1, sW, 11)
        b.I("s_add_u32", sT0, sT0, sT1)
        b.I("s_add_u32", sT0, sT0, LDS_MAX + (a & 1) * 256)
        b.I("v_lshlrev_b32", vt1, 2, vL)
        b.I("v_add_u32", vt1, sT0, vt1)
        b.I("ds_write_b32", vt1, MX[a])
    b.wait(lg=0)
    b.barrier()
    for a in range(8):
        b.I("s_add_u32", sT0, sW, a // 2)
        b.I("s_and_b32", sT0, sT0, 3)
        b.I("s_lshl_b32", sT0, sT0, 9)
        b.I("s_add_u32", sT0, sT0, LDS_MAX + (a & 1) * 256)
        b.I("v_lshlrev_b32", vt1, 2, vL)
        b.I("v_add_u32", vt1, sT0, vt1)
        T4 = V(204, 4)
        for ww in range(4): b.I("ds_read_b32", T4[ww], vt1, mods=f"offset:{2048 * ww}")
        b.I("v_max3_f32", T4[0], T4[0], T4[1], T4[2])
        b.I("v_max_f32", T4[0], T4[0], T4[3])
        standin_fold(b, QB[a], T4[0], vt0, vt2, vt3)
    for a in range(8):
        for i in range(16): b.I("v_accvgpr_write_b32", OA[a][i], 0)
    b.wait(lg=0)
    b.barrier()
    b.I("s_branch", f"ATT_RUN_{uid}")
    b.label(f"ATT_OK_{uid}")
    b.clear_hist(); b.nop(2)
    sO = sP[0]
    b.I("s_mul_i32", sO, sG, 81920)
    b.I("s_add_u32", sO, sO, sLO)
    b.I("s_mul_i32", sT0, sJ, 10240)
    b.I("s_add_u32", sO, sO, sT0)
    b.I("s_add_u32", sO, sO, hex(off["O0"]))
    vo = V(VB + 7); vo2 = V(VB + 8)
    b.I("s_mul_i32", sT0, sW, 5)
    b.I("v_lshrrev_b32", vt0, 5, vL)
    b.I("v_add_u32", vt0, sT0, vt0)
    b.I("v_lshrrev_b32", vt1, 1, vt0)
    b.I("v_lshlrev_b32", vo, 10, vt1)
    b.I("v_and_b32", vt1, 1, vt0)
    b.I("v_lshl_add_u32", vo, vt1, 3, vo)
    b.I("v_and_b32", vt1, 31, vL)
    b.I("v_lshl_add_u32", vo, vt1, 4, vo)
    b.I("v_cmp_gt_u32", "vcc", 32, vL)
    b.I("v_mov_b32", vt1, hex(OOB))
    b.I("v_cndmask_b32", vo2, vt1, vo, "vcc")
    for q in range(2):
        b.I("v_rcp_f32", lreg[q], lreg[q])
        for i in range(12): b.I("v_mul_f32", OO[q][i], lreg[q], OO[q][i])
        for i in range(6): b.I("v_cvt_pk_bf16_f32", PP[q][i], OO[q][2 * i], OO[q][2 * i + 1])
        for c in range(3):
            tag = b.I("buffer_store_dwordx2", PP[q][2 * c:2 * c + 2], (vo if c < 2 else vo2), WS, sO, mods=f"offen offset:{c * 1024 + q * 512} sc1")
    return tag


def attn_main2(b, uid, wo_dma, on_run, sc="sc1", last_extra=(), freed=None, store_sc="sc1", sBX_=None, own_freed=(), after_store=None, skip6=False, stage_o=False):
    last_extra = list(last_extra)
    fused = True
    ORDER = [2, 3, 4, 5, 6, 7, 0, 1]
    vKt, vV = V(VB), V(VB + 1)
    sKV, sOff, sCnt, sRetry = sP[0], sP[1], sP[2], sP[3]
    b.I("s_add_u32", sKV, sLO, hex(off["KV0"]))
    b.I("s_mul_i32", sT0, sW, 16 * 3072)
    b.I("s_add_u32", sKV, sKV, sT0)
    b.I("v_lshlrev_b32", vKt, 3, vL)
    b.I("v_add_u32", vKt, 1024, vKt)
    b.I("v_and_b32", vt0, 31, vL)
    b.I("v_lshrrev_b32", vt2, 5, vL)
    b.I("v_mul_u32_u24", vt2, 384, vt2)
    b.I("v_lshl_add_u32", vV, vt0, 4, vt2)
    b.I("v_add_u32", vV, 1536, vV)
    b.I("v_mov_b32", vt1, hex(OOB))
    b.I("v_cmp_ge_u32", "vcc", 20, vt0)
    b.I("v_cndmask_b32", vV, vt1, vV, "vcc")
    def loadk(p):
        b.I("buffer_load_dwordx4", KV2[p]["km"], vL16, WS, sOff, mods="offen " + sc)
        b.I("buffer_load_dwordx2", KV2[p]["kt"], vKt, WS, sOff, mods="offen " + sc)
    def loadv(p):
        b.I("buffer_load_dwordx4", KV2[p]["v"][0], vV, WS, sOff, mods="offen " + sc)
        b.I("buffer_load_dwordx4", KV2[p]["v"][1], vV, WS, sOff, mods="offen offset:768 " + sc)
    def qk_main(i, p): b.I("v_mfma_f32_32x32x16_bf16", SX[i % 2], KV2[p]["km"], QA[ORDER[i]], 0)
    def qk_tail(i, p): b.I("v_mfma_f32_32x32x8_bf16", SX[i % 2], KV2[p]["kt"], QB[ORDER[i]], SX[i % 2])
    def pv(i, p, mf): b.I("v_mfma_f32_32x32x16_bf16", OA[ORDER[i]], KV2[p]["v"][mf], PP[i % 2][4 * mf:4 * mf + 4], OA[ORDER[i]])
    b.I("s_mov_b32", sRetry, 0)
    if not fused:
        for a in range(8):
            for i in range(16): b.I("v_accvgpr_write_b32", OA[a][i], 0)
    b.label(f"ATT_RUN_{uid}")
    b.clear_hist(); b.nop(2)
    if not fused: stamp(b, "run")
    if on_run: on_run()
    b.I("s_mov_b32", sOff, sKV)
    loadk(0); loadv(0)
    b.I("s_add_u32", sOff, sOff, 3072)
    loadk(1)
    for i in range(8): b.I("v_mov_b32", PP[1][i], 0)
    for e in range(8): b.I("v_mov_b32", V(KV2[1]["v"][0].i + e), 0)
    for i in range(12, 16): b.I("v_mov_b32", SX[1][i], 0)
    qk_main(0, 0)
    b.nop(10)
    qk_tail(0, 0)
    b.nop(12)
    stamp(b, "loop_in")
    b.I("s_mov_b32", sCnt, 7)
    vRw = [V(VB + 2 + hd) for hd in range(3)]; vR = V(VB + 9)
    for hd in range(1, 4):
        b.I("s_add_u32", sT0, sW, hd)
        b.I("s_and_b32", sT0, sT0, 3)
        b.I("s_mul_i32", sT0, sT0, 18432)
        b.I("s_add_u32", sT0, sT0, LDS_PART + (hd - 1) * 6144)
        b.I("v_add_u32", vRw[hd - 1], sT0, vL16)
    b.I("s_mul_i32", sT0, sW, 18432)
    b.I("s_add_u32", sT0, sT0, LDS_PART)
    b.I("v_add_u32", vR, sT0, vL16)
    vOo, vOo2, vFl = V(216), V(217), V(218)
    sO = S(45)
    b.I("s_mul_i32", sT0, sJ, 10240)
    b.I("s_add_u32", sO, sBX_, sT0)
    b.I("s_add_u32", sO, sO, hex(off["O0"]))
    b.I("s_mul_i32", sT0, sW, 5)
    b.I("v_lshrrev_b32", vt0, 5, vL)
    b.I("v_add_u32", vt0, sT0, vt0)
    b.I("v_lshrrev_b32", vt1, 1, vt0)
    b.I("v_lshlrev_b32", vOo, 10, vt1)
    b.I("v_and_b32", vt1, 1, vt0)
    b.I("v_lshl_add_u32", vOo, vt1, 3, vOo)
    b.I("v_and_b32", vt1, 31, vL)
    b.I("v_lshl_add_u32", vOo, vt1, 4, vOo)
    b.I("v_cmp_gt_u32", "vcc", 32, vL)
    b.I("v_mov_b32", vt1, hex(OOB))
    b.I("v_cndmask_b32", vOo2, vt1, vOo, "vcc")
    b.I("s_lshl_b32", sT1, sW, 2)
    b.I("s_add_u32", sT1, sT1, LDS_FLAG)
    b.I("v_mov_b32", vFl, sT1)
    if stage_o:
        vOw, vOl = V(219), V(220)
        vOr = [[V(221 + 2 * i_ + hf) for hf in range(2)] for i_ in range(3)]
        b.I("s_mul_i32", sT0, sW, 18432)
        b.I("s_add_u32", sT0, sT0, LDS_PART)
        b.I("v_lshrrev_b32", vt0, 5, vL)
        b.I("v_lshlrev_b32", vt0, 9, vt0)
        b.I("v_and_b32", vt1, 31, vL)
        b.I("v_lshl_add_u32", vt0, vt1, 3, vt0)
        b.I("v_add_u32", vOw, sT0, vt0)
        for i_ in range(3):
            for hf in range(2):
                b.I("s_add_u32", sT0, sW, 4 * i_)
                b.I("s_min_u32", sT0, sT0, 9)
                b.I("s_lshl_b32", sT0, sT0, 1)
                b.I("s_add_u32", sT0, sT0, hf)
                b.I("s_mul_i32", sT1, sT0, 52)
                b.I("s_lshr_b32", sT1, sT1, 8)
                b.I("s_mul_i32", sT2, sT1, 5)
                b.I("s_sub_u32", sT0, sT0, sT2)
                b.I("s_mul_i32", sT1, sT1, 18432)
                b.I("s_lshl_b32", sT0, sT0, 9)
                b.I("s_add_u32", sT0, sT0, sT1)
                b.I("s_add_u32", sT0, sT0, LDS_PART)
                b.I("v_lshlrev_b32", vt0, 3, vL)
                b.I("v_add_u32", vOr[i_][hf], sT0, vt0)
        b.I("s_cmp_lt_u32", sW, 2)
        b.I("s_cselect_b32", sT0, 0, hex(OOB))
        b.I("v_add_u32", vOl, sT0, vL16)
        b.I("s_lshl_b32", sT0, sW, 10)
        b.I("s_add_u32", sO, sO, sT0)
    b.align(6)
    b.label(f"ATT_LOOP_{uid}")
    b.clear_hist()
    b.vm = [(("kv", 9), KV2[0]["v"][0].regs()), (("kv", 9), KV2[0]["v"][1].regs()),
            (("kv", 8), KV2[1]["km"].regs()), (("kv", 8), KV2[1]["kt"].regs())]
    entry = [e[1] for e in b.vm]
    def step(a, p, extra):
        s_ = SX[a % 2]; P_ = PP[a % 2]; sprev = SX[(a + 1) % 2]; Pprev = PP[(a + 1) % 2]
        an, pn = (a + 1) % 8, (p if a < 7 else 1 - p)
        ap, pp_ = (a - 1) % 8, (p if a > 0 else 1 - p)
        ex = lambda i: b.I("v_exp_f32", s_[i], s_[i])
        cv = lambda i: b.I("v_cvt_pk_bf16_f32", P_[i], s_[2 * i], s_[2 * i + 1])
        b.I("v_cvt_pk_bf16_f32", Pprev[6], sprev[12], sprev[13])
        ex(0)
        b.I("v_cvt_pk_bf16_f32", Pprev[7], sprev[14], sprev[15])
        ex(1)
        qk_main(an, pn)
        ex(2); ex(3); ex(4); ex(5); cv(0); cv(1)
        pv(ap, pp_, 0)
        for x in extra.get(0, []): x()
        ex(6); ex(7); ex(8); ex(9)
        qk_tail(an, pn)
        cv(2); ex(10); ex(11); cv(3); ex(12); ex(13); cv(4)
        pv(ap, pp_, 1)
        ex(14); ex(15); cv(5)
        for x in extra.get(1, []): x()
    def part_writes(a):
        hd, th = a // 2, a % 2
        return [lambda c=c: b.I("ds_write_b128", vRw[hd - 1], OA[a][4 * c:4 * c + 4], mods=f"offset:{th * 3072 + c * 1024}", tag=("pw", a)) for c in range(3)]
    def body(last):
        for p in range(2):
            for a in range(8):
                extra = {}
                if a == 1 and not (last and p == 1): extra = {0: [lambda p=p: loadv(1 - p)], 1: [lambda: b.I("s_add_u32", sOff, sOff, 3072)]}
                if a == 7 and not last: extra = {1: [lambda p=p: loadk(p)]}
                if not last and p == 0 and a == 3: extra.setdefault(0, []).append(wo_dma)
                if last:
                    for _ in range((2 if len(last_extra) <= 24 - 2 * a else 3) if p == 0 else (4 if a < 2 else 0)):
                        if last_extra: extra.setdefault(1, []).append(last_extra.pop(0))
                if last and p == 1 and a >= 2:
                    w = part_writes(ORDER[a - 2])
                    extra.setdefault(0, []).extend(w[:2]); extra.setdefault(1, []).append(w[2])
                if last and p == 1 and a >= 4 and freed:
                    extra.setdefault(0, []).insert(0, lambda a=a: b.wait_lg_tag(("pw", ORDER[a - 4])))
                    fr = freed(ORDER[a - 4])
                    extra[0] = extra[0][:1] + fr[:2] + extra[0][1:]
                    extra.setdefault(1, []).extend(fr[2:])
                step(a, p, extra)
    body(False)
    b.I("s_sub_u32", sCnt, sCnt, 1)
    b.I("s_cmp_lg_u32", sCnt, 0)
    b.I("s_cbranch_scc1", f"ATT_LOOP_{uid}")
    b.loop_states = (entry, [e[1] for e in b.vm])
    body(True)
    assert not last_extra
    stamp(b, "loop_out")
    b.I("v_cvt_pk_bf16_f32", PP[1][6], SX[1][12], SX[1][13])
    b.I("v_cvt_pk_bf16_f32", PP[1][7], SX[1][14], SX[1][15])
    pv(7, 1, 0); pv(7, 1, 1)
    OO = [V(192, 12), V(204, 12)]
    TT = [V(64, 12), V(76, 12), V(88, 12)]
    for i in range(12): b.I("v_accvgpr_read_b32", OO[0][i], OA[0][i])
    for i in range(12): b.I("v_accvgpr_read_b32", OO[1][i], OA[1][i])
    b.wait(lg=0)
    if freed and after_store is None and not skip6:
        for op in freed(6): op()
    for op in own_freed: op()
    stamp(b, "drain")
    b.barrier()
    for th in range(2):
        for sl in range(3):
            for c in range(3): b.I("ds_read_b128", TT[sl][4 * c:4 * c + 4], vR, mods=f"offset:{sl * 6144 + th * 3072 + c * 1024}")
        for sl in range(3):
            for i in range(0, 12, 2): b.I("v_pk_add_f32", OO[th][i:i + 2], OO[th][i:i + 2], TT[sl][i:i + 2])
    stamp(b, "reduced")
    lreg = [V(VB + 6), V(VB + 8)]
    sO = S(45)
    vo = V(VB + 10); vo2 = V(VB + 11); Z2 = V(VB + 12, 2)
    for q in range(2):
        b.I("v_mov_b32", lreg[q], OO[q][8])
        b.I("v_mov_b32", vt0, OO[q][8])
        b.I("v_permlane32_swap_b32", vt0, lreg[q])
    b.I("v_mov_b32", vt2, hex(f2u(2.0 ** 60)))
    b.I("v_cmp_nlt_f32", S(48, 2), lreg[0], vt2)
    b.I("v_cmp_nlt_f32", S(50, 2), lreg[1], vt2)
    b.I("v_mov_b32", Z2[0], 0); b.I("v_mov_b32", Z2[1], 0)
    for q in range(2):
        for i_ in range(0, 12, 2): b.I("v_pk_fma_f32", Z2, OO[q][i_:i_ + 2], 0, Z2, mods="op_sel_hi:[1,0,1]")
    for q in range(2): b.I("v_rcp_f32", lreg[q], lreg[q])
    b.I("v_add_f32", Z2[0], Z2[0], Z2[1])
    b.I("v_cmp_u_f32", "vcc", Z2[0], Z2[0])
    tag = None
    for q in range(2):
        l2 = V(lreg[q].i, 2)
        for i_ in range(0, 12, 2): b.I("v_pk_mul_f32", OO[q][i_:i_ + 2], OO[q][i_:i_ + 2], l2, mods="op_sel_hi:[1,0]")
        for i_ in range(6): b.I("v_cvt_pk_bf16_f32", PP[q][i_], OO[q][2 * i_], OO[q][2 * i_ + 1])
        for c in range(3):
            if stage_o:
                b.I("ds_write_b64", vOw, PP[q][2 * c:2 * c + 2], mods=f"offset:{c * 1024 + q * 256}")
            else:
                tag = b.I("buffer_store_dwordx2", PP[q][2 * c:2 * c + 2], (vOo if c < 2 else vOo2), WS, sO, mods=f"offen offset:{c * 1024 + q * 512} {store_sc}")
    b.I("s_or_b64", S(48, 2), S(48, 2), S(50, 2))
    b.I("s_or_b64", S(48, 2), S(48, 2), "vcc")
    b.I("s_cmp_lg_u64", S(48, 2), 0)
    b.I("s_cselect_b32", sT0, 1, 0)
    b.I("s_cmp_eq_u32", sRetry, 1)
    b.I("s_cselect_b32", sT0, 0, sT0)
    b.I("v_mov_b32", vt0, sT0)
    b.I("ds_write_b32", vFl, vt0)
    for op in (after_store or []): op()
    stamp(b, "att_end")
    if tag is not None: b.wait_vm_tag(tag)
    b.wait(lg=0)
    if not stage_o: stamp(b, "s1_drained")
    b.barrier()
    b.I("v_mov_b32", vt1, LDS_FLAG)
    FL = V(VB + 12, 4)
    b.I("ds_read_b128", FL, vt1)
    if stage_o:
        OU = [V(64 + 4 * i_, 4) for i_ in range(3)]
        for i_ in range(3):
            for hf in range(2): b.I("ds_read_b64", OU[i_][2 * hf:2 * hf + 2], vOr[i_][hf])
    b.I("v_or_b32", FL[0], FL[0], FL[1]); b.I("v_or_b32", FL[2], FL[2], FL[3]); b.I("v_or_b32", FL[0], FL[0], FL[2])
    b.I("v_readfirstlane_b32", sT0, FL[0])
    b.I("s_cmp_eq_u32", sT0, 0)
    b.I("s_cbranch_scc1", f"ATT_OK_{uid}")
    b.I("s_mov_b32", sRetry, 1)
    b.wait(vm=0)
    MX = [V(192 + a) for a in range(8)]
    QZ = V(200, 2)
    for a in range(8): b.I("v_mov_b32", MX[a], hex(f2u(-3.0e38)))
    b.I("s_mov_b32", sOff, sKV)
    b.I("s_mov_b32", sCnt, 16)
    b.label(f"ATT_MAX_{uid}")
    b.clear_hist()
    loadk(0)
    b.I("s_add_u32", sOff, sOff, 3072)
    b.I("v_cmp_gt_u32", "vcc", 32, vL)
    for a in range(8):
        for e in range(2): b.I("v_cndmask_b32", QZ[e], 0, QB[a][e], "vcc")
        b.I("v_mfma_f32_32x32x16_bf16", SX[0], KV2[0]["km"], QA[a], 0)
        b.nop(10)
        b.I("v_mfma_f32_32x32x8_bf16", SX[0], KV2[0]["kt"], QZ, SX[0])
        for i in range(0, 16, 2): b.I("v_max3_f32", MX[a], MX[a], SX[0][i], SX[0][i + 1])
    b.I("s_sub_u32", sCnt, sCnt, 1)
    b.I("s_cmp_lg_u32", sCnt, 0)
    b.I("s_cbranch_scc1", f"ATT_MAX_{uid}")
    b.barrier()
    for a in range(8):
        b.I("v_mov_b32", vt0, MX[a])
        b.I("v_permlane32_swap_b32", MX[a], vt0)
        b.I("v_max_f32", MX[a], MX[a], vt0)
        b.I("s_add_u32", sT0, sW, a // 2)
        b.I("s_and_b32", sT0, sT0, 3)
        b.I("s_lshl_b32", sT0, sT0, 9)
        b.I("s_lshl_b32", sT1, sW, 11)
        b.I("s_add_u32", sT0, sT0, sT1)
        b.I("s_add_u32", sT0, sT0, LDS_MAX + (a & 1) * 256)
        b.I("v_lshlrev_b32", vt1, 2, vL)
        b.I("v_add_u32", vt1, sT0, vt1)
        b.I("ds_write_b32", vt1, MX[a])
    b.wait(lg=0)
    b.barrier()
    for a in range(8):
        b.I("s_add_u32", sT0, sW, a // 2)
        b.I("s_and_b32", sT0, sT0, 3)
        b.I("s_lshl_b32", sT0, sT0, 9)
        b.I("s_add_u32", sT0, sT0, LDS_MAX + (a & 1) * 256)
        b.I("v_lshlrev_b32", vt1, 2, vL)
        b.I("v_add_u32", vt1, sT0, vt1)
        T4 = V(204, 4)
        for ww in range(4): b.I("ds_read_b32", T4[ww], vt1, mods=f"offset:{2048 * ww}")
        b.I("v_max3_f32", T4[0], T4[0], T4[1], T4[2])
        b.I("v_max_f32", T4[0], T4[0], T4[3])
        standin_fold(b, QB[a], T4[0], vt0, vt2, vt3)
    for a in range(8):
        for i in range(16): b.I("v_accvgpr_write_b32", OA[a][i], 0)
    b.wait(lg=0)
    b.barrier()
    b.I("s_branch", f"ATT_RUN_{uid}")
    b.label(f"ATT_OK_{uid}")
    b.clear_hist(); b.nop(2)
    if stage_o:
        b.wait(lg=0)
        for i_ in range(3):
            tag = b.I("buffer_store_dwordx4", OU[i_], (vL16 if i_ < 2 else vOl), WS, sO, mods=f"offen {store_sc}")
            if i_ < 2: b.I("s_add_u32", sO, sO, 4096)
        b.wait_vm_tag(tag)
        stamp(b, "s1_drained")
        b.barrier()
```

```python
from asmb import *
import layout as L
import k_main as M
from k_main import *
import k_att2 as A2
from k_att2 import QA, QB, KV2, SX, PP, OA, standin_fold, LDS_Q, LDS_PART, LDS_FLAG, LDS_MAX

SPIN_MAX = 400000
EXP = {}
sGS, sFG, sFA, sGT = S(52), S(53), S(54), S(55)
sWQ, sW1, sW2 = S(40), S(41), S(42)
sBX = S(43)
sWp = S(47)
F_GRID = off["FLAGS"] + 32768
PARK = 0x27F00
RESID = [V(240 + 2 * fb, 2) for fb in range(5)]
def HO():
    return "" if EXP.get("fastho", 0) else "sc1"
def slot(f): return A(4 * ((f + 32) % 64), 4)

class Fill:
    def __init__(self): self.q = []; self.credit = 0
    def add(self, c, f): self.q.append((c, f))
    def v(self, b, *a, **k): self.add(4, lambda: b.I(*a, **k))
    def run(self, budget):
        self.credit += budget
        while self.q and self.q[0][0] <= self.credit:
            c, f = self.q.pop(0); self.credit -= c; f()
    def flush(self):
        for c, f in self.q: f()
        self.q = []; self.credit = 0

sWA = S(58, 2)
def wops(b, sbase, frs):
    ops = []
    cur = None
    glob = EXP.get("glob", 1) and not M.PROFILE_USES_58
    for f in frs:
        def one(f=f, cur=cur):
            if glob:
                if cur is None:
                    b.I("s_add_u32", sWp, sbase, (f // 4) * 4096)
                    b.I("s_add_u32", sWA[0], S(4), sWp)
                    b.I("s_addc_u32", sWA[1], S(5), 0)
                elif f // 4 != cur:
                    b.I("s_add_u32", sWA[0], sWA[0], (f // 4 - cur) * 4096)
                    b.I("s_addc_u32", sWA[1], sWA[1], 0)
                b.I("global_load_dwordx4", slot(f), vL16, sWA, mods=f"offset:{(f % 4) * 1024}")
                return
            if cur is None: b.I("s_add_u32", sWp, sbase, (f // 4) * 4096)
            elif f // 4 != cur: b.I("s_add_u32", sWp, sWp, (f // 4 - cur) * 4096)
            b.I("buffer_load_dwordx4", slot(f), vL16, WS, sWp, mods=f"offen offset:{(f % 4) * 1024}")
        ops.append(one); cur = f // 4
    return ops

def l2_warm(b, region, slice_bytes):
    if not EXP.get("warm", 0): return []
    n = slice_bytes // 4 // 4 // 8192
    rem = slice_bytes // 4 // 4 - n * 8192
    n += 1 if rem else 0
    ops = []
    def first():
        b.I("s_mul_i32", sT0, sJ, slice_bytes)
        b.I("s_and_b32", sT1, sG, 3)
        b.I("s_lshl_b32", sT1, sT1, 2)
        b.I("s_add_u32", sT1, sT1, sW)
        b.I("s_mul_i32", sT1, sT1, slice_bytes // 16)
        b.I("s_add_u32", sT0, sT0, sT1)
        b.I("s_add_u32", S(45), sT0, hex(off[region]))
        b.I("v_lshlrev_b32", V(251), 7, vL)
    for q in range(n):
        def one(q=q):
            if q == 0: first()
            else: b.I("s_add_u32", S(45), S(45), 8192)
            b.I("buffer_load_dword", V(250), V(251), WS, S(45), mods="offen")
        ops.append(one)
    return ops

def dma_ops(b, ssrc, slds, n, sc):
    tags = []
    def one(q):
        if q == 0: b.I("s_mov_b32", "m0", slds)
        tags.append(b.I("buffer_load_dwordx4", vL16, WS, ssrc, mods=f"offen offset:{q * 1024} {sc} lds"))
    return [lambda q=q: one(q) for q in range(n)], tags

class XTile:
    NPW = [1, 3, 4, 4, 4, 4]
    U0 = [0, 4, 16, 32, 48, 64]
    def __init__(self, b, sX, lds_base, s0, s1):
        self.b = b; self.s0, self.s1 = s0, s1; self.tags = {}; self.sX = sX; self.lds = lds_base
    @classmethod
    def chunk_of_unit(cls, u): return max(c for c in range(6) if cls.U0[c] <= u)
    def ops(self, c):
        b = self.b; n = self.NPW[c]
        ops, tags = dma_ops(b, self.s0, self.s1, n, "sc1")
        self.tags[c] = tags
        first = ops[0]
        def head():
            if c <= 2:
                b.I("s_mul_i32", self.s0, sW, n * 1024)
                b.I("s_add_u32", self.s1, self.s0, self.lds + self.U0[c] * 1024)
                b.I("s_add_u32", self.s0, self.s0, self.sX)
                if c: b.I("s_add_u32", self.s0, self.s0, self.U0[c] * 1024)
            else:
                b.I("s_add_u32", self.s0, self.s0, 16384)
                b.I("s_add_u32", self.s1, self.s1, 16384)
            first()
        ops[0] = head
        return ops
    def wait(self, c):
        self.b.wait_vm_tag(self.tags[c][-1])
        self.b.barrier()

sLoc = S(46)
F_MASK = 49152
def arrive(b, uid):
    n0 = len(b.vm)
    b.I("s_cmp_lg_u32", sW, 0)
    b.I("s_cbranch_scc1", f"ARR_{uid}")
    snap = b.snapshot()
    b.I("v_mov_b32", vt0, 0); b.I("v_mov_b32", vt1, 1)
    b.I("s_mov_b64", "exec", 1)
    b.I("s_cmp_eq_u32", sLoc, 1)
    b.I("s_cbranch_scc1", f"ARRL_{uid}")
    if HO() == "" and uid != "s3":
        b.I("buffer_wbl2", mods="sc1")
        b.wait(vm=0)
    b.I("buffer_atomic_add", vt1, vt0, WS, sFG, mods="offen sc1")
    b.I("s_branch", f"ARRX_{uid}")
    b.label(f"ARRL_{uid}")
    b.I("buffer_atomic_add", vt1, vt0, WS, sFG, mods="offen")
    b.label(f"ARRX_{uid}")
    b.I("s_mov_b64", "exec", -1)
    b.label(f"ARR_{uid}")
    b.restore(snap)
    b.clear_hist(); b.nop(1)

def window_poll(b, uid, window, grid=False, late=3):
    window = list(window)
    if EXP.get("nowin"): window = []
    late = min(late, len(window))
    for op in window[:len(window) - late]: op()
    vP, vA = V(254), V(253)
    soff = sP[9] if grid else sFG
    target = sGT if grid else sGS
    def issue():
        b.I("buffer_load_dword", vP, vA, WS, soff, mods="offen sc1")
        b.vm.pop()
    def test(lbl):
        b.I("v_cmp_le_u32", "vcc", target, vP)
        b.I("s_cmp_eq_u64", "vcc", "exec")
        b.I("s_cbranch_scc1", lbl)
    if grid:
        b.I("s_mov_b32", soff, hex(F_GRID))
        b.I("v_and_b32", vA, 7, vL)
        b.I("v_lshlrev_b32", vA, 8, vA)
    else: b.I("v_mov_b32", vA, 0)
    b.I("s_cmp_lg_u32", sW, 0)
    b.I("s_cbranch_scc1", f"PL0_{uid}")
    issue()
    b.label(f"PL0_{uid}")
    b.clear_hist()
    nt0 = b.ntag; nv0 = b.nvm
    for op in window[len(window) - late:]: op()
    late = b.nvm - nv0
    snap = b.snapshot()
    b.I("s_cmp_lg_u32", sW, 0)
    b.I("s_cbranch_scc1", f"POLLE_{uid}")
    b.wait(vm=late)
    b.I("s_mov_b32", sT2, 0)
    test(f"POLLD_{uid}")
    if EXP.get("pipe", 0):
        PR = [V(250), V(251), V(252), V(254)]
        def issue_r(r):
            b.I("buffer_load_dword", r, vA, WS, soff, mods="offen sc1")
            b.vm.pop()
        for n_, r in enumerate(PR):
            if n_: b.I("s_sleep", EXP.get("psleep", 1))
            issue_r(r)
        b.label(f"POLL_{uid}")
        for r in PR:
            b.wait(vm=3)
            b.I("v_cmp_le_u32", "vcc", target, r)
            b.I("s_cmp_eq_u64", "vcc", "exec")
            b.I("s_cbranch_scc1", f"POLLD_{uid}")
            issue_r(r)
        b.I("s_add_u32", sT2, sT2, 1)
        b.I("s_cmp_lt_u32", sT2, SPIN_MAX // 4)
        b.I("s_cbranch_scc1", f"POLL_{uid}")
    else:
        b.label(f"POLL_{uid}")
        issue()
        b.wait(vm=0)
        b.I("s_add_u32", sT2, sT2, 1)
        test(f"POLLD_{uid}")
        b.I("s_cmp_lt_u32", sT2, SPIN_MAX)
        b.I("s_cbranch_scc1", f"POLL_{uid}")
    b.label(f"POLLD_{uid}")
    if not grid and HO() == "" and uid != "s3":
        b.I("s_cmp_eq_u32", sLoc, 1)
        b.I("s_cbranch_scc1", f"POLLE_{uid}")
        b.I("buffer_inv", mods="sc1")
        b.wait(vm=0)
    b.label(f"POLLE_{uid}")
    b.restore(snap)
    b.clear_hist()
    b.barrier()

def arrive_wave(b, uid):
    snap = b.snapshot()
    b.I("v_mov_b32", vt0, 0); b.I("v_mov_b32", vt1, 1)
    b.I("s_mov_b64", "exec", 1)
    b.I("s_cmp_eq_u32", sLoc, 1)
    b.I("s_cbranch_scc1", f"ARRL_{uid}")
    b.I("buffer_wbl2", mods="sc1")
    b.wait(vm=0)
    b.I("buffer_atomic_add", vt1, vt0, WS, sFG, mods="offen sc1")
    b.I("s_branch", f"ARRX_{uid}")
    b.label(f"ARRL_{uid}")
    b.I("buffer_atomic_add", vt1, vt0, WS, sFG, mods="offen")
    b.label(f"ARRX_{uid}")
    b.I("s_mov_b64", "exec", -1)
    b.restore(snap)
    b.vm.append((("arr", uid), set()))
    b.clear_hist(); b.nop(1)

def group_sync(b, store_tag, uid, window):
    if EXP.get("wavearr", 0) and store_tag is not None:
        b.wait_vm_tag(store_tag)
        stamp(b, uid + "_drained")
        arrive_wave(b, uid)
        b.I("s_add_u32", sGS, sGS, 32)
        window_poll(b, uid, window)
        return
    window = list(window)
    if store_tag is not None:
        if EXP.get("early", 0) or (uid == "s4" and EXP.get("early4", 1)):
            for op in window: op()
            window = []
        b.wait_vm_tag(store_tag)
        stamp(b, uid + "_drained")
        b.barrier()
    if EXP.get("wavearr", 0):
        arrive_wave(b, uid)
        b.I("s_add_u32", sGS, sGS, 32)
    else:
        arrive(b, uid)
        b.I("s_add_u32", sGS, sGS, 8)
    window_poll(b, uid, window)

def grid_arrive(b, store_tag, uid):
    b.wait_vm_tag(store_tag)
    b.barrier()
    b.I("s_add_u32", sGT, sGT, 32)
    b.I("s_cmp_lg_u32", sW, 0)
    b.I("s_cbranch_scc1", f"GA_{uid}")
    b.I("v_mov_b32", vt0, 0); b.I("v_mov_b32", vt1, 1)
    b.I("s_and_b32", sT0, sG, 7)
    b.I("s_lshl_b32", sT0, sT0, 8)
    b.I("s_add_u32", sT0, sT0, hex(F_GRID))
    b.I("s_mov_b64", "exec", 1)
    b.I("buffer_atomic_add", vt1, vt0, WS, sT0, mods="offen sc1")
    b.vm.pop()
    b.I("s_mov_b64", "exec", -1)
    b.label(f"GA_{uid}")
    b.clear_hist(); b.nop(1)

def xcd_publish(b):
    b.I("s_cmp_lg_u32", sW, 0)
    b.I("s_cbranch_scc1", "XP_END")
    b.I("s_getreg_b32", sT0, "hwreg(HW_REG_XCC_ID, 0, 4)")
    b.I("s_lshl_b32", sT0, 1, sT0)
    b.I("v_mov_b32", vt0, 0); b.I("v_mov_b32", vt1, sT0)
    b.I("s_add_u32", sT1, sFG, F_MASK)
    b.I("s_mov_b64", "exec", 1)
    b.I("buffer_atomic_or", vt1, vt0, WS, sT1, mods="offen sc1")
    b.vm.pop()
    b.I("s_mov_b64", "exec", -1)
    b.label("XP_END")
    b.clear_hist(); b.nop(1)
def xcd_mask_load(b):
    b.I("v_mov_b32", vt0, 0)
    b.I("s_add_u32", sT1, sFG, F_MASK)
    b.I("buffer_load_dword", V(252), vt0, WS, sT1, mods="offen sc1")
def xcd_mask_use(b):
    b.I("v_readfirstlane_b32", sT0, V(252))
    b.I("s_bcnt1_i32_b32", sT0, sT0)
    b.I("s_cmp_eq_u32", sT0, 1)
    b.I("s_cselect_b32", sLoc, 1, 0)

LDS_STX = 83968
class Stats:
    def __init__(self, b, region, regs):
        self.b = b; self.R = regs
        sS = self.sS = sP[1]
        b.I("s_lshl_b32", sS, sG, 12)
        b.I("s_add_u32", sS, sS, sLO)
        b.I("s_lshl_b32", sT0, sW, 10)
        b.I("s_add_u32", sS, sS, sT0)
        b.I("s_add_u32", sS, sS, hex(off[region]))
        self.va = V(regs.i + 8); self.vw = V(regs.i + 9)
        b.I("v_lshlrev_b32", self.va, 3, vL)
        b.I("s_lshl_b32", sT0, sW, 9)
        b.I("v_add_u32", self.vw, sT0, self.va)
        b.I("v_add_u32", self.vw, LDS_STX, self.vw)
    def load(self):
        for q in range(2): self.b.I("buffer_load_dwordx2", self.R[2 * q:2 * q + 2], self.va, WS, self.sS, mods=f"offen offset:{q * 512} sc1")
    def publish(self):
        b = self.b
        pk(b, "v_pk_add_f32", self.R[0:2], self.R[0:2], self.R[2:4])
        self.tag = b.I("ds_write_b64", self.vw, self.R[0:2])
        b.I("v_add_u32", self.va, LDS_STX, self.va)
    def before_barrier(self): self.b.wait_lg_tag(self.tag)
    def fill(self, f, mean, rstd):
        b = self.b
        for q in range(4): f.add(12, lambda q=q: b.I("ds_read_b64", self.R[2 * q:2 * q + 2], self.va, mods=f"offset:{q * 512}"))
        f.add(60, lambda: None)
        f.v(b, "v_pk_add_f32", self.R[0:2], self.R[0:2], self.R[2:4])
        f.v(b, "v_pk_add_f32", self.R[4:6], self.R[4:6], self.R[6:8])
        f.v(b, "v_pk_add_f32", self.R[0:2], self.R[0:2], self.R[4:6])
        f.v(b, "v_mul_f32", mean, hex(f2u(1.0 / 640)), self.R[0])
        f.v(b, "v_mul_f32", rstd, hex(f2u(1.0 / 640)), self.R[1])
        f.v(b, "v_fma_f32", rstd, f"-{mean}", mean, rstd)
        f.v(b, "v_max_f32", rstd, 0, rstd)
        f.v(b, "v_add_f32", rstd, hex(f2u(1e-5)), rstd)
        f.add(8, lambda: b.I("v_rsq_f32", rstd, rstd))

def pk(b, op, d, *src, mods=""): b.I(op, d, *src, mods=mods)

def qkv_start(b):
    sX, sD0, sD1 = sP[0], sP[2], sP[3]
    b.I("s_add_u32", sX, sBX, hex(off["XB0"]))
    xt = XTile(b, sX, LDS_X, sD0, sD1)
    for c in range(3):
        for op in xt.ops(c): op()
    return xt
def qkv(b, xt):
    uid = "q"
    sX, sSt, sD0, sD1, sSc = sP[0], sP[1], sP[2], sP[3], sP[4]
    st = Stats(b, "STI0", V(VB, 8))
    st.load()
    ACC = [V(64, 16), V(80, 16)]
    XF = [[V(96 + 8 * p + 4 * th, 4) for th in range(2)] for p in range(4)]
    vXa, vXb = V(VB + 16), V(VB + 17)
    mean, rstd = V(VB + 18), V(VB + 19)
    mT = [V(VB + 20, 2), V(VB + 22, 2)]; rT = [V(VB + 24, 2), V(VB + 26, 2)]
    rq, rm = [V(VB + 28, 2), V(VB + 30, 2)], [V(VB + 32, 2), V(VB + 34, 2)]
    vkey, vh, vaT, vaU, vaT1, vaU1 = (V(VB + 36 + i) for i in range(6))
    CS = V(128, 16)
    b.I("v_add_u32", vXa, LDS_X, vX32)
    b.I("v_add_u32", vXb, LDS_X + 65536, vX32)
    b.I("v_lshrrev_b32", vt0, 5, vL)
    b.I("v_lshlrev_b32", vt0, 4, vt0)
    b.I("s_lshl_b32", sT0, sW, 7)
    b.I("v_add_u32", vt0, sT0, vt0)
    b.I("v_add_u32", vt0, T_CSQ, vt0)
    for c in range(4): b.I("ds_read_b128", CS[4 * c:4 * c + 4], vt0, mods=f"offset:{32 * c}")
    b.I("v_and_b32", vkey, 31, vL)
    b.I("v_lshrrev_b32", vh, 5, vL)
    b.I("s_and_b32", sT0, sW, 1)
    b.I("s_mul_i32", sT0, sT0, 3)
    b.I("v_mov_b32", vaT, sT0)
    b.I("v_add_u32", vaU, 1, vh)
    b.I("v_add_u32", vaU, sT0, vaU)
    b.I("s_cmp_ge_u32", sW, 2)
    b.I("s_cbranch_scc1", f"QKV_AV_{uid}")
    for va in (vaT, vaU):
        b.I("v_lshrrev_b32", vt0, 1, va)
        b.I("v_lshlrev_b32", vt0, 9, vt0)
        b.I("v_and_b32", vt1, 1, va)
        b.I("v_lshl_add_u32", vt0, vt1, 3, vt0)
        b.I("v_lshl_add_u32", vt0, vkey, 4, vt0)
        b.I("v_lshlrev_b32", vt1, 3, vkey)
        b.I("v_add_u32", vt1, 1024, vt1)
        b.I("v_cmp_eq_u32", "vcc", 4, va)
        b.I("v_cndmask_b32", vt0, vt0, vt1, "vcc")
        b.I("v_add_u32", vt0, LDS_KVIMG, vt0)
        b.I("v_cmp_lt_u32", "vcc", 4, va)
        b.I("v_mov_b32", vt1, PARK)
        b.I("v_cndmask_b32", va, vt0, vt1, "vcc")
    b.I("s_branch", f"QKV_AJ_{uid}")
    b.label(f"QKV_AV_{uid}")
    b.I("v_lshrrev_b32", vt0, 4, vkey)
    b.I("v_mul_u32_u24", vt0, 768, vt0)
    b.I("v_bfe_u32", vt1, vkey, 2, 1)
    b.I("v_mul_u32_u24", vt1, 384, vt1)
    b.I("v_add_u32", vt0, vt0, vt1)
    b.I("v_and_b32", vt1, 3, vkey)
    b.I("v_lshl_add_u32", vt0, vt1, 1, vt0)
    b.I("v_bfe_u32", vt1, vkey, 3, 1)
    b.I("v_lshl_add_u32", vt0, vt1, 3, vt0)
    b.I("v_add_u32", vt3, LDS_KVIMG + 1536, vt0)
    for va in (vaT, vaU):
        b.I("v_lshl_add_u32", vt0, va, 6, vt3)
        b.I("v_cmp_lt_u32", "vcc", 4, va)
        b.I("v_mov_b32", vt1, PARK)
        b.I("v_cndmask_b32", va, vt0, vt1, "vcc")
    ONE = V(144, 4)
    b.I("v_and_b32", vt0, 3, vL)
    b.I("v_mul_u32_u24", vt0, 384, vt0)
    b.I("v_bfe_u32", vt1, vL, 2, 1)
    b.I("v_mul_u32_u24", vt1, 3072, vt1)
    b.I("v_add_u32", vt0, vt0, vt1)
    b.I("v_add_u32", vt0, LDS_KVIMG + 1536 + 320, vt0)
    for e in range(4): b.I("v_mov_b32", ONE[e], "0x3f803f80")
    b.I("ds_write_b128", vt0, ONE)
    b.I("v_lshlrev_b32", vt0, 3, vkey)
    b.I("v_mul_u32_u24", vt1, 3072, vh)
    b.I("v_add_u32", vt0, vt0, vt1)
    b.I("v_add_u32", vt0, LDS_KVIMG + 1280, vt0)
    b.I("v_mov_b32", V(148), "0x3f803f80"); b.I("v_mov_b32", V(149), "0x00003f80")
    b.I("ds_write_b64", vt0, V(148, 2))
    b.label(f"QKV_AJ_{uid}")
    b.clear_hist(); b.nop(1)
    b.I("v_cmp_gt_u32", "vcc", 32, vL)
    b.I("v_mov_b32", vt1, PARK)
    b.I("v_cndmask_b32", vaT, vaT, vt1, "vcc")
    for va, va1 in ((vaT, vaT1), (vaU, vaU1)):
        b.I("v_add_u32", vt0, 3072, va)
        b.I("v_cmp_eq_u32", "vcc", va, vt1)
        b.I("v_cndmask_b32", va1, vt0, va, "vcc")
    NPRE = EXP.get("npre", 20)
    rest = list(range(NPRE, 40))
    n0 = max(0, 24 - NPRE)
    q0, rest = rest[:n0], rest[n0:]
    q1, rest = rest[:4], rest[4:]
    q2, rest = rest[:6], rest[6:]
    W_ = lambda fr: wops(b, sWQ, fr) if fr else []
    mem = {0: xt.ops(3) + W_(q0), 1: [st.publish] + W_(q1) + xt.ops(4),
           2: xt.ops(5) + W_(q2), 3: W_(rest), 4: []}
    z = Fill()
    for i in range(32, 128): z.v(b, "v_accvgpr_write_b32", A(i), 0)
    f = Fill()
    st.fill(f, mean, rstd)
    f.v(b, "v_mov_b32", mT[0][0], mean); f.v(b, "v_mov_b32", mT[1][0], mean)
    f.v(b, "v_mov_b32", rT[0][0], rstd); f.v(b, "v_mov_b32", rT[1][0], rstd)
    f.v(b, "v_permlane32_swap_b32", mT[0][0], mT[1][0]); f.v(b, "v_permlane32_swap_b32", rT[0][0], rT[1][0])
    f.add(4, lambda: b.I("s_mov_b32", sSc, hex(f2u(math.log2(math.e) / math.sqrt(20.0)))))
    f.add(4, lambda: b.I("v_cmp_gt_u32", S(48, 2), 32, vL))
    for th in range(2):
        f.v(b, "v_mul_f32", rq[th][0], sSc, rT[th][0])
        f.v(b, "v_cndmask_b32", rm[th][0], rT[th][0], rq[th][0], S(48, 2))
    def xread(s_, th):
        o = s_ * 2048 + th * 512
        base, o = (vXa, o) if o < 65536 else (vXb, o - 65536)
        b.I("ds_read_b128", XF[s_ % 4][th], base, mods=f"offset:{o}")
    stamp(b, "q_pre")
    landed = set()
    def ensure(step):
        c_ = XTile.chunk_of_unit(2 * step + 1)
        if c_ not in landed:
            if c_ == 3: st.before_barrier()
            xt.wait(c_); landed.add(c_)
            stamp(b, f"q_c{c_}")
    ensure(0)
    for th in range(2): xread(0, th)
    for th in range(2): xread(1, th)
    for c in range(5):
        m = list(mem[c])
        k = 0
        for s_ in range(8 * c, 8 * c + 8):
            if s_ + 2 < 40: ensure(s_ + 2)
            b.need(XF[s_ % 4][0], XF[s_ % 4][1], slot(s_))
            for th in range(2):
                b.I("v_mfma_f32_32x32x16_bf16", ACC[th], slot(s_), XF[s_ % 4][th], (0 if s_ == 0 else ACC[th]))
                if s_ + 2 < 40: xread(s_ + 2, th)
                if m and (k % 4 != 0 or len(m) > 15 - k): m.pop(0)()
                else: z.run(8)
                if c >= 3: f.run(8)
                k += 1
        for op in m: op()
    f.flush(); z.flush()
    stamp(b, "q_mm")
    PK = [V(152, 2), V(154, 2)]
    for th in range(2):
        for i in range(8, 16, 2):
            pk(b, "v_pk_fma_f32", ACC[th][i:i + 2], mT[th], CS[i:i + 2], ACC[th][i:i + 2], mods="op_sel_hi:[0,1,1] neg_lo:[1,0,0] neg_hi:[1,0,0]")
        for i in range(8, 16, 2):
            pk(b, "v_pk_mul_f32", ACC[th][i:i + 2], ACC[th][i:i + 2], (rm[th] if i < 12 else rT[th]), mods="op_sel_hi:[1,0]")
        for q in range(2): b.I("v_cvt_pk_bf16_f32", QT[th][q], ACC[th][8 + 2 * q], ACC[th][9 + 2 * q])
        for q in range(2): b.I("v_cvt_pk_bf16_f32", PK[th][q], ACC[th][12 + 2 * q], ACC[th][13 + 2 * q])
    b.I("s_cmp_ge_u32", sW, 2)
    b.I("s_cbranch_scc1", f"QKV_V_{uid}")
    for th in range(2):
        b.I("ds_write_b64", (vaT, vaT1)[th], QT[th])
        b.I("ds_write_b64", (vaU, vaU1)[th], PK[th])
    b.I("s_branch", f"QKV_J_{uid}")
    b.label(f"QKV_V_{uid}")
    for th in range(2):
        for va, rr in (((vaT, vaT1)[th], QT[th]), ((vaU, vaU1)[th], PK[th])):
            for q in range(2):
                b.I("ds_write_b16", va, rr[q], mods=f"offset:{32 * q}")
                b.I("ds_write_b16_d16_hi", va, rr[q], mods=f"offset:{32 * q + 16}")
    b.label(f"QKV_J_{uid}")
    b.clear_hist()
    IM = V(144, 4)
    b.I("s_mul_i32", sT0, sJ, 768)
    b.I("v_add_u32", vt0, sT0, vL16)
    b.I("v_add_u32", vt2, LDS_KVIMG, vt0)
    b.I("s_cmp_eq_u32", sW, 0)
    b.I("s_cselect_b32", sT1, 48, 0)
    b.I("v_cmp_gt_u32", "vcc", sT1, vL)
    b.I("v_mov_b32", vt1, hex(OOB))
    b.I("v_cndmask_b32", vt0, vt1, vt0, "vcc")
    b.I("s_mul_i32", sT0, sG, 6144)
    b.I("s_add_u32", sT0, sT0, sLO)
    b.I("s_add_u32", sT0, sT0, hex(off["KV0"]))
    b.wait(lg=0)
    b.barrier()
    b.I("ds_read_b128", IM, vt2)
    tag = b.I("buffer_store_dwordx4", IM, vt0, WS, sT0, mods="offen sc1")
    stamp(b, "q_kv")
    for th in range(2):
        for i in range(0, 8, 2):
            pk(b, "v_pk_fma_f32", ACC[th][i:i + 2], mT[th], CS[i:i + 2], ACC[th][i:i + 2], mods="op_sel_hi:[0,1,1] neg_lo:[1,0,0] neg_hi:[1,0,0]")
        for i in range(0, 8, 2):
            pk(b, "v_pk_mul_f32", ACC[th][i:i + 2], ACC[th][i:i + 2], rq[th], mods="op_sel_hi:[1,0]")
        for q in range(4): b.I("v_cvt_pk_bf16_f32", QM[th][q], ACC[th][2 * q], ACC[th][2 * q + 1])
    return tag

def attention(b):
    uid = "a"
    A2.attn_pre(b, "p", trailing_barrier=False, part=("B" if EXP.get("preA", 0) else "AB"))
    for i in range(32): b.I("v_accvgpr_write_b32", A(i), 0)
    if HO() == "":
        snap = b.snapshot()
        b.I("s_cmp_eq_u32", sL, 0)
        b.I("s_cbranch_scc1", "XCLEAN_SKIP")
        for op in tile_clean_ops(b, "XB0"): op()
        b.label("XCLEAN_SKIP")
        b.restore(snap)
        b.clear_hist()
    GW = EXP.get("gw", 8)
    window_poll(b, "gw", wops(b, sW1, range(0, GW)), grid=True)
    xcd_mask_load(b)
    stamp(b, "grid_ok")
    sWo, sWl = sP[5], sP[6]
    def on_run():
        b.I("s_mul_i32", sWo, sJ, 102400)
        b.I("s_mul_i32", sT0, sW, 3072)
        b.I("s_add_u32", sWo, sWo, sT0)
        b.I("s_add_u32", sWo, sWo, hex(off["WOP"]))
        b.I("s_add_u32", sWl, sT0, LDS_WO)
    def wo():
        ops, _ = dma_ops(b, sWo, sWl, 3, "")
        for op in ops: op()
        b.I("s_add_u32", sWo, sWo, 12288)
        b.I("s_add_u32", sWl, sWl, 12288)
    tag = A2.attn_main2(b, uid, wo, on_run, last_extra=wops(b, sW1, range(GW, 32)), freed=lambda a: wops(b, sW1, range(4 * a + 32, 4 * a + 36)), store_sc=HO(), sBX_=sBX, own_freed=(wops(b, sW1, range(32, 40)) if EXP.get("own", 0) else []), skip6=bool(EXP.get("ow1", 0)), stage_o=bool(EXP.get("stageo", 1)), after_store=((wops(b, sW1, range(56, 60)) + wops(b, sW1, range(32, 40))) if EXP.get("early", 0) else None))
    xcd_mask_use(b)

def wo_rest(b):
    b.I("s_mul_i32", sT0, sJ, 102400)
    b.I("s_lshl_b32", sT1, sW, 12)
    b.I("s_add_u32", sT0, sT0, sT1)
    b.I("s_add_u32", sT0, sT0, hex(off["WOP"] + 84 * 1024))
    b.I("s_add_u32", sT1, sT1, LDS_WO + 84 * 1024)
    ops, tags = dma_ops(b, sT0, sT1, 4, "")
    for op in ops: op()
    return tags[-1]

def acc_init(b, ACC, RES, vbias=None):
    U = V(VB + 4, 2)
    if vbias is not None:
        for fb in range(5): b.I("ds_read_b128", ACC[fb], vbias, mods=f"offset:{64 * fb}")
    for fb in range(5):
        for q in range(2):
            a2 = ACC[fb][2 * q:2 * q + 2]
            if vbias is None:
                b.I("v_lshlrev_b32", a2[0], 16, RES[fb][q])
                b.I("v_and_b32", a2[1], "0xffff0000", RES[fb][q])
            else:
                b.I("v_lshlrev_b32", U[0], 16, RES[fb][q])
                b.I("v_and_b32", U[1], "0xffff0000", RES[fb][q])
                pk(b, "v_pk_add_f32", a2, a2, U)

def resid_epi(b, ACC, RES, sdst, sstat, out_natural=None):
    ssum, ssq = V(VB, 2), V(VB + 2, 2)
    tA, tB = vt0, vt1
    wide = EXP.get("widex", 0) and out_natural is None
    for fb in range(5):
        for q in range(2): b.I("v_cvt_pk_bf16_f32", RES[fb][q], ACC[fb][2 * q], ACC[fb][2 * q + 1])
        if out_natural is not None:
            b.I("buffer_store_dwordx2", RES[fb], out_natural, OUT, sdst, mods=f"offen offset:{32 * fb} sc1")
            continue
        if wide:
            if fb in (1, 3):
                T4 = V(VB + 8 + 4 * (fb // 2), 4)
                for q in range(2): b.I("v_mov_b32", T4[q], RES[fb - 1][q]); b.I("v_mov_b32", T4[2 + q], RES[fb][q])
                b.I("v_permlane16_swap_b32", T4[0], T4[2]); b.I("v_permlane16_swap_b32", T4[1], T4[3])
                if fb == 3: b.I("s_add_u32", sdst, sdst, 4096)
                b.I("buffer_store_dwordx4", T4, V(VB + 7), WS, sdst, mods="offen sc1")
            elif fb == 4:
                b.I("s_add_u32", sdst, sdst, 4096)
                b.I("buffer_store_dwordx2", RES[fb], vEpi, WS, sdst, mods="offen sc1")
            continue
        if fb in (2, 4): b.I("s_add_u32", sdst, sdst, 4096)
        b.I("buffer_store_dwordx2", RES[fb], vEpi, WS, sdst, mods=f"offen offset:{(fb % 2) * 2048} {HO()}")
    if out_natural is not None: return None
    for fb in range(5):
        for q in range(2):
            a2 = ACC[fb][2 * q:2 * q + 2]
            if fb == 0 and q == 0:
                pk(b, "v_pk_mul_f32", ssq, a2, a2)
            elif fb == 0 and q == 1:
                pk(b, "v_pk_add_f32", ssum, ACC[0][0:2], a2); pk(b, "v_pk_fma_f32", ssq, a2, a2, ssq)
            else:
                pk(b, "v_pk_add_f32", ssum, ssum, a2); pk(b, "v_pk_fma_f32", ssq, a2, a2, ssq)
    b.I("v_add_f32", ssum[0], ssum[0], ssum[1])
    b.I("v_add_f32", ssum[1], ssq[0], ssq[1])
    for swap in ("v_permlane16_swap_b32", "v_permlane32_swap_b32"):
        b.I("v_mov_b32", tA, ssum[0]); b.I("v_mov_b32", tB, ssum[1])
        b.I(swap, ssum[0], tA); b.I(swap, ssum[1], tB)
        b.I("v_add_f32", ssum[0], ssum[0], tA); b.I("v_add_f32", ssum[1], ssum[1], tB)
    return b.I("buffer_store_dwordx2", ssum, V(VB + 6), WS, sstat, mods=f"offen {HO()}")

OPR_ACC0 = [V(144 + 4 * fb, 4) for fb in range(5)]
FF2_ACC0 = [V(160 + 4 * fb, 4) for fb in range(5)]
def oproj_init(b): acc_init(b, OPR_ACC0, RESID)
def ffn2_init(b):
    vb = V(VB + 34)
    b.I("v_lshrrev_b32", vt0, 4, vL)
    b.I("v_lshlrev_b32", vt0, 4, vt0)
    b.I("v_add_u32", vb, T_B2, vt0)
    acc_init(b, FF2_ACC0, RESID, vbias=vb)

OKEEP = [V(224, 6), V(230, 6)]
def o_keep(b):
    if HO() != "": return
    for q in range(2):
        for i in range(6): b.I("v_mov_b32", OKEEP[q][i], PP[q][i])
    b.I("v_mov_b32", V(236), V(216)); b.I("v_mov_b32", V(237), V(217))
def o_clean_ops(b):
    if HO() != "": return []
    return [lambda q=q, c=c: b.I("buffer_store_dwordx2", OKEEP[q][2 * c:2 * c + 2], (V(236) if c < 2 else V(237)), WS, S(45), mods=f"offen offset:{c * 1024 + q * 512} sc1")
            for q in range(2) for c in range(3)]
def tile_clean_ops(b, region):
    if HO() != "": return []
    sC_ = sP[8]
    ops = []
    def first():
        b.I("s_and_b32", sT0, sW, 1)
        b.I("s_lshl_b32", sT0, sT0, 1)
        b.I("s_lshr_b32", sT1, sW, 1)
        b.I("s_or_b32", sT0, sT0, sT1)
        b.I("s_lshl_b32", sT0, sT0, 8)
        b.I("s_mul_i32", sT1, sJ, 10240)
        b.I("s_add_u32", sT0, sT0, sT1)
        b.I("s_add_u32", sT0, sT0, sBX)
        b.I("s_add_u32", sC_, sT0, hex(off[region]))
    for fb in range(5):
        def one(fb=fb):
            if fb == 0: first()
            if fb in (2, 4): b.I("s_add_u32", sC_, sC_, 4096)
            b.I("buffer_store_dwordx2", RESID[fb], vEpi, WS, sC_, mods=f"offen offset:{(fb % 2) * 2048} sc1")
        ops.append(one)
    return ops

def stat_addr(b):
    b.I("v_lshlrev_b32", vt0, 3, vL)
    b.I("v_cmp_gt_u32", "vcc", 16, vL)
    b.I("v_mov_b32", vt1, hex(OOB))
    b.I("v_cndmask_b32", V(VB + 6), vt1, vt0, "vcc")
    if EXP.get("widex", 0):
        b.I("v_lshrrev_b32", vt0, 4, vL)
        b.I("v_lshrrev_b32", vt1, 1, vt0)
        b.I("v_lshlrev_b32", V(VB + 7), 10, vt1)
        b.I("v_and_b32", vt1, 1, vt0)
        b.I("v_lshl_add_u32", V(VB + 7), vt1, 11, V(VB + 7))
        b.I("v_and_b32", vt1, 15, vL)
        b.I("v_lshl_add_u32", V(VB + 7), vt1, 4, V(VB + 7))

def resid_ops(b, sbase, RES):
    ops = []
    for fb in range(5):
        def one(fb=fb):
            if fb in (2, 4): b.I("s_add_u32", sbase, sbase, 4096)
            b.I("buffer_load_dwordx2", RES[fb], vEpi, WS, sbase, mods=f"offen offset:{(fb % 2) * 2048} sc1")
        ops.append(one)
    return ops

def oproj(b):
    sO, sRes, sTB, sDst, sSt = sP[0], sP[1], sP[2], sP[3], sP[4]
    XF = [[V(64 + 8 * s_ + 4 * a, 4) for a in range(2)] for s_ in range(10)]
    ACC = [[V(144 + 20 * a + 4 * fb, 4) for fb in range(5)] for a in range(2)]
    WF = [[V(184 + 20 * p + 4 * fb, 4) for fb in range(5)] for p in range(2)]
    RES = RESID
    vXa = [V(VB + 30), V(VB + 31)]; vWa = V(VB + 32); vR = V(VB + 33); vR2 = V(VB + 34)
    b.I("s_and_b32", sT0, sW, 1)
    b.I("s_lshr_b32", sT1, sW, 1)
    b.I("s_lshl_b32", sT0, sT0, 1)
    b.I("s_add_u32", sTB, sT0, sT1)
    b.I("s_xor_b32", sT2, sTB, 1)
    b.I("s_lshl_b32", sT3, sTB, 8)
    b.I("v_add_u32", vXa[0], sT3, vX16)
    b.I("s_lshl_b32", sT2, sT2, 8)
    b.I("v_add_u32", vXa[1], sT2, vX16)
    b.I("s_mul_i32", sT1, sT1, 40960)
    b.I("s_add_u32", sO, sBX, sT1)
    b.I("s_add_u32", sO, sO, hex(off["O0"]))
    def xload(s_):
        for a in range(2): b.I("buffer_load_dwordx4", XF[s_][a], vXa[a], WS, sO, mods="offen sc1")
        if s_ < 9: b.I("s_add_u32", sO, sO, 4096)
    def xops(s_):
        return [lambda: b.I("buffer_load_dwordx4", XF[s_][0], vXa[0], WS, sO, mods="offen sc1"),
                lambda: (b.I("buffer_load_dwordx4", XF[s_][1], vXa[1], WS, sO, mods="offen sc1"), b.I("s_add_u32", sO, sO, 4096))]
    OL = EXP.get("olead", 5)
    for s_ in range(OL): xload(s_)
    b.I("s_mul_i32", sT0, sJ, 10240)
    b.I("s_add_u32", sT0, sT0, sT3)
    b.I("s_add_u32", sRes, sBX, sT0)
    b.I("s_add_u32", sDst, sRes, hex(off["X10"]))
    b.I("v_lshrrev_b32", vt0, 4, vL)
    b.I("v_mul_u32_u24", vt0, 1280, vt0)
    b.I("v_and_b32", vt1, 15, vL)
    b.I("v_lshl_add_u32", vWa, vt1, 4, vt0)
    b.I("s_lshr_b32", sT1, sW, 1)
    b.I("s_mul_i32", sT1, sT1, 51200)
    b.I("v_add_u32", vWa, sT1, vWa)
    b.I("v_add_u32", vWa, LDS_WO, vWa)
    b.I("s_mul_i32", sT0, sW, 5120)
    b.I("v_add_u32", vR, sT0, vL16)
    b.I("v_add_u32", vR, LDS_RED_O, vR)
    b.I("s_xor_b32", sT0, sW, 2)
    b.I("s_mul_i32", sT0, sT0, 5120)
    b.I("v_add_u32", vR2, sT0, vL16)
    b.I("v_add_u32", vR2, LDS_RED_O, vR2)
    b.I("s_lshl_b32", sSt, sG, 12)
    b.I("s_add_u32", sSt, sSt, sLO)
    b.I("s_lshl_b32", sT0, sJ, 9)
    b.I("s_add_u32", sSt, sSt, sT0)
    b.I("s_lshl_b32", sT0, sTB, 7)
    b.I("s_add_u32", sSt, sSt, sT0)
    b.I("s_add_u32", sSt, sSt, hex(off["ST10"]))
    stat_addr(b)
    def wread(s_, fb): b.I("ds_read_b128", WF[s_ % 2][fb], vWa, mods=f"offset:{s_ * 5120 + fb * 256}")
    for fb in range(5): wread(0, fb)
    stamp(b, "o_pre")
    late_w = (wops(b, sW1, range(32, 40)) + wops(b, sW1, range(56, 60))) if EXP.get("ow1", 0) else []
    for s_ in range(10):
        m = (xops(s_ + OL) if s_ + OL < 10 else [])
        if s_ >= 10 - OL:
            n_ = -(-len(late_w) // (10 - s_))
            m = m + late_w[:n_]; late_w = late_w[n_:]
        if s_ == 6: m = m + l2_warm(b, "W2P", 245760)
        order = [(fb, a) for fb in range(5) for a in range(2)] if s_ < 9 else [(fb, 1) for fb in range(5)] + [(fb, 0) for fb in range(5)]
        b.need(*WF[s_ % 2], *XF[s_])
        for k, (fb, a) in enumerate(order):
            b.I("v_mfma_f32_16x16x32_bf16", ACC[a][fb], WF[s_ % 2][fb], XF[s_][a], (0 if s_ == 0 and a == 1 else ACC[a][fb]))
            if s_ < 9 and k < 5: wread(s_ + 1, k)
            if m and k in (5, 7, 9): m.pop(0)()
            if s_ == 9 and k >= 7: b.I("ds_write_b128", vR, ACC[1][k - 7], mods=f"offset:{(k - 7) * 1024}")
        for op in m: op()
        if s_ == 0: stamp(b, "o_s0")
    for fb in (3, 4): b.I("ds_write_b128", vR, ACC[1][fb], mods=f"offset:{fb * 1024}")
    stamp(b, "o_mm")
    b.wait(lg=0)
    b.barrier()
    for fb in range(5): b.I("ds_read_b128", WF[0][fb], vR2, mods=f"offset:{fb * 1024}")
    for fb in range(5):
        for q in range(2): pk(b, "v_pk_add_f32", ACC[0][fb][2 * q:2 * q + 2], ACC[0][fb][2 * q:2 * q + 2], WF[0][fb][2 * q:2 * q + 2])
    stamp(b, "o_red")
    return resid_epi(b, ACC[0], RES, sDst, sSt)

def ffn1(b):
    sX, sSt, sH, sD0, sD1 = sP[0], sP[1], sP[2], sP[5], sP[6]
    b.I("s_add_u32", sX, sBX, hex(off["X10"]))
    xt = XTile(b, sX, LDS_X, sD0, sD1)
    for c in range(3):
        for op in xt.ops(c): op()
    st = Stats(b, "ST10", V(VB, 8))
    st.load()
    ACC = [[V(64 + 16 * fb + 4 * tb, 4) for tb in range(4)] for fb in range(3)]
    XF = [[V(112 + 16 * p + 4 * tb, 4) for tb in range(4)] for p in range(2)]
    vXa, vXb = V(VB + 16), V(VB + 17)
    mean, rstd = V(VB + 18), V(VB + 19)
    MR = [V(176 + 2 * i, 2) for i in range(4)]; RS = [V(184 + 2 * i, 2) for i in range(4)]
    CS = V(144, 12); BI = V(156, 12)
    b.I("v_add_u32", vXa, LDS_X, vX16)
    b.I("v_add_u32", vXb, LDS_X + 65536, vX16)
    b.I("v_lshrrev_b32", vt0, 4, vL)
    b.I("v_lshlrev_b32", vt0, 4, vt0)
    b.I("s_mul_i32", sT0, sW, 192)
    b.I("v_add_u32", vt0, sT0, vt0)
    b.I("v_add_u32", vt1, T_CS1, vt0)
    b.I("v_add_u32", vt2, T_B1, vt0)
    for fb in range(3):
        b.I("ds_read_b128", CS[4 * fb:4 * fb + 4], vt1, mods=f"offset:{64 * fb}")
        b.I("ds_read_b128", BI[4 * fb:4 * fb + 4], vt2, mods=f"offset:{64 * fb}")
    b.I("s_mul_i32", sH, sG, 196608)
    b.I("s_add_u32", sH, sH, sLO)
    b.I("s_mul_i32", sT0, sJ, 24576)
    b.I("s_add_u32", sH, sH, sT0)
    b.I("s_mul_i32", sT0, sW, 6144)
    b.I("s_add_u32", sH, sH, sT0)
    b.I("s_add_u32", sH, sH, hex(off["H0"]))
    vH4 = V(194)
    if EXP.get("wideh", 0):
        b.I("v_lshrrev_b32", vt0, 4, vL)
        b.I("v_lshrrev_b32", vt1, 1, vt0)
        b.I("v_lshlrev_b32", vH4, 10, vt1)
        b.I("v_and_b32", vt1, 1, vt0)
        b.I("v_lshl_add_u32", vH4, vt1, 8, vH4)
        b.I("v_and_b32", vt1, 15, vL)
        b.I("v_lshl_add_u32", vH4, vt1, 4, vH4)
    c0 = -2.0 * math.sqrt(2.0 / math.pi) * math.log2(math.e)
    sC = S(50, 2)
    vC0 = V(192, 2)
    b.I("s_mov_b32", sC[0], hex(f2u(c0 * 0.044715)))
    b.I("v_mov_b32", vC0[0], hex(f2u(c0)))
    f = Fill()
    st.fill(f, mean, rstd)
    f.v(b, "v_mul_f32", mean, mean, rstd)
    for src, d4 in ((mean, MR), (rstd, RS)):
        d = [x[0] for x in d4]
        f.v(b, "v_mov_b32", d[0], src); f.v(b, "v_mov_b32", d[2], src)
        f.v(b, "v_permlane32_swap_b32", d[0], d[2])
        f.v(b, "v_mov_b32", d[1], d[0]); f.v(b, "v_mov_b32", d[3], d[2])
        f.v(b, "v_permlane16_swap_b32", d[0], d[1]); f.v(b, "v_permlane16_swap_b32", d[2], d[3])
    def xread(s_, tb):
        o = s_ * 4096 + tb * 256
        base, o = (vXa, o) if o < 65536 else (vXb, o - 65536)
        b.I("ds_read_b128", XF[s_ % 2][tb], base, mods=f"offset:{o}")
    stamp(b, "f_pre")
    mem = []
    NW2 = EXP.get('nw2', 52)
    w2q = wops(b, sW2, range(0, NW2)); w2n = 0; NM_ = EXP.get('nm', 52)
    landed = set()
    def ensure(step):
        c_ = XTile.chunk_of_unit(4 * step + 3)
        if c_ not in landed:
            if c_ == 3: st.before_barrier()
            xt.wait(c_); landed.add(c_)
            stamp(b, f"f_c{c_}")
    ensure(0)
    for tb in range(4): xread(0, tb)
    for c in range(5):
        if c + 3 < 6: mem += xt.ops(c + 3)
        if c == 4: mem += l2_warm(b, "WQP", 163840)
        for s_ in range(4 * c, 4 * c + 4):
            if s_ == 5: st.publish()
            if s_ + 1 < 20: ensure(s_ + 1)
            k = 0
            b.need(*XF[s_ % 2], slot(3 * s_), slot(3 * s_ + 1), slot(3 * s_ + 2))
            for fb in range(3):
                for tb in range(4):
                    b.I("v_mfma_f32_16x16x32_bf16", ACC[fb][tb], slot(3 * s_ + fb), XF[s_ % 2][tb], (0 if s_ == 0 else ACC[fb][tb]))
                    if k < 4 and s_ + 1 < 20: xread(s_ + 1, k)
                    elif k in ((5, 8, 11) if EXP.get("slots3", 1) else (6, 10)):
                        if mem: mem.pop(0)()
                        elif w2n < min(NM_, 3 * s_ + (k + 1) // 4): w2q[w2n](); w2n += 1
                    elif c >= 2 and f.q: f.run(5)
                    k += 1
    for op in mem: op()
    f.flush()
    stamp(b, "f_mm")
    T = [V(168 + 2 * i, 2) for i in range(4)]
    tag = None
    for fb in range(3):
        for tp in range(2):
            el = [(ACC[fb][2 * tp + u][2 * q:2 * q + 2], T[2 * u + q], 2 * tp + u, q) for u in range(2) for q in range(2)]
            for a, t, tb, q in el: pk(b, "v_pk_fma_f32", t, MR[tb], CS[4 * fb + 2 * q:4 * fb + 2 * q + 2], BI[4 * fb + 2 * q:4 * fb + 2 * q + 2], mods="op_sel_hi:[0,1,1] neg_lo:[1,0,0] neg_hi:[1,0,0]")
            for a, t, tb, q in el: pk(b, "v_pk_fma_f32", a, RS[tb], a, t, mods="op_sel_hi:[0,1,1]")
            for a, t, tb, q in el: pk(b, "v_pk_mul_f32", t, a, a)
            for a, t, tb, q in el: pk(b, "v_pk_fma_f32", t, t, sC, vC0, mods="op_sel_hi:[1,0,0]")
            for a, t, tb, q in el: pk(b, "v_pk_mul_f32", t, t, a)
            for _ in range(2):
                if w2n < NW2: w2q[w2n](); w2n += 1
            for a, t, tb, q in el:
                for e in range(2): b.I("v_exp_f32", t[e], t[e])
            if w2n < NW2: w2q[w2n](); w2n += 1
            for a, t, tb, q in el: pk(b, "v_pk_add_f32", t, t, 1.0, mods="op_sel_hi:[1,0]")
            for a, t, tb, q in el:
                for e in range(2): b.I("v_rcp_f32", t[e], t[e])
            for a, t, tb, q in el: pk(b, "v_pk_mul_f32", a, a, t)
            for _ in range(2):
                if w2n < NW2: w2q[w2n](); w2n += 1
            if EXP.get("wideh", 0):
                X_, Y_ = ACC[fb][2 * tp], ACC[fb][2 * tp + 1]
                b.I("v_cvt_pk_bf16_f32", X_[0], X_[0], X_[1]); b.I("v_cvt_pk_bf16_f32", X_[1], X_[2], X_[3])
                b.I("v_cvt_pk_bf16_f32", X_[2], Y_[0], Y_[1]); b.I("v_cvt_pk_bf16_f32", X_[3], Y_[2], Y_[3])
                b.I("v_permlane16_swap_b32", X_[0], X_[2]); b.I("v_permlane16_swap_b32", X_[1], X_[3])
                tag = b.I("buffer_store_dwordx4", X_, vH4, WS, sH, mods=f"offen offset:{tp * 512} sc1")
            else:
                for u in range(2):
                    a4 = ACC[fb][2 * tp + u]
                    for q in range(2): b.I("v_cvt_pk_bf16_f32", a4[q], a4[2 * q], a4[2 * q + 1])
                    tag = b.I("buffer_store_dwordx2", a4[0:2], vEpi, WS, sH, mods=f"offen offset:{(2 * tp + u) * 256} sc1")
        if fb < 2: b.I("s_add_u32", sH, sH, 2048)
    while w2n < NW2: w2q[w2n](); w2n += 1
    return tag

def ffn2(b):
    sH, sRes, sDst, sSt, sH9 = sP[0], sP[1], sP[2], sP[3], sP[4]
    NB = 6
    XF = [[V(64 + 16 * p + 4 * a, 4) for a in range(4)] for p in range(NB)]
    ACC = [[V(160 + 20 * a + 4 * fb, 4) for fb in range(5)] for a in range(4)]
    RES = RESID
    BI = V(64, 20)
    vXa = [V(VB + 26 + a) for a in range(4)]
    vRw = [V(VB + 30 + a) for a in range(3)]; vRr = V(VB + 33); vB2 = V(VB + 34)
    sTB = sP[5]
    for a in range(4):
        b.I("s_add_u32", sT0, sW, a)
        b.I("s_and_b32", sT1, sT0, 1)
        b.I("s_lshl_b32", sT1, sT1, 1)
        b.I("s_bfe_u32", sT0, sT0, "0x10001")
        b.I("s_or_b32", sT0, sT0, sT1)
        if a == 0: b.I("s_mov_b32", sTB, sT0)
        b.I("s_lshl_b32", sT0, sT0, 8)
        b.I("v_add_u32", vXa[a], sT0, vX16)
    b.I("s_mul_i32", sH, sG, 196608)
    b.I("s_add_u32", sH, sH, sLO)
    b.I("s_mul_i32", sT0, sW, 49152)
    b.I("s_add_u32", sH, sH, sT0)
    b.I("s_add_u32", sH, sH, hex(off["H0"]))
    def xops(s_):
        ops = [lambda a=a: b.I("buffer_load_dwordx4", XF[s_ % NB][a], vXa[a], WS, sH, mods="offen sc1") for a in range(3)]
        ops.append(lambda: (b.I("buffer_load_dwordx4", XF[s_ % NB][3], vXa[3], WS, sH, mods="offen sc1"), b.I("s_add_u32", sH, sH, 4096)))
        return ops
    GL = EXP.get("glead", 2)
    for s_ in range(GL):
        for op in xops(s_): op()
    b.I("s_mul_i32", sT0, sJ, 10240)
    b.I("s_add_u32", sRes, sBX, sT0)
    b.I("s_lshl_b32", sT0, sTB, 8)
    b.I("s_add_u32", sRes, sRes, sT0)
    b.I("s_add_u32", sDst, sRes, hex(off["XB0"] + LS))
    for a in range(1, 4):
        b.I("s_add_u32", sT0, sW, a)
        b.I("s_and_b32", sT0, sT0, 3)
        b.I("s_mul_i32", sT0, sT0, 15360)
        b.I("s_add_u32", sT0, sT0, LDS_RED_F + (a - 1) * 5120)
        b.I("v_add_u32", vRw[a - 1], sT0, vL16)
    b.I("s_mul_i32", sT0, sW, 15360)
    b.I("s_add_u32", sT0, sT0, LDS_RED_F)
    b.I("v_add_u32", vRr, sT0, vL16)
    b.I("s_lshl_b32", sSt, sG, 12)
    b.I("s_lshl_b32", sT0, sJ, 9)
    b.I("s_add_u32", sSt, sSt, sT0)
    b.I("s_lshl_b32", sT0, sTB, 7)
    b.I("s_add_u32", sSt, sSt, sT0)
    b.I("s_add_u32", sSt, sSt, hex(off["STI0"] + LS))
    stat_addr(b)
    stamp(b, "g_pre")
    mem = []
    for s_ in range(GL, 9): mem += xops(s_)
    for a in (1, 2, 3, 0):
        for s_ in range(9, 12):
            mem.append(lambda a=a, s_=s_: (b.I("s_add_u32", sH9, sH, (s_ - 9) * 4096), b.I("buffer_load_dwordx4", XF[s_ % NB][a], vXa[a], WS, sH9, mods="offen sc1")))
    issued = 4 * GL
    for s_ in range(9):
        k = 0
        b.need(*XF[s_ % NB], *[slot(5 * s_ + fb) for fb in range(5)])
        for fb in range(5):
            for a in range(4):
                b.I("v_mfma_f32_16x16x32_bf16", ACC[a][fb], slot(5 * s_ + fb), XF[s_ % NB][a], (0 if s_ == 0 and a else ACC[a][fb]))
                if mem and k % EXP.get("gden", 4) == EXP.get("gden", 4) - 2 and (issued // 4 if issued < 36 else 9 + (issued - 36) % 3) - NB < s_:
                    mem.pop(0)(); issued += 1
                k += 1
        if s_ in (0, 5): stamp(b, f"g_s{s_}")
    pend = []
    NQ = EXP.get("npre", 20) - 8
    wq = wops(b, sWQ, range(0, NQ))
    early_q = EXP.get("eq", 1)
    for a in (1, 2, 3, 0):
        k = 0
        for s_ in range(9, 12):
            for fb in range(5):
                b.I("v_mfma_f32_16x16x32_bf16", ACC[a][fb], slot(5 * s_ + fb), XF[s_ % NB][a], ACC[a][fb])
                if mem and k % EXP.get("gtail", 3) == 1: mem.pop(0)()
                elif pend and k >= 3 and k % 2 == 1: pend.pop(0)()
                elif early_q and not mem and wq and a in (3, 0) and k % 2 == 0: wq.pop(0)()
                k += 1
        for op in pend: op()
        pend = [lambda fb=fb, a=a: b.I("ds_write_b128", vRw[a - 1], ACC[a][fb], mods=f"offset:{fb * 1024}") for fb in range(5)] if a else []
    assert not mem
    stamp(b, "g_mm")
    NQ = len(wq)
    for _ in range(NQ // 2): wq.pop(0)()
    b.wait(lg=0)
    b.barrier()
    for a in range(1, 4):
        for fb in range(5): b.I("ds_read_b128", ACC[a][fb], vRr, mods=f"offset:{(a - 1) * 5120 + fb * 1024}")
    for _ in range(NQ - NQ // 2): wq.pop(0)()
    for a in range(1, 4):
        for fb in range(5):
            for q in range(2): pk(b, "v_pk_add_f32", ACC[0][fb][2 * q:2 * q + 2], ACC[0][fb][2 * q:2 * q + 2], ACC[a][fb][2 * q:2 * q + 2])
    stamp(b, "g_red")
    b.I("s_cmp_eq_u32", sL, 1)
    b.I("s_cbranch_scc1", "FFN2_FINAL")
    snap = b.snapshot(); hist = list(b.hist)
    tag = resid_epi(b, ACC[0], RES, sDst, sSt)
    assert not wq
    def final():
        b.label("FFN2_FINAL")
        b.restore(snap); b.hist = hist
        b.I("s_lshl_b32", sT0, sG, 6)
        b.I("s_lshl_b32", sT1, sTB, 4)
        b.I("s_add_u32", sT0, sT0, sT1)
        b.I("s_mul_i32", sDst, sT0, 1280)
        b.I("s_mul_i32", sT0, sJ, 160)
        b.I("s_add_u32", sDst, sDst, sT0)
        if not EXP.get("wideout", 1):
            vo = V(VB + 8)
            b.I("v_and_b32", vt0, 15, vL)
            b.I("v_mul_u32_u24", vo, 1280, vt0)
            b.I("v_lshrrev_b32", vt0, 4, vL)
            b.I("v_lshl_add_u32", vo, vt0, 3, vo)
            resid_epi(b, ACC[0], RES, sDst, None, out_natural=vo)
            return
        LO = 65536
        vw, vr, vo = V(VB + 8), V(VB + 9), V(VB + 10)
        b.I("s_mul_i32", sT0, sW, 16 * 176)
        b.I("v_and_b32", vt0, 15, vL)
        b.I("v_mul_u32_u24", vw, 176, vt0)
        b.I("v_lshrrev_b32", vt1, 4, vL)
        b.I("v_lshl_add_u32", vw, vt1, 3, vw)
        b.I("v_add_u32", vw, sT0, vw)
        b.I("v_add_u32", vw, LO, vw)
        for fb in range(5):
            for q in range(2): b.I("v_cvt_pk_bf16_f32", RES[fb][q], ACC[0][fb][2 * q], ACC[0][fb][2 * q + 1])
            b.I("ds_write_b64", vw, RES[fb], mods=f"offset:{32 * fb}")
        b.I("v_mul_u32_u24", vt0, 6554, vL)
        b.I("v_lshrrev_b32", vt0, 16, vt0)
        b.I("v_mul_u32_u24", vt1, 10, vt0)
        b.I("v_sub_u32", vt1, vL, vt1)
        b.I("v_mul_u32_u24", vr, 176, vt0)
        b.I("v_lshl_add_u32", vr, vt1, 4, vr)
        b.I("v_add_u32", vr, sT0, vr)
        b.I("v_add_u32", vr, LO, vr)
        b.I("v_mul_u32_u24", vo, 1280, vt0)
        b.I("v_lshl_add_u32", vo, vt1, 4, vo)
        OB = [V(64 + 4 * i_, 4) for i_ in range(3)]
        b.wait(lg=0)
        for i_ in range(3): b.I("ds_read_b128", OB[i_], vr, mods=f"offset:{6 * 176 * i_}")
        for i_ in range(3):
            lim = 60 if i_ < 2 else 40
            b.I("v_cmp_gt_u32", "vcc", lim, vL)
            b.I("v_mov_b32", vt2, hex(OOB))
            b.I("v_cndmask_b32", vt3, vt2, vo, "vcc")
            b.I("buffer_store_dwordx4", OB[i_], vt3, OUT, sDst, mods="offen " + {0: "", 1: "sc1", 2: "nt", 3: "sc0 sc1"}[EXP.get("outsc", 0)])
            if i_ < 2: b.I("s_add_u32", sDst, sDst, 6 * 1280)
    return tag, final

def gen_fused(b):
    setup(b, "MAIN_END")
    b.I("s_mov_b32", sL, 0); b.I("s_mov_b32", sLO, 0)
    b.I("s_mov_b32", sGS, 0); b.I("s_mov_b32", sGT, 0)
    b.I("s_lshl_b32", sFG, sG, 8)
    b.I("s_add_u32", sFG, sFG, hex(off["FLAGS"]))
    b.I("s_mov_b32", sLoc, 0)
    xcd_publish(b)
    stamp(b, "start")
    b.I("s_lshl_b32", sT0, sJ, 2)
    b.I("s_add_u32", sT0, sT0, sW)
    b.I("s_mul_i32", S(57), sT0, 40960)
    b.I("s_add_u32", S(57), S(57), hex(off["WQP"]))
    b.I("s_mul_i32", sBX, sG, 81920)
    qkv_start(b)
    b.I("s_and_b32", sT0, sW, 1)
    b.I("s_lshl_b32", sT0, sT0, 1)
    b.I("s_lshr_b32", sT1, sW, 1)
    b.I("s_or_b32", sT0, sT0, sT1)
    b.I("s_lshl_b32", sT0, sT0, 8)
    b.I("s_mul_i32", sT1, sJ, 10240)
    b.I("s_add_u32", sT0, sT0, sT1)
    b.I("s_add_u32", sT0, sT0, sBX)
    b.I("s_add_u32", sP[8], sT0, hex(off["XB0"]))
    def after_table_loads():
        for op in wops(b, S(57), range(0, EXP.get("npre", 20))): op()
        for op in resid_ops(b, sP[8], RESID): op()
    tables(b, after_loads=after_table_loads)
    b.I("s_lshl_b32", sT0, sJ, 2)
    b.I("s_add_u32", sT0, sT0, sW)
    b.I("s_mul_i32", sWQ, sT0, 40960)
    b.I("s_add_u32", sWQ, sWQ, hex(off["WQP"]))
    b.I("s_mul_i32", sW1, sT0, 61440)
    b.I("s_add_u32", sW2, sW1, hex(off["W2P"]))
    b.I("s_add_u32", sW1, sW1, hex(off["W1P"]))
    b.I("s_mul_i32", sBX, sG, 81920)
    if EXP.get("hotw"):
        b.I("s_mul_i32", sWQ, sW, 61440)
        b.I("s_add_u32", sWQ, sWQ, hex(off["WQP"]))
        b.I("s_mov_b32", sW1, sWQ); b.I("s_mov_b32", sW2, sWQ)
    b.I("s_branch", "LAYER_REST")
    b.label("LAYER")
    b.clear_hist()
    xt = qkv_start(b)
    b.label("LAYER_REST")
    b.clear_hist()
    stamp(b, "layer")
    tag = qkv(b, xt)
    stamp(b, "qkv_end")
    if EXP.get("preA", 0):
        A2.attn_pre(b, "p", trailing_barrier=False, part="A")
        b.wait(lg=0)
    grid_arrive(b, tag, "g")
    attention(b)
    wo_tag = []
    S1W = 0 if (EXP.get("own", 0) or EXP.get("early", 0) or EXP.get("ow1", 0)) else 8
    group_sync(b, None, "s1", [lambda: wo_tag.append(wo_rest(b))] + wops(b, sW1, range(32, 32 + S1W)) + [lambda: (o_keep(b), oproj_init(b))])
    b.wait_vm_tag(wo_tag[0]); b.barrier()
    stamp(b, "s1_ok")
    tag = oproj(b)
    stamp(b, "opr_end")
    group_sync(b, tag, "s2", o_clean_ops(b))
    stamp(b, "s2_ok")
    tag = ffn1(b)
    stamp(b, "ff1_end")
    group_sync(b, tag, "s3", wops(b, sW2, range(EXP.get("nw2", 52), 60)) + tile_clean_ops(b, "X10") + [lambda: ffn2_init(b)])
    stamp(b, "s3_ok")
    tag, final = ffn2(b)
    stamp(b, "ff2_end")
    group_sync(b, tag, "s4", wops(b, sWQ, range(EXP.get("npre", 20) - 8, EXP.get("npre", 20))))
    stamp(b, "s4_ok")
    b.I("s_mov_b32", sL, 1)
    b.I("s_mov_b32", sLO, hex(LS))
    b.I("s_add_u32", sBX, sBX, hex(LS))
    if M.PROFILE: M.stamp_flush(b, 0)
    b.I("s_branch", "LAYER")
    final()
    if M.PROFILE:
        b.wait(vm=0); stamp(b, "ff2_end"); stamp(b, "end"); M.stamp_flush(b, 20)
    b.label("MAIN_END")
```

```python
from asmb import *
import layout as L
import k_main as M
from k_main import *
import k_att2 as A2
from k_att2 import QA, QB, KV2, SX, PP, OA, standin_fold, LDS_Q, LDS_PART, LDS_FLAG, LDS_MAX

SPIN_MAX = 400000
EXP = {}
sGS, sFG, sFA, sGT = S(52), S(53), S(54), S(55)
sWQ, sW1, sW2 = S(40), S(41), S(42)
sBX = S(43)
sWp = S(47)
F_GRID = off["FLAGS"] + 32768
PARK = 0x27F00
RESID = [V(240 + 2 * fb, 2) for fb in range(5)]
def HO():
    return "" if EXP.get("fastho", 0) else "sc1"
def slot(f): return A(4 * ((f + 32) % 64), 4)

class Fill:
    def __init__(self): self.q = []; self.credit = 0
    def add(self, c, f): self.q.append((c, f))
    def v(self, b, *a, **k): self.add(4, lambda: b.I(*a, **k))
    def run(self, budget):
        self.credit += budget
        while self.q and self.q[0][0] <= self.credit:
            c, f = self.q.pop(0); self.credit -= c; f()
    def flush(self):
        for c, f in self.q: f()
        self.q = []; self.credit = 0

sWA = S(58, 2)
def wops(b, sbase, frs):
    ops = []
    cur = None
    glob = EXP.get("glob", 1) and not M.PROFILE_USES_58
    for f in frs:
        def one(f=f, cur=cur):
            if glob:
                if cur is None:
                    b.I("s_add_u32", sWp, sbase, (f // 4) * 4096)
                    b.I("s_add_u32", sWA[0], S(4), sWp)
                    b.I("s_addc_u32", sWA[1], S(5), 0)
                elif f // 4 != cur:
                    b.I("s_add_u32", sWA[0], sWA[0], (f // 4 - cur) * 4096)
                    b.I("s_addc_u32", sWA[1], sWA[1], 0)
                b.I("global_load_dwordx4", slot(f), vL16, sWA, mods=f"offset:{(f % 4) * 1024}")
                return
            if cur is None: b.I("s_add_u32", sWp, sbase, (f // 4) * 4096)
            elif f // 4 != cur: b.I("s_add_u32", sWp, sWp, (f // 4 - cur) * 4096)
            b.I("buffer_load_dwordx4", slot(f), vL16, WS, sWp, mods=f"offen offset:{(f % 4) * 1024}")
        ops.append(one); cur = f // 4
    return ops

def l2_warm(b, region, slice_bytes):
    if not EXP.get("warm", 0): return []
    n = slice_bytes // 4 // 4 // 8192
    rem = slice_bytes // 4 // 4 - n * 8192
    n += 1 if rem else 0
    ops = []
    def first():
        b.I("s_mul_i32", sT0, sJ, slice_bytes)
        b.I("s_and_b32", sT1, sG, 3)
        b.I("s_lshl_b32", sT1, sT1, 2)
        b.I("s_add_u32", sT1, sT1, sW)
        b.I("s_mul_i32", sT1, sT1, slice_bytes // 16)
        b.I("s_add_u32", sT0, sT0, sT1)
        b.I("s_add_u32", S(45), sT0, hex(off[region]))
        b.I("v_lshlrev_b32", V(251), 7, vL)
    for q in range(n):
        def one(q=q):
            if q == 0: first()
            else: b.I("s_add_u32", S(45), S(45), 8192)
            b.I("buffer_load_dword", V(250), V(251), WS, S(45), mods="offen")
        ops.append(one)
    return ops

def dma_ops(b, ssrc, slds, n, sc):
    tags = []
    def one(q):
        if q == 0: b.I("s_mov_b32", "m0", slds)
        tags.append(b.I("buffer_load_dwordx4", vL16, WS, ssrc, mods=f"offen offset:{q * 1024} {sc} lds"))
    return [lambda q=q: one(q) for q in range(n)], tags

class XTile:
    NPW = [1, 3, 4, 4, 4, 4]
    U0 = [0, 4, 16, 32, 48, 64]
    def __init__(self, b, sX, lds_base, s0, s1):
        self.b = b; self.s0, self.s1 = s0, s1; self.tags = {}; self.sX = sX; self.lds = lds_base
    @classmethod
    def chunk_of_unit(cls, u): return max(c for c in range(6) if cls.U0[c] <= u)
    def ops(self, c):
        b = self.b; n = self.NPW[c]
        ops, tags = dma_ops(b, self.s0, self.s1, n, "sc1")
        self.tags[c] = tags
        first = ops[0]
        def head():
            if c <= 2:
                b.I("s_mul_i32", self.s0, sW, n * 1024)
                b.I("s_add_u32", self.s1, self.s0, self.lds + self.U0[c] * 1024)
                b.I("s_add_u32", self.s0, self.s0, self.sX)
                if c: b.I("s_add_u32", self.s0, self.s0, self.U0[c] * 1024)
            else:
                b.I("s_add_u32", self.s0, self.s0, 16384)
                b.I("s_add_u32", self.s1, self.s1, 16384)
            first()
        ops[0] = head
        return ops
    def wait(self, c):
        self.b.wait_vm_tag(self.tags[c][-1])
        self.b.barrier()

sLoc = S(46)
F_MASK = 49152
def arrive(b, uid):
    n0 = len(b.vm)
    b.I("s_cmp_lg_u32", sW, 0)
    b.I("s_cbranch_scc1", f"ARR_{uid}")
    snap = b.snapshot()
    b.I("v_mov_b32", vt0, 0); b.I("v_mov_b32", vt1, 1)
    b.I("s_mov_b64", "exec", 1)
    b.I("s_cmp_eq_u32", sLoc, 1)
    b.I("s_cbranch_scc1", f"ARRL_{uid}")
    if HO() == "" and uid != "s3":
        b.I("buffer_wbl2", mods="sc1")
        b.wait(vm=0)
    b.I("buffer_atomic_add", vt1, vt0, WS, sFG, mods="offen sc1")
    b.I("s_branch", f"ARRX_{uid}")
    b.label(f"ARRL_{uid}")
    b.I("buffer_atomic_add", vt1, vt0, WS, sFG, mods="offen")
    b.label(f"ARRX_{uid}")
    b.I("s_mov_b64", "exec", -1)
    b.label(f"ARR_{uid}")
    b.restore(snap)
    b.clear_hist(); b.nop(1)

def window_poll(b, uid, window, grid=False, late=3):
    window = list(window)
    if EXP.get("nowin"): window = []
    late = min(late, len(window))
    for op in window[:len(window) - late]: op()
    vP, vA = V(254), V(253)
    soff = sP[9] if grid else sFG
    target = sGT if grid else sGS
    def issue():
        b.I("buffer_load_dword", vP, vA, WS, soff, mods="offen sc1")
        b.vm.pop()
    def test(lbl):
        b.I("v_cmp_le_u32", "vcc", target, vP)
        b.I("s_cmp_eq_u64", "vcc", "exec")
        b.I("s_cbranch_scc1", lbl)
    if grid:
        b.I("s_mov_b32", soff, hex(F_GRID))
        b.I("v_and_b32", vA, EXP.get("shards", 8) - 1, vL)
        b.I("v_lshlrev_b32", vA, 8, vA)
    else: b.I("v_mov_b32", vA, 0)
    b.I("s_cmp_lg_u32", sW, 0)
    b.I("s_cbranch_scc1", f"PL0_{uid}")
    issue()
    b.label(f"PL0_{uid}")
    b.clear_hist()
    nt0 = b.ntag; nv0 = b.nvm
    for op in window[len(window) - late:]: op()
    late = b.nvm - nv0
    snap = b.snapshot()
    b.I("s_cmp_lg_u32", sW, 0)
    b.I("s_cbranch_scc1", f"POLLE_{uid}")
    b.wait(vm=late)
    b.I("s_mov_b32", sT2, 0)
    test(f"POLLD_{uid}")
    if EXP.get("pipe", 0):
        PR = [V(250), V(251), V(252), V(254)]
        def issue_r(r):
            b.I("buffer_load_dword", r, vA, WS, soff, mods="offen sc1")
            b.vm.pop()
        for n_, r in enumerate(PR):
            if n_: b.I("s_sleep", EXP.get("psleep", 1))
            issue_r(r)
        b.label(f"POLL_{uid}")
        for r in PR:
            b.wait(vm=3)
            b.I("v_cmp_le_u32", "vcc", target, r)
            b.I("s_cmp_eq_u64", "vcc", "exec")
            b.I("s_cbranch_scc1", f"POLLD_{uid}")
            issue_r(r)
        b.I("s_add_u32", sT2, sT2, 1)
        b.I("s_cmp_lt_u32", sT2, SPIN_MAX // 4)
        b.I("s_cbranch_scc1", f"POLL_{uid}")
    else:
        b.label(f"POLL_{uid}")
        issue()
        b.wait(vm=0)
        b.I("s_add_u32", sT2, sT2, 1)
        test(f"POLLD_{uid}")
        b.I("s_cmp_lt_u32", sT2, SPIN_MAX)
        b.I("s_cbranch_scc1", f"POLL_{uid}")
    b.label(f"POLLD_{uid}")
    if not grid and HO() == "" and uid != "s3":
        b.I("s_cmp_eq_u32", sLoc, 1)
        b.I("s_cbranch_scc1", f"POLLE_{uid}")
        b.I("buffer_inv", mods="sc1")
        b.wait(vm=0)
    b.label(f"POLLE_{uid}")
    b.restore(snap)
    b.clear_hist()
    b.barrier()

def arrive_wave(b, uid):
    snap = b.snapshot()
    b.I("v_mov_b32", vt0, 0); b.I("v_mov_b32", vt1, 1)
    b.I("s_mov_b64", "exec", 1)
    b.I("s_cmp_eq_u32", sLoc, 1)
    b.I("s_cbranch_scc1", f"ARRL_{uid}")
    b.I("buffer_wbl2", mods="sc1")
    b.wait(vm=0)
    b.I("buffer_atomic_add", vt1, vt0, WS, sFG, mods="offen sc1")
    b.I("s_branch", f"ARRX_{uid}")
    b.label(f"ARRL_{uid}")
    b.I("buffer_atomic_add", vt1, vt0, WS, sFG, mods="offen")
    b.label(f"ARRX_{uid}")
    b.I("s_mov_b64", "exec", -1)
    b.restore(snap)
    b.vm.append((("arr", uid), set()))
    b.clear_hist(); b.nop(1)

def group_sync(b, store_tag, uid, window):
    if EXP.get("wavearr", 0) and store_tag is not None:
        b.wait_vm_tag(store_tag)
        stamp(b, uid + "_drained")
        arrive_wave(b, uid)
        b.I("s_add_u32", sGS, sGS, 32)
        window_poll(b, uid, window)
        return
    window = list(window)
    if store_tag is not None:
        if EXP.get("early", 0) or (uid == "s4" and EXP.get("early4", 0)):
            for op in window: op()
            window = []
        b.wait_vm_tag(store_tag)
        stamp(b, uid + "_drained")
        b.barrier()
    if EXP.get("wavearr", 0):
        arrive_wave(b, uid)
        b.I("s_add_u32", sGS, sGS, 32)
    else:
        arrive(b, uid)
        b.I("s_add_u32", sGS, sGS, 8)
    window_poll(b, uid, window)

def grid_arrive(b, store_tag, uid):
    b.wait_vm_tag(store_tag)
    b.barrier()
    b.I("s_add_u32", sGT, sGT, 256 // EXP.get("shards", 8))
    b.I("s_cmp_lg_u32", sW, 0)
    b.I("s_cbranch_scc1", f"GA_{uid}")
    b.I("v_mov_b32", vt0, 0); b.I("v_mov_b32", vt1, 1)
    b.I("s_and_b32", sT0, sG, EXP.get("shards", 8) - 1)
    b.I("s_lshl_b32", sT0, sT0, 8)
    b.I("s_add_u32", sT0, sT0, hex(F_GRID))
    b.I("s_mov_b64", "exec", 1)
    b.I("buffer_atomic_add", vt1, vt0, WS, sT0, mods="offen sc1")
    b.vm.pop()
    b.I("s_mov_b64", "exec", -1)
    b.label(f"GA_{uid}")
    b.clear_hist(); b.nop(1)

def xcd_publish(b):
    b.I("s_cmp_lg_u32", sW, 0)
    b.I("s_cbranch_scc1", "XP_END")
    b.I("s_getreg_b32", sT0, "hwreg(HW_REG_XCC_ID, 0, 4)")
    b.I("s_lshl_b32", sT0, 1, sT0)
    b.I("v_mov_b32", vt0, 0); b.I("v_mov_b32", vt1, sT0)
    b.I("s_add_u32", sT1, sFG, F_MASK)
    b.I("s_mov_b64", "exec", 1)
    b.I("buffer_atomic_or", vt1, vt0, WS, sT1, mods="offen sc1")
    b.vm.pop()
    b.I("s_mov_b64", "exec", -1)
    b.label("XP_END")
    b.clear_hist(); b.nop(1)
def xcd_mask_load(b):
    b.I("v_mov_b32", vt0, 0)
    b.I("s_add_u32", sT1, sFG, F_MASK)
    b.I("buffer_load_dword", V(252), vt0, WS, sT1, mods="offen sc1")
def xcd_mask_use(b):
    b.I("v_readfirstlane_b32", sT0, V(252))
    b.I("s_bcnt1_i32_b32", sT0, sT0)
    b.I("s_cmp_eq_u32", sT0, 1)
    b.I("s_cselect_b32", sLoc, 1, 0)

LDS_STX = 83968
class Stats:
    def __init__(self, b, region, regs):
        self.b = b; self.R = regs
        sS = self.sS = sP[1]
        b.I("s_lshl_b32", sS, sG, 12)
        b.I("s_add_u32", sS, sS, sLO)
        b.I("s_lshl_b32", sT0, sW, 10)
        b.I("s_add_u32", sS, sS, sT0)
        b.I("s_add_u32", sS, sS, hex(off[region]))
        self.va = V(regs.i + 8); self.vw = V(regs.i + 9)
        b.I("v_lshlrev_b32", self.va, 3, vL)
        b.I("s_lshl_b32", sT0, sW, 9)
        b.I("v_add_u32", self.vw, sT0, self.va)
        b.I("v_add_u32", self.vw, LDS_STX, self.vw)
    def load(self):
        for q in range(2): self.b.I("buffer_load_dwordx2", self.R[2 * q:2 * q + 2], self.va, WS, self.sS, mods=f"offen offset:{q * 512} sc1")
    def publish(self):
        b = self.b
        pk(b, "v_pk_add_f32", self.R[0:2], self.R[0:2], self.R[2:4])
        self.tag = b.I("ds_write_b64", self.vw, self.R[0:2])
        b.I("v_add_u32", self.va, LDS_STX, self.va)
    def before_barrier(self): self.b.wait_lg_tag(self.tag)
    def fill(self, f, mean, rstd):
        b = self.b
        for q in range(4): f.add(12, lambda q=q: b.I("ds_read_b64", self.R[2 * q:2 * q + 2], self.va, mods=f"offset:{q * 512}"))
        f.add(60, lambda: None)
        f.v(b, "v_pk_add_f32", self.R[0:2], self.R[0:2], self.R[2:4])
        f.v(b, "v_pk_add_f32", self.R[4:6], self.R[4:6], self.R[6:8])
        f.v(b, "v_pk_add_f32", self.R[0:2], self.R[0:2], self.R[4:6])
        f.v(b, "v_mul_f32", mean, hex(f2u(1.0 / 640)), self.R[0])
        f.v(b, "v_mul_f32", rstd, hex(f2u(1.0 / 640)), self.R[1])
        f.v(b, "v_fma_f32", rstd, f"-{mean}", mean, rstd)
        f.v(b, "v_max_f32", rstd, 0, rstd)
        f.v(b, "v_add_f32", rstd, hex(f2u(1e-5)), rstd)
        f.add(8, lambda: b.I("v_rsq_f32", rstd, rstd))

def pk(b, op, d, *src, mods=""): b.I(op, d, *src, mods=mods)

def qkv_start(b):
    sX, sD0, sD1 = sP[0], sP[2], sP[3]
    b.I("s_add_u32", sX, sBX, hex(off["XB0"]))
    xt = XTile(b, sX, LDS_X, sD0, sD1)
    for c in range(3):
        for op in xt.ops(c): op()
    return xt
def qkv(b, xt):
    uid = "q"
    sX, sSt, sD0, sD1, sSc = sP[0], sP[1], sP[2], sP[3], sP[4]
    st = Stats(b, "STI0", V(VB, 8))
    st.load()
    ACC = [V(64, 16), V(80, 16)]
    XF = [[V(96 + 8 * p + 4 * th, 4) for th in range(2)] for p in range(4)]
    vXa, vXb = V(VB + 16), V(VB + 17)
    mean, rstd = V(VB + 18), V(VB + 19)
    mT = [V(VB + 20, 2), V(VB + 22, 2)]; rT = [V(VB + 24, 2), V(VB + 26, 2)]
    rq, rm = [V(VB + 28, 2), V(VB + 30, 2)], [V(VB + 32, 2), V(VB + 34, 2)]
    vkey, vh, vaT, vaU, vaT1, vaU1 = (V(VB + 36 + i) for i in range(6))
    CS = V(128, 16)
    b.I("v_add_u32", vXa, LDS_X, vX32)
    b.I("v_add_u32", vXb, LDS_X + 65536, vX32)
    b.I("v_lshrrev_b32", vt0, 5, vL)
    b.I("v_lshlrev_b32", vt0, 4, vt0)
    b.I("s_lshl_b32", sT0, sW, 7)
    b.I("v_add_u32", vt0, sT0, vt0)
    b.I("v_add_u32", vt0, T_CSQ, vt0)
    for c in range(4): b.I("ds_read_b128", CS[4 * c:4 * c + 4], vt0, mods=f"offset:{32 * c}")
    b.I("v_and_b32", vkey, 31, vL)
    b.I("v_lshrrev_b32", vh, 5, vL)
    b.I("s_and_b32", sT0, sW, 1)
    b.I("s_mul_i32", sT0, sT0, 3)
    b.I("v_mov_b32", vaT, sT0)
    b.I("v_add_u32", vaU, 1, vh)
    b.I("v_add_u32", vaU, sT0, vaU)
    b.I("s_cmp_ge_u32", sW, 2)
    b.I("s_cbranch_scc1", f"QKV_AV_{uid}")
    for va in (vaT, vaU):
        b.I("v_lshrrev_b32", vt0, 1, va)
        b.I("v_lshlrev_b32", vt0, 9, vt0)
        b.I("v_and_b32", vt1, 1, va)
        b.I("v_lshl_add_u32", vt0, vt1, 3, vt0)
        b.I("v_lshl_add_u32", vt0, vkey, 4, vt0)
        b.I("v_lshlrev_b32", vt1, 3, vkey)
        b.I("v_add_u32", vt1, 1024, vt1)
        b.I("v_cmp_eq_u32", "vcc", 4, va)
        b.I("v_cndmask_b32", vt0, vt0, vt1, "vcc")
        b.I("v_add_u32", vt0, LDS_KVIMG, vt0)
        b.I("v_cmp_lt_u32", "vcc", 4, va)
        b.I("v_mov_b32", vt1, PARK)
        b.I("v_cndmask_b32", va, vt0, vt1, "vcc")
    b.I("s_branch", f"QKV_AJ_{uid}")
    b.label(f"QKV_AV_{uid}")
    b.I("v_lshrrev_b32", vt0, 4, vkey)
    b.I("v_mul_u32_u24", vt0, 768, vt0)
    b.I("v_bfe_u32", vt1, vkey, 2, 1)
    b.I("v_mul_u32_u24", vt1, 384, vt1)
    b.I("v_add_u32", vt0, vt0, vt1)
    b.I("v_and_b32", vt1, 3, vkey)
    b.I("v_lshl_add_u32", vt0, vt1, 1, vt0)
    b.I("v_bfe_u32", vt1, vkey, 3, 1)
    b.I("v_lshl_add_u32", vt0, vt1, 3, vt0)
    b.I("v_add_u32", vt3, LDS_KVIMG + 1536, vt0)
    for va in (vaT, vaU):
        b.I("v_lshl_add_u32", vt0, va, 6, vt3)
        b.I("v_cmp_lt_u32", "vcc", 4, va)
        b.I("v_mov_b32", vt1, PARK)
        b.I("v_cndmask_b32", va, vt0, vt1, "vcc")
    ONE = V(144, 4)
    b.I("v_and_b32", vt0, 3, vL)
    b.I("v_mul_u32_u24", vt0, 384, vt0)
    b.I("v_bfe_u32", vt1, vL, 2, 1)
    b.I("v_mul_u32_u24", vt1, 3072, vt1)
    b.I("v_add_u32", vt0, vt0, vt1)
    b.I("v_add_u32", vt0, LDS_KVIMG + 1536 + 320, vt0)
    for e in range(4): b.I("v_mov_b32", ONE[e], "0x3f803f80")
    b.I("ds_write_b128", vt0, ONE)
    b.I("v_lshlrev_b32", vt0, 3, vkey)
    b.I("v_mul_u32_u24", vt1, 3072, vh)
    b.I("v_add_u32", vt0, vt0, vt1)
    b.I("v_add_u32", vt0, LDS_KVIMG + 1280, vt0)
    b.I("v_mov_b32", V(148), "0x3f803f80"); b.I("v_mov_b32", V(149), "0x00003f80")
    b.I("ds_write_b64", vt0, V(148, 2))
    b.label(f"QKV_AJ_{uid}")
    b.clear_hist(); b.nop(1)
    b.I("v_cmp_gt_u32", "vcc", 32, vL)
    b.I("v_mov_b32", vt1, PARK)
    b.I("v_cndmask_b32", vaT, vaT, vt1, "vcc")
    for va, va1 in ((vaT, vaT1), (vaU, vaU1)):
        b.I("v_add_u32", vt0, 3072, va)
        b.I("v_cmp_eq_u32", "vcc", va, vt1)
        b.I("v_cndmask_b32", va1, vt0, va, "vcc")
    NPRE = EXP.get("npre", 20)
    rest = list(range(NPRE, 40))
    n0 = max(0, 24 - NPRE)
    q0, rest = rest[:n0], rest[n0:]
    q1, rest = rest[:4], rest[4:]
    q2, rest = rest[:6], rest[6:]
    W_ = lambda fr: wops(b, sWQ, fr) if fr else []
    mem = {0: xt.ops(3) + W_(q0), 1: [st.publish] + W_(q1) + xt.ops(4),
           2: xt.ops(5) + W_(q2), 3: W_(rest), 4: []}
    z = Fill()
    for i in range(32, 128): z.v(b, "v_accvgpr_write_b32", A(i), 0)
    f = Fill()
    st.fill(f, mean, rstd)
    f.v(b, "v_mov_b32", mT[0][0], mean); f.v(b, "v_mov_b32", mT[1][0], mean)
    f.v(b, "v_mov_b32", rT[0][0], rstd); f.v(b, "v_mov_b32", rT[1][0], rstd)
    f.v(b, "v_permlane32_swap_b32", mT[0][0], mT[1][0]); f.v(b, "v_permlane32_swap_b32", rT[0][0], rT[1][0])
    f.add(4, lambda: b.I("s_mov_b32", sSc, hex(f2u(math.log2(math.e) / math.sqrt(20.0)))))
    f.add(4, lambda: b.I("v_cmp_gt_u32", S(48, 2), 32, vL))
    for th in range(2):
        f.v(b, "v_mul_f32", rq[th][0], sSc, rT[th][0])
        f.v(b, "v_cndmask_b32", rm[th][0], rT[th][0], rq[th][0], S(48, 2))
    def xread(s_, th):
        o = s_ * 2048 + th * 512
        base, o = (vXa, o) if o < 65536 else (vXb, o - 65536)
        b.I("ds_read_b128", XF[s_ % 4][th], base, mods=f"offset:{o}")
    stamp(b, "q_pre")
    landed = set()
    def ensure(step):
        c_ = XTile.chunk_of_unit(2 * step + 1)
        if c_ not in landed:
            if c_ == 3: st.before_barrier()
            xt.wait(c_); landed.add(c_)
            stamp(b, f"q_c{c_}")
    ensure(0)
    for th in range(2): xread(0, th)
    for th in range(2): xread(1, th)
    for c in range(5):
        m = list(mem[c])
        k = 0
        for s_ in range(8 * c, 8 * c + 8):
            if s_ + 2 < 40: ensure(s_ + 2)
            b.need(XF[s_ % 4][0], XF[s_ % 4][1], slot(s_))
            for th in range(2):
                b.I("v_mfma_f32_32x32x16_bf16", ACC[th], slot(s_), XF[s_ % 4][th], (0 if s_ == 0 else ACC[th]))
                if s_ + 2 < 40: xread(s_ + 2, th)
                if m and (k % 4 != 0 or len(m) > 15 - k): m.pop(0)()
                else: z.run(8)
                if c >= 3: f.run(8)
                k += 1
        for op in m: op()
    f.flush(); z.flush()
    stamp(b, "q_mm")
    PK = [V(152, 2), V(154, 2)]
    for th in range(2):
        for i in range(8, 16, 2):
            pk(b, "v_pk_fma_f32", ACC[th][i:i + 2], mT[th], CS[i:i + 2], ACC[th][i:i + 2], mods="op_sel_hi:[0,1,1] neg_lo:[1,0,0] neg_hi:[1,0,0]")
        for i in range(8, 16, 2):
            pk(b, "v_pk_mul_f32", ACC[th][i:i + 2], ACC[th][i:i + 2], (rm[th] if i < 12 else rT[th]), mods="op_sel_hi:[1,0]")
        for q in range(2): b.I("v_cvt_pk_bf16_f32", QT[th][q], ACC[th][8 + 2 * q], ACC[th][9 + 2 * q])
        for q in range(2): b.I("v_cvt_pk_bf16_f32", PK[th][q], ACC[th][12 + 2 * q], ACC[th][13 + 2 * q])
    b.I("s_cmp_ge_u32", sW, 2)
    b.I("s_cbranch_scc1", f"QKV_V_{uid}")
    for th in range(2):
        b.I("ds_write_b64", (vaT, vaT1)[th], QT[th])
        b.I("ds_write_b64", (vaU, vaU1)[th], PK[th])
    b.I("s_branch", f"QKV_J_{uid}")
    b.label(f"QKV_V_{uid}")
    for th in range(2):
        for va, rr in (((vaT, vaT1)[th], QT[th]), ((vaU, vaU1)[th], PK[th])):
            for q in range(2):
                b.I("ds_write_b16", va, rr[q], mods=f"offset:{32 * q}")
                b.I("ds_write_b16_d16_hi", va, rr[q], mods=f"offset:{32 * q + 16}")
    b.label(f"QKV_J_{uid}")
    b.clear_hist()
    IM = V(144, 4)
    b.I("s_mul_i32", sT0, sJ, 768)
    b.I("v_add_u32", vt0, sT0, vL16)
    b.I("v_add_u32", vt2, LDS_KVIMG, vt0)
    b.I("s_cmp_eq_u32", sW, 0)
    b.I("s_cselect_b32", sT1, 48, 0)
    b.I("v_cmp_gt_u32", "vcc", sT1, vL)
    b.I("v_mov_b32", vt1, hex(OOB))
    b.I("v_cndmask_b32", vt0, vt1, vt0, "vcc")
    b.I("s_mul_i32", sT0, sG, 6144)
    b.I("s_add_u32", sT0, sT0, sLO)
    b.I("s_add_u32", sT0, sT0, hex(off["KV0"]))
    b.wait(lg=0)
    b.barrier()
    b.I("ds_read_b128", IM, vt2)
    tag = b.I("buffer_store_dwordx4", IM, vt0, WS, sT0, mods="offen sc1")
    stamp(b, "q_kv")
    for th in range(2):
        for i in range(0, 8, 2):
            pk(b, "v_pk_fma_f32", ACC[th][i:i + 2], mT[th], CS[i:i + 2], ACC[th][i:i + 2], mods="op_sel_hi:[0,1,1] neg_lo:[1,0,0] neg_hi:[1,0,0]")
        for i in range(0, 8, 2):
            pk(b, "v_pk_mul_f32", ACC[th][i:i + 2], ACC[th][i:i + 2], rq[th], mods="op_sel_hi:[1,0]")
        for q in range(4): b.I("v_cvt_pk_bf16_f32", QM[th][q], ACC[th][2 * q], ACC[th][2 * q + 1])
    return tag

def first_layer_only(b, lbl, fn):
    if not EXP.get("defer", 0): return
    snap = b.snapshot()
    b.I("s_cmp_lg_u32", sL, 0)
    b.I("s_cbranch_scc1", lbl)
    fn(b)
    b.label(lbl)
    b.restore(snap)
    b.clear_hist()

def attention(b):
    uid = "a"
    first_layer_only(b, "TABB1", tables_b_issue)
    A2.attn_pre(b, "p", trailing_barrier=False, part=("B" if EXP.get("preA", 0) else "AB"))
    for i in range(32): b.I("v_accvgpr_write_b32", A(i), 0)
    if HO() == "":
        snap = b.snapshot()
        b.I("s_cmp_eq_u32", sL, 0)
        b.I("s_cbranch_scc1", "XCLEAN_SKIP")
        for op in tile_clean_ops(b, "XB0"): op()
        b.label("XCLEAN_SKIP")
        b.restore(snap)
        b.clear_hist()
    GW = EXP.get("gw", 4)
    window_poll(b, "gw", (wops(b, sW1, range(0, GW)) if GW else []), grid=True)
    first_layer_only(b, "TABB2", lambda b_: tables_b_finish(b_, GW))
    xcd_mask_load(b)
    stamp(b, "grid_ok")
    sWo, sWl = sP[5], sP[6]
    def on_run():
        b.I("s_mul_i32", sWo, sJ, 102400)
        b.I("s_mul_i32", sT0, sW, 3072)
        b.I("s_add_u32", sWo, sWo, sT0)
        b.I("s_add_u32", sWo, sWo, hex(off["WOP"]))
        b.I("s_add_u32", sWl, sT0, LDS_WO)
    def wo():
        ops, _ = dma_ops(b, sWo, sWl, 3, "")
        for op in ops: op()
        b.I("s_add_u32", sWo, sWo, 12288)
        b.I("s_add_u32", sWl, sWl, 12288)
    tag = A2.attn_main2(b, uid, wo, on_run, last_extra=wops(b, sW1, range(GW, 32)), freed=lambda a: wops(b, sW1, range(4 * a + 32, 4 * a + 36)), store_sc=HO(), sBX_=sBX, own_freed=(wops(b, sW1, range(32, 40)) if EXP.get("own", 0) else []), skip6=bool(EXP.get("ow1", 1)), stage_o=bool(EXP.get("stageo", 1)), after_store=((wops(b, sW1, range(56, 60)) + wops(b, sW1, range(32, 40))) if EXP.get("early", 0) else None))
    xcd_mask_use(b)

def wo_rest(b):
    b.I("s_mul_i32", sT0, sJ, 102400)
    b.I("s_lshl_b32", sT1, sW, 12)
    b.I("s_add_u32", sT0, sT0, sT1)
    b.I("s_add_u32", sT0, sT0, hex(off["WOP"] + 84 * 1024))
    b.I("s_add_u32", sT1, sT1, LDS_WO + 84 * 1024)
    ops, tags = dma_ops(b, sT0, sT1, 4, "")
    for op in ops: op()
    return tags[-1]

def acc_init(b, ACC, RES, vbias=None):
    U = V(VB + 4, 2)
    if vbias is not None:
        for fb in range(5): b.I("ds_read_b128", ACC[fb], vbias, mods=f"offset:{64 * fb}")
    for fb in range(5):
        for q in range(2):
            a2 = ACC[fb][2 * q:2 * q + 2]
            if vbias is None:
                b.I("v_lshlrev_b32", a2[0], 16, RES[fb][q])
                b.I("v_and_b32", a2[1], "0xffff0000", RES[fb][q])
            else:
                b.I("v_lshlrev_b32", U[0], 16, RES[fb][q])
                b.I("v_and_b32", U[1], "0xffff0000", RES[fb][q])
                pk(b, "v_pk_add_f32", a2, a2, U)

def resid_epi(b, ACC, RES, sdst, sstat, out_natural=None):
    ssum, ssq = V(VB, 2), V(VB + 2, 2)
    tA, tB = vt0, vt1
    wide = EXP.get("widex", 0) and out_natural is None
    for fb in range(5):
        for q in range(2): b.I("v_cvt_pk_bf16_f32", RES[fb][q], ACC[fb][2 * q], ACC[fb][2 * q + 1])
        if out_natural is not None:
            b.I("buffer_store_dwordx2", RES[fb], out_natural, OUT, sdst, mods=f"offen offset:{32 * fb} sc1")
            continue
        if wide:
            if fb in (1, 3):
                T4 = V(VB + 8 + 4 * (fb // 2), 4)
                for q in range(2): b.I("v_mov_b32", T4[q], RES[fb - 1][q]); b.I("v_mov_b32", T4[2 + q], RES[fb][q])
                b.I("v_permlane16_swap_b32", T4[0], T4[2]); b.I("v_permlane16_swap_b32", T4[1], T4[3])
                if fb == 3: b.I("s_add_u32", sdst, sdst, 4096)
                b.I("buffer_store_dwordx4", T4, V(VB + 7), WS, sdst, mods="offen sc1")
            elif fb == 4:
                b.I("s_add_u32", sdst, sdst, 4096)
                b.I("buffer_store_dwordx2", RES[fb], vEpi, WS, sdst, mods="offen sc1")
            continue
        if fb in (2, 4): b.I("s_add_u32", sdst, sdst, 4096)
        b.I("buffer_store_dwordx2", RES[fb], vEpi, WS, sdst, mods=f"offen offset:{(fb % 2) * 2048} {HO()}")
    if out_natural is not None: return None
    for fb in range(5):
        for q in range(2):
            a2 = ACC[fb][2 * q:2 * q + 2]
            if fb == 0 and q == 0:
                pk(b, "v_pk_mul_f32", ssq, a2, a2)
            elif fb == 0 and q == 1:
                pk(b, "v_pk_add_f32", ssum, ACC[0][0:2], a2); pk(b, "v_pk_fma_f32", ssq, a2, a2, ssq)
            else:
                pk(b, "v_pk_add_f32", ssum, ssum, a2); pk(b, "v_pk_fma_f32", ssq, a2, a2, ssq)
    b.I("v_add_f32", ssum[0], ssum[0], ssum[1])
    b.I("v_add_f32", ssum[1], ssq[0], ssq[1])
    for swap in ("v_permlane16_swap_b32", "v_permlane32_swap_b32"):
        b.I("v_mov_b32", tA, ssum[0]); b.I("v_mov_b32", tB, ssum[1])
        b.I(swap, ssum[0], tA); b.I(swap, ssum[1], tB)
        b.I("v_add_f32", ssum[0], ssum[0], tA); b.I("v_add_f32", ssum[1], ssum[1], tB)
    return b.I("buffer_store_dwordx2", ssum, V(VB + 6), WS, sstat, mods=f"offen {HO()}")

OPR_ACC0 = [V(144 + 4 * fb, 4) for fb in range(5)]
FF2_ACC0 = [V(160 + 4 * fb, 4) for fb in range(5)]
def oproj_init(b): acc_init(b, OPR_ACC0, RESID)
def ffn2_init(b):
    vb = V(VB + 34)
    b.I("v_lshrrev_b32", vt0, 4, vL)
    b.I("v_lshlrev_b32", vt0, 4, vt0)
    b.I("v_add_u32", vb, T_B2, vt0)
    acc_init(b, FF2_ACC0, RESID, vbias=vb)

OKEEP = [V(224, 6), V(230, 6)]
def o_keep(b):
    if HO() != "": return
    for q in range(2):
        for i in range(6): b.I("v_mov_b32", OKEEP[q][i], PP[q][i])
    b.I("v_mov_b32", V(236), V(216)); b.I("v_mov_b32", V(237), V(217))
def o_clean_ops(b):
    if HO() != "": return []
    return [lambda q=q, c=c: b.I("buffer_store_dwordx2", OKEEP[q][2 * c:2 * c + 2], (V(236) if c < 2 else V(237)), WS, S(45), mods=f"offen offset:{c * 1024 + q * 512} sc1")
            for q in range(2) for c in range(3)]
def tile_clean_ops(b, region):
    if HO() != "": return []
    sC_ = sP[8]
    ops = []
    def first():
        b.I("s_and_b32", sT0, sW, 1)
        b.I("s_lshl_b32", sT0, sT0, 1)
        b.I("s_lshr_b32", sT1, sW, 1)
        b.I("s_or_b32", sT0, sT0, sT1)
        b.I("s_lshl_b32", sT0, sT0, 8)
        b.I("s_mul_i32", sT1, sJ, 10240)
        b.I("s_add_u32", sT0, sT0, sT1)
        b.I("s_add_u32", sT0, sT0, sBX)
        b.I("s_add_u32", sC_, sT0, hex(off[region]))
    for fb in range(5):
        def one(fb=fb):
            if fb == 0: first()
            if fb in (2, 4): b.I("s_add_u32", sC_, sC_, 4096)
            b.I("buffer_store_dwordx2", RESID[fb], vEpi, WS, sC_, mods=f"offen offset:{(fb % 2) * 2048} sc1")
        ops.append(one)
    return ops

def stat_addr(b):
    b.I("v_lshlrev_b32", vt0, 3, vL)
    b.I("v_cmp_gt_u32", "vcc", 16, vL)
    b.I("v_mov_b32", vt1, hex(OOB))
    b.I("v_cndmask_b32", V(VB + 6), vt1, vt0, "vcc")
    if EXP.get("widex", 0):
        b.I("v_lshrrev_b32", vt0, 4, vL)
        b.I("v_lshrrev_b32", vt1, 1, vt0)
        b.I("v_lshlrev_b32", V(VB + 7), 10, vt1)
        b.I("v_and_b32", vt1, 1, vt0)
        b.I("v_lshl_add_u32", V(VB + 7), vt1, 11, V(VB + 7))
        b.I("v_and_b32", vt1, 15, vL)
        b.I("v_lshl_add_u32", V(VB + 7), vt1, 4, V(VB + 7))

def resid_ops(b, sbase, RES):
    ops = []
    for fb in range(5):
        def one(fb=fb):
            if fb in (2, 4): b.I("s_add_u32", sbase, sbase, 4096)
            b.I("buffer_load_dwordx2", RES[fb], vEpi, WS, sbase, mods=f"offen offset:{(fb % 2) * 2048} sc1")
        ops.append(one)
    return ops

def oproj(b):
    sO, sRes, sTB, sDst, sSt = sP[0], sP[1], sP[2], sP[3], sP[4]
    XF = [[V(64 + 8 * s_ + 4 * a, 4) for a in range(2)] for s_ in range(10)]
    ACC = [[V(144 + 20 * a + 4 * fb, 4) for fb in range(5)] for a in range(2)]
    WF = [[V(184 + 20 * p + 4 * fb, 4) for fb in range(5)] for p in range(2)]
    RES = RESID
    vXa = [V(VB + 30), V(VB + 31)]; vWa = V(VB + 32); vR = V(VB + 33); vR2 = V(VB + 34)
    b.I("s_and_b32", sT0, sW, 1)
    b.I("s_lshr_b32", sT1, sW, 1)
    b.I("s_lshl_b32", sT0, sT0, 1)
    b.I("s_add_u32", sTB, sT0, sT1)
    b.I("s_xor_b32", sT2, sTB, 1)
    b.I("s_lshl_b32", sT3, sTB, 8)
    b.I("v_add_u32", vXa[0], sT3, vX16)
    b.I("s_lshl_b32", sT2, sT2, 8)
    b.I("v_add_u32", vXa[1], sT2, vX16)
    b.I("s_mul_i32", sT1, sT1, 40960)
    b.I("s_add_u32", sO, sBX, sT1)
    b.I("s_add_u32", sO, sO, hex(off["O0"]))
    def xload(s_):
        for a in range(2): b.I("buffer_load_dwordx4", XF[s_][a], vXa[a], WS, sO, mods="offen sc1")
        if s_ < 9: b.I("s_add_u32", sO, sO, 4096)
    def xops(s_):
        return [lambda: b.I("buffer_load_dwordx4", XF[s_][0], vXa[0], WS, sO, mods="offen sc1"),
                lambda: (b.I("buffer_load_dwordx4", XF[s_][1], vXa[1], WS, sO, mods="offen sc1"), b.I("s_add_u32", sO, sO, 4096))]
    OL = EXP.get("olead", 5)
    for s_ in range(OL): xload(s_)
    b.I("s_mul_i32", sT0, sJ, 10240)
    b.I("s_add_u32", sT0, sT0, sT3)
    b.I("s_add_u32", sRes, sBX, sT0)
    b.I("s_add_u32", sDst, sRes, hex(off["X10"]))
    b.I("v_lshrrev_b32", vt0, 4, vL)
    b.I("v_mul_u32_u24", vt0, 1280, vt0)
    b.I("v_and_b32", vt1, 15, vL)
    b.I("v_lshl_add_u32", vWa, vt1, 4, vt0)
    b.I("s_lshr_b32", sT1, sW, 1)
    b.I("s_mul_i32", sT1, sT1, 51200)
    b.I("v_add_u32", vWa, sT1, vWa)
    b.I("v_add_u32", vWa, LDS_WO, vWa)
    b.I("s_mul_i32", sT0, sW, 5120)
    b.I("v_add_u32", vR, sT0, vL16)
    b.I("v_add_u32", vR, LDS_RED_O, vR)
    b.I("s_xor_b32", sT0, sW, 2)
    b.I("s_mul_i32", sT0, sT0, 5120)
    b.I("v_add_u32", vR2, sT0, vL16)
    b.I("v_add_u32", vR2, LDS_RED_O, vR2)
    b.I("s_lshl_b32", sSt, sG, 12)
    b.I("s_add_u32", sSt, sSt, sLO)
    b.I("s_lshl_b32", sT0, sJ, 9)
    b.I("s_add_u32", sSt, sSt, sT0)
    b.I("s_lshl_b32", sT0, sTB, 7)
    b.I("s_add_u32", sSt, sSt, sT0)
    b.I("s_add_u32", sSt, sSt, hex(off["ST10"]))
    stat_addr(b)
    def wread(s_, fb): b.I("ds_read_b128", WF[s_ % 2][fb], vWa, mods=f"offset:{s_ * 5120 + fb * 256}")
    for fb in range(5): wread(0, fb)
    stamp(b, "o_pre")
    late_w = (wops(b, sW1, range(32, 40)) + wops(b, sW1, range(56, 60))) if EXP.get("ow1", 1) else []
    for s_ in range(10):
        m = (xops(s_ + OL) if s_ + OL < 10 else [])
        if s_ >= 10 - OL:
            n_ = -(-len(late_w) // (10 - s_))
            m = m + late_w[:n_]; late_w = late_w[n_:]
        if s_ == 6: m = m + l2_warm(b, "W2P", 245760)
        order = [(fb, a) for fb in range(5) for a in range(2)] if s_ < 9 else [(fb, 1) for fb in range(5)] + [(fb, 0) for fb in range(5)]
        b.need(*WF[s_ % 2], *XF[s_])
        for k, (fb, a) in enumerate(order):
            b.I("v_mfma_f32_16x16x32_bf16", ACC[a][fb], WF[s_ % 2][fb], XF[s_][a], (0 if s_ == 0 and a == 1 else ACC[a][fb]))
            if s_ < 9 and k < 5: wread(s_ + 1, k)
            if m and k in (5, 7, 9): m.pop(0)()
            if s_ == 9 and k >= 7: b.I("ds_write_b128", vR, ACC[1][k - 7], mods=f"offset:{(k - 7) * 1024}")
        for op in m: op()
        if s_ == 0: stamp(b, "o_s0")
    for fb in (3, 4): b.I("ds_write_b128", vR, ACC[1][fb], mods=f"offset:{fb * 1024}")
    stamp(b, "o_mm")
    b.wait(lg=0)
    b.barrier()
    for fb in range(5): b.I("ds_read_b128", WF[0][fb], vR2, mods=f"offset:{fb * 1024}")
    for fb in range(5):
        for q in range(2): pk(b, "v_pk_add_f32", ACC[0][fb][2 * q:2 * q + 2], ACC[0][fb][2 * q:2 * q + 2], WF[0][fb][2 * q:2 * q + 2])
    stamp(b, "o_red")
    return resid_epi(b, ACC[0], RES, sDst, sSt)

def ffn1(b):
    sX, sSt, sH, sD0, sD1 = sP[0], sP[1], sP[2], sP[5], sP[6]
    b.I("s_add_u32", sX, sBX, hex(off["X10"]))
    xt = XTile(b, sX, LDS_X, sD0, sD1)
    for c in range(3):
        for op in xt.ops(c): op()
    st = Stats(b, "ST10", V(VB, 8))
    st.load()
    ACC = [[V(64 + 16 * fb + 4 * tb, 4) for tb in range(4)] for fb in range(3)]
    XF = [[V(112 + 16 * p + 4 * tb, 4) for tb in range(4)] for p in range(2)]
    vXa, vXb = V(VB + 16), V(VB + 17)
    mean, rstd = V(VB + 18), V(VB + 19)
    MR = [V(176 + 2 * i, 2) for i in range(4)]; RS = [V(184 + 2 * i, 2) for i in range(4)]
    CS = V(144, 12); BI = V(156, 12)
    b.I("v_add_u32", vXa, LDS_X, vX16)
    b.I("v_add_u32", vXb, LDS_X + 65536, vX16)
    b.I("v_lshrrev_b32", vt0, 4, vL)
    b.I("v_lshlrev_b32", vt0, 4, vt0)
    b.I("s_mul_i32", sT0, sW, 192)
    b.I("v_add_u32", vt0, sT0, vt0)
    b.I("v_add_u32", vt1, T_CS1, vt0)
    b.I("v_add_u32", vt2, T_B1, vt0)
    for fb in range(3):
        b.I("ds_read_b128", CS[4 * fb:4 * fb + 4], vt1, mods=f"offset:{64 * fb}")
        b.I("ds_read_b128", BI[4 * fb:4 * fb + 4], vt2, mods=f"offset:{64 * fb}")
    b.I("s_mul_i32", sH, sG, 196608)
    b.I("s_add_u32", sH, sH, sLO)
    b.I("s_mul_i32", sT0, sJ, 24576)
    b.I("s_add_u32", sH, sH, sT0)
    b.I("s_mul_i32", sT0, sW, 6144)
    b.I("s_add_u32", sH, sH, sT0)
    b.I("s_add_u32", sH, sH, hex(off["H0"]))
    vH4 = V(194)
    if EXP.get("wideh", 0):
        b.I("v_lshrrev_b32", vt0, 4, vL)
        b.I("v_lshrrev_b32", vt1, 1, vt0)
        b.I("v_lshlrev_b32", vH4, 10, vt1)
        b.I("v_and_b32", vt1, 1, vt0)
        b.I("v_lshl_add_u32", vH4, vt1, 8, vH4)
        b.I("v_and_b32", vt1, 15, vL)
        b.I("v_lshl_add_u32", vH4, vt1, 4, vH4)
    c0 = -2.0 * math.sqrt(2.0 / math.pi) * math.log2(math.e)
    sC = S(50, 2)
    vC0 = V(192, 2)
    b.I("s_mov_b32", sC[0], hex(f2u(c0 * 0.044715)))
    b.I("v_mov_b32", vC0[0], hex(f2u(c0)))
    f = Fill()
    st.fill(f, mean, rstd)
    f.v(b, "v_mul_f32", mean, mean, rstd)
    for src, d4 in ((mean, MR), (rstd, RS)):
        d = [x[0] for x in d4]
        f.v(b, "v_mov_b32", d[0], src); f.v(b, "v_mov_b32", d[2], src)
        f.v(b, "v_permlane32_swap_b32", d[0], d[2])
        f.v(b, "v_mov_b32", d[1], d[0]); f.v(b, "v_mov_b32", d[3], d[2])
        f.v(b, "v_permlane16_swap_b32", d[0], d[1]); f.v(b, "v_permlane16_swap_b32", d[2], d[3])
    def xread(s_, tb):
        o = s_ * 4096 + tb * 256
        base, o = (vXa, o) if o < 65536 else (vXb, o - 65536)
        b.I("ds_read_b128", XF[s_ % 2][tb], base, mods=f"offset:{o}")
    stamp(b, "f_pre")
    mem = []
    NW2 = EXP.get('nw2', 52)
    w2q = wops(b, sW2, range(0, NW2)); w2n = 0; NM_ = EXP.get('nm', 52)
    landed = set()
    def ensure(step):
        c_ = XTile.chunk_of_unit(4 * step + 3)
        if c_ not in landed:
            if c_ == 3: st.before_barrier()
            xt.wait(c_); landed.add(c_)
            stamp(b, f"f_c{c_}")
    ensure(0)
    for tb in range(4): xread(0, tb)
    for c in range(5):
        if c + 3 < 6: mem += xt.ops(c + 3)
        if c == 4: mem += l2_warm(b, "WQP", 163840)
        for s_ in range(4 * c, 4 * c + 4):
            if s_ == 5: st.publish()
            if s_ + 1 < 20: ensure(s_ + 1)
            k = 0
            b.need(*XF[s_ % 2], slot(3 * s_), slot(3 * s_ + 1), slot(3 * s_ + 2))
            for fb in range(3):
                for tb in range(4):
                    b.I("v_mfma_f32_16x16x32_bf16", ACC[fb][tb], slot(3 * s_ + fb), XF[s_ % 2][tb], (0 if s_ == 0 else ACC[fb][tb]))
                    if k < 4 and s_ + 1 < 20: xread(s_ + 1, k)
                    elif k in ((5, 8, 11) if EXP.get("slots3", 1) else (6, 10)):
                        if mem: mem.pop(0)()
                        elif w2n < min(NM_, 3 * s_ + (k + 1) // 4): w2q[w2n](); w2n += 1
                    elif c >= 2 and f.q: f.run(5)
                    k += 1
    for op in mem: op()
    f.flush()
    stamp(b, "f_mm")
    T = [V(168 + 2 * i, 2) for i in range(4)]
    tag = None
    for fb in range(3):
        for tp in range(2):
            el = [(ACC[fb][2 * tp + u][2 * q:2 * q + 2], T[2 * u + q], 2 * tp + u, q) for u in range(2) for q in range(2)]
            for a, t, tb, q in el: pk(b, "v_pk_fma_f32", t, MR[tb], CS[4 * fb + 2 * q:4 * fb + 2 * q + 2], BI[4 * fb + 2 * q:4 * fb + 2 * q + 2], mods="op_sel_hi:[0,1,1] neg_lo:[1,0,0] neg_hi:[1,0,0]")
            for a, t, tb, q in el: pk(b, "v_pk_fma_f32", a, RS[tb], a, t, mods="op_sel_hi:[0,1,1]")
            for a, t, tb, q in el: pk(b, "v_pk_mul_f32", t, a, a)
            for a, t, tb, q in el: pk(b, "v_pk_fma_f32", t, t, sC, vC0, mods="op_sel_hi:[1,0,0]")
            for a, t, tb, q in el: pk(b, "v_pk_mul_f32", t, t, a)
            for _ in range(2):
                if w2n < NW2: w2q[w2n](); w2n += 1
            for a, t, tb, q in el:
                for e in range(2): b.I("v_exp_f32", t[e], t[e])
            if w2n < NW2: w2q[w2n](); w2n += 1
            for a, t, tb, q in el: pk(b, "v_pk_add_f32", t, t, 1.0, mods="op_sel_hi:[1,0]")
            for a, t, tb, q in el:
                for e in range(2): b.I("v_rcp_f32", t[e], t[e])
            for a, t, tb, q in el: pk(b, "v_pk_mul_f32", a, a, t)
            for _ in range(2):
                if w2n < NW2: w2q[w2n](); w2n += 1
            if EXP.get("wideh", 0):
                X_, Y_ = ACC[fb][2 * tp], ACC[fb][2 * tp + 1]
                b.I("v_cvt_pk_bf16_f32", X_[0], X_[0], X_[1]); b.I("v_cvt_pk_bf16_f32", X_[1], X_[2], X_[3])
                b.I("v_cvt_pk_bf16_f32", X_[2], Y_[0], Y_[1]); b.I("v_cvt_pk_bf16_f32", X_[3], Y_[2], Y_[3])
                b.I("v_permlane16_swap_b32", X_[0], X_[2]); b.I("v_permlane16_swap_b32", X_[1], X_[3])
                tag = b.I("buffer_store_dwordx4", X_, vH4, WS, sH, mods=f"offen offset:{tp * 512} sc1")
            else:
                for u in range(2):
                    a4 = ACC[fb][2 * tp + u]
                    for q in range(2): b.I("v_cvt_pk_bf16_f32", a4[q], a4[2 * q], a4[2 * q + 1])
                    tag = b.I("buffer_store_dwordx2", a4[0:2], vEpi, WS, sH, mods=f"offen offset:{(2 * tp + u) * 256} sc1")
        if fb < 2: b.I("s_add_u32", sH, sH, 2048)
    while w2n < NW2: w2q[w2n](); w2n += 1
    return tag

def ffn2(b):
    sH, sRes, sDst, sSt, sH9 = sP[0], sP[1], sP[2], sP[3], sP[4]
    NB = 6
    XF = [[V(64 + 16 * p + 4 * a, 4) for a in range(4)] for p in range(NB)]
    ACC = [[V(160 + 20 * a + 4 * fb, 4) for fb in range(5)] for a in range(4)]
    RES = RESID
    BI = V(64, 20)
    vXa = [V(VB + 26 + a) for a in range(4)]
    vRw = [V(VB + 30 + a) for a in range(3)]; vRr = V(VB + 33); vB2 = V(VB + 34)
    sTB = sP[5]
    for a in range(4):
        b.I("s_add_u32", sT0, sW, a)
        b.I("s_and_b32", sT1, sT0, 1)
        b.I("s_lshl_b32", sT1, sT1, 1)
        b.I("s_bfe_u32", sT0, sT0, "0x10001")
        b.I("s_or_b32", sT0, sT0, sT1)
        if a == 0: b.I("s_mov_b32", sTB, sT0)
        b.I("s_lshl_b32", sT0, sT0, 8)
        b.I("v_add_u32", vXa[a], sT0, vX16)
    b.I("s_mul_i32", sH, sG, 196608)
    b.I("s_add_u32", sH, sH, sLO)
    b.I("s_mul_i32", sT0, sW, 49152)
    b.I("s_add_u32", sH, sH, sT0)
    b.I("s_add_u32", sH, sH, hex(off["H0"]))
    def xops(s_):
        ops = [lambda a=a: b.I("buffer_load_dwordx4", XF[s_ % NB][a], vXa[a], WS, sH, mods="offen sc1") for a in range(3)]
        ops.append(lambda: (b.I("buffer_load_dwordx4", XF[s_ % NB][3], vXa[3], WS, sH, mods="offen sc1"), b.I("s_add_u32", sH, sH, 4096)))
        return ops
    GL = EXP.get("glead", 2)
    for s_ in range(GL):
        for op in xops(s_): op()
    b.I("s_mul_i32", sT0, sJ, 10240)
    b.I("s_add_u32", sRes, sBX, sT0)
    b.I("s_lshl_b32", sT0, sTB, 8)
    b.I("s_add_u32", sRes, sRes, sT0)
    b.I("s_add_u32", sDst, sRes, hex(off["XB0"] + LS))
    for a in range(1, 4):
        b.I("s_add_u32", sT0, sW, a)
        b.I("s_and_b32", sT0, sT0, 3)
        b.I("s_mul_i32", sT0, sT0, 15360)
        b.I("s_add_u32", sT0, sT0, LDS_RED_F + (a - 1) * 5120)
        b.I("v_add_u32", vRw[a - 1], sT0, vL16)
    b.I("s_mul_i32", sT0, sW, 15360)
    b.I("s_add_u32", sT0, sT0, LDS_RED_F)
    b.I("v_add_u32", vRr, sT0, vL16)
    b.I("s_lshl_b32", sSt, sG, 12)
    b.I("s_lshl_b32", sT0, sJ, 9)
    b.I("s_add_u32", sSt, sSt, sT0)
    b.I("s_lshl_b32", sT0, sTB, 7)
    b.I("s_add_u32", sSt, sSt, sT0)
    b.I("s_add_u32", sSt, sSt, hex(off["STI0"] + LS))
    stat_addr(b)
    stamp(b, "g_pre")
    mem = []
    for s_ in range(GL, 9): mem += xops(s_)
    for a in (1, 2, 3, 0):
        for s_ in range(9, 12):
            mem.append(lambda a=a, s_=s_: (b.I("s_add_u32", sH9, sH, (s_ - 9) * 4096), b.I("buffer_load_dwordx4", XF[s_ % NB][a], vXa[a], WS, sH9, mods="offen sc1")))
    issued = 4 * GL
    for s_ in range(9):
        k = 0
        b.need(*XF[s_ % NB], *[slot(5 * s_ + fb) for fb in range(5)])
        for fb in range(5):
            for a in range(4):
                b.I("v_mfma_f32_16x16x32_bf16", ACC[a][fb], slot(5 * s_ + fb), XF[s_ % NB][a], (0 if s_ == 0 and a else ACC[a][fb]))
                if mem and k % EXP.get("gden", 4) == EXP.get("gden", 4) - 2 and (issued // 4 if issued < 36 else 9 + (issued - 36) % 3) - NB < s_:
                    mem.pop(0)(); issued += 1
                k += 1
        if s_ in (0, 5): stamp(b, f"g_s{s_}")
    pend = []
    NQ = EXP.get("npre", 20) - 8
    wq = wops(b, sWQ, range(0, NQ))
    early_q = EXP.get("eq", 1)
    for a in (1, 2, 3, 0):
        k = 0
        for s_ in range(9, 12):
            for fb in range(5):
                b.I("v_mfma_f32_16x16x32_bf16", ACC[a][fb], slot(5 * s_ + fb), XF[s_ % NB][a], ACC[a][fb])
                if mem and k % EXP.get("gtail", 3) == 1: mem.pop(0)()
                elif pend and k >= 3 and k % 2 == 1: pend.pop(0)()
                elif early_q and not mem and wq and a in (3, 0) and k % 2 == 0: wq.pop(0)()
                k += 1
        for op in pend: op()
        pend = [lambda fb=fb, a=a: b.I("ds_write_b128", vRw[a - 1], ACC[a][fb], mods=f"offset:{fb * 1024}") for fb in range(5)] if a else []
    assert not mem
    stamp(b, "g_mm")
    NQ = len(wq)
    for _ in range(NQ // 2): wq.pop(0)()
    b.wait(lg=0)
    b.barrier()
    for a in range(1, 4):
        for fb in range(5): b.I("ds_read_b128", ACC[a][fb], vRr, mods=f"offset:{(a - 1) * 5120 + fb * 1024}")
    for _ in range(NQ - NQ // 2): wq.pop(0)()
    for a in range(1, 4):
        for fb in range(5):
            for q in range(2): pk(b, "v_pk_add_f32", ACC[0][fb][2 * q:2 * q + 2], ACC[0][fb][2 * q:2 * q + 2], ACC[a][fb][2 * q:2 * q + 2])
    stamp(b, "g_red")
    b.I("s_cmp_eq_u32", sL, 1)
    b.I("s_cbranch_scc1", "FFN2_FINAL")
    snap = b.snapshot(); hist = list(b.hist)
    tag = resid_epi(b, ACC[0], RES, sDst, sSt)
    assert not wq
    def final():
        b.label("FFN2_FINAL")
        b.restore(snap); b.hist = hist
        b.I("s_lshl_b32", sT0, sG, 6)
        b.I("s_lshl_b32", sT1, sTB, 4)
        b.I("s_add_u32", sT0, sT0, sT1)
        b.I("s_mul_i32", sDst, sT0, 1280)
        b.I("s_mul_i32", sT0, sJ, 160)
        b.I("s_add_u32", sDst, sDst, sT0)
        if not EXP.get("wideout", 1):
            vo = V(VB + 8)
            b.I("v_and_b32", vt0, 15, vL)
            b.I("v_mul_u32_u24", vo, 1280, vt0)
            b.I("v_lshrrev_b32", vt0, 4, vL)
            b.I("v_lshl_add_u32", vo, vt0, 3, vo)
            resid_epi(b, ACC[0], RES, sDst, None, out_natural=vo)
            return
        LO = 65536
        vw, vr, vo = V(VB + 8), V(VB + 9), V(VB + 10)
        b.I("s_mul_i32", sT0, sW, 16 * 176)
        b.I("v_and_b32", vt0, 15, vL)
        b.I("v_mul_u32_u24", vw, 176, vt0)
        b.I("v_lshrrev_b32", vt1, 4, vL)
        b.I("v_lshl_add_u32", vw, vt1, 3, vw)
        b.I("v_add_u32", vw, sT0, vw)
        b.I("v_add_u32", vw, LO, vw)
        for fb in range(5):
            for q in range(2): b.I("v_cvt_pk_bf16_f32", RES[fb][q], ACC[0][fb][2 * q], ACC[0][fb][2 * q + 1])
            b.I("ds_write_b64", vw, RES[fb], mods=f"offset:{32 * fb}")
        b.I("v_mul_u32_u24", vt0, 6554, vL)
        b.I("v_lshrrev_b32", vt0, 16, vt0)
        b.I("v_mul_u32_u24", vt1, 10, vt0)
        b.I("v_sub_u32", vt1, vL, vt1)
        b.I("v_mul_u32_u24", vr, 176, vt0)
        b.I("v_lshl_add_u32", vr, vt1, 4, vr)
        b.I("v_add_u32", vr, sT0, vr)
        b.I("v_add_u32", vr, LO, vr)
        b.I("v_mul_u32_u24", vo, 1280, vt0)
        b.I("v_lshl_add_u32", vo, vt1, 4, vo)
        OB = [V(64 + 4 * i_, 4) for i_ in range(3)]
        b.wait(lg=0)
        for i_ in range(3): b.I("ds_read_b128", OB[i_], vr, mods=f"offset:{6 * 176 * i_}")
        for i_ in range(3):
            lim = 60 if i_ < 2 else 40
            b.I("v_cmp_gt_u32", "vcc", lim, vL)
            b.I("v_mov_b32", vt2, hex(OOB))
            b.I("v_cndmask_b32", vt3, vt2, vo, "vcc")
            b.I("buffer_store_dwordx4", OB[i_], vt3, OUT, sDst, mods="offen " + {0: "", 1: "sc1", 2: "nt", 3: "sc0 sc1"}[EXP.get("outsc", 0)])
            if i_ < 2: b.I("s_add_u32", sDst, sDst, 6 * 1280)
    return tag, final

def tables_a(b, after_loads):
    a = [V(VB + i) for i in range(4)]
    vo = V(VB + 12)
    b.I("v_lshlrev_b32", vo, 2, V(0))
    b.I("s_lshl_b32", sT0, sJ, 9)
    b.I("s_add_u32", sT0, sT0, hex(off["CSQ"]))
    for kr in range(4):
        b.I("buffer_load_dword", a[kr], vo, WS, sT0, mods="offen")
        if kr < 3: b.I("s_add_u32", sT0, sT0, 4096)
    after_loads()
    b.I("v_add_f32", a[0], a[0], a[1]); b.I("v_add_f32", a[2], a[2], a[3]); b.I("v_add_f32", a[0], a[0], a[2])
    b.I("v_cmp_gt_u32", "vcc", 128, V(0))
    b.I("v_mov_b32", vt0, PARK)
    b.I("v_add_u32", vt1, T_CSQ, vo)
    b.I("v_cndmask_b32", vt1, vt0, vt1, "vcc")
    b.I("ds_write_b32", vt1, a[0])
    b.wait(lg=0)
    b.barrier()

def tables_b_issue(b):
    a = [V(200 + i) for i in range(6)]
    vo, vo2, vo3 = V(206), V(207), V(208)
    b.I("v_lshlrev_b32", vo, 2, V(0))
    b.I("s_mul_i32", sT1, sJ, 768)
    b.I("s_add_u32", sT0, sT1, hex(off["CS1"]))
    for kr in range(4):
        b.I("buffer_load_dword", a[kr], vo, WS, sT0, mods="offen")
        if kr < 3: b.I("s_add_u32", sT0, sT0, 6144)
    b.I("v_min_u32", vo2, 191, V(0))
    b.I("v_lshlrev_b32", vo2, 1, vo2)
    b.I("s_mul_i32", sT1, sJ, 384)
    b.I("v_add_u32", vo2, sT1, vo2)
    b.I("global_load_ushort", a[4], vo2, P_B1)
    b.I("v_min_u32", vo3, 79, V(0))
    b.I("v_lshlrev_b32", vo3, 1, vo3)
    b.I("s_mul_i32", sT1, sJ, 160)
    b.I("v_add_u32", vo3, sT1, vo3)
    b.I("global_load_ushort", a[5], vo3, P_B2)
    b.I("s_and_b32", sT0, sW, 1)
    b.I("s_lshl_b32", sT0, sT0, 1)
    b.I("s_lshr_b32", sT1, sW, 1)
    b.I("s_or_b32", sT0, sT0, sT1)
    b.I("s_lshl_b32", sT0, sT0, 8)
    b.I("s_mul_i32", sT1, sJ, 10240)
    b.I("s_add_u32", sT0, sT0, sT1)
    b.I("s_add_u32", sT0, sT0, sBX)
    b.I("s_add_u32", sP[8], sT0, hex(off["XB0"]))
    for op in resid_ops(b, sP[8], RESID): op()

def tables_b_finish(b, younger):
    a = [V(200 + i) for i in range(6)]
    vo = V(206)
    b.wait(vm=younger)
    b.I("v_add_f32", a[0], a[0], a[1]); b.I("v_add_f32", a[2], a[2], a[3]); b.I("v_add_f32", a[0], a[0], a[2])
    b.I("v_lshlrev_b32", a[4], 16, a[4]); b.I("v_lshlrev_b32", a[5], 16, a[5])
    for cnt, reg, dst in ((192, a[0], T_CS1), (192, a[4], T_B1), (80, a[5], T_B2)):
        b.I("v_cmp_gt_u32", "vcc", cnt, V(0))
        b.I("v_mov_b32", vt0, PARK)
        b.I("v_add_u32", vt1, dst, vo)
        b.I("v_cndmask_b32", vt1, vt0, vt1, "vcc")
        b.I("ds_write_b32", vt1, reg)
    b.wait(lg=0)

def gen_fused(b):
    setup(b, "MAIN_END")
    b.I("s_mov_b32", sL, 0); b.I("s_mov_b32", sLO, 0)
    b.I("s_mov_b32", sGS, 0); b.I("s_mov_b32", sGT, 0)
    b.I("s_lshl_b32", sFG, sG, 8)
    b.I("s_add_u32", sFG, sFG, hex(off["FLAGS"]))
    b.I("s_mov_b32", sLoc, 0)
    xcd_publish(b)
    stamp(b, "start")
    b.I("s_lshl_b32", sT0, sJ, 2)
    b.I("s_add_u32", sT0, sT0, sW)
    b.I("s_mul_i32", S(57), sT0, 40960)
    b.I("s_add_u32", S(57), S(57), hex(off["WQP"]))
    b.I("s_mul_i32", sBX, sG, 81920)
    qkv_start(b)
    if EXP.get("defer", 0):
        tables_a(b, lambda: [op() for op in wops(b, S(57), range(0, EXP.get("npre", 20)))])
    else:
        b.I("s_and_b32", sT0, sW, 1)
        b.I("s_lshl_b32", sT0, sT0, 1)
        b.I("s_lshr_b32", sT1, sW, 1)
        b.I("s_or_b32", sT0, sT0, sT1)
        b.I("s_lshl_b32", sT0, sT0, 8)
        b.I("s_mul_i32", sT1, sJ, 10240)
        b.I("s_add_u32", sT0, sT0, sT1)
        b.I("s_add_u32", sT0, sT0, sBX)
        b.I("s_add_u32", sP[8], sT0, hex(off["XB0"]))
        def after_table_loads():
            for op in wops(b, S(57), range(0, EXP.get("npre", 20))): op()
            for op in resid_ops(b, sP[8], RESID): op()
        tables(b, after_loads=after_table_loads)
    b.I("s_lshl_b32", sT0, sJ, 2)
    b.I("s_add_u32", sT0, sT0, sW)
    b.I("s_mul_i32", sWQ, sT0, 40960)
    b.I("s_add_u32", sWQ, sWQ, hex(off["WQP"]))
    b.I("s_mul_i32", sW1, sT0, 61440)
    b.I("s_add_u32", sW2, sW1, hex(off["W2P"]))
    b.I("s_add_u32", sW1, sW1, hex(off["W1P"]))
    b.I("s_mul_i32", sBX, sG, 81920)
    if EXP.get("hotw"):
        b.I("s_mul_i32", sWQ, sW, 61440)
        b.I("s_add_u32", sWQ, sWQ, hex(off["WQP"]))
        b.I("s_mov_b32", sW1, sWQ); b.I("s_mov_b32", sW2, sWQ)
    b.I("s_branch", "LAYER_REST")
    b.label("LAYER")
    b.clear_hist()
    xt = qkv_start(b)
    b.label("LAYER_REST")
    b.clear_hist()
    stamp(b, "layer")
    tag = qkv(b, xt)
    stamp(b, "qkv_end")
    if EXP.get("preA", 0):
        A2.attn_pre(b, "p", trailing_barrier=False, part="A")
        b.wait(lg=0)
    grid_arrive(b, tag, "g")
    attention(b)
    wo_tag = []
    S1W = 0 if (EXP.get("own", 0) or EXP.get("early", 0) or EXP.get("ow1", 1)) else 8
    group_sync(b, None, "s1", [lambda: wo_tag.append(wo_rest(b))] + wops(b, sW1, range(32, 32 + S1W)) + [lambda: (o_keep(b), oproj_init(b))])
    b.wait_vm_tag(wo_tag[0]); b.barrier()
    stamp(b, "s1_ok")
    tag = oproj(b)
    stamp(b, "opr_end")
    group_sync(b, tag, "s2", o_clean_ops(b))
    stamp(b, "s2_ok")
    tag = ffn1(b)
    stamp(b, "ff1_end")
    group_sync(b, tag, "s3", wops(b, sW2, range(EXP.get("nw2", 52), 60)) + tile_clean_ops(b, "X10") + [lambda: ffn2_init(b)])
    stamp(b, "s3_ok")
    tag, final = ffn2(b)
    stamp(b, "ff2_end")
    group_sync(b, tag, "s4", wops(b, sWQ, range(EXP.get("npre", 20) - 8, EXP.get("npre", 20))))
    stamp(b, "s4_ok")
    b.I("s_mov_b32", sL, 1)
    b.I("s_mov_b32", sLO, hex(LS))
    b.I("s_add_u32", sBX, sBX, hex(LS))
    if M.PROFILE: M.stamp_flush(b, 0)
    b.I("s_branch", "LAYER")
    final()
    if M.PROFILE:
        b.wait(vm=0); stamp(b, "ff2_end"); stamp(b, "end"); M.stamp_flush(b, 20)
    b.label("MAIN_END")
```
